```python
import torch

def _softmax(x, axis=-1):
    return torch.softmax(x, dim=axis)
def _gelu(x):
    return torch.nn.functional.gelu(x, approximate="tanh")
def _silu(x):
    return torch.nn.functional.silu(x)
def _sigmoid(x):
    return torch.sigmoid(x)
def _layernorm(x, axis=-1, eps=1e-5):
    m = x.mean(dim=axis, keepdim=True)
    v = x.var(dim=axis, keepdim=True, unbiased=False)
    return (x - m) / torch.sqrt(v + eps)
def _scatter_add(tgt, idx, src, axis=0):
    return tgt.clone().index_add_(axis, idx, src)
def _segment_sum(src, seg, n):
    out = torch.zeros((n,) + src.shape[1:], dtype=src.dtype)
    return out.index_add_(0, seg, src)
def _pad(x, pw):
    flat = tuple(v for pair in reversed(pw) for v in pair)
    return torch.nn.functional.pad(x, flat)

kernel_name = 'parallel_sum__sliding_block__moe_arch_mod__prompt'

def setup_inputs():

    _w = (lambda a: (lambda t: t.to(torch.bfloat16) if t.is_floating_point() else t)(torch.as_tensor(a)))
    def _A_setup():
        B, S, D = 1, 2048, 512
        return {
            "x": _w((lambda *s: torch.randn(*s, dtype=torch.bfloat16) * 0.05)(B, S, D)),
            "wqkv": _w((lambda *s: torch.randn(*s, dtype=torch.bfloat16) * 0.05)(D, 3 * D)),
            "wo": _w((lambda *s: torch.randn(*s, dtype=torch.bfloat16) * 0.1)(D, D)),
        }
    _A_in = _A_setup()

    def _B_setup():
        B, S, D, F, C = 1, 2048, 512, 1792, 8
        return {
            "x": _w((lambda *s: torch.randn(*s, dtype=torch.bfloat16) * 0.05)(B, S, D)),
            "w_r": _w((lambda *s: torch.randn(*s, dtype=torch.bfloat16) * 0.05)(D)),
            "w_gate": _w((lambda *s: torch.randn(*s, dtype=torch.bfloat16) * 0.05)(D, F)),
            "w_up": _w((lambda *s: torch.randn(*s, dtype=torch.bfloat16) * 0.05)(D, F)),
            "w_down": _w((lambda *s: torch.randn(*s, dtype=torch.bfloat16) * 0.05)(F, D)),
        }
    _B_in = _B_setup()

    return {
        "A_x": _A_in["x"],
        "A_wqkv": _A_in["wqkv"],
        "A_wo": _A_in["wo"],
        "B_x": _B_in["x"],
        "B_w_r": _B_in["w_r"],
        "B_w_gate": _B_in["w_gate"],
        "B_w_up": _B_in["w_up"],
        "B_w_down": _B_in["w_down"],
    }

def reference(A_x, A_wqkv, A_wo, B_x, B_w_r, B_w_gate, B_w_up, B_w_down):
    def _A_ref(x, wqkv, wo):
        B, S, D = x.shape
        H = 32; Dh = D // H; W = 256
        qkv = (lambda x, *d: x.permute(*d))((x @ wqkv).reshape(B, S, 3, H, Dh), 2, 0, 3, 1, 4)
        q, k, v = qkv[0], qkv[1], qkv[2]
        scores = torch.einsum("bhqd,bhkd->bhqk", q, k) * (Dh ** -0.5)
        idx = torch.arange(S)
        mask = (idx[:, None] - idx[None, :] >= 0) & (idx[:, None] - idx[None, :] < W)
        scores = torch.where(mask[None, None], scores, -1e9)
        p = _softmax(scores, axis=-1)
        o = torch.einsum("bhqk,bhkd->bhqd", p, v)
        return (lambda x, *d: x.permute(*d))(o, 0, 2, 1, 3).reshape(B, S, D) @ wo

    def _B_ref(x, w_r, w_gate, w_up, w_down):
        B, S, D = x.shape
        C = 8
        r = x @ w_r
        idx = torch.argsort(-r, axis=-1)[:, :C]
        idx_e = (lambda x, n, axis: torch.repeat_interleave(x, n, dim=axis))(idx.reshape(B, C, 1), D, axis=2)
        x_sel = (lambda x, i, axis: torch.take_along_dim(x, i, dim=axis))(x, idx_e, axis=1)
        g = _silu(x_sel @ w_gate)
        u = x_sel @ w_up
        y = (g * u) @ w_down
        r_sel = _sigmoid((lambda x, i, axis: torch.take_along_dim(x, i, dim=axis))(r, idx, axis=1))
        y = y * r_sel.reshape(B, C, 1)
        b_off = (torch.arange(B) * S).reshape(B, 1)
        flat_idx = (idx + b_off).reshape(B * C)
        zero = (x * 0.0).reshape(B * S, D)
        upd = _scatter_add(zero, flat_idx, y.reshape(B * C, D), axis=0)
        return x + upd.reshape(B, S, D)

    x = A_x
    xn = _layernorm(x, axis=-1)
    return x + _A_ref(xn, A_wqkv, A_wo) + _B_ref(xn, B_w_r, B_w_gate, B_w_up, B_w_down)
```

```python
class Asm:
    def __init__(self):
        self.L = []
    def __call__(self, s=""):
        for line in s.split("\n"):
            self.L.append(line)
    def label(self, n):
        self.L.append(n + ":")
    def c(self, s):
        self.L.append("; " + s)
    def text(self):
        return "\n".join(self.L) + "\n"

def v(i, n=1):
    return "v%d" % i if n == 1 else "v[%d:%d]" % (i, i + n - 1)
def s(i, n=1):
    return "s%d" % i if n == 1 else "s[%d:%d]" % (i, i + n - 1)

def srd(a, dst, base, nbytes):
    a("s_mov_b32 s%d, s%d" % (dst, base))
    a("s_mov_b32 s%d, s%d" % (dst + 1, base + 1))
    a("s_mov_b32 s%d, 0x%x" % (dst + 2, nbytes))
    a("s_mov_b32 s%d, 0x20000" % (dst + 3))

def kernel_head(name):
    return ".globl %s\n.p2align 8\n.type %s,@function\n%s:\n" % (name, name, name)

def kernel_desc(name, nvgpr, nsgpr=102, accum=None):
    if accum is None:
        accum = (nvgpr + 3) // 4 * 4
    return (".amdhsa_kernel %s\n  .amdhsa_next_free_vgpr %d\n  .amdhsa_next_free_sgpr %d\n  .amdhsa_accum_offset %d\n"
            "  .amdhsa_group_segment_fixed_size 0\n  .amdhsa_kernarg_size 88\n  .amdhsa_user_sgpr_count 2\n"
            "  .amdhsa_user_sgpr_kernarg_segment_ptr 1\n  .amdhsa_system_sgpr_workgroup_id_x 1\n"
            "  .amdhsa_float_denorm_mode_32 3\n"
            ".end_amdhsa_kernel\n") % (name, nvgpr, nsgpr, accum)

def bf16r(a, dst, src, tmp=None):
    a("v_cvt_pk_bf16_f32 %s, %s, %s" % (dst, src, src))
    a("v_and_b32 %s, 0xffff0000, %s" % (dst, dst))
```

```python
from dsl import *

WS_QF = 0x000000
WS_KF = 0x200000
WS_VF = 0x400000
WS_OF = 0x600000
WS_STATS = 0x800000
WS_RKEY = 0x804000
WS_SEL = 0x806000
WS_PART = 0x810000
WS_SIZE = 0x900000

QSCALE = 0.25 * 1.4426950408889634

def fhex(x):
    import struct
    return "0x%08x" % struct.unpack("<I", struct.pack("<f", x))[0]

K1_LDS_TBL = 131072
K1_LDS_STAT = K1_LDS_TBL + 2048
K1_LDS_CS = K1_LDS_STAT + 768
K1_LDS_BC = K1_LDS_CS + 768
K1_LDS = K1_LDS_BC + 1024

def gen_k1():
    a = Asm()
    N = "k1_kernel"
    a(kernel_head(N))
    vLane = 1
    vXr = [4, 5, 6, 7]
    vWrE, vWrO, vTb = 8, 9, 10
    vXa, vXb, vWa, vWb = 11, 12, 13, 14
    accQ, accK, accV = 16, 32, 48
    csQ, csK, csV = 64, 68, 72
    Dsr, Dsq = 76, 80
    SEL = 84
    XF = [88, 92]
    WF = [[96, 100, 104], [108, 112, 116]]
    TF = 120
    sX, sW, sWR, sWS = 8, 12, 16, 20
    sRb, sCg, sWave, sMt, sNs, sPi = 28, 29, 30, 31, 32, 33
    sXg, sWg, sSlot, sC, sWx = 34, 35, 36, 37, 38
    sM1, sM2, sM3, sM16 = 40, 42, 44, 46
    sT0, sT1 = 48, 49
    a("s_cmp_ge_u32 s2, 256")
    a("s_cbranch_scc1 L_k1_end")
    a("s_load_dwordx4 s[4:7], s[0:1], 0")
    a("s_load_dwordx2 s[24:25], s[0:1], 32")
    a("s_load_dwordx2 s[26:27], s[0:1], 80")
    a("s_and_b32 s%d, s2, 7" % sT0)
    a("s_lshr_b32 s%d, s2, 3" % sT1)
    a("s_lshr_b32 s%d, s%d, 1" % (sRb, sT0))
    a("s_lshl_b32 s%d, s%d, 3" % (sRb, sRb))
    a("s_and_b32 s%d, s%d, 7" % (sCg, sT1))
    a("s_add_u32 s%d, s%d, s%d" % (sRb, sRb, sCg))
    a("s_and_b32 s%d, s%d, 1" % (sCg, sT0))
    a("s_lshl_b32 s%d, s%d, 2" % (sCg, sCg))
    a("s_lshr_b32 s%d, s%d, 3" % (sT1, sT1))
    a("s_add_u32 s%d, s%d, s%d" % (sCg, sCg, sT1))
    a("v_lshrrev_b32 v2, 6, v0")
    a("v_and_b32 v%d, 63, v0" % vLane)
    a("v_readfirstlane_b32 s%d, v2" % sWave)
    a("v_lshrrev_b32 v2, 3, v%d" % vLane)
    a("v_and_b32 v3, 7, v%d" % vLane)
    a("v_lshrrev_b32 v15, 1, v2")
    a("v_xor_b32 v%d, v3, v15" % vXa)
    a("v_xor_b32 v%d, 4, v%d" % (vXb, vXa))
    a("v_lshlrev_b32 v%d, 4, v%d" % (vXa, vXa))
    a("v_lshlrev_b32 v%d, 4, v%d" % (vXb, vXb))
    a("v_lshl_add_u32 v%d, v2, 10, v%d" % (vXa, vXa))
    a("v_lshl_add_u32 v%d, v2, 10, v%d" % (vXb, vXb))
    a("v_add_u32 v%d, 0x2000, v%d" % (vXb, vXb))
    a("v_and_b32 v15, 1, v15")
    a("v_lshlrev_b32 v15, 2, v15")
    a("v_xor_b32 v15, v3, v15")
    a("v_lshlrev_b32 v15, 4, v15")
    a("v_mul_u32_u24 v%d, 0xc00, v2" % vWa)
    a("v_add_u32 v%d, v%d, v15" % (vWa, vWa))
    a("v_add_u32 v%d, 0x6000, v%d" % (vWb, vWa))
    a("s_and_b32 s%d, s%d, 1" % (sMt, sWave))
    a("s_lshr_b32 s%d, s%d, 1" % (sNs, sWave))
    a("s_xor_b32 s%d, s%d, s%d" % (sPi, sMt, sNs))
    a("s_lshl_b32 s%d, s%d, 11" % (sWx, sWave))
    a("s_lshl_b32 s%d, s%d, 16" % (sXg, sRb))
    a("s_lshl_b32 s%d, s%d, 14" % (sT0, sWave))
    a("s_add_u32 s%d, s%d, s%d" % (sXg, sXg, sT0))
    a("s_mul_i32 s%d, s%d, %d" % (sWg, sWave, 16 * 3072))
    a("s_lshl_b32 s%d, s%d, 7" % (sT0, sCg))
    a("s_add_u32 s%d, s%d, s%d" % (sWg, sWg, sT0))
    a("v_lshlrev_b32 v2, 4, v%d" % vLane)
    a("s_waitcnt lgkmcnt(0)")
    srd(a, sX, 4, 2048 * 1024)
    srd(a, sW, 6, 512 * 3072)
    srd(a, sWR, 24, 1024)
    srd(a, sWS, 26, WS_SIZE)
    a("buffer_load_dwordx4 v[%d:%d], v2, s[%d:%d], 0 offen" % (TF, TF + 3, sWR, sWR + 3))

    def dma_chunk():
        a("s_add_u32 m0, s%d, s%d" % (sSlot, sWx))
        a("s_nop 0")
        a("buffer_load_dwordx4 v%d, s[%d:%d], s%d offen lds" % (vXa, sX, sX + 3, sXg))
        a("s_add_u32 m0, m0, 1024")
        a("s_nop 0")
        a("buffer_load_dwordx4 v%d, s[%d:%d], s%d offen lds" % (vXb, sX, sX + 3, sXg))
        inc = 7168
        for seg in range(3):
            for half in range(2):
                a("s_add_u32 m0, m0, %d" % inc)
                a("s_nop 0")
                off = (" offset:%d" % (seg * 1024)) if seg else ""
                a("buffer_load_dwordx4 v%d, s[%d:%d], s%d offen%s lds" % (vWa if half == 0 else vWb, sW, sW + 3, sWg, off))
                inc = 1024 if half == 0 else 6144
        a("s_add_u32 s%d, s%d, 128" % (sXg, sXg))
        a("s_add_u32 s%d, s%d, %d" % (sWg, sWg, 64 * 3072))

    for c in range(4):
        a("s_mov_b32 s%d, %d" % (sSlot, c * 32768))
        dma_chunk()

    a("v_and_b32 v2, 31, v%d" % vLane)
    a("v_lshrrev_b32 v3, 5, v%d" % vLane)
    a("v_lshrrev_b32 v15, 1, v2")
    a("v_and_b32 v15, 7, v15")
    a("s_lshl_b32 s%d, s%d, 12" % (sT0, sMt))
    a("v_lshl_add_u32 v124, v2, 7, s%d" % sT0)
    for p in range(4):
        a("s_xor_b32 s%d, s%d, %d" % (sT1, sPi, p))
        a("s_lshl_b32 s%d, s%d, 1" % (sT1, sT1))
        a("v_add_u32 v125, s%d, v3" % sT1)
        a("v_xor_b32 v125, v125, v15")
        a("v_lshl_add_u32 v%d, v125, 4, v124" % vXr[p])
    a("v_lshrrev_b32 v125, 4, v%d" % vLane)
    a("v_and_b32 v126, 1, v125")
    a("v_bfe_u32 v127, v%d, 2, 2" % vLane)
    a("v_and_b32 v128, 3, v%d" % vLane)
    a("v_lshl_add_u32 v129, v3, 3, v127")
    a("v_lshlrev_b32 v129, 7, v129")
    a("v_lshrrev_b32 v127, 1, v127")
    a("v_xor_b32 v127, s%d, v127" % sNs)
    a("v_lshl_add_u32 v129, v127, 6, v129")
    a("v_lshl_add_u32 v129, v126, 5, v129")
    a("v_lshl_add_u32 v129, v128, 3, v129")
    a("v_add_u32 v129, 0x2000, v129")
    a("s_lshl_b32 s%d, s%d, 11" % (sT0, sPi))
    a("v_add_u32 v%d, s%d, v129" % (vWrE, sT0))
    a("v_subrev_u32 v%d, s%d, v129" % (vWrO, sT0))
    a("v_and_b32 v125, 3, v%d" % vLane)
    a("v_cmp_eq_u32 s[%d:%d], 1, v125" % (sM1, sM1 + 1))
    a("v_cmp_eq_u32 s[%d:%d], 2, v125" % (sM2, sM2 + 1))
    a("v_cmp_eq_u32 s[%d:%d], 3, v125" % (sM3, sM3 + 1))
    a("s_xor_b32 s%d, s%d, 1" % (sT0, sPi))
    a("s_lshl_b32 s%d, s%d, 6" % (sT0, sT0))
    a("s_add_u32 s%d, s%d, %d" % (sT0, sT0, K1_LDS_TBL))
    a("v_lshl_add_u32 v%d, v3, 5, s%d" % (vTb, sT0))
    a("v_cndmask_b32 v125, 0, 16, s[%d:%d]" % (sM1, sM1 + 1))
    a("v_add_u32 v%d, v%d, v125" % (vTb, vTb))
    a("v_bfe_u32 v125, v%d, 4, 1" % vLane)
    a("v_and_b32 v126, 1, v%d" % vLane)
    a("v_cmp_eq_u32 vcc, v125, v126")
    a("v_cmp_eq_u32 s[%d:%d], 1, v125" % (sM16, sM16 + 1))
    a("v_mov_b32 v127, 0x3f803f80")
    a("v_cndmask_b32 v%d, 0, v127, vcc" % SEL)
    for i in range(1, 4):
        a("v_mov_b32 v%d, v%d" % (SEL + i, SEL))
    for r in range(accQ, Dsq + 4):
        a("v_mov_b32 v%d, 0" % r)
    a("v_lshlrev_b32 v128, 4, v%d" % vLane)
    a("v_add_u32 v128, %d, v128" % K1_LDS_STAT)
    a("v_mov_b32 v132, 0"); a("v_mov_b32 v133, 0"); a("v_mov_b32 v134, 0"); a("v_mov_b32 v135, 0")
    a("ds_write_b128 v128, v[132:135]")
    a("v_lshlrev_b32 v130, 3, v%d" % vLane)
    a("v_add_u32 v130, %d, v130" % (K1_LDS_STAT + 1024))
    a("ds_write_b64 v130, v[132:133]")
    a("v_lshlrev_b32 v128, 5, v%d" % vLane)
    a("v_add_u32 v128, %d, v128" % K1_LDS_TBL)
    for i in range(4):
        a("v_mov_b32 v%d, v127" % (132 + i))
    a("ds_write_b128 v128, v[132:135]")
    a("s_waitcnt vmcnt(32)")
    a("ds_write_b128 v128, v[%d:%d] offset:16" % (TF, TF + 3))
    a("v_lshlrev_b32 v136, 16, v%d" % TF)
    a("v_and_b32 v137, 0xffff0000, v%d" % TF)
    a("v_add_f32 v136, v136, v137")
    for i in range(1, 4):
        a("v_lshlrev_b32 v137, 16, v%d" % (TF + i))
        a("v_and_b32 v138, 0xffff0000, v%d" % (TF + i))
        a("v_add_f32 v136, v136, v137")
        a("v_add_f32 v136, v136, v138")
    for dp in ["quad_perm:[1,0,3,2]", "quad_perm:[2,3,0,1]", "row_half_mirror", "row_mirror"]:
        a("s_nop 1")
        a("v_add_f32_dpp v136, v136, v136 %s row_mask:0xf bank_mask:0xf" % dp)
    a("v_mov_b32 v137, v136"); a("s_nop 1")
    a("v_permlane16_swap_b32 v136, v137"); a("s_nop 1")
    a("v_add_f32 v136, v136, v137")
    a("v_mov_b32 v137, v136"); a("s_nop 1")
    a("v_permlane32_swap_b32 v136, v137"); a("s_nop 1")
    a("v_add_f32 v136, v136, v137")
    vCsr = 136

    def reads(p, buf, wbase):
        a("ds_read_b128 %s, v%d" % (v(XF[buf], 4), vXr[p]))
        for seg in range(3):
            for t in range(2):
                a("ds_read_b64_tr_b16 %s, v%d offset:%d" % (v(WF[buf][seg] + 2 * t, 2), wbase, seg * 8192 + p * 2048 + t * 512))
    def treads(p):
        a("ds_read_b128 %s, v%d offset:%d" % (v(TF, 4), vTb, 0 if p == 1 else 128))
    def mfma_main(buf, which):
        x = v(XF[buf], 4)
        if which == 0: a("v_mfma_f32_32x32x16_bf16 %s, %s, %s, %s" % (v(accQ, 16), v(WF[buf][0], 4), x, v(accQ, 16)))
        if which == 1: a("v_mfma_f32_32x32x16_bf16 %s, %s, %s, %s" % (v(accK, 16), v(WF[buf][1], 4), x, v(accK, 16)))
        if which == 2: a("v_mfma_f32_32x32x16_bf16 %s, %s, %s, %s" % (v(accV, 16), x, v(WF[buf][2], 4), v(accV, 16)))
    def mfma_even(buf):
        for i, cs in enumerate([csQ, csK, csV]):
            mfma_main(buf, i)
            a("v_mfma_f32_16x16x32_bf16 %s, %s, %s, %s" % (v(cs, 4), v(SEL, 4), v(WF[buf][i], 4), v(cs, 4)))
    def mfma_odd(buf):
        x = XF[buf]
        a("v_mfma_f32_4x4x4_16b_bf16 %s, %s, %s, %s" % (v(Dsr, 4), v(TF, 2), v(x, 2), v(Dsr, 4)))
        a("v_mfma_f32_4x4x4_16b_bf16 %s, %s, %s, %s" % (v(Dsq, 4), v(x, 2), v(x, 2), v(Dsq, 4)))
        mfma_main(buf, 0)
        a("v_mfma_f32_4x4x4_16b_bf16 %s, %s, %s, %s" % (v(Dsr, 4), v(TF + 2, 2), v(x + 2, 2), v(Dsr, 4)))
        a("v_mfma_f32_4x4x4_16b_bf16 %s, %s, %s, %s" % (v(Dsq, 4), v(x + 2, 2), v(x + 2, 2), v(Dsq, 4)))
        mfma_main(buf, 1)
        mfma_main(buf, 2)

    a("s_waitcnt vmcnt(24) lgkmcnt(0)")
    a("s_barrier")
    reads(0, 0, vWrE)
    a("s_mov_b32 s%d, 0" % sC)
    a("s_mov_b32 s%d, 0" % sSlot)
    a.label("L_k1_loop")
    reads(1, 1, vWrO); treads(1)
    a("s_waitcnt lgkmcnt(8)")
    mfma_even(0)
    reads(2, 0, vWrE)
    a("s_waitcnt lgkmcnt(7)")
    mfma_odd(1)
    reads(3, 1, vWrO); treads(3)
    a("s_waitcnt lgkmcnt(8)")
    mfma_even(0)
    a("s_cmp_eq_u32 s%d, 7" % sC)
    a("s_cbranch_scc1 L_k1_last")
    a("s_cmp_ge_u32 s%d, 5" % sC)
    a("s_cbranch_scc1 L_k1_w5")
    a("s_waitcnt vmcnt(16) lgkmcnt(0)")
    a("s_barrier")
    a("s_cmp_ge_u32 s%d, 4" % sC)
    a("s_cbranch_scc1 L_k1_nodma")
    dma_chunk()
    a("s_branch L_k1_nodma")
    a.label("L_k1_w5")
    a("s_cmp_eq_u32 s%d, 5" % sC)
    a("s_cbranch_scc0 L_k1_w6")
    a("s_waitcnt vmcnt(8) lgkmcnt(0)")
    a("s_barrier")
    a("s_branch L_k1_nodma")
    a.label("L_k1_w6")
    a("s_waitcnt vmcnt(0) lgkmcnt(0)")
    a("s_barrier")
    a.label("L_k1_nodma")
    for r in vXr + [vWrE, vWrO]:
        a("v_add_u32 v%d, 0x8000, v%d" % (r, r))
        a("v_and_b32 v%d, 0x1ffff, v%d" % (r, r))
    a("v_add_u32 v%d, 0x100, v%d" % (vTb, vTb))
    a("s_add_u32 s%d, s%d, 0x8000" % (sSlot, sSlot))
    a("s_and_b32 s%d, s%d, 0x1ffff" % (sSlot, sSlot))
    reads(0, 0, vWrE)
    mfma_odd(1)
    a("s_add_u32 s%d, s%d, 1" % (sC, sC))
    a("s_branch L_k1_loop")
    a.label("L_k1_last")
    a("s_waitcnt lgkmcnt(0)")
    mfma_odd(1)

    tS, tR, tQ = 88, 89, 90
    a("s_nop 4")
    a("v_cndmask_b32 v%d, v%d, v%d, s[%d:%d]" % (tQ, Dsq, Dsq + 1, sM1, sM1 + 1))
    a("v_cndmask_b32 v%d, v%d, v%d, s[%d:%d]" % (tQ, tQ, Dsq + 2, sM2, sM2 + 1))
    a("v_cndmask_b32 v%d, v%d, v%d, s[%d:%d]" % (tQ, tQ, Dsq + 3, sM3, sM3 + 1))
    a("v_mov_b32 v%d, v%d" % (tS, Dsr))
    a("v_mov_b32 v%d, v%d" % (tR, Dsr + 1))
    a("v_mov_b32 v91, v%d" % tQ)
    a("s_nop 1")
    a("v_permlane32_swap_b32 v%d, v%d" % (tS, Dsr))
    a("v_permlane32_swap_b32 v%d, v%d" % (tR, Dsr + 1))
    a("v_permlane32_swap_b32 v91, v%d" % tQ)
    a("v_cndmask_b32 v92, v%d, v%d, s[%d:%d]" % (csQ, csQ + 1, sM16, sM16 + 1))
    a("v_cndmask_b32 v93, v%d, v%d, s[%d:%d]" % (csK, csK + 1, sM16, sM16 + 1))
    a("v_cndmask_b32 v94, v%d, v%d, s[%d:%d]" % (csV, csV + 1, sM16, sM16 + 1))
    a("v_add_f32 v%d, v%d, v%d" % (tS, tS, Dsr))
    a("v_add_f32 v%d, v%d, v%d" % (tR, tR, Dsr + 1))
    a("v_add_f32 v%d, v%d, v91" % (tQ, tQ))
    a("v_and_b32 v2, 31, v%d" % vLane)
    a("v_lshlrev_b32 v2, 2, v2")
    a("s_mul_i32 s%d, s%d, 384" % (sT0, sMt))
    a("s_add_u32 s%d, s%d, %d" % (sT0, sT0, K1_LDS_STAT))
    a("v_add_u32 v95, s%d, v2" % sT0)
    a("s_mul_i32 s%d, s%d, 384" % (sT0, sNs))
    a("s_add_u32 s%d, s%d, %d" % (sT0, sT0, K1_LDS_CS))
    a("v_add_u32 v96, s%d, v2" % sT0)
    a("v_lshrrev_b32 v3, 5, v%d" % vLane)
    a("v_lshl_add_u32 v97, v3, 4, s%d" % sT0)
    a("s_mov_b32 exec_hi, 0")
    a("ds_add_f32 v95, v%d" % tS)
    a("ds_add_f32 v95, v%d offset:128" % tR)
    a("ds_add_f32 v95, v%d offset:256" % tQ)
    a("ds_add_f32 v96, v92")
    a("ds_add_f32 v96, v93 offset:128")
    a("ds_add_f32 v96, v94 offset:256")
    a("s_mov_b64 exec, -1")
    a("s_lshl_b32 s%d, s%d, 8" % (sT0, sWave))
    a("s_add_u32 s%d, s%d, %d" % (sT0, sT0, K1_LDS_BC))
    a("v_add_u32 v98, s%d, v2" % sT0)
    a("v_lshl_add_u32 v99, v3, 4, s%d" % sT0)
    a("s_waitcnt lgkmcnt(0)")
    a("s_barrier")
    a("ds_read_b32 v%d, v95" % tS)
    a("ds_read_b32 v%d, v95 offset:128" % tR)
    a("ds_read_b32 v%d, v95 offset:256" % tQ)
    a("ds_read_b32 v94, v96 offset:256")
    cQ, cK, mT, rT = 140, 156, 172, 188
    for j in range(4):
        a("ds_read_b128 %s, v97 offset:%d" % (v(cQ + 4 * j, 4), j * 32))
    for j in range(4):
        a("ds_read_b128 %s, v97 offset:%d" % (v(cK + 4 * j, 4), 128 + j * 32))
    a("s_waitcnt lgkmcnt(9)")
    vM, vRs, vRq = 100, 102, 104
    a("v_mul_f32 v106, %s, v%d" % (fhex(1.0 / 512), tS))
    a("v_mul_f32 v107, %s, v%d" % (fhex(1.0 / 512), tQ))
    a("v_fma_f32 v107, -v106, v106, v107")
    a("v_max_f32 v107, 0, v107")
    bf16r(a, "v%d" % vM, "v106")
    bf16r(a, "v107", "v107")
    a("v_add_f32 v107, %s, v107" % fhex(1e-5))
    bf16r(a, "v107", "v107")
    a("v_sqrt_f32 v107, v107")
    a("s_nop 0")
    bf16r(a, "v107", "v107")
    a("v_rcp_f32 v%d, v107" % vRs)
    a("s_nop 0")
    a("ds_write_b32 v98, v%d" % vM)
    a("ds_write_b32 v98, v%d offset:128" % vRs)
    a("v_mul_f32 v%d, %s, v%d" % (vRq, fhex(QSCALE), vRs))
    for j in range(4):
        a("ds_read_b128 %s, v99 offset:%d" % (v(mT + 4 * j, 4), j * 32))
    for j in range(4):
        a("ds_read_b128 %s, v99 offset:%d" % (v(rT + 4 * j, 4), 128 + j * 32))
    sQa, sQb = 50, 51
    a("s_lshl_b32 s%d, s%d, 2" % (sT0, sCg))
    a("s_lshl_b32 s%d, s%d, 1" % (sT1, sNs))
    a("s_add_u32 s%d, s%d, s%d" % (sT0, sT0, sT1))
    a("s_lshl_b32 s%d, s%d, 16" % (sT0, sT0))
    a("s_lshl_b32 s%d, s%d, 1" % (sT1, sRb))
    a("s_add_u32 s%d, s%d, s%d" % (sT1, sT1, sMt))
    a("s_lshl_b32 s52, s%d, 10" % sT1)
    a("s_add_u32 s%d, s%d, s52" % (sQa, sT0))
    a("s_add_u32 s%d, s%d, 0x10000" % (sQb, sQa))
    a("v_lshlrev_b32 v108, 4, v%d" % vLane)
    def qk_tile(acc, cs, vr, base):
        for i in range(8):
            a("v_pk_fma_f32 %s, %s, %s, %s op_sel_hi:[1,0,1] neg_lo:[0,1,0] neg_hi:[0,1,0]" % (v(acc + 2 * i, 2), v(cs + 2 * i, 2), v(vM, 2), v(acc + 2 * i, 2)))
        for i in range(8):
            a("v_pk_mul_f32 %s, %s, %s op_sel_hi:[1,0]" % (v(acc + 2 * i, 2), v(acc + 2 * i, 2), v(vr, 2)))
        for i in range(8):
            a("v_cvt_pk_bf16_f32 v%d, v%d, v%d" % (cs + i, acc + 2 * i, acc + 2 * i + 1))
        a("s_add_u32 s53, s%d, 0x%x" % (sQa, base))
        a("s_add_u32 s54, s%d, 0x%x" % (sQb, base))
        a("buffer_store_dwordx4 %s, v108, s[%d:%d], s53 offen" % (v(cs, 4), sWS, sWS + 3))
        a("buffer_store_dwordx4 %s, v108, s[%d:%d], s54 offen" % (v(cs + 4, 4), sWS, sWS + 3))
    a("s_waitcnt lgkmcnt(10)")
    qk_tile(accQ, cQ, vRq, WS_QF)
    qk_tile(accK, cK, vRs, WS_KF)
    a("v_bfe_u32 v109, v%d, 4, 1" % vLane)
    a("v_lshlrev_b32 v109, 16, v109")
    a("v_lshl_add_u32 v109, v3, 8, v109")
    a("v_and_b32 v110, 15, v%d" % vLane)
    a("v_lshl_add_u32 v109, v110, 4, v109")
    a("s_waitcnt lgkmcnt(0)")
    for i in range(8):
        a("v_pk_fma_f32 %s, %s, %s, %s op_sel_hi:[1,0,1] neg_lo:[0,1,0] neg_hi:[0,1,0]" % (v(accV + 2 * i, 2), v(mT + 2 * i, 2), v(94, 2), v(accV + 2 * i, 2)))
    for i in range(8):
        a("v_pk_mul_f32 %s, %s, %s" % (v(accV + 2 * i, 2), v(accV + 2 * i, 2), v(rT + 2 * i, 2)))
    for i in range(8):
        a("v_cvt_pk_bf16_f32 v%d, v%d, v%d" % (mT + i, accV + 2 * i, accV + 2 * i + 1))
    a("s_add_u32 s53, s%d, 0x%x" % (sQa, WS_VF))
    a("buffer_store_dwordx4 %s, v109, s[%d:%d], s53 offen" % (v(mT, 4), sWS, sWS + 3))
    a("buffer_store_dwordx4 %s, v109, s[%d:%d], s53 offen offset:512" % (v(mT + 4, 4), sWS, sWS + 3))
    a("s_or_b32 s%d, s%d, s%d" % (sT0, sCg, sNs))
    a("s_cmp_lg_u32 s%d, 0" % sT0)
    a("s_cbranch_scc1 L_k1_end")
    a("v_fma_f32 v110, -v%d, v%d, v%d" % (vM, vCsr, tR))
    a("v_mul_f32 v110, v110, v%d" % vRs)
    a("v_cvt_pk_bf16_f32 v110, v110, v110")
    a("v_and_b32 v110, 0xffff, v110")
    a("v_cmp_gt_u32 vcc, 0x8000, v110")
    a("v_xor_b32 v111, 0x8000, v110")
    a("v_xor_b32 v112, 0xffff, v110")
    a("s_nop 0")
    a("v_cndmask_b32 v110, v112, v111, vcc")
    a("v_and_b32 v111, 31, v%d" % vLane)
    a("s_lshl_b32 s%d, s%d, 5" % (sT1, sT1))
    a("v_add_u32 v111, s%d, v111" % sT1)
    a("v_sub_u32 v112, 0xffff, v111")
    a("v_lshl_or_b32 v110, v110, 16, v112")
    a("v_mov_b32 v%d, v%d" % (vM + 1, vRs))
    a("v_lshlrev_b32 v112, 3, v111")
    a("v_lshlrev_b32 v113, 2, v111")
    a("s_mov_b32 exec_hi, 0")
    a("s_mov_b32 s53, 0x%x" % WS_STATS)
    a("s_mov_b32 s54, 0x%x" % WS_RKEY)
    a("buffer_store_dwordx2 %s, v112, s[%d:%d], s53 offen" % (v(vM, 2), sWS, sWS + 3))
    a("buffer_store_dword v110, v113, s[%d:%d], s54 offen" % (sWS, sWS + 3))
    a.label("L_k1_end")
    a("s_endpgm")
    return a.text(), 204
```

```python
from dsl import *
from k1 import *

NSLICE = 56
K2_GRID = 256 + NSLICE
M_XS = 65536
M_CAND = M_XS + 8 * 1040
M_GU = M_CAND + 256
M_HS = M_GU + 4096
K2_LDS = M_HS + 512
NEGBIG = 0xf149f2ca
LOG2E = 1.4426950408889634

def gen_attn(a):
    vLane = 1
    vK, vV, mx0, mx1, vT0, vT1, vZ, vOff = 2, 3, 4, 5, 6, 7, 8, 9
    SA, SB, CB, O, P, mA = 16, 32, 48, 64, 80, 88
    KF, VF, V0F, QF = 96, 100, 108, 116
    sWS = 8
    sH, sQb, sW, sT, sBase, sTs, sN = 20, 21, 22, 23, 24, 25, 26
    sT0, sT1 = 27, 28
    sVM = 30
    sCond = 40
    a("s_and_b32 s%d, s2, 7" % sH)
    a("s_bfe_u32 s%d, s2, 0x20003" % sT0)
    a("s_lshl_b32 s%d, s%d, 3" % (sT0, sT0))
    a("s_add_u32 s%d, s%d, s%d" % (sH, sH, sT0))
    a("s_lshr_b32 s%d, s2, 5" % sQb)
    a("v_lshrrev_b32 v2, 6, v0")
    a("v_and_b32 v%d, 63, v0" % vLane)
    a("v_readfirstlane_b32 s%d, v2" % sW)
    a("v_lshlrev_b32 v%d, 4, v%d" % (vOff, vLane))
    a("s_lshl_b32 s%d, s%d, 3" % (sT, sQb))
    a("s_add_u32 s%d, s%d, s%d" % (sT, sT, sW))
    a("s_lshl_b32 s%d, s%d, 6" % (sBase, sH))
    a("s_add_u32 s%d, s%d, s%d" % (sBase, sBase, sT))
    a("s_lshl_b32 s%d, s%d, 10" % (sBase, sBase))
    a("s_lshl_b32 s%d, s%d, 10" % (sT1, sW))
    a("s_waitcnt lgkmcnt(0)")
    srd(a, sWS, 6, WS_SIZE)
    a("s_add_u32 s%d, s%d, 0x%x" % (sT0, sBase, WS_KF))
    a("s_add_u32 m0, s%d, 8192" % sT1)
    a("s_nop 0")
    a("buffer_load_dwordx4 v%d, s[%d:%d], s%d offen lds" % (vOff, sWS, sWS + 3, sT0))
    a("s_add_u32 s%d, s%d, 0x%x" % (sT0, sBase, WS_QF))
    a("buffer_load_dwordx4 %s, v%d, s[%d:%d], s%d offen" % (v(QF, 4), vOff, sWS, sWS + 3, sT0))
    a("s_cmp_eq_u32 s%d, 0" % sQb)
    a("s_cbranch_scc1 L_at_noprev")
    a("s_add_u32 s%d, s%d, 0x%x" % (sT0, sBase, WS_KF - 8192))
    a("s_mov_b32 m0, s%d" % sT1)
    a("s_nop 0")
    a("buffer_load_dwordx4 v%d, s[%d:%d], s%d offen lds" % (vOff, sWS, sWS + 3, sT0))
    a("s_add_u32 s%d, s%d, 0x%x" % (sT0, sBase, WS_VF - 8192))
    a("s_add_u32 m0, s%d, 16384" % sT1)
    a("s_nop 0")
    a("buffer_load_dwordx4 v%d, s[%d:%d], s%d offen lds" % (vOff, sWS, sWS + 3, sT0))
    a.label("L_at_noprev")
    a("s_add_u32 s%d, s%d, 0x%x" % (sT0, sBase, WS_VF))
    a("s_add_u32 m0, s%d, %d" % (sT1, 16384 + 8192))
    a("s_nop 0")
    a("buffer_load_dwordx4 v%d, s[%d:%d], s%d offen lds" % (vOff, sWS, sWS + 3, sT0))
    a("v_and_b32 v%d, 31, v%d" % (vT0, vLane))
    a("v_lshrrev_b32 v%d, 5, v%d" % (vT1, vLane))
    a("v_lshlrev_b32 v%d, 2, v%d" % (vZ, vT1))
    a("v_sub_u32 v%d, v%d, v%d" % (vZ, vT0, vZ))
    for r in range(16):
        a("v_cmp_gt_i32 s[%d:%d], %d, v%d" % (sCond + 2 * r, sCond + 2 * r + 1, 8 * (r >> 2) + (r & 3), vZ))
    a("v_mov_b32 v10, 0xffff")
    a("v_mov_b32 v11, 0xffff0000")
    for j in range(8):
        a("v_cndmask_b32 v%d, 0, v10, s[%d:%d]" % (mA + j, sCond + 4 * j, sCond + 4 * j + 1))
        a("v_cndmask_b32 v12, 0, v11, s[%d:%d]" % (sCond + 4 * j + 2, sCond + 4 * j + 3))
        a("v_or_b32 v%d, v%d, v12" % (mA + j, mA + j))
    a("v_mov_b32 v10, 0x3f803f80")
    for r in range(16):
        a("v_mov_b32 v%d, v10" % (VF + r))
    for r in range(16):
        a("v_mov_b32 v%d, 0" % (O + r))
    a("s_mov_b32 s%d, 0xffff" % sVM)
    a("s_mov_b32 s%d, 0xffff" % (sVM + 1))
    a("s_sub_u32 s%d, 8, s%d" % (sTs, sW))
    a("s_cmp_eq_u32 s%d, 0" % sQb)
    a("s_cselect_b32 s%d, s%d, 1" % (sTs, sTs))
    a("v_add_u32 v%d, s%d, v%d" % (vK, sT1, vOff))
    a("v_and_b32 v%d, 15, v%d" % (vV, vLane))
    a("v_lshlrev_b32 v%d, 4, v%d" % (vV, vV))
    a("v_lshl_add_u32 v%d, v%d, 8, v%d" % (vV, vT1, vV))
    a("s_add_u32 s%d, s%d, 16384" % (sT0, sT1))
    a("v_add_u32 v%d, s%d, v%d" % (vV, sT0, vV))
    a("s_lshl_b32 s%d, s%d, 10" % (sT0, sTs))
    a("v_add_u32 v13, s%d, v%d" % (sT0, vK))
    a("v_add_u32 v14, s%d, v%d" % (sT0, vV))
    a("v_mov_b32 v%d, 0x%x" % (mx0, NEGBIG))
    a("v_mov_b32 v%d, 0x%x" % (mx1, NEGBIG))
    a("s_waitcnt vmcnt(0)")
    a("s_barrier")

    def mfma_s(dst, c):
        a("v_mfma_f32_32x32x16_bf16 %s, %s, %s, %s" % (v(dst, 16), v(KF, 4), v(QF, 4), c))
    def vread(dst, addr):
        a("s_mov_b64 exec, s[%d:%d]" % (sVM, sVM + 1))
        a("ds_read_b128 %s, v%d" % (v(dst, 4), addr))
        a("ds_read_b128 %s, v%d offset:512" % (v(dst + 4, 4), addr))
        a("s_mov_b64 exec, -1")
    def maxes():
        for i in range(8):
            m = mx0 if i % 2 == 0 else mx1
            a("v_max3_f32 v%d, v%d, v%d, v%d" % (m, m, SB + 2 * i, SB + 2 * i + 1))
    def sel():
        for r in range(16):
            a("v_cndmask_b32 v%d, v%d, v%d, s[%d:%d]" % (SB + r, SB + r, SA + r, sCond + 2 * r, sCond + 2 * r + 1))
    def exps():
        for r in range(16):
            a("v_exp_f32 v%d, v%d" % (SB + r, SB + r))
        for j in range(8):
            a("v_cvt_pk_bf16_f32 v%d, v%d, v%d" % (P + j, SB + 2 * j, SB + 2 * j + 1))
    def pv(vf, p):
        a("v_mfma_f32_32x32x16_bf16 %s, %s, %s, %s" % (v(O, 16), v(vf, 4), v(p, 4), v(O, 16)))
        a("v_mfma_f32_32x32x16_bf16 %s, %s, %s, %s" % (v(O, 16), v(vf + 4, 4), v(p + 4, 4), v(O, 16)))

    a("s_cmp_eq_u32 s%d, 0" % sQb)
    a("s_cbranch_scc1 L_at_p1_no0")
    a("ds_read_b128 %s, v%d" % (v(KF, 4), vK))
    vread(V0F, vV)
    a("s_waitcnt lgkmcnt(2)")
    mfma_s(SA, "0")
    a("s_branch L_at_p1_go")
    a.label("L_at_p1_no0")
    for r in range(16):
        a("v_mov_b32 v%d, 0x%x" % (SA + r, NEGBIG))
    a.label("L_at_p1_go")
    a("v_mov_b32 v15, v13")
    a("ds_read_b128 %s, v15" % v(KF, 4))
    a("s_sub_u32 s%d, 8, s%d" % (sN, sTs))
    a("s_cmp_eq_u32 s%d, 0" % sN)
    a("s_cbranch_scc1 L_at_p1_fin")
    a.label("L_at_p1_loop")
    a("s_waitcnt lgkmcnt(0)")
    mfma_s(SB, "0")
    a("v_add_u32 v15, 0x400, v15")
    a("ds_read_b128 %s, v15" % v(KF, 4))
    a("s_sub_u32 s%d, s%d, 1" % (sN, sN))
    a("s_nop 8")
    maxes()
    a("s_cmp_lg_u32 s%d, 0" % sN)
    a("s_cbranch_scc1 L_at_p1_loop")
    a.label("L_at_p1_fin")
    a("s_waitcnt lgkmcnt(0)")
    mfma_s(SB, "0")
    a("s_cmp_eq_u32 s%d, 0" % sQb)
    a("s_cselect_b32 s%d, s%d, 0" % (sT1, sT0))
    a("v_add_u32 v15, s%d, v%d" % (sT1, vK))
    a("ds_read_b128 %s, v15" % v(KF, 4))
    a("s_nop 7")
    sel()
    maxes()
    a("v_max_f32 v%d, v%d, v%d" % (mx0, mx0, mx1))
    a("v_mov_b32 v%d, v%d" % (mx1, mx0))
    a("s_nop 1")
    a("v_permlane32_swap_b32 v%d, v%d" % (mx0, mx1))
    a("s_nop 0")
    a("v_max_f32 v%d, v%d, v%d" % (mx0, mx0, mx1))
    for r in range(16):
        a("v_sub_f32 v%d, 0, v%d" % (CB + r, mx0))
    a("s_cmp_eq_u32 s%d, 0" % sQb)
    a("s_cbranch_scc1 L_at_p2_go")
    a("s_waitcnt lgkmcnt(0)")
    mfma_s(SA, v(CB, 16))
    a("ds_read_b128 %s, v13" % v(KF, 4))
    a.label("L_at_p2_go")
    a("s_sub_u32 s%d, 8, s%d" % (sN, sTs))
    a("s_cmp_eq_u32 s%d, 0" % sN)
    a("s_cbranch_scc1 L_at_p2_fin")
    a.label("L_at_p2_loop")
    vread(VF, 14)
    a("s_waitcnt lgkmcnt(2)")
    mfma_s(SB, v(CB, 16))
    a("v_add_u32 v13, 0x400, v13")
    a("v_add_u32 v14, 0x400, v14")
    a("ds_read_b128 %s, v13" % v(KF, 4))
    a("s_sub_u32 s%d, s%d, 1" % (sN, sN))
    a("s_nop 7")
    exps()
    a("s_waitcnt lgkmcnt(1)")
    pv(VF, P)
    a("s_cmp_lg_u32 s%d, 0" % sN)
    a("s_cbranch_scc1 L_at_p2_loop")
    a.label("L_at_p2_fin")
    vread(VF, 14)
    a("s_waitcnt lgkmcnt(2)")
    mfma_s(SB, v(CB, 16))
    a("s_nop 11")
    sel()
    exps()
    for j in range(8):
        a("v_and_b32 v%d, v%d, v%d" % (SA + j, P + j, mA + j))
    for j in range(8):
        a("v_xor_b32 v%d, v%d, v%d" % (P + j, P + j, SA + j))
    a("s_waitcnt lgkmcnt(0)")
    a("s_nop 0")
    pv(VF, P)
    a("s_cmp_eq_u32 s%d, 0" % sQb)
    a("s_cbranch_scc1 L_at_fin")
    pv(V0F, SA)
    a.label("L_at_fin")
    a("s_lshl_b32 s%d, s%d, 5" % (sT0, sT))
    a("s_add_u32 s%d, s%d, s%d" % (sT0, sT0, sH))
    a("s_lshl_b32 s%d, s%d, 10" % (sT0, sT0))
    a("s_add_u32 s%d, s%d, 0x%x" % (sT0, sT0, WS_OF))
    a("s_nop 7")
    a("v_rcp_f32 v10, v%d" % (O + 8))
    a("s_nop 0")
    for r in range(8):
        a("v_mul_f32 v%d, v%d, v10" % (O + r, O + r))
    for j in range(4):
        a("v_cvt_pk_bf16_f32 v%d, v%d, v%d" % (P + j, O + 2 * j, O + 2 * j + 1))
    a("buffer_store_dwordx4 %s, v%d, s[%d:%d], s%d offen" % (v(P, 4), vOff, sWS, sWS + 3, sT0))
    a("s_endpgm")

def wave_max_u32(a, t):
    for dp in ["quad_perm:[1,0,3,2] row_mask:0xf", "quad_perm:[2,3,0,1] row_mask:0xf", "row_half_mirror row_mask:0xf", "row_mirror row_mask:0xf",
               "row_bcast:15 row_mask:0xa", "row_bcast:31 row_mask:0xc"]:
        a("s_nop 1")
        a("v_max_u32_dpp v%d, v%d, v%d %s bank_mask:0xf" % (t, t, t, dp))

def gen_moe(a):
    vLane = 1
    k0, k1, k2, k3 = 16, 17, 18, 19
    vRes, vT = 20, 21
    WR = 32
    WF = 48
    sWS, sX, sWm, sWd = 8, 12, 16, 20
    sW, sSl, sT0, sT1, sI, sVal, sTok = 24, 25, 26, 27, 28, 29, 30
    a("s_sub_u32 s%d, s2, 256" % sT0)
    a("s_and_b32 s%d, s%d, 7" % (sSl, sT0))
    a("s_lshr_b32 s%d, s%d, 4" % (sT1, sT0))
    a("s_lshl_b32 s%d, s%d, 3" % (sT1, sT1))
    a("s_add_u32 s%d, s%d, s%d" % (sSl, sSl, sT1))
    a("s_lshl_b32 s%d, s%d, 1" % (sSl, sSl))
    a("s_bfe_u32 s%d, s%d, 0x10003" % (sT1, sT0))
    a("s_add_u32 s%d, s%d, s%d" % (sSl, sSl, sT1))
    a("s_cmp_ge_u32 s%d, 48" % sT0)
    a("s_cselect_b32 s%d, s%d, s%d" % (sSl, sT0, sSl))
    a("v_lshrrev_b32 v2, 6, v0")
    a("v_and_b32 v%d, 63, v0" % vLane)
    a("v_readfirstlane_b32 s%d, v2" % sW)
    a("v_lshlrev_b32 v3, 4, v0")
    a("s_load_dwordx2 s[32:33], s[0:1], 0")
    a("s_load_dwordx4 s[36:39], s[0:1], 40")
    a("s_load_dwordx2 s[40:41], s[0:1], 56")
    a("s_waitcnt lgkmcnt(0)")
    srd(a, sWS, 6, WS_SIZE)
    a("s_mov_b32 s%d, 0x%x" % (sT0, WS_RKEY))
    a("buffer_load_dwordx4 v[%d:%d], v3, s[%d:%d], s%d offen" % (k0, k3, sWS, sWS + 3, sT0))
    srd(a, sX, 32, 2048 * 1024)
    srd(a, sWd, 40, 1792 * 1024)
    a("s_and_b32 s%d, s%d, 1" % (sT0, sW))
    a("s_cmp_eq_u32 s%d, 0" % sT0)
    a("s_cselect_b32 s%d, s36, s38" % sWm)
    a("s_cselect_b32 s%d, s37, s39" % (sWm + 1))
    a("s_mov_b32 s%d, 0x%x" % (sWm + 2, 512 * 3584))
    a("s_mov_b32 s%d, 0x20000" % (sWm + 3))
    a("v_lshrrev_b32 v4, 2, v%d" % vLane)
    a("v_and_b32 v5, 3, v%d" % vLane)
    a("v_bfe_u32 v6, v%d, 5, 1" % vLane)
    a("v_lshlrev_b32 v6, 1, v6")
    a("v_xor_b32 v5, v5, v6")
    a("v_mul_u32_u24 v4, 0xe00, v4")
    a("v_lshl_add_u32 v4, v5, 4, v4")
    a("s_lshr_b32 s%d, s%d, 1" % (sT1, sW))
    a("s_mul_i32 s42, s%d, %d" % (sT1, 8 * 16 * 3584))
    a("s_lshl_b32 s43, s%d, 6" % sSl)
    a("s_add_u32 s42, s42, s43")
    a("s_lshl_b32 s43, s%d, 15" % sT0)
    a("s_lshl_b32 s44, s%d, 13" % sT1)
    a("s_add_u32 s43, s43, s44")
    for q in range(8):
        a("s_add_u32 m0, s43, %d" % (q * 1024))
        a("s_add_u32 s44, s42, %d" % (q * 16 * 3584))
        a("buffer_load_dwordx4 v4, s[%d:%d], s44 offen lds" % (sWm, sWm + 3))
    a("v_lshrrev_b32 v5, 4, v%d" % vLane)
    a("v_and_b32 v6, 15, v%d" % vLane)
    a("v_lshlrev_b32 v5, 13, v5")
    a("v_lshl_add_u32 v5, v6, 3, v5")
    a("s_lshl_b32 s44, s%d, 15" % sSl)
    a("s_lshl_b32 s45, s%d, 7" % sW)
    a("s_add_u32 s44, s44, s45")
    a("v_add_u32 v5, s44, v5")
    for e in range(8):
        if e < 4:
            a("buffer_load_dwordx2 %s, v5, s[%d:%d], 0 offen offset:%d" % (v(WR + 2 * e, 2), sWd, sWd + 3, e * 1024))
        else:
            if e == 4:
                a("s_movk_i32 s45, 0x1000")
            a("buffer_load_dwordx2 %s, v5, s[%d:%d], s45 offen offset:%d" % (v(WR + 2 * e, 2), sWd, sWd + 3, (e - 4) * 1024))
    a("s_waitcnt vmcnt(16)")
    def ce(x, y):
        a("v_max_u32 v%d, v%d, v%d" % (vT, x, y))
        a("v_min_u32 v%d, v%d, v%d" % (y, x, y))
        a("v_mov_b32 v%d, v%d" % (x, vT))
    ce(k0, k1); ce(k2, k3); ce(k0, k2); ce(k1, k3); ce(k1, k2)
    a("v_mov_b32 v%d, 0" % vRes)
    a("s_mov_b32 s%d, 0" % sI)
    a.label("L_moe_t1")
    a("v_mov_b32 v%d, v%d" % (vT, k0))
    wave_max_u32(a, vT)
    a("s_nop 0")
    a("v_readlane_b32 s%d, v%d, 63" % (sVal, vT))
    a("s_mov_b32 m0, s%d" % sI)
    a("s_nop 0")
    a("v_cmp_eq_u32 vcc, s%d, v%d" % (sVal, k0))
    a("v_writelane_b32 v%d, s%d, m0" % (vRes, sVal))
    a("s_add_u32 s%d, s%d, 1" % (sI, sI))
    a("v_cndmask_b32 v%d, v%d, v%d, vcc" % (k0, k0, k1))
    a("v_cndmask_b32 v%d, v%d, v%d, vcc" % (k1, k1, k2))
    a("v_cndmask_b32 v%d, v%d, v%d, vcc" % (k2, k2, k3))
    a("v_cndmask_b32 v%d, v%d, 0, vcc" % (k3, k3))
    a("s_cmp_lt_u32 s%d, 8" % sI)
    a("s_cbranch_scc1 L_moe_t1")
    a("s_lshl_b32 s%d, s%d, 5" % (sT0, sW))
    a("s_add_u32 s%d, s%d, %d" % (sT0, sT0, M_CAND))
    a("v_lshl_add_u32 v6, v%d, 2, s%d" % (vLane, sT0))
    a("s_mov_b32 exec_lo, 0xff")
    a("s_mov_b32 exec_hi, 0")
    a("ds_write_b32 v6, v%d" % vRes)
    a("s_mov_b64 exec, -1")
    a("v_lshlrev_b32 v6, 2, v%d" % vLane)
    a("v_add_u32 v6, %d, v6" % M_CAND)
    a("s_waitcnt lgkmcnt(0)")
    a("s_barrier")
    a("ds_read_b32 v%d, v6" % k0)
    a("v_mov_b32 v%d, 0" % vRes)
    a("s_mov_b32 s%d, 0" % sI)
    a("s_waitcnt lgkmcnt(0)")
    a.label("L_moe_t2")
    a("v_mov_b32 v%d, v%d" % (vT, k0))
    wave_max_u32(a, vT)
    a("s_nop 0")
    a("v_readlane_b32 s%d, v%d, 63" % (sVal, vT))
    a("s_mov_b32 m0, s%d" % sI)
    a("s_nop 0")
    a("v_cmp_eq_u32 vcc, s%d, v%d" % (sVal, k0))
    a("v_writelane_b32 v%d, s%d, m0" % (vRes, sVal))
    a("s_add_u32 s%d, s%d, 1" % (sI, sI))
    a("v_cndmask_b32 v%d, v%d, 0, vcc" % (k0, k0))
    a("s_cmp_lt_u32 s%d, 8" % sI)
    a("s_cbranch_scc1 L_moe_t2")
    a("s_nop 1")
    a("v_readlane_b32 s%d, v%d, s%d" % (sTok, vRes, sW))
    a("s_nop 3")
    a("s_and_b32 s%d, s%d, 0xffff" % (sTok, sTok))
    a("s_sub_u32 s%d, 0xffff, s%d" % (sTok, sTok))
    a("s_lshl_b32 s%d, s%d, 10" % (sT0, sTok))
    a("v_lshlrev_b32 v6, 4, v%d" % vLane)
    a("buffer_load_dwordx4 v[24:27], v6, s[%d:%d], s%d offen" % (sX, sX + 3, sT0))
    a("s_lshl_b32 s%d, s%d, 3" % (sT1, sTok))
    a("s_add_u32 s%d, s%d, 0x%x" % (sT1, sT1, WS_STATS))
    a("v_mov_b32 v7, 0")
    a("buffer_load_dwordx2 v[22:23], v7, s[%d:%d], s%d offen" % (sWS, sWS + 3, sT1))
    a("s_or_b32 s%d, s%d, s%d" % (sT0, sSl, sW))
    a("s_cmp_lg_u32 s%d, 0" % sT0)
    a("s_cbranch_scc1 L_moe_nosel")
    a("v_and_b32 v8, 0xffff, v%d" % vRes)
    a("v_sub_u32 v8, 0xffff, v8")
    a("v_lshrrev_b32 v9, 16, v%d" % vRes)
    a("v_cmp_le_u32 vcc, 0x8000, v9")
    a("v_xor_b32 v10, 0x8000, v9")
    a("v_xor_b32 v11, 0xffff, v9")
    a("v_cndmask_b32 v9, v11, v10, vcc")
    a("v_lshlrev_b32 v9, 16, v9")
    a("v_mul_f32 v9, %s, v9" % fhex(-LOG2E))
    a("v_exp_f32 v9, v9")
    a("s_nop 0")
    a("v_add_f32 v9, 1.0, v9")
    a("v_rcp_f32 v9, v9")
    a("s_nop 0")
    bf16r(a, "v9", "v9")
    a("v_lshlrev_b32 v10, 2, v%d" % vLane)
    a("s_mov_b32 s%d, 0x%x" % (sT0, WS_SEL))
    a("s_mov_b32 exec_lo, 0xff")
    a("s_mov_b32 exec_hi, 0")
    a("buffer_store_dword v8, v10, s[%d:%d], s%d offen" % (sWS, sWS + 3, sT0))
    a("buffer_store_dword v9, v10, s[%d:%d], s%d offen offset:32" % (sWS, sWS + 3, sT0))
    a("s_mov_b64 exec, -1")
    a("s_waitcnt vmcnt(2)")
    a("s_branch L_moe_sel")
    a.label("L_moe_nosel")
    a("s_waitcnt vmcnt(0)")
    a.label("L_moe_sel")
    a("s_mov_b32 s44, 0x05040100")
    a("s_mov_b32 s45, 0x07060302")
    for jj in range(4):
        for p in range(4):
            a("v_perm_b32 v%d, v%d, v%d, s%d" % (WF + 4 * jj + p, WR + 2 * (2 * p + 1) + (jj >> 1), WR + 2 * (2 * p) + (jj >> 1), 44 + (jj & 1)))
    for i in range(4):
        a("v_lshlrev_b32 v%d, 16, v%d" % (64 + 2 * i, 24 + i))
        a("v_and_b32 v%d, 0xffff0000, v%d" % (65 + 2 * i, 24 + i))
    for i in range(8):
        a("v_sub_f32 v%d, v%d, v22" % (64 + i, 64 + i))
    for i in range(4):
        a("v_cvt_pk_bf16_f32 v%d, v%d, v%d" % (24 + i, 64 + 2 * i, 65 + 2 * i))
    for i in range(4):
        a("v_lshlrev_b32 v%d, 16, v%d" % (64 + 2 * i, 24 + i))
        a("v_and_b32 v%d, 0xffff0000, v%d" % (65 + 2 * i, 24 + i))
    for i in range(8):
        a("v_mul_f32 v%d, v%d, v23" % (64 + i, 64 + i))
    for i in range(4):
        a("v_cvt_pk_bf16_f32 v%d, v%d, v%d" % (24 + i, 64 + 2 * i, 65 + 2 * i))
    a("s_mul_i32 s%d, s%d, 1040" % (sT0, sW))
    a("s_add_u32 s%d, s%d, %d" % (sT0, sT0, M_XS))
    a("v_add_u32 v6, s%d, v6" % sT0)
    a("ds_write_b128 v6, v[24:27]")
    a("v_lshrrev_b32 v8, 4, v%d" % vLane)
    a("v_bfe_u32 v9, v%d, 2, 2" % vLane)
    a("v_and_b32 v10, 3, v%d" % vLane)
    a("v_lshl_add_u32 v9, v8, 3, v9")
    a("v_lshlrev_b32 v9, 6, v9")
    a("v_lshl_add_u32 v9, v10, 3, v9")
    a("s_bfe_u32 s%d, s%d, 0x10001" % (sI, sW))
    a("v_and_b32 v10, 1, v8")
    a("v_xor_b32 v10, s%d, v10" % sI)
    a("v_lshl_add_u32 v9, v10, 5, v9")
    a("s_and_b32 s%d, s%d, 1" % (sT0, sW))
    a("s_lshr_b32 s%d, s%d, 2" % (sT1, sW))
    a("s_lshl_b32 s44, s%d, 15" % sT0)
    a("s_lshl_b32 s45, s%d, 14" % sT1)
    a("s_add_u32 s44, s44, s45")
    a("v_add_u32 v9, s44, v9")
    a("v_and_b32 v10, 7, v%d" % vLane)
    a("v_mul_u32_u24 v10, 1040, v10")
    a("v_lshl_add_u32 v10, v8, 4, v10")
    a("s_lshl_b32 s45, s%d, 9" % sT1)
    a("s_add_u32 s45, s45, %d" % M_XS)
    a("v_add_u32 v10, s45, v10")
    a("s_lshl_b32 s44, s%d, 1" % sT1)
    a("s_add_u32 s44, s44, s%d" % sT0)
    a("s_lshl_b32 s44, s44, 10")
    a("s_lshl_b32 s45, s%d, 6" % sI)
    a("s_add_u32 s44, s44, s45")
    a("s_add_u32 s44, s44, %d" % M_GU)
    a("v_and_b32 v11, 15, v%d" % vLane)
    a("v_lshlrev_b32 v11, 7, v11")
    a("v_lshl_add_u32 v11, v8, 4, v11")
    a("v_add_u32 v11, s44, v11")
    for r in range(4):
        a("v_mov_b32 v%d, 0" % (28 + r))
    a("s_waitcnt lgkmcnt(0)")
    a("s_barrier")
    FA, FB = 64, 96
    def gu_reads(ks):
        a("ds_read_b64_tr_b16 %s, v9 offset:%d" % (v(FA + 4 * ks, 2), ks * 2048))
        a("ds_read_b64_tr_b16 %s, v9 offset:%d" % (v(FA + 4 * ks + 2, 2), ks * 2048 + 256))
        a("ds_read_b128 %s, v10 offset:%d" % (v(FB + 4 * ks, 4), ks * 64))
    for ks in range(4):
        gu_reads(ks)
    for ks in range(8):
        if ks + 4 < 8:
            a("s_waitcnt lgkmcnt(9)")
        else:
            a("s_waitcnt lgkmcnt(%d)" % (3 * (7 - ks)))
        a("v_mfma_f32_16x16x32_bf16 v[28:31], %s, %s, v[28:31]" % (v(FA + 4 * ks, 4), v(FB + 4 * ks, 4)))
        if ks + 4 < 8:
            gu_reads(ks + 4)
    a("s_mov_b32 exec_lo, 0x00ff00ff")
    a("s_mov_b32 exec_hi, 0x00ff00ff")
    a("s_nop 7")
    a("ds_write_b128 v11, v[28:31]")
    a("s_mov_b64 exec, -1")
    a("s_waitcnt lgkmcnt(0)")
    a("s_barrier")
    a("s_cmp_ge_u32 s%d, 4" % sW)
    a("s_cbranch_scc1 L_moe_hdone")
    a("v_lshlrev_b32 v8, 2, v0")
    a("v_add_u32 v8, %d, v8" % M_GU)
    a("ds_read_b32 v12, v8")
    a("ds_read_b32 v13, v8 offset:2048")
    a("ds_read_b32 v14, v8 offset:1024")
    a("ds_read_b32 v15, v8 offset:3072")
    a("v_lshlrev_b32 v8, 1, v0")
    a("v_add_u32 v8, %d, v8" % M_HS)
    a("s_waitcnt lgkmcnt(0)")
    a("v_add_f32 v12, v12, v13")
    a("v_add_f32 v14, v14, v15")
    bf16r(a, "v12", "v12")
    bf16r(a, "v14", "v14")
    a("v_mul_f32 v13, %s, v12" % fhex(-LOG2E))
    a("v_exp_f32 v13, v13")
    a("s_nop 0")
    a("v_add_f32 v13, 1.0, v13")
    a("v_rcp_f32 v13, v13")
    a("s_nop 0")
    a("v_mul_f32 v12, v12, v13")
    bf16r(a, "v12", "v12")
    a("v_mul_f32 v12, v12, v14")
    a("v_cvt_pk_bf16_f32 v12, v12, v12")
    a("ds_write_b16 v8, v12")
    a("s_waitcnt lgkmcnt(0)")
    a.label("L_moe_hdone")
    a("s_barrier")
    a("v_and_b32 v8, 7, v%d" % vLane)
    a("v_lshrrev_b32 v9, 4, v%d" % vLane)
    a("v_lshlrev_b32 v8, 6, v8")
    a("v_lshl_add_u32 v8, v9, 4, v8")
    a("v_add_u32 v8, %d, v8" % M_HS)
    a("ds_read_b128 v[64:67], v8")
    a("v_and_b32 v10, 15, v%d" % vLane)
    a("v_lshlrev_b32 v10, 11, v10")
    a("v_lshl_add_u32 v10, v9, 6, v10")
    a("s_lshl_b32 s44, s%d, 14" % sSl)
    a("s_lshl_b32 s45, s%d, 8" % sW)
    a("s_add_u32 s44, s44, s45")
    a("s_add_u32 s44, s44, 0x%x" % WS_PART)
    a("s_waitcnt lgkmcnt(0)")
    for jj in range(4):
        a("v_mfma_f32_16x16x32_bf16 %s, %s, v[64:67], 0" % (v(68 + 4 * jj, 4), v(WF + 4 * jj, 4)))
    a("s_mov_b32 exec_lo, 0x00ff00ff")
    a("s_mov_b32 exec_hi, 0x00ff00ff")
    a("s_nop 7")
    for jj in range(4):
        a("buffer_store_dwordx4 %s, v10, s[%d:%d], s44 offen offset:%d" % (v(68 + 4 * jj, 4), sWS, sWS + 3, jj * 16))
    a("s_endpgm")

def gen_k2():
    a = Asm()
    N = "k2_kernel"
    a(kernel_head(N))
    a("s_cmp_ge_u32 s2, %d" % K2_GRID)
    a("s_cbranch_scc1 L_k2_end")
    a("s_load_dwordx2 s[6:7], s[0:1], 80")
    a("s_cmp_ge_u32 s2, 256")
    a("s_cbranch_scc1 L_moe")
    gen_attn(a)
    a.label("L_moe")
    gen_moe(a)
    a.label("L_k2_end")
    a("s_endpgm")
    return a.text(), 128
```

```python
from dsl import *
from k1 import *
from k2 import NSLICE

K3_Y = 131072
K3_LDS = K3_Y + 512

def gen_k3():
    a = Asm()
    N = "k3_kernel"
    a(kernel_head(N))
    vLane = 1
    vOa, vWa, vOr, vWr, vXo = 4, 5, 6, 7, 8
    acc = 16
    XR = 32
    base = 40
    FB, FA = 64, 96
    sWS, sX, sWo, sOut = 8, 12, 16, 20
    sRb, sCb, sW, sMt, sNt, sT0, sT1, sPh, sTile = 28, 29, 30, 31, 32, 33, 34, 35, 36
    sIdx, sSig = 40, 48
    a("s_cmp_ge_u32 s2, 256")
    a("s_cbranch_scc1 L_k3_end")
    a("s_load_dwordx2 s[4:5], s[0:1], 0")
    a("s_load_dwordx2 s[6:7], s[0:1], 16")
    a("s_load_dwordx4 s[24:27], s[0:1], 64")
    a("s_load_dwordx2 s[38:39], s[0:1], 80")
    a("s_and_b32 s%d, s2, 7" % sT0)
    a("s_lshr_b32 s%d, s2, 3" % sT1)
    a("s_lshr_b32 s%d, s%d, 1" % (sRb, sT0))
    a("s_lshl_b32 s%d, s%d, 3" % (sRb, sRb))
    a("s_and_b32 s%d, s%d, 7" % (sCb, sT1))
    a("s_add_u32 s%d, s%d, s%d" % (sRb, sRb, sCb))
    a("s_and_b32 s%d, s%d, 1" % (sCb, sT0))
    a("s_lshl_b32 s%d, s%d, 2" % (sCb, sCb))
    a("s_lshr_b32 s%d, s%d, 3" % (sT1, sT1))
    a("s_add_u32 s%d, s%d, s%d" % (sCb, sCb, sT1))
    a("v_lshrrev_b32 v2, 6, v0")
    a("v_and_b32 v%d, 63, v0" % vLane)
    a("v_readfirstlane_b32 s%d, v2" % sW)
    a("v_lshlrev_b32 v%d, 4, v%d" % (vOa, vLane))
    a("v_lshrrev_b32 v2, 3, v%d" % vLane)
    a("v_and_b32 v3, 7, v%d" % vLane)
    a("v_bfe_u32 v9, v%d, 4, 1" % vLane)
    a("v_lshlrev_b32 v9, 2, v9")
    a("v_xor_b32 v3, v3, v9")
    a("v_lshlrev_b32 v3, 4, v3")
    a("v_lshl_add_u32 v%d, v2, 10, v3" % vWa)
    a("s_and_b32 s%d, s%d, 1" % (sMt, sW))
    a("s_lshr_b32 s%d, s%d, 1" % (sNt, sW))
    a("s_lshl_b32 s%d, s%d, 1" % (sTile, sRb))
    a("s_add_u32 s%d, s%d, s%d" % (sTile, sTile, sMt))
    a("s_waitcnt lgkmcnt(0)")
    srd(a, sWS, 38, WS_SIZE)
    srd(a, sWo, 6, 512 * 1024)
    a("s_lshl_b32 s52, s%d, 15" % sTile)
    a("s_lshl_b32 s53, s%d, 12" % sNt)
    a("s_add_u32 s52, s52, s53")
    a("s_add_u32 s52, s52, 0x%x" % WS_OF)
    a("s_lshl_b32 s54, s%d, 15" % sMt)
    a("s_add_u32 s54, s54, s53")
    a("s_lshl_b32 s55, s%d, 15" % sW)
    a("s_lshl_b32 s53, s%d, 7" % sCb)
    a("s_add_u32 s55, s55, s53")
    a("s_lshl_b32 s56, s%d, 12" % sW)
    a("s_add_u32 s56, s56, 65536")
    for ph in range(4):
        for q in range(4):
            a("s_add_u32 m0, s54, %d" % (ph * 8192 + q * 1024))
            a("s_add_u32 s53, s52, %d" % (ph * 8192 + q * 1024))
            a("buffer_load_dwordx4 v%d, s[%d:%d], s53 offen lds" % (vOa, sWS, sWS + 3))
        for q in range(4):
            a("s_add_u32 m0, s56, %d" % (ph * 16384 + q * 1024))
            a("s_add_u32 s53, s55, %d" % (ph * 131072 + q * 8192))
            a("buffer_load_dwordx4 v%d, s[%d:%d], s53 offen lds" % (vWa, sWo, sWo + 3))
    srd(a, sX, 4, 2048 * 1024)
    srd(a, sOut, 24, 2048 * 1024)
    a("s_add_u32 s62, s38, 0x%x" % WS_SEL)
    a("s_addc_u32 s63, s39, 0")
    a("s_load_dwordx16 s[%d:%d], s[62:63], 0" % (sIdx, sIdx + 15))
    a("v_and_b32 v2, 31, v%d" % vLane)
    a("v_lshrrev_b32 v3, 5, v%d" % vLane)
    a("s_lshl_b32 s%d, s%d, 5" % (sT0, sTile))
    a("v_add_u32 v9, s%d, v2" % sT0)
    a("v_lshlrev_b32 v%d, 10, v9" % vXo)
    a("v_lshl_add_u32 v%d, v3, 4, v%d" % (vXo, vXo))
    a("s_lshl_b32 s%d, s%d, 7" % (sT0, sCb))
    a("s_lshl_b32 s%d, s%d, 6" % (sT1, sNt))
    a("s_add_u32 s%d, s%d, s%d" % (sT0, sT0, sT1))
    a("v_add_u32 v%d, s%d, v%d" % (vXo, sT0, vXo))
    a("buffer_load_dwordx4 %s, v%d, s[%d:%d], 0 offen" % (v(XR, 4), vXo, sX, sX + 3))
    a("buffer_load_dwordx4 %s, v%d, s[%d:%d], 0 offen offset:32" % (v(XR + 4, 4), vXo, sX, sX + 3))
    a("v_lshlrev_b32 v9, 3, v9")
    a("s_mov_b32 s%d, 0x%x" % (sT0, WS_STATS))
    a("buffer_load_dwordx2 v[10:11], v9, s[%d:%d], s%d offen" % (sWS, sWS + 3, sT0))
    a("s_lshl_b32 s%d, s%d, 15" % (sT0, sMt))
    a("v_add_u32 v%d, s%d, v%d" % (vOr, sT0, vOa))
    a("v_bfe_u32 v12, v%d, 2, 2" % vLane)
    a("v_lshl_add_u32 v13, v3, 2, v12")
    a("v_lshlrev_b32 v13, 7, v13")
    a("v_lshrrev_b32 v12, 1, v12")
    a("v_xor_b32 v12, s%d, v12" % sNt)
    a("v_lshl_add_u32 v13, v12, 6, v13")
    a("v_bfe_u32 v12, v%d, 4, 1" % vLane)
    a("v_lshl_add_u32 v13, v12, 5, v13")
    a("v_and_b32 v12, 3, v%d" % vLane)
    a("v_lshl_add_u32 v13, v12, 3, v13")
    a("v_add_u32 v%d, 0x10000, v13" % vWr)
    for r in range(16):
        a("v_mov_b32 v%d, 0" % (acc + r))
    def step_reads(ks, buf):
        a("ds_read_b128 %s, v%d offset:%d" % (v(FB + 4 * buf, 4), vOr, ks * 1024))
        a("ds_read_b64_tr_b16 %s, v%d offset:%d" % (v(FA + 4 * buf, 2), vWr, ks * 2048))
        a("ds_read_b64_tr_b16 %s, v%d offset:%d" % (v(FA + 4 * buf + 2, 2), vWr, ks * 2048 + 1024))
    a("s_mov_b32 s%d, 0" % sPh)
    a("s_waitcnt lgkmcnt(0)")
    a.label("L_k3_loop")
    a("s_cmp_eq_u32 s%d, 0" % sPh); a("s_cbranch_scc0 L_k3_w1")
    a("s_waitcnt vmcnt(27)"); a("s_branch L_k3_go")
    a.label("L_k3_w1")
    a("s_cmp_eq_u32 s%d, 1" % sPh); a("s_cbranch_scc0 L_k3_w2")
    a("s_waitcnt vmcnt(19)"); a("s_branch L_k3_go")
    a.label("L_k3_w2")
    a("s_cmp_eq_u32 s%d, 2" % sPh); a("s_cbranch_scc0 L_k3_w3")
    a("s_waitcnt vmcnt(11)"); a("s_branch L_k3_go")
    a.label("L_k3_w3")
    a("s_waitcnt vmcnt(3)")
    a.label("L_k3_go")
    a("s_barrier")
    for ks in range(4):
        step_reads(ks, ks)
    for ks in range(8):
        a("s_waitcnt lgkmcnt(%d)" % (9 if ks < 5 else 3 * (7 - ks)))
        a("v_mfma_f32_32x32x16_bf16 %s, %s, %s, %s" % (v(acc, 16), v(FA + 4 * ks, 4), v(FB + 4 * ks, 4), v(acc, 16)))
        if ks + 4 < 8:
            step_reads(ks + 4, ks + 4)
    a("v_add_u32 v%d, 0x2000, v%d" % (vOr, vOr))
    a("v_add_u32 v%d, 0x4000, v%d" % (vWr, vWr))
    a("s_add_u32 s%d, s%d, 1" % (sPh, sPh))
    a("s_cmp_lt_u32 s%d, 4" % sPh)
    a("s_cbranch_scc1 L_k3_loop")
    a("s_waitcnt vmcnt(0) lgkmcnt(0)")
    for i in range(8):
        a("v_lshlrev_b32 v%d, 16, v%d" % (base + 2 * i, XR + i))
        a("v_and_b32 v%d, 0xffff0000, v%d" % (base + 2 * i + 1, XR + i))
    for i in range(8):
        a("v_sub_f32 v%d, v%d, v10" % (64 + 2 * i, base + 2 * i))
        a("v_sub_f32 v%d, v%d, v10" % (65 + 2 * i, base + 2 * i + 1))
        a("v_cvt_pk_bf16_f32 v%d, v%d, v%d" % (XR + i, 64 + 2 * i, 65 + 2 * i))
    for i in range(8):
        a("v_lshlrev_b32 v%d, 16, v%d" % (64 + 2 * i, XR + i))
        a("v_and_b32 v%d, 0xffff0000, v%d" % (65 + 2 * i, XR + i))
        a("v_mul_f32 v%d, v%d, v11" % (64 + 2 * i, 64 + 2 * i))
        a("v_mul_f32 v%d, v%d, v11" % (65 + 2 * i, 65 + 2 * i))
        a("v_cvt_pk_bf16_f32 v%d, v%d, v%d" % (XR + i, 64 + 2 * i, 65 + 2 * i))
    for i in range(8):
        a("v_lshlrev_b32 v%d, 16, v%d" % (64 + 2 * i, XR + i))
        a("v_and_b32 v%d, 0xffff0000, v%d" % (65 + 2 * i, XR + i))
    XN = 64
    a("v_lshrrev_b32 v12, 3, v%d" % vLane)
    a("v_and_b32 v13, 7, v%d" % vLane)
    a("v_lshlrev_b32 v12, 14, v12")
    a("v_lshl_add_u32 v12, v13, 4, v12")
    a("s_lshl_b32 s%d, s%d, 8" % (sT0, sCb))
    a("s_lshl_b32 s%d, s%d, 7" % (sT1, sNt))
    a("s_add_u32 s%d, s%d, s%d" % (sT0, sT0, sT1))
    a("s_add_u32 s57, s%d, 0x%x" % (sT0, WS_PART))
    a("s_lshl_b32 s%d, s%d, 7" % (sT0, sW))
    a("s_add_u32 s%d, s%d, %d" % (sT0, sT0, K3_Y))
    a("v_lshrrev_b32 v14, 2, v13")
    a("v_lshlrev_b32 v14, 4, v14")
    a("v_and_b32 v15, 3, v13")
    a("v_add_u32 v14, v14, v15")
    a("v_lshl_add_u32 v14, v14, 2, s%d" % sT0)
    a("v_lshl_add_u32 v15, v3, 5, s%d" % sT0)
    for j in range(8):
        a("s_lshr_b32 s%d, s%d, 5" % (sT1, sIdx + j))
        a("s_cmp_eq_u32 s%d, s%d" % (sT1, sTile))
        a("s_cbranch_scc0 L_k3_m%d" % j)
        a("s_add_u32 s58, s57, %d" % (j * 2048))
        for q in range(7):
            a("buffer_load_dwordx4 %s, v12, s[%d:%d], s58 offen" % (v(96 + 4 * q, 4), sWS, sWS + 3))
            a("s_add_u32 s58, s58, 0x20000")
        a("s_waitcnt vmcnt(0)")
        for q in range(1, 7):
            for e in range(4):
                a("v_add_f32 v%d, v%d, v%d" % (96 + e, 96 + e, 96 + 4 * q + e))
        a("s_nop 1")
        for e in range(4):
            a("v_add_f32_dpp v%d, v%d, v%d row_ror:8 row_mask:0xf bank_mask:0xf" % (96 + e, 96 + e, 96 + e))
        for sw in ("v_permlane16_swap_b32", "v_permlane32_swap_b32"):
            for e in range(4):
                a("v_mov_b32 v%d, v%d" % (100 + e, 96 + e))
            a("s_nop 1")
            for e in range(4):
                a("%s v%d, v%d" % (sw, 96 + e, 100 + e))
            a("s_nop 0")
            for e in range(4):
                a("v_add_f32 v%d, v%d, v%d" % (96 + e, 96 + e, 100 + e))
        for e in range(4):
            bf16r(a, "v%d" % (96 + e), "v%d" % (96 + e))
            a("v_mul_f32 v%d, s%d, v%d" % (96 + e, sSig + j, 96 + e))
            bf16r(a, "v%d" % (96 + e), "v%d" % (96 + e))
        for e in range(4):
            a("ds_write_b32 v14, v%d offset:%d" % (96 + e, e * 16))
        a("ds_read_b128 v[100:103], v15")
        a("ds_read_b128 v[104:107], v15 offset:16")
        a("ds_read_b128 v[108:111], v15 offset:64")
        a("ds_read_b128 v[112:115], v15 offset:80")
        a("s_and_b32 s%d, s%d, 31" % (sT1, sIdx + j))
        a("v_cmp_eq_u32 vcc, s%d, v2" % sT1)
        a("s_waitcnt lgkmcnt(0)")
        a("s_and_saveexec_b64 s[60:61], vcc")
        for r in range(16):
            a("v_add_f32 v%d, v%d, v%d" % (XN + r, XN + r, 100 + r))
            bf16r(a, "v%d" % (XN + r), "v%d" % (XN + r))
        a("s_mov_b64 exec, s[60:61]")
        a.label("L_k3_m%d" % j)
    for i in range(8):
        a("v_pk_add_f32 %s, %s, %s" % (v(base + 2 * i, 2), v(base + 2 * i, 2), v(XN + 2 * i, 2)))
    a("s_nop 1")
    for r in range(4):
        a("v_permlane32_swap_b32 v%d, v%d" % (acc + r, acc + 4 + r))
        a("v_permlane32_swap_b32 v%d, v%d" % (acc + 8 + r, acc + 12 + r))
    for i in range(8):
        a("v_pk_add_f32 %s, %s, %s" % (v(base + 2 * i, 2), v(base + 2 * i, 2), v(acc + 2 * i, 2)))
    for i in range(8):
        a("v_cvt_pk_bf16_f32 v%d, v%d, v%d" % (XR + i, base + 2 * i, base + 2 * i + 1))
    a("buffer_store_dwordx4 %s, v%d, s[%d:%d], 0 offen" % (v(XR, 4), vXo, sOut, sOut + 3))
    a("buffer_store_dwordx4 %s, v%d, s[%d:%d], 0 offen offset:32" % (v(XR + 4, 4), vXo, sOut, sOut + 3))
    a.label("L_k3_end")
    a("s_endpgm")
    return a.text(), 128
```

```python
import sys
from dsl import *
import k1, k2, k3

HEADER = """; out = x + SlidingWindowAttention(LN(x)) @ wo + LN(x) + scatter(top-8 tokens: sigmoid(r) * SwiGLU(LN(x)))
"""
def build_text(extra_launches=""):
    t1, n1 = k1.gen_k1()
    t2, n2 = k2.gen_k2()
    t3, n3 = k3.gen_k3()
    out = HEADER
    out += "; @launch kernel=k1_kernel grid=(%d,1,1) block=(512,1,1) lds=%d\n" % (k1.K1_GRID, k1.K1_LDS)
    out += "; @launch kernel=k2_kernel grid=(%d,1,1) block=(1024,1,1) lds=%d\n" % (k2.K2_GRID, k2.K2_LDS)
    out += "; @launch kernel=k3_kernel grid=(256,1,1) block=(768,1,1) lds=%d\n" % k3.K3_LDS
    out += extra_launches
    out += '.amdgcn_target "amdgcn-amd-amdhsa--gfx950"\n.text\n'
    out += t1 + t2 + t3 + "L_code_end:\n"
    out += '.section .rodata,"a"\n'
    for n, c in (("k1_kernel", n1), ("k2_kernel", n2), ("k3_kernel", n3)):
        out += ".p2align 6\n" + kernel_desc(n, c)
    return out

if __name__ == "__main__":
    path = sys.argv[1] if len(sys.argv) > 1 else "parallel_sum__sliding_block__moe_arch_mod__prompt.s"
    open(path, "w").write(build_text())
    print("wrote", path)
```

```python
import gen, k1, k2, k3
from dsl import *
base = gen.build_text()
L1 = "; @launch kernel=k1_kernel grid=(256,1,1) block=(256,1,1) lds=%d\n" % k1.K1_LDS
L2 = "; @launch kernel=k2_kernel grid=(%d,1,1) block=(512,1,1) lds=%d\n" % (k2.K2_GRID, k2.K2_LDS)
L3 = "; @launch kernel=k3_kernel grid=(256,1,1) block=(256,1,1) lds=%d\n" % k3.K3_LDS
LE = "; @launch kernel=e_kernel grid=(1,1,1) block=(64,1,1) lds=0\n"
def with_launches(ls, empty=False):
    t = base.replace(L1 + L2 + L3, "".join(ls))
    if empty:
        t = t.replace('.section .rodata,"a"\n', kernel_head("e_kernel") + "s_endpgm\n" + '.section .rodata,"a"\n.p2align 6\n' + kernel_desc("e_kernel", 8), 1)
    return t
open("v1.s", "w").write(with_launches([L1, L2, L3, LE], True))
open("v2.s", "w").write(with_launches([L1, L2, L3, LE, LE, LE], True))
open("v3.s", "w").write(with_launches([L1, L1, L2, L3]))
open("v4.s", "w").write(with_launches([L1, L2, L2, L3]))
open("v5.s", "w").write(with_launches([L1, L2, L3, L3]))
open("v0.s", "w").write(base)
```

```python
class Asm:
    def __init__(self):
        self.L = []
    def __call__(self, s=""):
        for line in s.split("\n"):
            self.L.append(line)
    def label(self, n):
        self.L.append(n + ":")
    def c(self, s):
        self.L.append("; " + s)
    def text(self):
        return "\n".join(self.L) + "\n"

def v(i, n=1):
    return "v%d" % i if n == 1 else "v[%d:%d]" % (i, i + n - 1)
def s(i, n=1):
    return "s%d" % i if n == 1 else "s[%d:%d]" % (i, i + n - 1)

def srd(a, dst, base, nbytes):
    a("s_mov_b32 s%d, s%d" % (dst, base))
    a("s_mov_b32 s%d, s%d" % (dst + 1, base + 1))
    a("s_mov_b32 s%d, 0x%x" % (dst + 2, nbytes))
    a("s_mov_b32 s%d, 0x20000" % (dst + 3))

import os
WS_BASE = int(os.environ.get("WS_BASE", "0"), 0)
def ws_adjust(a, reg):
    if WS_BASE:
        a("s_add_u32 s%d, s%d, 0x%x" % (reg, reg, WS_BASE))
        a("s_addc_u32 s%d, s%d, 0" % (reg + 1, reg + 1))

def kernel_head(name):
    return ".globl %s\n.p2align 8\n.type %s,@function\n%s:\n" % (name, name, name)

def kernel_desc(name, nvgpr, nsgpr=102, accum=None):
    if accum is None:
        accum = (nvgpr + 3) // 4 * 4
    return (".amdhsa_kernel %s\n  .amdhsa_next_free_vgpr %d\n  .amdhsa_next_free_sgpr %d\n  .amdhsa_accum_offset %d\n"
            "  .amdhsa_group_segment_fixed_size 0\n  .amdhsa_kernarg_size 88\n  .amdhsa_user_sgpr_count 2\n"
            "  .amdhsa_user_sgpr_kernarg_segment_ptr 1\n  .amdhsa_system_sgpr_workgroup_id_x 1\n"
            "  .amdhsa_float_denorm_mode_32 3\n"
            ".end_amdhsa_kernel\n") % (name, nvgpr, nsgpr, accum)

def bf16r(a, dst, src, tmp=None):
    a("v_cvt_pk_bf16_f32 %s, %s, %s" % (dst, src, src))
    a("v_and_b32 %s, 0xffff0000, %s" % (dst, dst))

import os
PROF = bool(int(os.environ.get("PROF", "0")))
WS_PROF = 0x900000
PV = [255]
def stamp_begin(a, pv):
    PV[0] = pv
    if PROF:
        a("s_memrealtime s[100:101]")
        a("s_memtime s[80:81]")
        a("v_mov_b32 v%d, 0" % pv)
        a("s_waitcnt lgkmcnt(0)")
        a("v_writelane_b32 v%d, s80, 0" % pv)
        a("v_writelane_b32 v%d, s100, 62" % pv)
def stamp(a, i):
    if PROF:
        a("s_memtime s[80:81]")
        if isinstance(i, str):
            reg, k = i.split("+")
            a("s_add_u32 m0, %s, %s" % (reg, k))
            a("s_waitcnt lgkmcnt(0)")
            a("v_writelane_b32 v%d, s80, m0" % PV[0])
        else:
            a("s_waitcnt lgkmcnt(0)")
            a("v_writelane_b32 v%d, s80, %d" % (PV[0], i))
def stamp_flush(a, kern, srd_reg, wave_sgpr):
    if PROF:
        a("s_waitcnt vmcnt(0)")
        stamp(a, 60)
        a("s_memrealtime s[98:99]")
        a("s_waitcnt lgkmcnt(0)")
        a("s_mov_b64 exec, -1")
        a("v_writelane_b32 v%d, s98, 63" % PV[0])
        a("s_getreg_b32 s96, hwreg(HW_REG_XCC_ID)")
        a("v_writelane_b32 v%d, s96, 61" % PV[0])
        a("s_lshl_b32 s96, s2, 3")
        a("s_add_u32 s96, s96, s%d" % wave_sgpr)
        a("s_lshl_b32 s96, s96, 8")
        a("s_add_u32 s96, s96, 0x%x" % (WS_PROF + kern * 320 * 8 * 256))
        a("v_mbcnt_lo_u32_b32 v15, -1, 0")
        a("v_mbcnt_hi_u32_b32 v15, -1, v15")
        a("v_lshlrev_b32 v15, 2, v15")
        a("buffer_store_dword v%d, v15, s[%d:%d], s96 offen" % (PV[0], srd_reg, srd_reg + 3))
```

```python
from dsl import *

WS_QF = 0x000000
WS_KF = 0x200000
WS_VF = 0x400000
WS_OF = 0x600000
WS_STATS = 0x800000
WS_RKEY = 0x804000
WS_SEL = 0x806000
WS_PART = 0x810000
WS_SIZE = 0xB00000 if PROF else 0x900000

QSCALE = 0.25 * 1.4426950408889634

def fhex(x):
    import struct
    return "0x%08x" % struct.unpack("<I", struct.pack("<f", x))[0]

K1_LDS_TBL = 131072
K1_LDS_STAT = K1_LDS_TBL + 2048
K1_LDS_CS = K1_LDS_STAT + 768
K1_LDS_BC = K1_LDS_CS + 768
K1_LDS = K1_LDS_BC + 1024

def gen_k1():
    a = Asm()
    N = "k1_kernel"
    a(kernel_head(N))
    vLane = 1
    vXr = [4, 5, 6, 7]
    vWrE, vWrO, vTb = 8, 9, 10
    vXa, vXb, vWa, vWb = 11, 12, 13, 14
    accQ, accK, accV = 16, 32, 48
    csQ, csK, csV = 64, 68, 72
    Dsr, Dsq = 76, 80
    SEL = 84
    XF = [88, 92]
    WF = [[96, 100, 104], [108, 112, 116]]
    TF = 120
    sX, sW, sWR, sWS = 8, 12, 16, 20
    sRb, sCg, sWave, sMt, sNs, sPi = 28, 29, 30, 31, 32, 33
    sXg, sWg, sSlot, sC, sWx = 34, 35, 36, 37, 38
    sM1, sM2, sM3, sM16 = 40, 42, 44, 46
    sT0, sT1 = 48, 49
    a("s_cmp_ge_u32 s2, 256")
    a("s_cbranch_scc1 L_k1_end")
    stamp_begin(a, 255)
    a("s_load_dwordx4 s[4:7], s[0:1], 0")
    a("s_load_dwordx2 s[24:25], s[0:1], 32")
    a("s_load_dwordx2 s[26:27], s[0:1], 80")
    a("s_and_b32 s%d, s2, 7" % sT0)
    a("s_lshr_b32 s%d, s2, 3" % sT1)
    a("s_lshr_b32 s%d, s%d, 1" % (sRb, sT0))
    a("s_lshl_b32 s%d, s%d, 3" % (sRb, sRb))
    a("s_and_b32 s%d, s%d, 7" % (sCg, sT1))
    a("s_add_u32 s%d, s%d, s%d" % (sRb, sRb, sCg))
    a("s_and_b32 s%d, s%d, 1" % (sCg, sT0))
    a("s_lshl_b32 s%d, s%d, 2" % (sCg, sCg))
    a("s_lshr_b32 s%d, s%d, 3" % (sT1, sT1))
    a("s_add_u32 s%d, s%d, s%d" % (sCg, sCg, sT1))
    a("v_lshrrev_b32 v2, 6, v0")
    a("v_and_b32 v%d, 63, v0" % vLane)
    a("v_readfirstlane_b32 s%d, v2" % sWave)
    a("v_lshrrev_b32 v2, 3, v%d" % vLane)
    a("v_and_b32 v3, 7, v%d" % vLane)
    a("v_lshrrev_b32 v15, 1, v2")
    a("v_xor_b32 v%d, v3, v15" % vXa)
    a("v_xor_b32 v%d, 4, v%d" % (vXb, vXa))
    a("v_lshlrev_b32 v%d, 4, v%d" % (vXa, vXa))
    a("v_lshlrev_b32 v%d, 4, v%d" % (vXb, vXb))
    a("v_lshl_add_u32 v%d, v2, 10, v%d" % (vXa, vXa))
    a("v_lshl_add_u32 v%d, v2, 10, v%d" % (vXb, vXb))
    a("v_add_u32 v%d, 0x2000, v%d" % (vXb, vXb))
    a("v_and_b32 v15, 1, v15")
    a("v_lshlrev_b32 v15, 2, v15")
    a("v_xor_b32 v15, v3, v15")
    a("v_lshlrev_b32 v15, 4, v15")
    a("v_mul_u32_u24 v%d, 0xc00, v2" % vWa)
    a("v_add_u32 v%d, v%d, v15" % (vWa, vWa))
    a("v_add_u32 v%d, 0x6000, v%d" % (vWb, vWa))
    a("s_and_b32 s%d, s%d, 1" % (sMt, sWave))
    a("s_lshr_b32 s%d, s%d, 1" % (sNs, sWave))
    a("s_xor_b32 s%d, s%d, s%d" % (sPi, sMt, sNs))
    a("s_lshl_b32 s%d, s%d, 11" % (sWx, sWave))
    a("s_lshl_b32 s%d, s%d, 16" % (sXg, sRb))
    a("s_lshl_b32 s%d, s%d, 14" % (sT0, sWave))
    a("s_add_u32 s%d, s%d, s%d" % (sXg, sXg, sT0))
    a("s_mul_i32 s%d, s%d, %d" % (sWg, sWave, 16 * 3072))
    a("s_lshl_b32 s%d, s%d, 7" % (sT0, sCg))
    a("s_add_u32 s%d, s%d, s%d" % (sWg, sWg, sT0))
    a("v_lshlrev_b32 v2, 4, v%d" % vLane)
    a("s_waitcnt lgkmcnt(0)")
    stamp(a, 1)
    srd(a, sX, 4, 2048 * 1024)
    srd(a, sW, 6, 512 * 3072)
    srd(a, sWR, 24, 1024)
    ws_adjust(a, 26)
    srd(a, sWS, 26, WS_SIZE)
    a("buffer_load_dwordx4 v[%d:%d], v2, s[%d:%d], 0 offen" % (TF, TF + 3, sWR, sWR + 3))

    def dma_chunk():
        a("s_add_u32 m0, s%d, s%d" % (sSlot, sWx))
        a("s_nop 0")
        a("buffer_load_dwordx4 v%d, s[%d:%d], s%d offen lds" % (vXa, sX, sX + 3, sXg))
        a("s_add_u32 m0, m0, 1024")
        a("s_nop 0")
        a("buffer_load_dwordx4 v%d, s[%d:%d], s%d offen lds" % (vXb, sX, sX + 3, sXg))
        inc = 7168
        for seg in range(3):
            for half in range(2):
                a("s_add_u32 m0, m0, %d" % inc)
                a("s_nop 0")
                off = (" offset:%d" % (seg * 1024)) if seg else ""
                a("buffer_load_dwordx4 v%d, s[%d:%d], s%d offen%s lds" % (vWa if half == 0 else vWb, sW, sW + 3, sWg, off))
                inc = 1024 if half == 0 else 6144
        a("s_add_u32 s%d, s%d, 128" % (sXg, sXg))
        a("s_add_u32 s%d, s%d, %d" % (sWg, sWg, 64 * 3072))

    for c in range(4):
        a("s_mov_b32 s%d, %d" % (sSlot, c * 32768))
        dma_chunk()

    stamp(a, 2)
    a("v_and_b32 v2, 31, v%d" % vLane)
    a("v_lshrrev_b32 v3, 5, v%d" % vLane)
    a("v_lshrrev_b32 v15, 1, v2")
    a("v_and_b32 v15, 7, v15")
    a("s_lshl_b32 s%d, s%d, 12" % (sT0, sMt))
    a("v_lshl_add_u32 v124, v2, 7, s%d" % sT0)
    for p in range(4):
        a("s_xor_b32 s%d, s%d, %d" % (sT1, sPi, p))
        a("s_lshl_b32 s%d, s%d, 1" % (sT1, sT1))
        a("v_add_u32 v125, s%d, v3" % sT1)
        a("v_xor_b32 v125, v125, v15")
        a("v_lshl_add_u32 v%d, v125, 4, v124" % vXr[p])
    a("v_lshrrev_b32 v125, 4, v%d" % vLane)
    a("v_and_b32 v126, 1, v125")
    a("v_bfe_u32 v127, v%d, 2, 2" % vLane)
    a("v_and_b32 v128, 3, v%d" % vLane)
    a("v_lshl_add_u32 v129, v3, 3, v127")
    a("v_lshlrev_b32 v129, 7, v129")
    a("v_lshrrev_b32 v127, 1, v127")
    a("v_xor_b32 v127, s%d, v127" % sNs)
    a("v_lshl_add_u32 v129, v127, 6, v129")
    a("v_lshl_add_u32 v129, v126, 5, v129")
    a("v_lshl_add_u32 v129, v128, 3, v129")
    a("v_add_u32 v129, 0x2000, v129")
    a("s_lshl_b32 s%d, s%d, 11" % (sT0, sPi))
    a("v_add_u32 v%d, s%d, v129" % (vWrE, sT0))
    a("v_subrev_u32 v%d, s%d, v129" % (vWrO, sT0))
    a("v_and_b32 v125, 3, v%d" % vLane)
    a("v_cmp_eq_u32 s[%d:%d], 1, v125" % (sM1, sM1 + 1))
    a("v_cmp_eq_u32 s[%d:%d], 2, v125" % (sM2, sM2 + 1))
    a("v_cmp_eq_u32 s[%d:%d], 3, v125" % (sM3, sM3 + 1))
    a("s_xor_b32 s%d, s%d, 1" % (sT0, sPi))
    a("s_lshl_b32 s%d, s%d, 6" % (sT0, sT0))
    a("s_add_u32 s%d, s%d, %d" % (sT0, sT0, K1_LDS_TBL))
    a("v_lshl_add_u32 v%d, v3, 5, s%d" % (vTb, sT0))
    a("v_cndmask_b32 v125, 0, 16, s[%d:%d]" % (sM1, sM1 + 1))
    a("v_add_u32 v%d, v%d, v125" % (vTb, vTb))
    a("v_bfe_u32 v125, v%d, 4, 1" % vLane)
    a("v_and_b32 v126, 1, v%d" % vLane)
    a("v_cmp_eq_u32 vcc, v125, v126")
    a("v_cmp_eq_u32 s[%d:%d], 1, v125" % (sM16, sM16 + 1))
    a("v_mov_b32 v127, 0x3f803f80")
    a("v_cndmask_b32 v%d, 0, v127, vcc" % SEL)
    for i in range(1, 4):
        a("v_mov_b32 v%d, v%d" % (SEL + i, SEL))
    for r in range(accQ, Dsq + 4):
        a("v_mov_b32 v%d, 0" % r)
    a("v_lshlrev_b32 v128, 4, v%d" % vLane)
    a("v_add_u32 v128, %d, v128" % K1_LDS_STAT)
    a("v_mov_b32 v132, 0"); a("v_mov_b32 v133, 0"); a("v_mov_b32 v134, 0"); a("v_mov_b32 v135, 0")
    a("ds_write_b128 v128, v[132:135]")
    a("v_lshlrev_b32 v130, 3, v%d" % vLane)
    a("v_add_u32 v130, %d, v130" % (K1_LDS_STAT + 1024))
    a("ds_write_b64 v130, v[132:133]")
    a("v_lshlrev_b32 v128, 5, v%d" % vLane)
    a("v_add_u32 v128, %d, v128" % K1_LDS_TBL)
    for i in range(4):
        a("v_mov_b32 v%d, v127" % (132 + i))
    a("ds_write_b128 v128, v[132:135]")
    a("s_waitcnt vmcnt(32)")
    a("ds_write_b128 v128, v[%d:%d] offset:16" % (TF, TF + 3))
    a("v_lshlrev_b32 v136, 16, v%d" % TF)
    a("v_and_b32 v137, 0xffff0000, v%d" % TF)
    a("v_add_f32 v136, v136, v137")
    for i in range(1, 4):
        a("v_lshlrev_b32 v137, 16, v%d" % (TF + i))
        a("v_and_b32 v138, 0xffff0000, v%d" % (TF + i))
        a("v_add_f32 v136, v136, v137")
        a("v_add_f32 v136, v136, v138")
    for dp in ["quad_perm:[1,0,3,2]", "quad_perm:[2,3,0,1]", "row_half_mirror", "row_mirror"]:
        a("s_nop 1")
        a("v_add_f32_dpp v136, v136, v136 %s row_mask:0xf bank_mask:0xf" % dp)
    a("v_mov_b32 v137, v136"); a("s_nop 1")
    a("v_permlane16_swap_b32 v136, v137"); a("s_nop 1")
    a("v_add_f32 v136, v136, v137")
    a("v_mov_b32 v137, v136"); a("s_nop 1")
    a("v_permlane32_swap_b32 v136, v137"); a("s_nop 1")
    a("v_add_f32 v136, v136, v137")
    vCsr = 136

    def reads(p, buf, wbase):
        a("ds_read_b128 %s, v%d" % (v(XF[buf], 4), vXr[p]))
        for seg in range(3):
            for t in range(2):
                a("ds_read_b64_tr_b16 %s, v%d offset:%d" % (v(WF[buf][seg] + 2 * t, 2), wbase, seg * 8192 + p * 2048 + t * 512))
    def treads(p):
        a("ds_read_b128 %s, v%d offset:%d" % (v(TF, 4), vTb, 0 if p == 1 else 128))
    def mfma_main(buf, which):
        x = v(XF[buf], 4)
        if which == 0: a("v_mfma_f32_32x32x16_bf16 %s, %s, %s, %s" % (v(accQ, 16), v(WF[buf][0], 4), x, v(accQ, 16)))
        if which == 1: a("v_mfma_f32_32x32x16_bf16 %s, %s, %s, %s" % (v(accK, 16), v(WF[buf][1], 4), x, v(accK, 16)))
        if which == 2: a("v_mfma_f32_32x32x16_bf16 %s, %s, %s, %s" % (v(accV, 16), x, v(WF[buf][2], 4), v(accV, 16)))
    def mfma_even(buf):
        for i, cs in enumerate([csQ, csK, csV]):
            mfma_main(buf, i)
            a("v_mfma_f32_16x16x32_bf16 %s, %s, %s, %s" % (v(cs, 4), v(SEL, 4), v(WF[buf][i], 4), v(cs, 4)))
    def mfma_odd(buf):
        x = XF[buf]
        a("v_mfma_f32_4x4x4_16b_bf16 %s, %s, %s, %s" % (v(Dsr, 4), v(TF, 2), v(x, 2), v(Dsr, 4)))
        a("v_mfma_f32_4x4x4_16b_bf16 %s, %s, %s, %s" % (v(Dsq, 4), v(x, 2), v(x, 2), v(Dsq, 4)))
        mfma_main(buf, 0)
        a("v_mfma_f32_4x4x4_16b_bf16 %s, %s, %s, %s" % (v(Dsr, 4), v(TF + 2, 2), v(x + 2, 2), v(Dsr, 4)))
        a("v_mfma_f32_4x4x4_16b_bf16 %s, %s, %s, %s" % (v(Dsq, 4), v(x + 2, 2), v(x + 2, 2), v(Dsq, 4)))
        mfma_main(buf, 1)
        mfma_main(buf, 2)

    a("s_waitcnt vmcnt(24) lgkmcnt(0)")
    stamp(a, 3)
    a("s_barrier")
    stamp(a, 4)
    reads(0, 0, vWrE)
    a("s_mov_b32 s%d, 0" % sC)
    a("s_mov_b32 s%d, 0" % sSlot)
    a.label("L_k1_loop")
    reads(1, 1, vWrO); treads(1)
    a("s_waitcnt lgkmcnt(8)")
    mfma_even(0)
    reads(2, 0, vWrE)
    a("s_waitcnt lgkmcnt(7)")
    mfma_odd(1)
    reads(3, 1, vWrO); treads(3)
    a("s_waitcnt lgkmcnt(8)")
    mfma_even(0)
    a("s_cmp_eq_u32 s%d, 7" % sC)
    a("s_cbranch_scc1 L_k1_last")
    a("s_cmp_ge_u32 s%d, 5" % sC)
    a("s_cbranch_scc1 L_k1_w5")
    a("s_waitcnt vmcnt(16) lgkmcnt(0)")
    stamp(a, "s%d+20" % sC)
    a("s_barrier")
    stamp(a, "s%d+30" % sC)
    a("s_cmp_ge_u32 s%d, 4" % sC)
    a("s_cbranch_scc1 L_k1_nodma")
    dma_chunk()
    a("s_branch L_k1_nodma")
    a.label("L_k1_w5")
    a("s_cmp_eq_u32 s%d, 5" % sC)
    a("s_cbranch_scc0 L_k1_w6")
    a("s_waitcnt vmcnt(8) lgkmcnt(0)")
    a("s_barrier")
    a("s_branch L_k1_nodma")
    a.label("L_k1_w6")
    a("s_waitcnt vmcnt(0) lgkmcnt(0)")
    a("s_barrier")
    a.label("L_k1_nodma")
    stamp(a, "s%d+10" % sC)
    for r in vXr + [vWrE, vWrO]:
        a("v_add_u32 v%d, 0x8000, v%d" % (r, r))
        a("v_and_b32 v%d, 0x1ffff, v%d" % (r, r))
    a("v_add_u32 v%d, 0x100, v%d" % (vTb, vTb))
    a("s_add_u32 s%d, s%d, 0x8000" % (sSlot, sSlot))
    a("s_and_b32 s%d, s%d, 0x1ffff" % (sSlot, sSlot))
    reads(0, 0, vWrE)
    mfma_odd(1)
    a("s_add_u32 s%d, s%d, 1" % (sC, sC))
    a("s_branch L_k1_loop")
    a.label("L_k1_last")
    a("s_waitcnt lgkmcnt(0)")
    mfma_odd(1)

    stamp(a, 5)
    tS, tR, tQ = 88, 89, 90
    a("s_nop 4")
    a("v_cndmask_b32 v%d, v%d, v%d, s[%d:%d]" % (tQ, Dsq, Dsq + 1, sM1, sM1 + 1))
    a("v_cndmask_b32 v%d, v%d, v%d, s[%d:%d]" % (tQ, tQ, Dsq + 2, sM2, sM2 + 1))
    a("v_cndmask_b32 v%d, v%d, v%d, s[%d:%d]" % (tQ, tQ, Dsq + 3, sM3, sM3 + 1))
    a("v_mov_b32 v%d, v%d" % (tS, Dsr))
    a("v_mov_b32 v%d, v%d" % (tR, Dsr + 1))
    a("v_mov_b32 v91, v%d" % tQ)
    a("s_nop 1")
    a("v_permlane32_swap_b32 v%d, v%d" % (tS, Dsr))
    a("v_permlane32_swap_b32 v%d, v%d" % (tR, Dsr + 1))
    a("v_permlane32_swap_b32 v91, v%d" % tQ)
    a("v_cndmask_b32 v92, v%d, v%d, s[%d:%d]" % (csQ, csQ + 1, sM16, sM16 + 1))
    a("v_cndmask_b32 v93, v%d, v%d, s[%d:%d]" % (csK, csK + 1, sM16, sM16 + 1))
    a("v_cndmask_b32 v94, v%d, v%d, s[%d:%d]" % (csV, csV + 1, sM16, sM16 + 1))
    a("v_add_f32 v%d, v%d, v%d" % (tS, tS, Dsr))
    a("v_add_f32 v%d, v%d, v%d" % (tR, tR, Dsr + 1))
    a("v_add_f32 v%d, v%d, v91" % (tQ, tQ))
    a("v_and_b32 v2, 31, v%d" % vLane)
    a("v_lshlrev_b32 v2, 2, v2")
    a("s_mul_i32 s%d, s%d, 384" % (sT0, sMt))
    a("s_add_u32 s%d, s%d, %d" % (sT0, sT0, K1_LDS_STAT))
    a("v_add_u32 v95, s%d, v2" % sT0)
    a("s_mul_i32 s%d, s%d, 384" % (sT0, sNs))
    a("s_add_u32 s%d, s%d, %d" % (sT0, sT0, K1_LDS_CS))
    a("v_add_u32 v96, s%d, v2" % sT0)
    a("v_lshrrev_b32 v3, 5, v%d" % vLane)
    a("v_lshl_add_u32 v97, v3, 4, s%d" % sT0)
    a("s_mov_b32 exec_hi, 0")
    a("ds_add_f32 v95, v%d" % tS)
    a("ds_add_f32 v95, v%d offset:128" % tR)
    a("ds_add_f32 v95, v%d offset:256" % tQ)
    a("ds_add_f32 v96, v92")
    a("ds_add_f32 v96, v93 offset:128")
    a("ds_add_f32 v96, v94 offset:256")
    a("s_mov_b64 exec, -1")
    a("s_lshl_b32 s%d, s%d, 8" % (sT0, sWave))
    a("s_add_u32 s%d, s%d, %d" % (sT0, sT0, K1_LDS_BC))
    a("v_add_u32 v98, s%d, v2" % sT0)
    a("v_lshl_add_u32 v99, v3, 4, s%d" % sT0)
    a("s_waitcnt lgkmcnt(0)")
    stamp(a, 40)
    a("s_barrier")
    stamp(a, 41)
    a("ds_read_b32 v%d, v95" % tS)
    a("ds_read_b32 v%d, v95 offset:128" % tR)
    a("ds_read_b32 v%d, v95 offset:256" % tQ)
    a("ds_read_b32 v94, v96 offset:256")
    cQ, cK, mT, rT = 140, 156, 172, 188
    for j in range(4):
        a("ds_read_b128 %s, v97 offset:%d" % (v(cQ + 4 * j, 4), j * 32))
    for j in range(4):
        a("ds_read_b128 %s, v97 offset:%d" % (v(cK + 4 * j, 4), 128 + j * 32))
    a("s_waitcnt lgkmcnt(9)")
    vM, vRs, vRq = 100, 102, 104
    a("v_mul_f32 v106, %s, v%d" % (fhex(1.0 / 512), tS))
    a("v_mul_f32 v107, %s, v%d" % (fhex(1.0 / 512), tQ))
    a("v_fma_f32 v107, -v106, v106, v107")
    a("v_max_f32 v107, 0, v107")
    bf16r(a, "v%d" % vM, "v106")
    bf16r(a, "v107", "v107")
    a("v_add_f32 v107, %s, v107" % fhex(1e-5))
    bf16r(a, "v107", "v107")
    a("v_sqrt_f32 v107, v107")
    a("s_nop 0")
    bf16r(a, "v107", "v107")
    a("v_rcp_f32 v%d, v107" % vRs)
    a("s_nop 0")
    a("ds_write_b32 v98, v%d" % vM)
    a("ds_write_b32 v98, v%d offset:128" % vRs)
    a("v_mul_f32 v%d, %s, v%d" % (vRq, fhex(QSCALE), vRs))
    for j in range(4):
        a("ds_read_b128 %s, v99 offset:%d" % (v(mT + 4 * j, 4), j * 32))
    for j in range(4):
        a("ds_read_b128 %s, v99 offset:%d" % (v(rT + 4 * j, 4), 128 + j * 32))
    sQa, sQb = 50, 51
    a("s_lshl_b32 s%d, s%d, 2" % (sT0, sCg))
    a("s_lshl_b32 s%d, s%d, 1" % (sT1, sNs))
    a("s_add_u32 s%d, s%d, s%d" % (sT0, sT0, sT1))
    a("s_lshl_b32 s%d, s%d, 16" % (sT0, sT0))
    a("s_lshl_b32 s%d, s%d, 1" % (sT1, sRb))
    a("s_add_u32 s%d, s%d, s%d" % (sT1, sT1, sMt))
    a("s_lshl_b32 s52, s%d, 10" % sT1)
    a("s_add_u32 s%d, s%d, s52" % (sQa, sT0))
    a("s_add_u32 s%d, s%d, 0x10000" % (sQb, sQa))
    a("v_lshlrev_b32 v108, 4, v%d" % vLane)
    def qk_tile(acc, cs, vr, base):
        for i in range(8):
            a("v_pk_fma_f32 %s, %s, %s, %s op_sel_hi:[1,0,1] neg_lo:[0,1,0] neg_hi:[0,1,0]" % (v(acc + 2 * i, 2), v(cs + 2 * i, 2), v(vM, 2), v(acc + 2 * i, 2)))
        for i in range(8):
            a("v_pk_mul_f32 %s, %s, %s op_sel_hi:[1,0]" % (v(acc + 2 * i, 2), v(acc + 2 * i, 2), v(vr, 2)))
        for i in range(8):
            a("v_cvt_pk_bf16_f32 v%d, v%d, v%d" % (cs + i, acc + 2 * i, acc + 2 * i + 1))
        a("s_add_u32 s53, s%d, 0x%x" % (sQa, base))
        a("s_add_u32 s54, s%d, 0x%x" % (sQb, base))
        a("buffer_store_dwordx4 %s, v108, s[%d:%d], s53 offen" % (v(cs, 4), sWS, sWS + 3))
        a("buffer_store_dwordx4 %s, v108, s[%d:%d], s54 offen" % (v(cs + 4, 4), sWS, sWS + 3))
    a("s_waitcnt lgkmcnt(10)")
    stamp(a, 42)
    qk_tile(accQ, cQ, vRq, WS_QF)
    qk_tile(accK, cK, vRs, WS_KF)
    stamp(a, 43)
    a("v_bfe_u32 v109, v%d, 4, 1" % vLane)
    a("v_lshlrev_b32 v109, 16, v109")
    a("v_lshl_add_u32 v109, v3, 8, v109")
    a("v_and_b32 v110, 15, v%d" % vLane)
    a("v_lshl_add_u32 v109, v110, 4, v109")
    a("s_waitcnt lgkmcnt(0)")
    for i in range(8):
        a("v_pk_fma_f32 %s, %s, %s, %s op_sel_hi:[1,0,1] neg_lo:[0,1,0] neg_hi:[0,1,0]" % (v(accV + 2 * i, 2), v(mT + 2 * i, 2), v(94, 2), v(accV + 2 * i, 2)))
    for i in range(8):
        a("v_pk_mul_f32 %s, %s, %s" % (v(accV + 2 * i, 2), v(accV + 2 * i, 2), v(rT + 2 * i, 2)))
    for i in range(8):
        a("v_cvt_pk_bf16_f32 v%d, v%d, v%d" % (mT + i, accV + 2 * i, accV + 2 * i + 1))
    a("s_add_u32 s53, s%d, 0x%x" % (sQa, WS_VF))
    a("buffer_store_dwordx4 %s, v109, s[%d:%d], s53 offen" % (v(mT, 4), sWS, sWS + 3))
    a("buffer_store_dwordx4 %s, v109, s[%d:%d], s53 offen offset:512" % (v(mT + 4, 4), sWS, sWS + 3))
    stamp(a, 6)
    a("s_or_b32 s%d, s%d, s%d" % (sT0, sCg, sNs))
    a("s_cmp_lg_u32 s%d, 0" % sT0)
    a("s_cbranch_scc1 L_k1_fin")
    a("v_fma_f32 v110, -v%d, v%d, v%d" % (vM, vCsr, tR))
    a("v_mul_f32 v110, v110, v%d" % vRs)
    a("v_cvt_pk_bf16_f32 v110, v110, v110")
    a("v_and_b32 v110, 0xffff, v110")
    a("v_cmp_gt_u32 vcc, 0x8000, v110")
    a("v_xor_b32 v111, 0x8000, v110")
    a("v_xor_b32 v112, 0xffff, v110")
    a("s_nop 0")
    a("v_cndmask_b32 v110, v112, v111, vcc")
    a("v_and_b32 v111, 31, v%d" % vLane)
    a("s_lshl_b32 s%d, s%d, 5" % (sT1, sT1))
    a("v_add_u32 v111, s%d, v111" % sT1)
    a("v_sub_u32 v112, 0xffff, v111")
    a("v_lshl_or_b32 v110, v110, 16, v112")
    a("v_mov_b32 v%d, v%d" % (vM + 1, vRs))
    a("v_lshlrev_b32 v112, 3, v111")
    a("v_lshlrev_b32 v113, 2, v111")
    a("s_mov_b32 exec_hi, 0")
    a("s_mov_b32 s53, 0x%x" % WS_STATS)
    a("s_mov_b32 s54, 0x%x" % WS_RKEY)
    a("buffer_store_dwordx2 %s, v112, s[%d:%d], s53 offen" % (v(vM, 2), sWS, sWS + 3))
    a("buffer_store_dword v110, v113, s[%d:%d], s54 offen" % (sWS, sWS + 3))
    a.label("L_k1_fin")
    stamp_flush(a, 0, sWS, sWave)
    a.label("L_k1_end")
    a("s_endpgm")
    return a.text(), (256 if PROF else 204)
```

```python
from dsl import *
from k1 import *

NSLICE = 56
K2_GRID = 256 + NSLICE
M_XS = 65536
M_CAND = M_XS + 8 * 1040
M_GU = M_CAND + 256
M_HS = M_GU + 4096
K2_LDS = M_HS + 512
NEGBIG = 0xf149f2ca
LOG2E = 1.4426950408889634

def gen_attn(a):
    vLane = 1
    vK, vV, mx0, mx1, vT0, vT1, vZ, vOff = 2, 3, 4, 5, 6, 7, 8, 9
    SA, SB, CB, O, P, mA = 16, 32, 48, 64, 80, 88
    KF, VF, V0F, QF = 96, 100, 108, 116
    sWS = 8
    sH, sQb, sW, sT, sBase, sTs, sN = 20, 21, 22, 23, 24, 25, 26
    sT0, sT1 = 27, 28
    sVM = 30
    sCond = 40
    a("s_and_b32 s%d, s2, 7" % sH)
    a("s_bfe_u32 s%d, s2, 0x20003" % sT0)
    a("s_lshl_b32 s%d, s%d, 3" % (sT0, sT0))
    a("s_add_u32 s%d, s%d, s%d" % (sH, sH, sT0))
    a("s_lshr_b32 s%d, s2, 5" % sQb)
    a("v_lshrrev_b32 v2, 6, v0")
    a("v_and_b32 v%d, 63, v0" % vLane)
    a("v_readfirstlane_b32 s%d, v2" % sW)
    a("v_lshlrev_b32 v%d, 4, v%d" % (vOff, vLane))
    a("s_lshl_b32 s%d, s%d, 3" % (sT, sQb))
    a("s_add_u32 s%d, s%d, s%d" % (sT, sT, sW))
    a("s_lshl_b32 s%d, s%d, 6" % (sBase, sH))
    a("s_add_u32 s%d, s%d, s%d" % (sBase, sBase, sT))
    a("s_lshl_b32 s%d, s%d, 10" % (sBase, sBase))
    a("s_lshl_b32 s%d, s%d, 10" % (sT1, sW))
    a("s_waitcnt lgkmcnt(0)")
    stamp(a, 1)
    ws_adjust(a, 6)
    srd(a, sWS, 6, WS_SIZE)
    a("s_add_u32 s%d, s%d, 0x%x" % (sT0, sBase, WS_KF))
    a("s_add_u32 m0, s%d, 8192" % sT1)
    a("s_nop 0")
    a("buffer_load_dwordx4 v%d, s[%d:%d], s%d offen lds" % (vOff, sWS, sWS + 3, sT0))
    a("s_add_u32 s%d, s%d, 0x%x" % (sT0, sBase, WS_QF))
    a("buffer_load_dwordx4 %s, v%d, s[%d:%d], s%d offen" % (v(QF, 4), vOff, sWS, sWS + 3, sT0))
    a("s_cmp_eq_u32 s%d, 0" % sQb)
    a("s_cbranch_scc1 L_at_noprev")
    a("s_add_u32 s%d, s%d, 0x%x" % (sT0, sBase, WS_KF - 8192))
    a("s_mov_b32 m0, s%d" % sT1)
    a("s_nop 0")
    a("buffer_load_dwordx4 v%d, s[%d:%d], s%d offen lds" % (vOff, sWS, sWS + 3, sT0))
    a("s_add_u32 s%d, s%d, 0x%x" % (sT0, sBase, WS_VF - 8192))
    a("s_add_u32 m0, s%d, 16384" % sT1)
    a("s_nop 0")
    a("buffer_load_dwordx4 v%d, s[%d:%d], s%d offen lds" % (vOff, sWS, sWS + 3, sT0))
    a.label("L_at_noprev")
    a("s_add_u32 s%d, s%d, 0x%x" % (sT0, sBase, WS_VF))
    a("s_add_u32 m0, s%d, %d" % (sT1, 16384 + 8192))
    a("s_nop 0")
    a("buffer_load_dwordx4 v%d, s[%d:%d], s%d offen lds" % (vOff, sWS, sWS + 3, sT0))
    a("v_and_b32 v%d, 31, v%d" % (vT0, vLane))
    a("v_lshrrev_b32 v%d, 5, v%d" % (vT1, vLane))
    a("v_lshlrev_b32 v%d, 2, v%d" % (vZ, vT1))
    a("v_sub_u32 v%d, v%d, v%d" % (vZ, vT0, vZ))
    for r in range(16):
        a("v_cmp_gt_i32 s[%d:%d], %d, v%d" % (sCond + 2 * r, sCond + 2 * r + 1, 8 * (r >> 2) + (r & 3), vZ))
    a("v_mov_b32 v10, 0xffff")
    a("v_mov_b32 v11, 0xffff0000")
    for j in range(8):
        a("v_cndmask_b32 v%d, 0, v10, s[%d:%d]" % (mA + j, sCond + 4 * j, sCond + 4 * j + 1))
        a("v_cndmask_b32 v12, 0, v11, s[%d:%d]" % (sCond + 4 * j + 2, sCond + 4 * j + 3))
        a("v_or_b32 v%d, v%d, v12" % (mA + j, mA + j))
    a("v_mov_b32 v10, 0x3f803f80")
    for r in range(16):
        a("v_mov_b32 v%d, v10" % (VF + r))
    for r in range(16):
        a("v_mov_b32 v%d, 0" % (O + r))
    a("s_mov_b32 s%d, 0xffff" % sVM)
    a("s_mov_b32 s%d, 0xffff" % (sVM + 1))
    a("s_sub_u32 s%d, 8, s%d" % (sTs, sW))
    a("s_cmp_eq_u32 s%d, 0" % sQb)
    a("s_cselect_b32 s%d, s%d, 1" % (sTs, sTs))
    a("v_add_u32 v%d, s%d, v%d" % (vK, sT1, vOff))
    a("v_and_b32 v%d, 15, v%d" % (vV, vLane))
    a("v_lshlrev_b32 v%d, 4, v%d" % (vV, vV))
    a("v_lshl_add_u32 v%d, v%d, 8, v%d" % (vV, vT1, vV))
    a("s_add_u32 s%d, s%d, 16384" % (sT0, sT1))
    a("v_add_u32 v%d, s%d, v%d" % (vV, sT0, vV))
    a("s_lshl_b32 s%d, s%d, 10" % (sT0, sTs))
    a("v_add_u32 v13, s%d, v%d" % (sT0, vK))
    a("v_add_u32 v14, s%d, v%d" % (sT0, vV))
    a("v_mov_b32 v%d, 0x%x" % (mx0, NEGBIG))
    a("v_mov_b32 v%d, 0x%x" % (mx1, NEGBIG))
    stamp(a, 2)
    a("s_waitcnt vmcnt(0)")
    stamp(a, 3)
    a("s_barrier")
    stamp(a, 4)

    def mfma_s(dst, c):
        a("v_mfma_f32_32x32x16_bf16 %s, %s, %s, %s" % (v(dst, 16), v(KF, 4), v(QF, 4), c))
    def vread(dst, addr):
        a("s_mov_b64 exec, s[%d:%d]" % (sVM, sVM + 1))
        a("ds_read_b128 %s, v%d" % (v(dst, 4), addr))
        a("ds_read_b128 %s, v%d offset:512" % (v(dst + 4, 4), addr))
        a("s_mov_b64 exec, -1")
    def maxes():
        for i in range(8):
            m = mx0 if i % 2 == 0 else mx1
            a("v_max3_f32 v%d, v%d, v%d, v%d" % (m, m, SB + 2 * i, SB + 2 * i + 1))
    def sel():
        for r in range(16):
            a("v_cndmask_b32 v%d, v%d, v%d, s[%d:%d]" % (SB + r, SB + r, SA + r, sCond + 2 * r, sCond + 2 * r + 1))
    def exps():
        for r in range(16):
            a("v_exp_f32 v%d, v%d" % (SB + r, SB + r))
        for j in range(8):
            a("v_cvt_pk_bf16_f32 v%d, v%d, v%d" % (P + j, SB + 2 * j, SB + 2 * j + 1))
    def pv(vf, p):
        a("v_mfma_f32_32x32x16_bf16 %s, %s, %s, %s" % (v(O, 16), v(vf, 4), v(p, 4), v(O, 16)))
        a("v_mfma_f32_32x32x16_bf16 %s, %s, %s, %s" % (v(O, 16), v(vf + 4, 4), v(p + 4, 4), v(O, 16)))

    a("s_cmp_eq_u32 s%d, 0" % sQb)
    a("s_cbranch_scc1 L_at_p1_no0")
    a("ds_read_b128 %s, v%d" % (v(KF, 4), vK))
    vread(V0F, vV)
    a("s_waitcnt lgkmcnt(2)")
    mfma_s(SA, "0")
    a("s_branch L_at_p1_go")
    a.label("L_at_p1_no0")
    for r in range(16):
        a("v_mov_b32 v%d, 0x%x" % (SA + r, NEGBIG))
    a.label("L_at_p1_go")
    a("v_mov_b32 v15, v13")
    a("ds_read_b128 %s, v15" % v(KF, 4))
    a("s_sub_u32 s%d, 8, s%d" % (sN, sTs))
    a("s_cmp_eq_u32 s%d, 0" % sN)
    a("s_cbranch_scc1 L_at_p1_fin")
    a.label("L_at_p1_loop")
    a("s_waitcnt lgkmcnt(0)")
    mfma_s(SB, "0")
    a("v_add_u32 v15, 0x400, v15")
    a("ds_read_b128 %s, v15" % v(KF, 4))
    a("s_sub_u32 s%d, s%d, 1" % (sN, sN))
    a("s_nop 8")
    maxes()
    a("s_cmp_lg_u32 s%d, 0" % sN)
    a("s_cbranch_scc1 L_at_p1_loop")
    a.label("L_at_p1_fin")
    a("s_waitcnt lgkmcnt(0)")
    mfma_s(SB, "0")
    a("s_cmp_eq_u32 s%d, 0" % sQb)
    a("s_cselect_b32 s%d, s%d, 0" % (sT1, sT0))
    a("v_add_u32 v15, s%d, v%d" % (sT1, vK))
    a("ds_read_b128 %s, v15" % v(KF, 4))
    a("s_nop 7")
    sel()
    maxes()
    a("v_max_f32 v%d, v%d, v%d" % (mx0, mx0, mx1))
    a("v_mov_b32 v%d, v%d" % (mx1, mx0))
    a("s_nop 1")
    a("v_permlane32_swap_b32 v%d, v%d" % (mx0, mx1))
    a("s_nop 0")
    a("v_max_f32 v%d, v%d, v%d" % (mx0, mx0, mx1))
    for r in range(16):
        a("v_sub_f32 v%d, 0, v%d" % (CB + r, mx0))
    stamp(a, 5)
    a("s_cmp_eq_u32 s%d, 0" % sQb)
    a("s_cbranch_scc1 L_at_p2_go")
    a("s_waitcnt lgkmcnt(0)")
    mfma_s(SA, v(CB, 16))
    a("ds_read_b128 %s, v13" % v(KF, 4))
    a.label("L_at_p2_go")
    a("s_sub_u32 s%d, 8, s%d" % (sN, sTs))
    a("s_cmp_eq_u32 s%d, 0" % sN)
    a("s_cbranch_scc1 L_at_p2_fin")
    a.label("L_at_p2_loop")
    vread(VF, 14)
    a("s_waitcnt lgkmcnt(2)")
    mfma_s(SB, v(CB, 16))
    a("v_add_u32 v13, 0x400, v13")
    a("v_add_u32 v14, 0x400, v14")
    a("ds_read_b128 %s, v13" % v(KF, 4))
    a("s_sub_u32 s%d, s%d, 1" % (sN, sN))
    a("s_nop 7")
    exps()
    a("s_waitcnt lgkmcnt(1)")
    pv(VF, P)
    a("s_cmp_lg_u32 s%d, 0" % sN)
    a("s_cbranch_scc1 L_at_p2_loop")
    a.label("L_at_p2_fin")
    vread(VF, 14)
    a("s_waitcnt lgkmcnt(2)")
    mfma_s(SB, v(CB, 16))
    a("s_nop 11")
    sel()
    exps()
    for j in range(8):
        a("v_and_b32 v%d, v%d, v%d" % (SA + j, P + j, mA + j))
    for j in range(8):
        a("v_xor_b32 v%d, v%d, v%d" % (P + j, P + j, SA + j))
    a("s_waitcnt lgkmcnt(0)")
    a("s_nop 0")
    pv(VF, P)
    a("s_cmp_eq_u32 s%d, 0" % sQb)
    a("s_cbranch_scc1 L_at_fin")
    pv(V0F, SA)
    a.label("L_at_fin")
    stamp(a, 6)
    a("s_lshl_b32 s%d, s%d, 5" % (sT0, sT))
    a("s_add_u32 s%d, s%d, s%d" % (sT0, sT0, sH))
    a("s_lshl_b32 s%d, s%d, 10" % (sT0, sT0))
    a("s_add_u32 s%d, s%d, 0x%x" % (sT0, sT0, WS_OF))
    a("s_nop 7")
    a("v_rcp_f32 v10, v%d" % (O + 8))
    a("s_nop 0")
    for r in range(8):
        a("v_mul_f32 v%d, v%d, v10" % (O + r, O + r))
    for j in range(4):
        a("v_cvt_pk_bf16_f32 v%d, v%d, v%d" % (P + j, O + 2 * j, O + 2 * j + 1))
    a("buffer_store_dwordx4 %s, v%d, s[%d:%d], s%d offen" % (v(P, 4), vOff, sWS, sWS + 3, sT0))
    stamp_flush(a, 1, sWS, sW)
    a("s_endpgm")

def wave_max_u32(a, t):
    for dp in ["quad_perm:[1,0,3,2] row_mask:0xf", "quad_perm:[2,3,0,1] row_mask:0xf", "row_half_mirror row_mask:0xf", "row_mirror row_mask:0xf",
               "row_bcast:15 row_mask:0xa", "row_bcast:31 row_mask:0xc"]:
        a("s_nop 1")
        a("v_max_u32_dpp v%d, v%d, v%d %s bank_mask:0xf" % (t, t, t, dp))

def gen_moe(a):
    vLane = 1
    k0, k1, k2, k3 = 16, 17, 18, 19
    vRes, vT = 20, 21
    WR = 32
    WF = 48
    sWS, sX, sWm, sWd = 8, 12, 16, 20
    sW, sSl, sT0, sT1, sI, sVal, sTok = 24, 25, 26, 27, 28, 29, 30
    a("s_sub_u32 s%d, s2, 256" % sT0)
    a("s_and_b32 s%d, s%d, 7" % (sSl, sT0))
    a("s_lshr_b32 s%d, s%d, 4" % (sT1, sT0))
    a("s_lshl_b32 s%d, s%d, 3" % (sT1, sT1))
    a("s_add_u32 s%d, s%d, s%d" % (sSl, sSl, sT1))
    a("s_lshl_b32 s%d, s%d, 1" % (sSl, sSl))
    a("s_bfe_u32 s%d, s%d, 0x10003" % (sT1, sT0))
    a("s_add_u32 s%d, s%d, s%d" % (sSl, sSl, sT1))
    a("s_cmp_ge_u32 s%d, 48" % sT0)
    a("s_cselect_b32 s%d, s%d, s%d" % (sSl, sT0, sSl))
    a("v_lshrrev_b32 v2, 6, v0")
    a("v_and_b32 v%d, 63, v0" % vLane)
    a("v_readfirstlane_b32 s%d, v2" % sW)
    a("v_lshlrev_b32 v3, 4, v0")
    a("s_load_dwordx2 s[32:33], s[0:1], 0")
    a("s_load_dwordx4 s[36:39], s[0:1], 40")
    a("s_load_dwordx2 s[40:41], s[0:1], 56")
    a("s_waitcnt lgkmcnt(0)")
    ws_adjust(a, 6)
    srd(a, sWS, 6, WS_SIZE)
    a("s_mov_b32 s%d, 0x%x" % (sT0, WS_RKEY))
    a("buffer_load_dwordx4 v[%d:%d], v3, s[%d:%d], s%d offen" % (k0, k3, sWS, sWS + 3, sT0))
    srd(a, sX, 32, 2048 * 1024)
    srd(a, sWd, 40, 1792 * 1024)
    a("s_and_b32 s%d, s%d, 1" % (sT0, sW))
    a("s_cmp_eq_u32 s%d, 0" % sT0)
    a("s_cselect_b32 s%d, s36, s38" % sWm)
    a("s_cselect_b32 s%d, s37, s39" % (sWm + 1))
    a("s_mov_b32 s%d, 0x%x" % (sWm + 2, 512 * 3584))
    a("s_mov_b32 s%d, 0x20000" % (sWm + 3))
    a("v_lshrrev_b32 v4, 2, v%d" % vLane)
    a("v_and_b32 v5, 3, v%d" % vLane)
    a("v_bfe_u32 v6, v%d, 5, 1" % vLane)
    a("v_lshlrev_b32 v6, 1, v6")
    a("v_xor_b32 v5, v5, v6")
    a("v_mul_u32_u24 v4, 0xe00, v4")
    a("v_lshl_add_u32 v4, v5, 4, v4")
    a("s_lshr_b32 s%d, s%d, 1" % (sT1, sW))
    a("s_mul_i32 s42, s%d, %d" % (sT1, 8 * 16 * 3584))
    a("s_lshl_b32 s43, s%d, 6" % sSl)
    a("s_add_u32 s42, s42, s43")
    a("s_lshl_b32 s43, s%d, 15" % sT0)
    a("s_lshl_b32 s44, s%d, 13" % sT1)
    a("s_add_u32 s43, s43, s44")
    for q in range(8):
        a("s_add_u32 m0, s43, %d" % (q * 1024))
        a("s_add_u32 s44, s42, %d" % (q * 16 * 3584))
        a("buffer_load_dwordx4 v4, s[%d:%d], s44 offen lds" % (sWm, sWm + 3))
    a("v_lshrrev_b32 v5, 4, v%d" % vLane)
    a("v_and_b32 v6, 15, v%d" % vLane)
    a("v_lshlrev_b32 v5, 13, v5")
    a("v_lshl_add_u32 v5, v6, 3, v5")
    a("s_lshl_b32 s44, s%d, 15" % sSl)
    a("s_lshl_b32 s45, s%d, 7" % sW)
    a("s_add_u32 s44, s44, s45")
    a("v_add_u32 v5, s44, v5")
    for e in range(8):
        if e < 4:
            a("buffer_load_dwordx2 %s, v5, s[%d:%d], 0 offen offset:%d" % (v(WR + 2 * e, 2), sWd, sWd + 3, e * 1024))
        else:
            if e == 4:
                a("s_movk_i32 s45, 0x1000")
            a("buffer_load_dwordx2 %s, v5, s[%d:%d], s45 offen offset:%d" % (v(WR + 2 * e, 2), sWd, sWd + 3, (e - 4) * 1024))
    stamp(a, 1)
    a("s_waitcnt vmcnt(16)")
    stamp(a, 2)
    def ce(x, y):
        a("v_max_u32 v%d, v%d, v%d" % (vT, x, y))
        a("v_min_u32 v%d, v%d, v%d" % (y, x, y))
        a("v_mov_b32 v%d, v%d" % (x, vT))
    ce(k0, k1); ce(k2, k3); ce(k0, k2); ce(k1, k3); ce(k1, k2)
    a("v_mov_b32 v%d, 0" % vRes)
    a("s_mov_b32 s%d, 0" % sI)
    a.label("L_moe_t1")
    a("v_mov_b32 v%d, v%d" % (vT, k0))
    wave_max_u32(a, vT)
    a("s_nop 0")
    a("v_readlane_b32 s%d, v%d, 63" % (sVal, vT))
    a("s_mov_b32 m0, s%d" % sI)
    a("s_nop 0")
    a("v_cmp_eq_u32 vcc, s%d, v%d" % (sVal, k0))
    a("v_writelane_b32 v%d, s%d, m0" % (vRes, sVal))
    a("s_add_u32 s%d, s%d, 1" % (sI, sI))
    a("v_cndmask_b32 v%d, v%d, v%d, vcc" % (k0, k0, k1))
    a("v_cndmask_b32 v%d, v%d, v%d, vcc" % (k1, k1, k2))
    a("v_cndmask_b32 v%d, v%d, v%d, vcc" % (k2, k2, k3))
    a("v_cndmask_b32 v%d, v%d, 0, vcc" % (k3, k3))
    a("s_cmp_lt_u32 s%d, 8" % sI)
    a("s_cbranch_scc1 L_moe_t1")
    a("s_lshl_b32 s%d, s%d, 5" % (sT0, sW))
    a("s_add_u32 s%d, s%d, %d" % (sT0, sT0, M_CAND))
    a("v_lshl_add_u32 v6, v%d, 2, s%d" % (vLane, sT0))
    a("s_mov_b32 exec_lo, 0xff")
    a("s_mov_b32 exec_hi, 0")
    a("ds_write_b32 v6, v%d" % vRes)
    a("s_mov_b64 exec, -1")
    a("v_lshlrev_b32 v6, 2, v%d" % vLane)
    a("v_add_u32 v6, %d, v6" % M_CAND)
    a("s_waitcnt lgkmcnt(0)")
    a("s_barrier")
    a("ds_read_b32 v%d, v6" % k0)
    a("v_mov_b32 v%d, 0" % vRes)
    a("s_mov_b32 s%d, 0" % sI)
    a("s_waitcnt lgkmcnt(0)")
    a.label("L_moe_t2")
    a("v_mov_b32 v%d, v%d" % (vT, k0))
    wave_max_u32(a, vT)
    a("s_nop 0")
    a("v_readlane_b32 s%d, v%d, 63" % (sVal, vT))
    a("s_mov_b32 m0, s%d" % sI)
    a("s_nop 0")
    a("v_cmp_eq_u32 vcc, s%d, v%d" % (sVal, k0))
    a("v_writelane_b32 v%d, s%d, m0" % (vRes, sVal))
    a("s_add_u32 s%d, s%d, 1" % (sI, sI))
    a("v_cndmask_b32 v%d, v%d, 0, vcc" % (k0, k0))
    a("s_cmp_lt_u32 s%d, 8" % sI)
    a("s_cbranch_scc1 L_moe_t2")
    stamp(a, 3)
    a("s_nop 1")
    a("v_readlane_b32 s%d, v%d, s%d" % (sTok, vRes, sW))
    a("s_nop 3")
    a("s_and_b32 s%d, s%d, 0xffff" % (sTok, sTok))
    a("s_sub_u32 s%d, 0xffff, s%d" % (sTok, sTok))
    a("s_lshl_b32 s%d, s%d, 10" % (sT0, sTok))
    a("v_lshlrev_b32 v6, 4, v%d" % vLane)
    a("buffer_load_dwordx4 v[24:27], v6, s[%d:%d], s%d offen" % (sX, sX + 3, sT0))
    a("s_lshl_b32 s%d, s%d, 3" % (sT1, sTok))
    a("s_add_u32 s%d, s%d, 0x%x" % (sT1, sT1, WS_STATS))
    a("v_mov_b32 v7, 0")
    a("buffer_load_dwordx2 v[22:23], v7, s[%d:%d], s%d offen" % (sWS, sWS + 3, sT1))
    a("s_or_b32 s%d, s%d, s%d" % (sT0, sSl, sW))
    a("s_cmp_lg_u32 s%d, 0" % sT0)
    a("s_cbranch_scc1 L_moe_nosel")
    a("v_and_b32 v8, 0xffff, v%d" % vRes)
    a("v_sub_u32 v8, 0xffff, v8")
    a("v_lshrrev_b32 v9, 16, v%d" % vRes)
    a("v_cmp_le_u32 vcc, 0x8000, v9")
    a("v_xor_b32 v10, 0x8000, v9")
    a("v_xor_b32 v11, 0xffff, v9")
    a("v_cndmask_b32 v9, v11, v10, vcc")
    a("v_lshlrev_b32 v9, 16, v9")
    a("v_mul_f32 v9, %s, v9" % fhex(-LOG2E))
    a("v_exp_f32 v9, v9")
    a("s_nop 0")
    a("v_add_f32 v9, 1.0, v9")
    a("v_rcp_f32 v9, v9")
    a("s_nop 0")
    bf16r(a, "v9", "v9")
    a("v_lshlrev_b32 v10, 2, v%d" % vLane)
    a("s_mov_b32 s%d, 0x%x" % (sT0, WS_SEL))
    a("s_mov_b32 exec_lo, 0xff")
    a("s_mov_b32 exec_hi, 0")
    a("buffer_store_dword v8, v10, s[%d:%d], s%d offen" % (sWS, sWS + 3, sT0))
    a("buffer_store_dword v9, v10, s[%d:%d], s%d offen offset:32" % (sWS, sWS + 3, sT0))
    a("s_mov_b64 exec, -1")
    a("s_waitcnt vmcnt(2)")
    a("s_branch L_moe_sel")
    a.label("L_moe_nosel")
    a("s_waitcnt vmcnt(0)")
    a.label("L_moe_sel")
    stamp(a, 4)
    a("s_mov_b32 s44, 0x05040100")
    a("s_mov_b32 s45, 0x07060302")
    for jj in range(4):
        for p in range(4):
            a("v_perm_b32 v%d, v%d, v%d, s%d" % (WF + 4 * jj + p, WR + 2 * (2 * p + 1) + (jj >> 1), WR + 2 * (2 * p) + (jj >> 1), 44 + (jj & 1)))
    for i in range(4):
        a("v_lshlrev_b32 v%d, 16, v%d" % (64 + 2 * i, 24 + i))
        a("v_and_b32 v%d, 0xffff0000, v%d" % (65 + 2 * i, 24 + i))
    for i in range(8):
        a("v_sub_f32 v%d, v%d, v22" % (64 + i, 64 + i))
    for i in range(4):
        a("v_cvt_pk_bf16_f32 v%d, v%d, v%d" % (24 + i, 64 + 2 * i, 65 + 2 * i))
    for i in range(4):
        a("v_lshlrev_b32 v%d, 16, v%d" % (64 + 2 * i, 24 + i))
        a("v_and_b32 v%d, 0xffff0000, v%d" % (65 + 2 * i, 24 + i))
    for i in range(8):
        a("v_mul_f32 v%d, v%d, v23" % (64 + i, 64 + i))
    for i in range(4):
        a("v_cvt_pk_bf16_f32 v%d, v%d, v%d" % (24 + i, 64 + 2 * i, 65 + 2 * i))
    a("s_mul_i32 s%d, s%d, 1040" % (sT0, sW))
    a("s_add_u32 s%d, s%d, %d" % (sT0, sT0, M_XS))
    a("v_add_u32 v6, s%d, v6" % sT0)
    a("ds_write_b128 v6, v[24:27]")
    a("v_lshrrev_b32 v8, 4, v%d" % vLane)
    a("v_bfe_u32 v9, v%d, 2, 2" % vLane)
    a("v_and_b32 v10, 3, v%d" % vLane)
    a("v_lshl_add_u32 v9, v8, 3, v9")
    a("v_lshlrev_b32 v9, 6, v9")
    a("v_lshl_add_u32 v9, v10, 3, v9")
    a("s_bfe_u32 s%d, s%d, 0x10001" % (sI, sW))
    a("v_and_b32 v10, 1, v8")
    a("v_xor_b32 v10, s%d, v10" % sI)
    a("v_lshl_add_u32 v9, v10, 5, v9")
    a("s_and_b32 s%d, s%d, 1" % (sT0, sW))
    a("s_lshr_b32 s%d, s%d, 2" % (sT1, sW))
    a("s_lshl_b32 s44, s%d, 15" % sT0)
    a("s_lshl_b32 s45, s%d, 14" % sT1)
    a("s_add_u32 s44, s44, s45")
    a("v_add_u32 v9, s44, v9")
    a("v_and_b32 v10, 7, v%d" % vLane)
    a("v_mul_u32_u24 v10, 1040, v10")
    a("v_lshl_add_u32 v10, v8, 4, v10")
    a("s_lshl_b32 s45, s%d, 9" % sT1)
    a("s_add_u32 s45, s45, %d" % M_XS)
    a("v_add_u32 v10, s45, v10")
    a("s_lshl_b32 s44, s%d, 1" % sT1)
    a("s_add_u32 s44, s44, s%d" % sT0)
    a("s_lshl_b32 s44, s44, 10")
    a("s_lshl_b32 s45, s%d, 6" % sI)
    a("s_add_u32 s44, s44, s45")
    a("s_add_u32 s44, s44, %d" % M_GU)
    a("v_and_b32 v11, 15, v%d" % vLane)
    a("v_lshlrev_b32 v11, 7, v11")
    a("v_lshl_add_u32 v11, v8, 4, v11")
    a("v_add_u32 v11, s44, v11")
    for r in range(4):
        a("v_mov_b32 v%d, 0" % (28 + r))
    a("s_waitcnt lgkmcnt(0)")
    a("s_barrier")
    stamp(a, 5)
    FA, FB = 64, 80
    def gu_reads(ks):
        a("ds_read_b64_tr_b16 %s, v9 offset:%d" % (v(FA + 4 * (ks % 4), 2), ks * 2048))
        a("ds_read_b64_tr_b16 %s, v9 offset:%d" % (v(FA + 4 * (ks % 4) + 2, 2), ks * 2048 + 256))
        a("ds_read_b128 %s, v10 offset:%d" % (v(FB + 4 * (ks % 4), 4), ks * 64))
    for ks in range(4):
        gu_reads(ks)
    for ks in range(8):
        if ks + 4 < 8:
            a("s_waitcnt lgkmcnt(9)")
        else:
            a("s_waitcnt lgkmcnt(%d)" % (3 * (7 - ks)))
        a("v_mfma_f32_16x16x32_bf16 v[28:31], %s, %s, v[28:31]" % (v(FA + 4 * (ks % 4), 4), v(FB + 4 * (ks % 4), 4)))
        if ks + 4 < 8:
            gu_reads(ks + 4)
    a("s_mov_b32 exec_lo, 0x00ff00ff")
    a("s_mov_b32 exec_hi, 0x00ff00ff")
    a("s_nop 7")
    a("ds_write_b128 v11, v[28:31]")
    a("s_mov_b64 exec, -1")
    a("s_waitcnt lgkmcnt(0)")
    a("s_barrier")
    a("s_cmp_ge_u32 s%d, 4" % sW)
    a("s_cbranch_scc1 L_moe_hdone")
    a("v_lshlrev_b32 v8, 2, v0")
    a("v_add_u32 v8, %d, v8" % M_GU)
    a("ds_read_b32 v12, v8")
    a("ds_read_b32 v13, v8 offset:2048")
    a("ds_read_b32 v14, v8 offset:1024")
    a("ds_read_b32 v15, v8 offset:3072")
    a("v_lshlrev_b32 v8, 1, v0")
    a("v_add_u32 v8, %d, v8" % M_HS)
    a("s_waitcnt lgkmcnt(0)")
    a("v_add_f32 v12, v12, v13")
    a("v_add_f32 v14, v14, v15")
    bf16r(a, "v12", "v12")
    bf16r(a, "v14", "v14")
    a("v_mul_f32 v13, %s, v12" % fhex(-LOG2E))
    a("v_exp_f32 v13, v13")
    a("s_nop 0")
    a("v_add_f32 v13, 1.0, v13")
    a("v_rcp_f32 v13, v13")
    a("s_nop 0")
    a("v_mul_f32 v12, v12, v13")
    bf16r(a, "v12", "v12")
    a("v_mul_f32 v12, v12, v14")
    a("v_cvt_pk_bf16_f32 v12, v12, v12")
    a("ds_write_b16 v8, v12")
    a("s_waitcnt lgkmcnt(0)")
    a.label("L_moe_hdone")
    a("s_barrier")
    stamp(a, 6)
    a("v_and_b32 v8, 7, v%d" % vLane)
    a("v_lshrrev_b32 v9, 4, v%d" % vLane)
    a("v_lshlrev_b32 v8, 6, v8")
    a("v_lshl_add_u32 v8, v9, 4, v8")
    a("v_add_u32 v8, %d, v8" % M_HS)
    a("ds_read_b128 v[64:67], v8")
    a("v_and_b32 v10, 15, v%d" % vLane)
    a("v_lshlrev_b32 v10, 11, v10")
    a("v_lshl_add_u32 v10, v9, 6, v10")
    a("s_lshl_b32 s44, s%d, 14" % sSl)
    a("s_lshl_b32 s45, s%d, 8" % sW)
    a("s_add_u32 s44, s44, s45")
    a("s_add_u32 s44, s44, 0x%x" % WS_PART)
    a("s_waitcnt lgkmcnt(0)")
    for jj in range(4):
        a("v_mfma_f32_16x16x32_bf16 %s, %s, v[64:67], 0" % (v(68 + 4 * jj, 4), v(WF + 4 * jj, 4)))
    a("s_mov_b32 exec_lo, 0x00ff00ff")
    a("s_mov_b32 exec_hi, 0x00ff00ff")
    a("s_nop 7")
    for jj in range(4):
        a("buffer_store_dwordx4 %s, v10, s[%d:%d], s44 offen offset:%d" % (v(68 + 4 * jj, 4), sWS, sWS + 3, jj * 16))
    stamp_flush(a, 1, sWS, sW)
    a("s_endpgm")

def gen_k2():
    a = Asm()
    N = "k2_kernel"
    a(kernel_head(N))
    a("s_cmp_ge_u32 s2, %d" % K2_GRID)
    a("s_cbranch_scc1 L_k2_end")
    stamp_begin(a, 127)
    a("s_load_dwordx2 s[6:7], s[0:1], 80")
    a("s_cmp_ge_u32 s2, 256")
    a("s_cbranch_scc1 L_moe")
    gen_attn(a)
    a.label("L_moe")
    gen_moe(a)
    a.label("L_k2_end")
    a("s_endpgm")
    return a.text(), 128
```

```python
from dsl import *
from k1 import *

K3_Y = 131072
K3_LDS = K3_Y + 512

def gen_k3():
    a = Asm()
    N = "k3_kernel"
    a(kernel_head(N))
    vLane = 1
    vOa, vWa, vOr, vWr, vXo = 4, 5, 6, 7, 8
    acc = 16
    XR = 32
    base = 40
    FB, FA = 64, 96
    sWS, sX, sWo, sOut = 8, 12, 16, 20
    sRb, sCb, sW, sMt, sNt, sT0, sT1, sPh, sTile = 28, 29, 30, 31, 32, 33, 34, 35, 36
    sIdx, sSig = 40, 48
    a("s_cmp_ge_u32 s2, 256")
    a("s_cbranch_scc1 L_k3_end")
    stamp_begin(a, 62)
    a("s_load_dwordx2 s[4:5], s[0:1], 0")
    a("s_load_dwordx2 s[6:7], s[0:1], 16")
    a("s_load_dwordx4 s[24:27], s[0:1], 64")
    a("s_load_dwordx2 s[38:39], s[0:1], 80")
    a("s_and_b32 s%d, s2, 7" % sT0)
    a("s_lshr_b32 s%d, s2, 3" % sT1)
    a("s_lshr_b32 s%d, s%d, 1" % (sRb, sT0))
    a("s_lshl_b32 s%d, s%d, 3" % (sRb, sRb))
    a("s_and_b32 s%d, s%d, 7" % (sCb, sT1))
    a("s_add_u32 s%d, s%d, s%d" % (sRb, sRb, sCb))
    a("s_and_b32 s%d, s%d, 1" % (sCb, sT0))
    a("s_lshl_b32 s%d, s%d, 2" % (sCb, sCb))
    a("s_lshr_b32 s%d, s%d, 3" % (sT1, sT1))
    a("s_add_u32 s%d, s%d, s%d" % (sCb, sCb, sT1))
    a("v_lshrrev_b32 v2, 6, v0")
    a("v_and_b32 v%d, 63, v0" % vLane)
    a("v_readfirstlane_b32 s%d, v2" % sW)
    a("v_lshlrev_b32 v%d, 4, v%d" % (vOa, vLane))
    a("v_lshrrev_b32 v2, 3, v%d" % vLane)
    a("v_and_b32 v3, 7, v%d" % vLane)
    a("v_bfe_u32 v9, v%d, 4, 1" % vLane)
    a("v_lshlrev_b32 v9, 2, v9")
    a("v_xor_b32 v3, v3, v9")
    a("v_lshlrev_b32 v3, 4, v3")
    a("v_lshl_add_u32 v%d, v2, 10, v3" % vWa)
    a("s_and_b32 s%d, s%d, 1" % (sMt, sW))
    a("s_lshr_b32 s%d, s%d, 1" % (sNt, sW))
    a("s_lshl_b32 s%d, s%d, 1" % (sTile, sRb))
    a("s_add_u32 s%d, s%d, s%d" % (sTile, sTile, sMt))
    a("s_waitcnt lgkmcnt(0)")
    stamp(a, 1)
    ws_adjust(a, 38)
    srd(a, sWS, 38, WS_SIZE)
    srd(a, sWo, 6, 512 * 1024)
    a("s_lshl_b32 s52, s%d, 15" % sTile)
    a("s_lshl_b32 s53, s%d, 12" % sNt)
    a("s_add_u32 s52, s52, s53")
    a("s_add_u32 s52, s52, 0x%x" % WS_OF)
    a("s_lshl_b32 s54, s%d, 15" % sMt)
    a("s_add_u32 s54, s54, s53")
    a("s_lshl_b32 s55, s%d, 15" % sW)
    a("s_lshl_b32 s53, s%d, 7" % sCb)
    a("s_add_u32 s55, s55, s53")
    a("s_lshl_b32 s56, s%d, 12" % sW)
    a("s_add_u32 s56, s56, 65536")
    for ph in range(4):
        for q in range(4):
            a("s_add_u32 m0, s54, %d" % (ph * 8192 + q * 1024))
            a("s_add_u32 s53, s52, %d" % (ph * 8192 + q * 1024))
            a("buffer_load_dwordx4 v%d, s[%d:%d], s53 offen lds" % (vOa, sWS, sWS + 3))
        for q in range(4):
            a("s_add_u32 m0, s56, %d" % (ph * 16384 + q * 1024))
            a("s_add_u32 s53, s55, %d" % (ph * 131072 + q * 8192))
            a("buffer_load_dwordx4 v%d, s[%d:%d], s53 offen lds" % (vWa, sWo, sWo + 3))
    srd(a, sX, 4, 2048 * 1024)
    srd(a, sOut, 24, 2048 * 1024)
    a("s_add_u32 s62, s38, 0x%x" % WS_SEL)
    a("s_addc_u32 s63, s39, 0")
    a("s_load_dwordx16 s[%d:%d], s[62:63], 0" % (sIdx, sIdx + 15))
    a("v_and_b32 v2, 31, v%d" % vLane)
    a("v_lshrrev_b32 v3, 5, v%d" % vLane)
    a("s_lshl_b32 s%d, s%d, 5" % (sT0, sTile))
    a("v_add_u32 v9, s%d, v2" % sT0)
    a("v_lshlrev_b32 v%d, 10, v9" % vXo)
    a("v_lshl_add_u32 v%d, v3, 4, v%d" % (vXo, vXo))
    a("s_lshl_b32 s%d, s%d, 7" % (sT0, sCb))
    a("s_lshl_b32 s%d, s%d, 6" % (sT1, sNt))
    a("s_add_u32 s%d, s%d, s%d" % (sT0, sT0, sT1))
    a("v_add_u32 v%d, s%d, v%d" % (vXo, sT0, vXo))
    a("buffer_load_dwordx4 %s, v%d, s[%d:%d], 0 offen" % (v(XR, 4), vXo, sX, sX + 3))
    a("buffer_load_dwordx4 %s, v%d, s[%d:%d], 0 offen offset:32" % (v(XR + 4, 4), vXo, sX, sX + 3))
    a("v_lshlrev_b32 v9, 4, v9")
    a("s_mov_b32 s%d, 0x%x" % (sT0, WS_REC))
    a("buffer_load_dwordx2 v[10:11], v9, s[%d:%d], s%d offen" % (sWS, sWS + 3, sT0))
    a("s_lshl_b32 s%d, s%d, 15" % (sT0, sMt))
    a("v_add_u32 v%d, s%d, v%d" % (vOr, sT0, vOa))
    a("v_bfe_u32 v12, v%d, 2, 2" % vLane)
    a("v_lshl_add_u32 v13, v3, 2, v12")
    a("v_lshlrev_b32 v13, 7, v13")
    a("v_lshrrev_b32 v12, 1, v12")
    a("v_xor_b32 v12, s%d, v12" % sNt)
    a("v_lshl_add_u32 v13, v12, 6, v13")
    a("v_bfe_u32 v12, v%d, 4, 1" % vLane)
    a("v_lshl_add_u32 v13, v12, 5, v13")
    a("v_and_b32 v12, 3, v%d" % vLane)
    a("v_lshl_add_u32 v13, v12, 3, v13")
    a("v_add_u32 v%d, 0x10000, v13" % vWr)
    for r in range(16):
        a("v_mov_b32 v%d, 0" % (acc + r))
    def step_reads(ks, buf):
        a("ds_read_b128 %s, v%d offset:%d" % (v(FB + 4 * buf, 4), vOr, ks * 1024))
        a("ds_read_b64_tr_b16 %s, v%d offset:%d" % (v(FA + 4 * buf, 2), vWr, ks * 2048))
        a("ds_read_b64_tr_b16 %s, v%d offset:%d" % (v(FA + 4 * buf + 2, 2), vWr, ks * 2048 + 1024))
    a("s_mov_b32 s%d, 0" % sPh)
    a("s_waitcnt lgkmcnt(0)")
    stamp(a, 2)
    if PROF:
        a("s_waitcnt vmcnt(27)")
        stamp(a, 3)
    a.label("L_k3_loop")
    a("s_cmp_eq_u32 s%d, 0" % sPh); a("s_cbranch_scc0 L_k3_w1")
    a("s_waitcnt vmcnt(27)"); a("s_branch L_k3_go")
    a.label("L_k3_w1")
    a("s_cmp_eq_u32 s%d, 1" % sPh); a("s_cbranch_scc0 L_k3_w2")
    a("s_waitcnt vmcnt(19)"); a("s_branch L_k3_go")
    a.label("L_k3_w2")
    a("s_cmp_eq_u32 s%d, 2" % sPh); a("s_cbranch_scc0 L_k3_w3")
    a("s_waitcnt vmcnt(11)"); a("s_branch L_k3_go")
    a.label("L_k3_w3")
    a("s_waitcnt vmcnt(3)")
    a.label("L_k3_go")
    a("s_barrier")
    for ks in range(4):
        step_reads(ks, ks)
    for ks in range(8):
        a("s_waitcnt lgkmcnt(%d)" % (9 if ks < 5 else 3 * (7 - ks)))
        a("v_mfma_f32_32x32x16_bf16 %s, %s, %s, %s" % (v(acc, 16), v(FA + 4 * ks, 4), v(FB + 4 * ks, 4), v(acc, 16)))
        if ks + 4 < 8:
            step_reads(ks + 4, ks + 4)
    a("v_add_u32 v%d, 0x2000, v%d" % (vOr, vOr))
    a("v_add_u32 v%d, 0x4000, v%d" % (vWr, vWr))
    a("s_add_u32 s%d, s%d, 1" % (sPh, sPh))
    a("s_cmp_lt_u32 s%d, 4" % sPh)
    a("s_cbranch_scc1 L_k3_loop")
    stamp(a, 4)
    a("s_waitcnt vmcnt(0) lgkmcnt(0)")
    for i in range(8):
        a("v_lshlrev_b32 v%d, 16, v%d" % (base + 2 * i, XR + i))
        a("v_and_b32 v%d, 0xffff0000, v%d" % (base + 2 * i + 1, XR + i))
    for i in range(8):
        a("v_sub_f32 v%d, v%d, v10" % (64 + 2 * i, base + 2 * i))
        a("v_sub_f32 v%d, v%d, v10" % (65 + 2 * i, base + 2 * i + 1))
        a("v_cvt_pk_bf16_f32 v%d, v%d, v%d" % (XR + i, 64 + 2 * i, 65 + 2 * i))
    for i in range(8):
        a("v_lshlrev_b32 v%d, 16, v%d" % (64 + 2 * i, XR + i))
        a("v_and_b32 v%d, 0xffff0000, v%d" % (65 + 2 * i, XR + i))
        a("v_mul_f32 v%d, v%d, v11" % (64 + 2 * i, 64 + 2 * i))
        a("v_mul_f32 v%d, v%d, v11" % (65 + 2 * i, 65 + 2 * i))
        a("v_cvt_pk_bf16_f32 v%d, v%d, v%d" % (XR + i, 64 + 2 * i, 65 + 2 * i))
    for i in range(8):
        a("v_lshlrev_b32 v%d, 16, v%d" % (64 + 2 * i, XR + i))
        a("v_and_b32 v%d, 0xffff0000, v%d" % (65 + 2 * i, XR + i))
    XN = 64
    stamp(a, 5)
    a("v_lshrrev_b32 v12, 3, v%d" % vLane)
    a("v_and_b32 v13, 7, v%d" % vLane)
    a("v_lshlrev_b32 v12, 14, v12")
    a("v_lshl_add_u32 v12, v13, 4, v12")
    a("s_lshl_b32 s%d, s%d, 8" % (sT0, sCb))
    a("s_lshl_b32 s%d, s%d, 7" % (sT1, sNt))
    a("s_add_u32 s%d, s%d, s%d" % (sT0, sT0, sT1))
    a("s_add_u32 s57, s%d, 0x%x" % (sT0, WS_PART))
    a("s_lshl_b32 s%d, s%d, 7" % (sT0, sW))
    a("s_add_u32 s%d, s%d, %d" % (sT0, sT0, K3_Y))
    a("v_lshrrev_b32 v14, 2, v13")
    a("v_lshlrev_b32 v14, 4, v14")
    a("v_and_b32 v15, 3, v13")
    a("v_add_u32 v14, v14, v15")
    a("v_lshl_add_u32 v14, v14, 2, s%d" % sT0)
    a("v_lshl_add_u32 v15, v3, 5, s%d" % sT0)
    for j in range(8):
        a("s_lshr_b32 s%d, s%d, 5" % (sT1, sIdx + j))
        a("s_cmp_eq_u32 s%d, s%d" % (sT1, sTile))
        a("s_cbranch_scc0 L_k3_m%d" % j)
        a("s_add_u32 s58, s57, %d" % (j * 2048))
        for q in range(7):
            a("buffer_load_dwordx4 %s, v12, s[%d:%d], s58 offen" % (v(96 + 4 * q, 4), sWS, sWS + 3))
            a("s_add_u32 s58, s58, 0x20000")
        a("s_waitcnt vmcnt(0)")
        for q in range(1, 7):
            for e in range(4):
                a("v_add_f32 v%d, v%d, v%d" % (96 + e, 96 + e, 96 + 4 * q + e))
        a("s_nop 1")
        for e in range(4):
            a("v_add_f32_dpp v%d, v%d, v%d row_ror:8 row_mask:0xf bank_mask:0xf" % (96 + e, 96 + e, 96 + e))
        for sw in ("v_permlane16_swap_b32", "v_permlane32_swap_b32"):
            for e in range(4):
                a("v_mov_b32 v%d, v%d" % (100 + e, 96 + e))
            a("s_nop 1")
            for e in range(4):
                a("%s v%d, v%d" % (sw, 96 + e, 100 + e))
            a("s_nop 0")
            for e in range(4):
                a("v_add_f32 v%d, v%d, v%d" % (96 + e, 96 + e, 100 + e))
        for e in range(4):
            bf16r(a, "v%d" % (96 + e), "v%d" % (96 + e))
            a("v_mul_f32 v%d, s%d, v%d" % (96 + e, sSig + j, 96 + e))
            bf16r(a, "v%d" % (96 + e), "v%d" % (96 + e))
        for e in range(4):
            a("ds_write_b32 v14, v%d offset:%d" % (96 + e, e * 16))
        a("ds_read_b128 v[100:103], v15")
        a("ds_read_b128 v[104:107], v15 offset:16")
        a("ds_read_b128 v[108:111], v15 offset:64")
        a("ds_read_b128 v[112:115], v15 offset:80")
        a("s_and_b32 s%d, s%d, 31" % (sT1, sIdx + j))
        a("v_cmp_eq_u32 vcc, s%d, v2" % sT1)
        a("s_waitcnt lgkmcnt(0)")
        a("s_and_saveexec_b64 s[60:61], vcc")
        for r in range(16):
            a("v_add_f32 v%d, v%d, v%d" % (XN + r, XN + r, 100 + r))
            bf16r(a, "v%d" % (XN + r), "v%d" % (XN + r))
        a("s_mov_b64 exec, s[60:61]")
        a.label("L_k3_m%d" % j)
    stamp(a, 6)
    for i in range(8):
        a("v_pk_add_f32 %s, %s, %s" % (v(base + 2 * i, 2), v(base + 2 * i, 2), v(XN + 2 * i, 2)))
    a("s_nop 1")
    for r in range(4):
        a("v_permlane32_swap_b32 v%d, v%d" % (acc + r, acc + 4 + r))
        a("v_permlane32_swap_b32 v%d, v%d" % (acc + 8 + r, acc + 12 + r))
    for i in range(8):
        a("v_pk_add_f32 %s, %s, %s" % (v(base + 2 * i, 2), v(base + 2 * i, 2), v(acc + 2 * i, 2)))
    for i in range(8):
        a("v_cvt_pk_bf16_f32 v%d, v%d, v%d" % (XR + i, base + 2 * i, base + 2 * i + 1))
    a("buffer_store_dwordx4 %s, v%d, s[%d:%d], 0 offen" % (v(XR, 4), vXo, sOut, sOut + 3))
    a("buffer_store_dwordx4 %s, v%d, s[%d:%d], 0 offen offset:32" % (v(XR + 4, 4), vXo, sOut, sOut + 3))
    stamp_flush(a, 2, sWS, sW)
    a.label("L_k3_end")
    a("s_endpgm")
    return a.text(), 128
```

```python
from dsl import *

WS_QF = 0x000000
WS_KF = 0x200000
WS_VF = 0x400000
WS_OF = 0x600000
WS_REC = 0x800000
WS_CSR = 0x808000
WS_SEL = 0x80e000
WS_PART = 0x810000
WS_SIZE = 0xB00000 if PROF else 0x900000
NSLICE = 56
K1_GRID = 256

QSCALE = 0.25 * 1.4426950408889634
LOG2E = 1.4426950408889634

def fhex(x):
    import struct
    return "0x%08x" % struct.unpack("<I", struct.pack("<f", x))[0]

G_ST = 131072
G_LDS = G_ST + 1024
K1_LDS = G_LDS

sXP, sWP, sWRP, sWGP, sWUP, sWDP, sDBG, sWSP = 4, 6, 12, 14, 16, 18, 20, 22
sWave = 3

def wave_max_u32(a, t):
    for dp in ["quad_perm:[1,0,3,2] row_mask:0xf", "quad_perm:[2,3,0,1] row_mask:0xf", "row_half_mirror row_mask:0xf", "row_mirror row_mask:0xf",
               "row_bcast:15 row_mask:0xa", "row_bcast:31 row_mask:0xc"]:
        a("s_nop 1")
        a("v_max_u32_dpp v%d, v%d, v%d %s bank_mask:0xf" % (t, t, t, dp))

def poll_flags(a, tag, vaddr, srdreg, lanes_mask_lo, tmp):
    a("s_mov_b32 s98, 0")
    a.label("L_poll_%s" % tag)
    a("buffer_load_dword v%d, v%d, s[%d:%d], 0 offen sc1" % (tmp, vaddr, srdreg, srdreg + 3))
    a("s_add_u32 s98, s98, 1")
    a("s_waitcnt vmcnt(0)")
    a("v_cmp_eq_u32 vcc, 0, v%d" % tmp)
    a("s_cmp_gt_u32 s98, 0x40000")
    a("s_cbranch_scc1 L_polld_%s" % tag)
    a("s_and_b32 s99, vcc_lo, 0x%x" % lanes_mask_lo)
    a("s_cbranch_scc0 L_polld_%s" % tag)
    a("s_sleep 8")
    a("s_branch L_poll_%s" % tag)
    a.label("L_polld_%s" % tag)

def get_nonce(a, tag, sdb, vtmp, vzero, sdst):
    a("v_mov_b32 v%d, 0" % vzero)
    a("s_mov_b32 s98, 0")
    a.label("L_nonce_%s" % tag)
    a("buffer_load_dword v%d, v%d, s[%d:%d], 0 offen sc1" % (vtmp, vzero, sdb, sdb + 3))
    a("s_add_u32 s98, s98, 1")
    a("s_waitcnt vmcnt(0)")
    a("v_readfirstlane_b32 s%d, v%d" % (sdst, vtmp))
    a("s_cmp_gt_u32 s98, 0x40000")
    a("s_cbranch_scc1 L_nonced_%s" % tag)
    a("s_cmp_lg_u32 s%d, 0" % sdst)
    a("s_cbranch_scc1 L_nonced_%s" % tag)
    a("s_sleep 4")
    a("s_branch L_nonce_%s" % tag)
    a.label("L_nonced_%s" % tag)

def gen_e(a):
    vLane = 1
    sX, sW, sWS, sDb, sWR = 24, 28, 32, 36, 40
    sT0, sT1, sEb, sStrip, sTag = 44, 45, 49, 50, 51
    L_CS = 0
    srd(a, sX, sXP, 2048 * 1024)
    srd(a, sWR, sWRP, 1024)
    a("s_and_b32 s%d, s2, 1" % sT0)
    a("s_bfe_u32 s%d, s2, 0x20001" % sT1)
    a("s_lshr_b32 s46, s2, 3")
    a("s_lshl_b32 s%d, s%d, 3" % (sEb, sT1))
    a("s_lshl_b32 s47, s%d, 2" % sT0)
    a("s_add_u32 s%d, s%d, s47" % (sEb, sEb))
    a("s_add_u32 s%d, s%d, s46" % (sEb, sEb))
    a("v_lshrrev_b32 v2, 4, v%d" % vLane)
    a("v_and_b32 v3, 15, v%d" % vLane)
    a("v_lshlrev_b32 v3, 4, v3")
    a("v_lshl_add_u32 v4, v2, 10, v3")
    WP = 16
    a("s_lshl_b32 s%d, s%d, 6" % (sT0, sEb))
    a("s_lshl_b32 s%d, s%d, 3" % (sT1, sWave))
    a("s_add_u32 s46, s%d, s%d" % (sT0, sT1))
    a("s_lshl_b32 s47, s46, 10")
    XP = 32
    for g in range(2):
        for q in range(4):
            a("buffer_load_dwordx4 %s, v4, s[%d:%d], s47 offen offset:%d" % (v(XP + 16 * g + 4 * q, 4), sX, sX + 3, q * 256))
        if g == 0:
            for q in range(4):
                a("buffer_load_dwordx4 %s, v3, s[%d:%d], 0 offen offset:%d" % (v(WP + 4 * q, 4), sWR, sWR + 3, q * 256))
            a("s_add_u32 s47, s47, 4096")
    srd(a, sDb, sDBG, 256)
    a("v_mov_b32 v13, 0")
    a("buffer_load_dword v12, v13, s[%d:%d], 0 offen sc1" % (sDb, sDb + 3))
    stamp(a, 1)
    srd(a, sWS, sWSP, WS_SIZE)
    a("v_mov_b32 v5, 0x3f803f80")
    a("v_mov_b32 v8, 0")
    a("v_add_u32 v15, s46, v2")
    dps = ["quad_perm:[1,0,3,2]", "quad_perm:[2,3,0,1]", "row_half_mirror", "row_mirror"]
    a("s_waitcnt vmcnt(5)")
    for i in range(16):
        a("v_dot2_f32_bf16 v8, v%d, v5, v8" % (WP + i))
    A0, A1, A2 = 9, 10, 11
    OUT = [100, 104]
    for g in range(2):
        if g == 1:
            a("s_waitcnt vmcnt(1)")
        if g == 0:
            stamp(a, 2)
        a("v_mov_b32 v%d, 0" % A0); a("v_mov_b32 v%d, 0" % A1); a("v_mov_b32 v%d, 0" % A2)
        for i in range(16):
            x = XP + 16 * g + i
            a("v_dot2_f32_bf16 v%d, v%d, v5, v%d" % (A0, x, A0))
            a("v_dot2_f32_bf16 v%d, v%d, v%d, v%d" % (A1, x, x, A1))
            a("v_dot2_f32_bf16 v%d, v%d, v%d, v%d" % (A2, x, WP + i, A2))
        a("s_nop 2")
        for dp in dps:
            for r in ((A0, A1, A2, 8) if g == 0 else (A0, A1, A2)):
                a("v_add_f32_dpp v%d, v%d, v%d %s row_mask:0xf bank_mask:0xf" % (r, r, r, dp))
        M, RS, KEY = OUT[g], OUT[g] + 1, OUT[g] + 2
        a("v_mul_f32 v%d, %s, v%d" % (M, fhex(1.0 / 512), A0))
        a("v_mul_f32 v14, %s, v%d" % (fhex(1.0 / 512), A1))
        a("v_fma_f32 v14, -v%d, v%d, v14" % (M, M))
        a("v_max_f32 v14, 0, v14")
        bf16r(a, "v%d" % M, "v%d" % M)
        bf16r(a, "v14", "v14")
        a("v_add_f32 v14, %s, v14" % fhex(1e-5))
        bf16r(a, "v14", "v14")
        a("v_sqrt_f32 v14, v14")
        a("s_nop 0")
        bf16r(a, "v14", "v14")
        a("v_rcp_f32 v%d, v14" % RS)
        a("v_fma_f32 v14, -v%d, v8, v%d" % (M, A2))
        a("v_mul_f32 v14, v14, v%d" % RS)
        a("v_cvt_pk_bf16_f32 v14, v14, v14")
        a("v_and_b32 v14, 0xffff, v14")
        a("v_cmp_gt_u32 vcc, 0x8000, v14")
        a("v_xor_b32 v96, 0x8000, v14")
        a("v_xor_b32 v97, 0xffff, v14")
        a("v_sub_u32 v98, 0xffff, v15")
        a("v_cndmask_b32 v14, v97, v96, vcc")
        a("v_lshl_or_b32 v%d, v14, 16, v98" % KEY)
        a("v_add_u32 v15, 4, v15")
    a("s_waitcnt vmcnt(0)")
    a("v_readfirstlane_b32 s%d, v12" % sTag)
    a("v_and_b32 v9, 15, v%d" % vLane)
    a("v_cmp_eq_u32 vcc, 1, v9")
    a("s_nop 1")
    a("s_cmp_lg_u32 s%d, 0" % sTag)
    a("s_cbranch_scc1 L_e_tag")
    get_nonce(a, "e", sDb, 12, 13, sTag)
    a.label("L_e_tag")
    for q in range(3):
        a("v_cndmask_b32 v%d, v%d, v%d, vcc" % (OUT[0] + q, OUT[0] + q, OUT[1] + q))
    a("v_mov_b32 v%d, s%d" % (OUT[0] + 3, sTag))
    a("v_lshl_add_u32 v10, v9, 2, v2")
    a("v_add_u32 v10, s46, v10")
    a("v_lshlrev_b32 v10, 4, v10")
    a("s_mov_b32 s47, 0x%x" % WS_REC)
    a("s_mov_b32 exec_lo, 0x00030003")
    a("s_mov_b32 exec_hi, 0x00030003")
    a("buffer_store_dwordx4 %s, v10, s[%d:%d], s47 offen sc1" % (v(OUT[0], 4), sWS, sWS + 3))
    a("s_mov_b64 exec, -1")
    stamp(a, 3)
    a.label("L_e_done")
    stamp_flush(a, 0, sWS, sWave)
    a("s_endpgm")

class Net:
    def __init__(self, a, free):
        self.a = a; self.free = list(free)
    def get(self): return self.free.pop(0)
    def put(self, r): self.free.append(r)
    def ce(self, L, i, j):
        hi, lo = self.get(), self.get()
        self.a("v_max_u32 v%d, v%d, v%d" % (hi, L[i], L[j]))
        self.a("v_min_u32 v%d, v%d, v%d" % (lo, L[i], L[j]))
        self.put(L[i]); self.put(L[j])
        L[i], L[j] = hi, lo
    def sort_bitonic8(self, L):
        for st in ([(0, 4), (1, 5), (2, 6), (3, 7)], [(0, 2), (1, 3), (4, 6), (5, 7)], [(0, 1), (2, 3), (4, 5), (6, 7)]):
            for (i, j) in st: self.ce(L, i, j)
    def top8(self, L, dpp, sort=True):
        T = [None] * 8
        for i in range(7, -1, -1):
            T[i] = self.get()
            self.a("v_max_u32_dpp v%d, v%d, v%d %s bank_mask:0xf" % (T[i], L[7 - i], L[i], dpp))
        for r in L: self.put(r)
        if sort: self.sort_bitonic8(T)
        return T

def top8_wave(a, keys, free, wave_sgpr, lds_cand):
    n = Net(a, free)
    L = list(keys)
    for (i, j) in ((0,1),(2,3),(4,5),(6,7),(0,2),(1,3),(4,6),(5,7),(1,2),(5,6),(0,4),(3,7),(1,5),(2,6),(1,4),(3,6),(2,4),(3,5),(3,4)):
        n.ce(L, i, j)
    a("s_nop 0")
    for dp in ("quad_perm:[1,0,3,2] row_mask:0xf", "quad_perm:[2,3,0,1] row_mask:0xf", "row_half_mirror row_mask:0xf", "row_mirror row_mask:0xf",
               "row_bcast:15 row_mask:0xa", "row_bcast:31 row_mask:0xc"):
        L = n.top8(L, dp)
    base = (max(free) + 4) // 4 * 4
    for i in range(8):
        a("v_mov_b32 v%d, v%d" % (base + i, L[i]))
    adr = n.get()
    a("s_lshl_b32 s98, s%d, 5" % wave_sgpr)
    a("s_add_u32 s98, s98, %d" % lds_cand)
    a("v_mov_b32 v%d, s98" % adr)
    a("s_mov_b32 exec_lo, 0")
    a("s_mov_b32 exec_hi, 0x80000000")
    a("ds_write_b128 v%d, %s" % (adr, v(base, 4)))
    a("ds_write_b128 v%d, %s offset:16" % (adr, v(base + 4, 4)))
    a("s_mov_b64 exec, -1")

def top8_final(a, free, lds_cand):
    n = Net(a, free)
    base = (max(free) + 4) // 4 * 4
    adr = n.get()
    a("v_mbcnt_lo_u32_b32 v%d, -1, 0" % adr)
    a("v_mbcnt_hi_u32_b32 v%d, -1, v%d" % (adr, adr))
    a("v_and_b32 v%d, 3, v%d" % (adr, adr))
    a("v_lshlrev_b32 v%d, 5, v%d" % (adr, adr))
    a("v_add_u32 v%d, %d, v%d" % (adr, lds_cand, adr))
    a("ds_read_b128 %s, v%d" % (v(base, 4), adr))
    a("ds_read_b128 %s, v%d offset:16" % (v(base + 4, 4), adr))
    L = [base + i for i in range(8)]
    a("s_waitcnt lgkmcnt(0)")
    L = n.top8(L, "quad_perm:[1,0,3,2] row_mask:0xf")
    L = n.top8(L, "quad_perm:[2,3,0,1] row_mask:0xf")
    return L

def gen_topk(a):
    vLane = 1
    sWS, sDb = 24, 40
    sT0, sT1, sTag = 45, 46, 48
    T_CAND = 0
    srd(a, sWS, sWSP, WS_SIZE)
    srd(a, sDb, sDBG, 256)
    a("s_cmp_ge_u32 s%d, 4" % sWave)
    a("s_cbranch_scc1 L_tk_sync")
    get_nonce(a, "tk", sDb, 12, 13, sTag)
    stamp(a, 1)
    a("v_lshlrev_b32 v3, 4, v0")
    a("s_mov_b32 s98, 0")
    a.label("L_tk_poll")
    a("s_mov_b32 s%d, 0x%x" % (sT0, WS_REC))
    for q in range(8):
        a("buffer_load_dwordx2 %s, v3, s[%d:%d], s%d offen offset:8 sc1" % (v(96 + 2 * q, 2), sWS, sWS + 3, sT0))
        if q < 7:
            a("s_add_u32 s%d, s%d, 4096" % (sT0, sT0))
    a("s_add_u32 s98, s98, 1")
    a("s_waitcnt vmcnt(0)")
    for q in range(8):
        a("v_xor_b32 v%d, s%d, v%d" % (97 + 2 * q, sTag, 97 + 2 * q))
    a("v_or3_b32 v4, v97, v99, v101")
    a("v_or3_b32 v5, v103, v105, v107")
    a("v_or3_b32 v4, v4, v109, v111")
    a("v_or_b32 v4, v4, v5")
    a("v_cmp_ne_u32 vcc, 0, v4")
    a("s_cmp_gt_u32 s98, 0x40000")
    a("s_cbranch_scc1 L_tk_go")
    a("s_cmp_eq_u64 vcc, 0")
    a("s_cbranch_scc1 L_tk_go")
    a("s_sleep 2")
    a("s_branch L_tk_poll")
    a.label("L_tk_go")
    stamp(a, 3)
    top8_wave(a, [96 + 2 * q for q in range(8)], [97 + 2 * q for q in range(8)] + list(range(14, 24)) + [112, 113], sWave, T_CAND)
    a("s_waitcnt lgkmcnt(0)")
    a.label("L_tk_sync")
    a("s_barrier")
    stamp(a, 4)
    a("s_cmp_lg_u32 s%d, 0" % sWave)
    a("s_cbranch_scc1 L_tk_done")
    R = top8_final(a, list(range(96, 114)), T_CAND)
    vRes = 20
    a("v_mov_b32 v%d, v%d" % (vRes, R[0]))
    for jx in range(1, 8):
        a("v_cmp_eq_u32 vcc, %d, v%d" % (jx, vLane))
        a("s_nop 1")
        a("v_cndmask_b32 v%d, v%d, v%d, vcc" % (vRes, vRes, R[jx]))
    stamp(a, 5)
    a("v_and_b32 v8, 0xffff, v%d" % vRes)
    a("v_sub_u32 v8, 0xffff, v8")
    a("v_lshrrev_b32 v9, 16, v%d" % vRes)
    a("v_cmp_le_u32 vcc, 0x8000, v9")
    a("v_xor_b32 v10, 0x8000, v9")
    a("v_xor_b32 v11, 0xffff, v9")
    a("v_cndmask_b32 v9, v11, v10, vcc")
    a("v_lshlrev_b32 v9, 16, v9")
    a("v_mul_f32 v9, %s, v9" % fhex(-LOG2E))
    a("v_exp_f32 v9, v9")
    a("s_nop 0")
    a("v_add_f32 v9, 1.0, v9")
    a("v_rcp_f32 v9, v9")
    a("s_nop 0")
    bf16r(a, "v9", "v9")
    a("v_lshlrev_b32 v10, 2, v%d" % vLane)
    a("s_mov_b32 s%d, 0x%x" % (sT0, WS_SEL))
    a("s_mov_b32 exec_lo, 0xff")
    a("s_mov_b32 exec_hi, 0")
    a("buffer_store_dword v8, v10, s[%d:%d], s%d offen" % (sWS, sWS + 3, sT0))
    a("buffer_store_dword v9, v10, s[%d:%d], s%d offen offset:32" % (sWS, sWS + 3, sT0))
    a("s_mov_b64 exec, -1")
    a.label("L_tk_done")
    stamp_flush(a, 0, sWS, sWave)
    a("s_endpgm")

def gen_gemm(a):
    vLane = 1
    sX, sW, sWS, sDb = 24, 28, 32, 36
    sRb, sCb, sT0, sT1, sC, sSlot = 40, 41, 42, 43, 44, 45
    a("s_sub_u32 s%d, s2, 64" % sT0)
    a("s_and_b32 s%d, s%d, 7" % (sT1, sT0))
    a("s_lshr_b32 s%d, s%d, 3" % (sT0, sT0))
    a("s_lshr_b32 s%d, s%d, 1" % (sRb, sT1))
    a("s_lshl_b32 s%d, s%d, 2" % (sRb, sRb))
    a("s_and_b32 s46, s%d, 3" % sT0)
    a("s_add_u32 s%d, s%d, s46" % (sRb, sRb))
    a("s_and_b32 s%d, s%d, 1" % (sCb, sT1))
    a("s_mul_i32 s%d, s%d, 6" % (sCb, sCb))
    a("s_lshr_b32 s%d, s%d, 2" % (sT0, sT0))
    a("s_add_u32 s%d, s%d, s%d" % (sCb, sCb, sT0))
    srd(a, sWS, sWSP, WS_SIZE)
    a("s_cmp_ge_u32 s%d, 4" % sWave)
    a("s_cbranch_scc0 L_g_cons")
    vXa, vXb, vW = 10, 11, 12
    sLw, sXg, sXg2, sWg, sL4 = 46, 47, 48, 49, 50
    srd(a, sX, sXP, 2048 * 1024)
    srd(a, sW, sWP, 512 * 3072)
    a("s_sub_u32 s%d, s%d, 4" % (sLw, sWave))
    a("v_lshrrev_b32 v2, 3, v%d" % vLane)
    a("v_and_b32 v3, 7, v%d" % vLane)
    a("v_lshrrev_b32 v4, 1, v2")
    a("v_xor_b32 v3, v3, v4")
    a("v_xor_b32 v4, 4, v3")
    a("v_lshlrev_b32 v2, 10, v2")
    a("v_lshl_add_u32 v%d, v3, 4, v2" % vXa)
    a("v_lshl_add_u32 v%d, v4, 4, v2" % vXb)
    a("v_add_u32 v%d, 0x2000, v%d" % (vXb, vXb))
    a("v_lshrrev_b32 v2, 4, v%d" % vLane)
    a("v_bfe_u32 v3, v%d, 2, 2" % vLane)
    a("v_xor_b32 v3, v3, v2")
    a("v_and_b32 v4, 3, v%d" % vLane)
    a("v_lshl_add_u32 v3, v3, 2, v4")
    a("v_mul_u32_u24 v2, 0xc00, v2")
    a("v_lshl_add_u32 v%d, v3, 4, v2" % vW)
    for i in range(1, 4):
        a("v_add_u32 v%d, %d, v%d" % (vW + i, i * 12288, vW))
    a("s_lshl_b32 s%d, s%d, 17" % (sXg, sRb))
    a("s_lshl_b32 s%d, s%d, 15" % (sT0, sLw))
    a("s_add_u32 s%d, s%d, s%d" % (sXg, sXg, sT0))
    a("s_mul_i32 s%d, s%d, %d" % (sWg, sLw, 16 * 3072))
    a("s_lshl_b32 s%d, s%d, 8" % (sT0, sCb))
    a("s_add_u32 s%d, s%d, s%d" % (sWg, sWg, sT0))
    a("s_lshl_b32 s%d, s%d, 12" % (sL4, sLw))
    a("s_mov_b32 s%d, 0" % sSlot)
    def issue():
        a("s_add_u32 s%d, s%d, 0x4000" % (sXg2, sXg))
        a("s_add_u32 m0, s%d, s%d" % (sSlot, sL4))
        a("s_nop 0")
        for i in range(4):
            a("buffer_load_dwordx4 v%d, s[%d:%d], s%d offen lds" % (vXa if i % 2 == 0 else vXb, sX, sX + 3, sXg if i < 2 else sXg2))
            a("s_add_u32 m0, m0, %d" % (1024 if i < 3 else 13312))
            a("s_nop 0")
        for i in range(4):
            a("buffer_load_dwordx4 v%d, s[%d:%d], s%d offen lds" % (vW + i, sW, sW + 3, sWg))
            if i < 3:
                a("s_add_u32 m0, m0, 1024")
                a("s_nop 0")
        a("s_add_u32 s%d, s%d, 128" % (sXg, sXg))
        a("s_add_u32 s%d, s%d, %d" % (sWg, sWg, 64 * 3072))
        a("s_add_u32 s%d, s%d, 0x8000" % (sSlot, sSlot))
        a("s_and_b32 s%d, s%d, 0x1ffff" % (sSlot, sSlot))
    a("s_mov_b32 s%d, 0" % sC)
    a.label("L_g_lpro")
    issue()
    a("s_add_u32 s%d, s%d, 1" % (sC, sC))
    a("s_cmp_lt_u32 s%d, 2" % sC)
    a("s_cbranch_scc1 L_g_lpro")
    stamp(a, 1)
    a("s_mov_b32 s%d, 0" % sC)
    a.label("L_g_lloop")
    a("s_waitcnt vmcnt(8)")
    stamp(a, "s%d+10" % sC)
    a("s_barrier")
    issue()
    a("s_add_u32 s%d, s%d, 1" % (sC, sC))
    a("s_cmp_lt_u32 s%d, 4" % sC)
    a("s_cbranch_scc1 L_g_lloop")
    srd(a, sDb, sDBG, 256)
    a("v_mov_b32 v4, 0")
    a("s_waitcnt vmcnt(8)")
    a("s_barrier")
    a("buffer_load_dword v5, v4, s[%d:%d], 0 offen sc1" % (sDb, sDb + 3))
    issue()
    a("s_lshl_b32 s%d, s%d, 11" % (sT0, sRb))
    a("s_add_u32 s51, s%d, 0x%x" % (sT0, WS_REC))
    a("v_and_b32 v7, 31, v%d" % vLane)
    a("s_lshl_b32 s%d, s%d, 9" % (sT0, sLw))
    a("v_lshl_add_u32 v6, v7, 4, s%d" % sT0)
    a("s_lshl_b32 s%d, s%d, 7" % (sT0, sLw))
    a("s_add_u32 s%d, s%d, %d" % (sT0, sT0, G_ST))
    a("v_lshl_add_u32 v7, v7, 2, s%d" % sT0)
    a("s_waitcnt vmcnt(8)")
    a("v_readfirstlane_b32 s52, v5")
    a("s_nop 3")
    a("s_cmp_lg_u32 s52, 0")
    a("s_cbranch_scc1 L_g_nonok")
    get_nonce(a, "g", sDb, 5, 4, 52)
    a.label("L_g_nonok")
    a("s_barrier")
    a("buffer_load_dwordx4 v[16:19], v6, s[%d:%d], s51 offen sc1" % (sWS, sWS + 3))
    issue()
    a("s_waitcnt vmcnt(8)")
    a("s_mov_b32 s98, 0")
    a.label("L_g_rec")
    a("v_cmp_ne_u32 vcc, s52, v19")
    a("s_cmp_gt_u32 s98, 0x40000")
    a("s_cbranch_scc1 L_g_recok")
    a("s_cmp_eq_u64 vcc, 0")
    a("s_cbranch_scc1 L_g_recok")
    a("s_sleep 4")
    a("buffer_load_dwordx4 v[16:19], v6, s[%d:%d], s51 offen sc1" % (sWS, sWS + 3))
    a("s_add_u32 s98, s98, 1")
    a("s_waitcnt vmcnt(0)")
    a("s_branch L_g_rec")
    a.label("L_g_recok")
    a("ds_write_b32 v7, v16")
    a("ds_write_b32 v7, v17 offset:512")
    a("s_barrier")
    a("s_waitcnt vmcnt(0) lgkmcnt(0)")
    a("s_barrier")
    stamp_flush(a, 0, sWS, sWave)
    a("s_endpgm")
    a.label("L_g_cons")
    vXr = [4, 5, 6, 7]
    vWr = [8, 9]
    acc = [[64, 80], [96, 112]]
    XB = [[128, 132], [136, 140]]
    WB = [[144, 148], [152, 156]]
    NM, CSF = [160, 164], [168, 172]
    SEL, CSA = 176, [180, 184]
    sMt, sNt, sHi = 46, 47, 48
    a("s_and_b32 s%d, s%d, 1" % (sMt, sWave))
    a("s_lshr_b32 s%d, s%d, 1" % (sNt, sWave))
    a("v_and_b32 v2, 31, v%d" % vLane)
    a("v_lshrrev_b32 v3, 5, v%d" % vLane)
    a("v_cmp_eq_u32 s[%d:%d], 1, v3" % (sHi, sHi + 1))
    a("v_lshrrev_b32 v10, 1, v2")
    a("v_and_b32 v10, 7, v10")
    a("s_lshl_b32 s%d, s%d, 13" % (sT0, sMt))
    a("v_lshl_add_u32 v11, v2, 7, s%d" % sT0)
    for p in range(4):
        a("v_add_u32 v12, %d, v3" % (2 * p))
        a("v_xor_b32 v12, v12, v10")
        a("v_lshl_add_u32 v%d, v12, 4, v11" % vXr[p])
    a("v_bfe_u32 v12, v%d, 2, 2" % vLane)
    a("v_lshl_add_u32 v13, v3, 3, v12")
    a("v_lshlrev_b32 v13, 8, v13")
    a("v_bfe_u32 v14, v%d, 4, 1" % vLane)
    a("v_lshl_add_u32 v13, v14, 5, v13")
    a("v_and_b32 v14, 3, v%d" % vLane)
    a("v_lshl_add_u32 v13, v14, 3, v13")
    a("v_add_u32 v13, 0x4000, v13")
    a("s_lshl_b32 s%d, s%d, 1" % (sT0, sNt))
    a("v_xor_b32 v14, s%d, v12" % sT0)
    a("v_lshl_add_u32 v%d, v14, 6, v13" % vWr[0])
    a("v_xor_b32 v%d, 64, v%d" % (vWr[1], vWr[0]))
    for r in range(64, 128):
        a("v_mov_b32 v%d, 0" % r)
    for r in list(range(136, 144)) + list(range(152, 176)) + list(range(180, 188)):
        a("v_mov_b32 v%d, 0" % r)
    a("v_bfe_u32 v12, v%d, 4, 1" % vLane)
    a("v_and_b32 v13, 1, v%d" % vLane)
    a("v_cmp_eq_u32 vcc, v12, v13")
    a("v_cmp_eq_u32 s[56:57], 1, v12")
    a("v_mov_b32 v14, 0x3f803f80")
    a("v_cndmask_b32 v%d, 0, v14, vcc" % SEL)
    for i in range(1, 4):
        a("v_mov_b32 v%d, v%d" % (SEL + i, SEL))
    def csum(buf, n):
        a("v_mfma_f32_16x16x32_bf16 %s, %s, %s, %s" % (v(CSA[n], 4), v(SEL, 4), v(WB[buf][n], 4), v(CSA[n], 4)))
    def xread(p, buf, m):
        a("ds_read_b128 %s, v%d offset:%d" % (v(XB[buf][m], 4), vXr[p], m * 4096))
    def wread(p, buf, n, t):
        a("ds_read_b64_tr_b16 %s, v%d offset:%d" % (v(WB[buf][n] + 2 * t, 2), vWr[n], p * 4096 + t * 1024))
    def mm(kind, buf, m, n):
        if kind == 0:
            a("v_mfma_f32_32x32x16_bf16 %s, %s, %s, %s" % (v(acc[m][n], 16), v(WB[buf][n], 4), v(XB[buf][m], 4), v(acc[m][n], 16)))
        else:
            a("v_mfma_f32_32x32x16_bf16 %s, %s, %s, %s" % (v(acc[m][n], 16), v(XB[buf][m], 4), v(WB[buf][n], 4), v(acc[m][n], 16)))
    def step(kind, cur, p, filler=None):
        nxt = cur ^ 1
        a("s_waitcnt lgkmcnt(3)")
        mm(kind, cur, 0, 0)
        xread(p, nxt, 0); wread(p, nxt, 0, 0); wread(p, nxt, 0, 1)
        csum(cur, 0)
        a("s_waitcnt lgkmcnt(4)")
        mm(kind, cur, 0, 1)
        wread(p, nxt, 1, 0); wread(p, nxt, 1, 1); xread(p, nxt, 1)
        csum(cur, 1)
        a("s_waitcnt lgkmcnt(6)")
        mm(kind, cur, 1, 0)
        if filler: filler(0)
        mm(kind, cur, 1, 1)
        if filler: filler(1)
    def adv(h):
        regs = (vXr + vWr)[3 * h:3 * h + 3]
        for r in regs:
            a("v_add_u32 v%d, 0x8000, v%d" % (r, r))
        for r in regs:
            a("v_and_b32 v%d, 0x1ffff, v%d" % (r, r))
    def main_loop(kind, tag):
        a("s_mov_b32 s%d, 0" % sC)
        a.label("L_g_loop%s" % tag)
        a("s_waitcnt lgkmcnt(0)")
        a("s_barrier")
        stamp(a, "s%d+10" % sC)
        step(kind, 1, 0)
        step(kind, 0, 1)
        step(kind, 1, 2)
        step(kind, 0, 3, adv)
        a("s_add_u32 s%d, s%d, 1" % (sC, sC))
        a("s_cmp_lt_u32 s%d, 8" % sC)
        a("s_cbranch_scc1 L_g_loop%s" % tag)
        stamp(a, 20)
    vM, vRs, vCs = [10, 11], [12, 14], [16, 17]
    def stat_reads(kind):
        a("v_lshlrev_b32 v18, 2, v2")
        a("s_lshl_b32 s%d, s%d, 8" % (sT0, sMt))
        a("s_add_u32 s%d, s%d, %d" % (sT0, sT0, G_ST))
        a("v_add_u32 v19, s%d, v18" % sT0)
        for m in range(2):
            a("ds_read_b32 v%d, v19 offset:%d" % (vM[m], m * 128))
        if kind == 0:
            for m in range(2):
                a("ds_read_b32 v%d, v19 offset:%d" % (vRs[m], 512 + m * 128))
        else:
            a("v_lshl_add_u32 v19, v3, 4, s%d" % sT0)
            for m in range(2):
                for j in range(4):
                    a("ds_read_b128 %s, v19 offset:%d" % (v(24 + 16 * m + 4 * j, 4), 512 + m * 128 + j * 32))
    def last_step(kind):
        a("s_waitcnt lgkmcnt(%d)" % (4 if kind == 0 else 10))
        csum(1, 0)
        csum(1, 1)
        for m in range(2):
            for n in range(2):
                mm(kind, 1, m, n)
    def correction(kind, nwait):
        a("s_waitcnt lgkmcnt(%d)" % nwait)
        for m in range(2):
            a("v_sub_f32 v20, 0, v%d" % vM[m])
            a("v_cvt_pk_bf16_f32 v%d, v20, 0" % NM[m])
        for n in range(2):
            a("v_cndmask_b32 v%d, v%d, v%d, s[56:57]" % (vCs[n], CSA[n], CSA[n] + 1))
        for n in range(2):
            a("v_cvt_pk_bf16_f32 v20, v%d, v%d" % (vCs[n], vCs[n]))
            a("v_and_b32 v20, 0xffff0000, v20")
            a("v_sub_f32 v20, v%d, v20" % vCs[n])
            a("v_cndmask_b32 v20, v%d, v20, s[%d:%d]" % (vCs[n], sHi, sHi + 1))
            a("v_cvt_pk_bf16_f32 v%d, v20, 0" % CSF[n])
        a("s_nop 1")
        for m in range(2):
            for n in range(2):
                if kind == 0:
                    a("v_mfma_f32_32x32x16_bf16 %s, %s, %s, %s" % (v(acc[m][n], 16), v(CSF[n], 4), v(NM[m], 4), v(acc[m][n], 16)))
                else:
                    a("v_mfma_f32_32x32x16_bf16 %s, %s, %s, %s" % (v(acc[m][n], 16), v(NM[m], 4), v(CSF[n], 4), v(acc[m][n], 16)))
    def store_bases():
        a("s_and_b32 s%d, s%d, 3" % (sT0, sCb))
        a("s_lshl_b32 s%d, s%d, 3" % (sT0, sT0))
        a("s_lshl_b32 s%d, s%d, 2" % (sT1, sNt))
        a("s_add_u32 s%d, s%d, s%d" % (sT0, sT0, sT1))
        a("s_lshl_b32 s%d, s%d, 16" % (sT0, sT0))
        a("s_lshl_b32 s%d, s%d, 2" % (sT1, sRb))
        a("s_lshl_b32 s50, s%d, 1" % sMt)
        a("s_add_u32 s%d, s%d, s50" % (sT1, sT1))
        a("s_lshl_b32 s%d, s%d, 10" % (sT1, sT1))
        a("s_add_u32 s50, s%d, s%d" % (sT0, sT1))
        a("s_lshr_b32 s%d, s%d, 2" % (sT0, sCb))
        a("s_lshl_b32 s%d, s%d, 21" % (sT0, sT0))
        a("s_add_u32 s50, s50, s%d" % sT0)
    a("s_cmp_ge_u32 s%d, 8" % sCb)
    a("s_cbranch_scc1 L_g_v")
    main_loop(0, "q")
    stat_reads(0)
    last_step(0)
    store_bases()
    correction(0, 2)
    a("s_cmp_lt_u32 s%d, 4" % sCb)
    a("s_cselect_b32 s51, %s, 1.0" % fhex(QSCALE))
    a("v_lshlrev_b32 v21, 4, v%d" % vLane)
    a("s_waitcnt lgkmcnt(0)")
    for m in range(2):
        a("v_mul_f32 v%d, s51, v%d" % (vRs[m], vRs[m]))
    a("s_nop 4")
    for m in range(2):
        for n in range(2):
            A = acc[m][n]
            P = XB[0][0] + 8 * ((2 * m + n) % 2)
            for i in range(8):
                a("v_pk_mul_f32 %s, %s, %s op_sel_hi:[1,0]" % (v(A + 2 * i, 2), v(A + 2 * i, 2), v(vRs[m], 2)))
            for i in range(8):
                a("v_cvt_pk_bf16_f32 v%d, v%d, v%d" % (A + i, A + 2 * i, A + 2 * i + 1))
            a("s_add_u32 s52, s50, %d" % (m * 1024 + n * 0x20000))
            a("s_add_u32 s53, s52, 0x10000")
            a("buffer_store_dwordx4 %s, v21, s[%d:%d], s52 offen" % (v(A, 4), sWS, sWS + 3))
            a("buffer_store_dwordx4 %s, v21, s[%d:%d], s53 offen" % (v(A + 4, 4), sWS, sWS + 3))
    a("s_branch L_g_fin")
    a.label("L_g_v")
    main_loop(1, "v")
    stat_reads(1)
    last_step(1)
    store_bases()
    correction(1, 8)
    a("v_bfe_u32 v21, v%d, 4, 1" % vLane)
    a("v_lshlrev_b32 v21, 16, v21")
    a("v_lshl_add_u32 v21, v3, 8, v21")
    a("v_and_b32 v22, 15, v%d" % vLane)
    a("v_lshl_add_u32 v21, v22, 4, v21")
    a("s_waitcnt lgkmcnt(0)")
    a("s_nop 4")
    for m in range(2):
        for n in range(2):
            A = acc[m][n]
            for i in range(8):
                a("v_pk_mul_f32 %s, %s, %s" % (v(A + 2 * i, 2), v(A + 2 * i, 2), v(24 + 16 * m + 2 * i, 2)))
            for i in range(8):
                a("v_cvt_pk_bf16_f32 v%d, v%d, v%d" % (A + i, A + 2 * i, A + 2 * i + 1))
            a("s_add_u32 s52, s50, %d" % (m * 1024 + n * 0x20000))
            a("buffer_store_dwordx4 %s, v21, s[%d:%d], s52 offen" % (v(A, 4), sWS, sWS + 3))
            a("buffer_store_dwordx4 %s, v21, s[%d:%d], s52 offen offset:512" % (v(A + 4, 4), sWS, sWS + 3))
    a.label("L_g_fin")
    stamp(a, 21)
    stamp_flush(a, 0, sWS, sWave)
    a("s_endpgm")

def gen_k1():
    a = Asm()
    N = "k1_kernel"
    a(kernel_head(N))
    a("s_cmp_ge_u32 s2, %d" % K1_GRID)
    a("s_cbranch_scc1 L_k1_end")
    stamp_begin(a, 255)
    a("s_load_dwordx4 s[4:7], s[0:1], 0")
    a("s_load_dwordx8 s[12:19], s[0:1], 32")
    a("s_load_dwordx4 s[20:23], s[0:1], 72")
    a("v_lshrrev_b32 v2, 6, v0")
    a("v_and_b32 v1, 63, v0")
    a("v_readfirstlane_b32 s%d, v2" % sWave)
    a("s_waitcnt lgkmcnt(0)")
    ws_adjust(a, sWSP)
    a("s_or_b32 s24, s2, s%d" % sWave)
    a("s_cmp_lg_u32 s24, 0")
    a("s_cbranch_scc1 L_k1_non")
    a("s_memrealtime s[60:61]")
    srd(a, 24, sDBG, 256)
    a("v_mov_b32 v3, 0")
    a("s_waitcnt lgkmcnt(0)")
    a("s_or_b32 s60, s60, 1")
    a("v_mov_b32 v4, s60")
    a("s_mov_b32 exec_lo, 1")
    a("s_mov_b32 exec_hi, 0")
    a("buffer_store_dword v4, v3, s[24:27], 0 offen sc1")
    a("s_mov_b64 exec, -1")
    a.label("L_k1_non")
    a("s_cmp_ge_u32 s2, 64")
    a("s_cbranch_scc1 L_k1_gemm")
    a("s_cmp_gt_u32 s2, 32")
    a("s_cbranch_scc1 L_k1_end")
    a("s_cmp_eq_u32 s2, 32")
    a("s_cbranch_scc1 L_k1_topk")
    gen_e(a)
    a.label("L_k1_topk")
    gen_topk(a)
    a.label("L_k1_gemm")
    gen_gemm(a)
    a.label("L_k1_end")
    a("s_endpgm")
    return a.text(), (256 if PROF else 188)
```

```python
from dsl import *
from k1 import *

K2_GRID = 256 + NSLICE
M_XS = 65536
M_CAND = M_XS + 8 * 1040
M_GU = M_CAND + 256
M_HS = M_GU + 4096
K2_LDS = M_HS + 512
NEGBIG = 0xf149f2ca
LOG2E = 1.4426950408889634

def gen_attn(a):
    vLane = 1
    vK, vV, mx0, mx1, vT0, vT1, vZ, vOff = 2, 3, 4, 5, 6, 7, 8, 9
    SA, SB, CB, O, P, mA = 16, 32, 48, 64, 80, 88
    KF, VF, V0F, QF = 96, 100, 108, 116
    sWS = 8
    sH, sQb, sW, sT, sBase, sTs, sN = 20, 21, 22, 23, 24, 25, 26
    sT0, sT1 = 27, 28
    sVM = 30
    sCond = 40
    a("s_and_b32 s%d, s2, 7" % sH)
    a("s_bfe_u32 s%d, s2, 0x20003" % sT0)
    a("s_lshl_b32 s%d, s%d, 3" % (sT0, sT0))
    a("s_add_u32 s%d, s%d, s%d" % (sH, sH, sT0))
    a("s_lshr_b32 s%d, s2, 5" % sQb)
    a("v_lshrrev_b32 v2, 6, v0")
    a("v_and_b32 v%d, 63, v0" % vLane)
    a("v_readfirstlane_b32 s%d, v2" % sW)
    a("v_lshlrev_b32 v%d, 4, v%d" % (vOff, vLane))
    a("s_lshl_b32 s%d, s%d, 3" % (sT, sQb))
    a("s_add_u32 s%d, s%d, s%d" % (sT, sT, sW))
    a("s_lshl_b32 s%d, s%d, 6" % (sBase, sH))
    a("s_add_u32 s%d, s%d, s%d" % (sBase, sBase, sT))
    a("s_lshl_b32 s%d, s%d, 10" % (sBase, sBase))
    a("s_lshl_b32 s%d, s%d, 10" % (sT1, sW))
    a("s_waitcnt lgkmcnt(0)")
    stamp(a, 1)
    ws_adjust(a, 6)
    srd(a, sWS, 6, WS_SIZE)
    a("s_add_u32 s%d, s%d, 0x%x" % (sT0, sBase, WS_KF))
    a("s_add_u32 m0, s%d, 8192" % sT1)
    a("s_nop 0")
    a("buffer_load_dwordx4 v%d, s[%d:%d], s%d offen lds" % (vOff, sWS, sWS + 3, sT0))
    a("s_add_u32 s%d, s%d, 0x%x" % (sT0, sBase, WS_QF))
    a("buffer_load_dwordx4 %s, v%d, s[%d:%d], s%d offen" % (v(QF, 4), vOff, sWS, sWS + 3, sT0))
    a("s_cmp_eq_u32 s%d, 0" % sQb)
    a("s_cbranch_scc1 L_at_noprev")
    a("s_add_u32 s%d, s%d, 0x%x" % (sT0, sBase, WS_KF - 8192))
    a("s_mov_b32 m0, s%d" % sT1)
    a("s_nop 0")
    a("buffer_load_dwordx4 v%d, s[%d:%d], s%d offen lds" % (vOff, sWS, sWS + 3, sT0))
    a("s_add_u32 s%d, s%d, 0x%x" % (sT0, sBase, WS_VF - 8192))
    a("s_add_u32 m0, s%d, 16384" % sT1)
    a("s_nop 0")
    a("buffer_load_dwordx4 v%d, s[%d:%d], s%d offen lds" % (vOff, sWS, sWS + 3, sT0))
    a.label("L_at_noprev")
    a("s_add_u32 s%d, s%d, 0x%x" % (sT0, sBase, WS_VF))
    a("s_add_u32 m0, s%d, %d" % (sT1, 16384 + 8192))
    a("s_nop 0")
    a("buffer_load_dwordx4 v%d, s[%d:%d], s%d offen lds" % (vOff, sWS, sWS + 3, sT0))
    a("v_and_b32 v%d, 31, v%d" % (vT0, vLane))
    a("v_lshrrev_b32 v%d, 5, v%d" % (vT1, vLane))
    a("v_lshlrev_b32 v%d, 2, v%d" % (vZ, vT1))
    a("v_sub_u32 v%d, v%d, v%d" % (vZ, vT0, vZ))
    for r in range(16):
        a("v_cmp_gt_i32 s[%d:%d], %d, v%d" % (sCond + 2 * r, sCond + 2 * r + 1, 8 * (r >> 2) + (r & 3), vZ))
    a("v_mov_b32 v10, 0xffff")
    a("v_mov_b32 v11, 0xffff0000")
    for j in range(8):
        a("v_cndmask_b32 v%d, 0, v10, s[%d:%d]" % (mA + j, sCond + 4 * j, sCond + 4 * j + 1))
        a("v_cndmask_b32 v12, 0, v11, s[%d:%d]" % (sCond + 4 * j + 2, sCond + 4 * j + 3))
        a("v_or_b32 v%d, v%d, v12" % (mA + j, mA + j))
    a("v_mov_b32 v10, 0x3f803f80")
    for r in range(16):
        a("v_mov_b32 v%d, v10" % (VF + r))
    for r in range(16):
        a("v_mov_b32 v%d, 0" % (O + r))
    a("s_mov_b32 s%d, 0xffff" % sVM)
    a("s_mov_b32 s%d, 0xffff" % (sVM + 1))
    a("s_sub_u32 s%d, 8, s%d" % (sTs, sW))
    a("s_cmp_eq_u32 s%d, 0" % sQb)
    a("s_cselect_b32 s%d, s%d, 1" % (sTs, sTs))
    a("v_add_u32 v%d, s%d, v%d" % (vK, sT1, vOff))
    a("v_and_b32 v%d, 15, v%d" % (vV, vLane))
    a("v_lshlrev_b32 v%d, 4, v%d" % (vV, vV))
    a("v_lshl_add_u32 v%d, v%d, 8, v%d" % (vV, vT1, vV))
    a("s_add_u32 s%d, s%d, 16384" % (sT0, sT1))
    a("v_add_u32 v%d, s%d, v%d" % (vV, sT0, vV))
    a("s_lshl_b32 s%d, s%d, 10" % (sT0, sTs))
    a("v_add_u32 v13, s%d, v%d" % (sT0, vK))
    a("v_add_u32 v14, s%d, v%d" % (sT0, vV))
    a("v_mov_b32 v%d, 0x%x" % (mx0, NEGBIG))
    a("v_mov_b32 v%d, 0x%x" % (mx1, NEGBIG))
    stamp(a, 2)
    a("s_waitcnt vmcnt(0)")
    stamp(a, 3)
    a("s_barrier")
    stamp(a, 4)

    def mfma_s(dst, c):
        a("v_mfma_f32_32x32x16_bf16 %s, %s, %s, %s" % (v(dst, 16), v(KF, 4), v(QF, 4), c))
    def vread(dst, addr):
        a("s_mov_b64 exec, s[%d:%d]" % (sVM, sVM + 1))
        a("ds_read_b128 %s, v%d" % (v(dst, 4), addr))
        a("ds_read_b128 %s, v%d offset:512" % (v(dst + 4, 4), addr))
        a("s_mov_b64 exec, -1")
    def maxes():
        for i in range(8):
            m = mx0 if i % 2 == 0 else mx1
            a("v_max3_f32 v%d, v%d, v%d, v%d" % (m, m, SB + 2 * i, SB + 2 * i + 1))
    def sel():
        for r in range(16):
            a("v_cndmask_b32 v%d, v%d, v%d, s[%d:%d]" % (SB + r, SB + r, SA + r, sCond + 2 * r, sCond + 2 * r + 1))
    def exps():
        for r in range(16):
            a("v_exp_f32 v%d, v%d" % (SB + r, SB + r))
        for j in range(8):
            a("v_cvt_pk_bf16_f32 v%d, v%d, v%d" % (P + j, SB + 2 * j, SB + 2 * j + 1))
    def pv(vf, p):
        a("v_mfma_f32_32x32x16_bf16 %s, %s, %s, %s" % (v(O, 16), v(vf, 4), v(p, 4), v(O, 16)))
        a("v_mfma_f32_32x32x16_bf16 %s, %s, %s, %s" % (v(O, 16), v(vf + 4, 4), v(p + 4, 4), v(O, 16)))

    a("s_cmp_eq_u32 s%d, 0" % sQb)
    a("s_cbranch_scc1 L_at_p1_no0")
    a("ds_read_b128 %s, v%d" % (v(KF, 4), vK))
    vread(V0F, vV)
    a("s_waitcnt lgkmcnt(2)")
    mfma_s(SA, "0")
    a("s_branch L_at_p1_go")
    a.label("L_at_p1_no0")
    for r in range(16):
        a("v_mov_b32 v%d, 0x%x" % (SA + r, NEGBIG))
    a.label("L_at_p1_go")
    a("v_mov_b32 v15, v13")
    a("ds_read_b128 %s, v15" % v(KF, 4))
    a("s_sub_u32 s%d, 8, s%d" % (sN, sTs))
    a("s_cmp_eq_u32 s%d, 0" % sN)
    a("s_cbranch_scc1 L_at_p1_fin")
    a.label("L_at_p1_loop")
    a("s_waitcnt lgkmcnt(0)")
    mfma_s(SB, "0")
    a("v_add_u32 v15, 0x400, v15")
    a("ds_read_b128 %s, v15" % v(KF, 4))
    a("s_sub_u32 s%d, s%d, 1" % (sN, sN))
    a("s_nop 8")
    maxes()
    a("s_cmp_lg_u32 s%d, 0" % sN)
    a("s_cbranch_scc1 L_at_p1_loop")
    a.label("L_at_p1_fin")
    a("s_waitcnt lgkmcnt(0)")
    mfma_s(SB, "0")
    a("s_cmp_eq_u32 s%d, 0" % sQb)
    a("s_cselect_b32 s%d, s%d, 0" % (sT1, sT0))
    a("v_add_u32 v15, s%d, v%d" % (sT1, vK))
    a("ds_read_b128 %s, v15" % v(KF, 4))
    a("s_nop 7")
    sel()
    maxes()
    a("v_max_f32 v%d, v%d, v%d" % (mx0, mx0, mx1))
    a("v_mov_b32 v%d, v%d" % (mx1, mx0))
    a("s_nop 1")
    a("v_permlane32_swap_b32 v%d, v%d" % (mx0, mx1))
    a("s_nop 0")
    a("v_max_f32 v%d, v%d, v%d" % (mx0, mx0, mx1))
    for r in range(16):
        a("v_sub_f32 v%d, 0, v%d" % (CB + r, mx0))
    stamp(a, 5)
    a("s_cmp_eq_u32 s%d, 0" % sQb)
    a("s_cbranch_scc1 L_at_p2_go")
    a("s_waitcnt lgkmcnt(0)")
    mfma_s(SA, v(CB, 16))
    a("ds_read_b128 %s, v13" % v(KF, 4))
    a.label("L_at_p2_go")
    a("s_sub_u32 s%d, 8, s%d" % (sN, sTs))
    a("s_cmp_eq_u32 s%d, 0" % sN)
    a("s_cbranch_scc1 L_at_p2_fin")
    a.label("L_at_p2_loop")
    vread(VF, 14)
    a("s_waitcnt lgkmcnt(2)")
    mfma_s(SB, v(CB, 16))
    a("v_add_u32 v13, 0x400, v13")
    a("v_add_u32 v14, 0x400, v14")
    a("ds_read_b128 %s, v13" % v(KF, 4))
    a("s_sub_u32 s%d, s%d, 1" % (sN, sN))
    a("s_nop 7")
    exps()
    a("s_waitcnt lgkmcnt(1)")
    pv(VF, P)
    a("s_cmp_lg_u32 s%d, 0" % sN)
    a("s_cbranch_scc1 L_at_p2_loop")
    a.label("L_at_p2_fin")
    vread(VF, 14)
    a("s_waitcnt lgkmcnt(2)")
    mfma_s(SB, v(CB, 16))
    a("s_nop 11")
    sel()
    exps()
    for j in range(8):
        a("v_and_b32 v%d, v%d, v%d" % (SA + j, P + j, mA + j))
    for j in range(8):
        a("v_xor_b32 v%d, v%d, v%d" % (P + j, P + j, SA + j))
    a("s_waitcnt lgkmcnt(0)")
    a("s_nop 0")
    pv(VF, P)
    a("s_cmp_eq_u32 s%d, 0" % sQb)
    a("s_cbranch_scc1 L_at_fin")
    pv(V0F, SA)
    a.label("L_at_fin")
    stamp(a, 6)
    a("s_lshl_b32 s%d, s%d, 5" % (sT0, sT))
    a("s_add_u32 s%d, s%d, s%d" % (sT0, sT0, sH))
    a("s_lshl_b32 s%d, s%d, 10" % (sT0, sT0))
    a("s_add_u32 s%d, s%d, 0x%x" % (sT0, sT0, WS_OF))
    a("s_nop 7")
    a("v_rcp_f32 v10, v%d" % (O + 8))
    a("s_nop 0")
    for r in range(8):
        a("v_mul_f32 v%d, v%d, v10" % (O + r, O + r))
    for j in range(4):
        a("v_cvt_pk_bf16_f32 v%d, v%d, v%d" % (P + j, O + 2 * j, O + 2 * j + 1))
    a("buffer_store_dwordx4 %s, v%d, s[%d:%d], s%d offen" % (v(P, 4), vOff, sWS, sWS + 3, sT0))
    stamp_flush(a, 1, sWS, sW)
    a("s_endpgm")

def gen_moe(a):
    vLane = 1
    k0, k1, k2, k3 = 16, 17, 18, 19
    vRes, vT = 20, 21
    WR = 32
    WF = 48
    sWS, sX, sWm, sWd = 8, 12, 16, 20
    sW, sSl, sT0, sT1, sI, sVal, sTok = 24, 25, 26, 27, 28, 29, 30
    a("s_sub_u32 s%d, s2, 256" % sT0)
    a("s_and_b32 s%d, s%d, 7" % (sSl, sT0))
    a("s_lshr_b32 s%d, s%d, 4" % (sT1, sT0))
    a("s_lshl_b32 s%d, s%d, 3" % (sT1, sT1))
    a("s_add_u32 s%d, s%d, s%d" % (sSl, sSl, sT1))
    a("s_lshl_b32 s%d, s%d, 1" % (sSl, sSl))
    a("s_bfe_u32 s%d, s%d, 0x10003" % (sT1, sT0))
    a("s_add_u32 s%d, s%d, s%d" % (sSl, sSl, sT1))
    a("s_cmp_ge_u32 s%d, 48" % sT0)
    a("s_cselect_b32 s%d, s%d, s%d" % (sSl, sT0, sSl))
    a("v_lshrrev_b32 v2, 6, v0")
    a("v_and_b32 v%d, 63, v0" % vLane)
    a("v_readfirstlane_b32 s%d, v2" % sW)
    a("s_load_dwordx2 s[32:33], s[0:1], 0")
    a("s_load_dwordx4 s[36:39], s[0:1], 40")
    a("s_load_dwordx2 s[40:41], s[0:1], 56")
    a("s_waitcnt lgkmcnt(0)")
    ws_adjust(a, 6)
    srd(a, sWS, 6, WS_SIZE)
    a("s_lshl_b32 s%d, s%d, 2" % (sT0, sW))
    a("s_add_u32 s%d, s%d, 0x%x" % (sT0, sT0, WS_SEL))
    a("s_buffer_load_dword s%d, s[%d:%d], s%d" % (sTok, sWS, sWS + 3, sT0))
    srd(a, sX, 32, 2048 * 1024)
    srd(a, sWd, 40, 1792 * 1024)
    a("s_waitcnt lgkmcnt(0)")
    a("s_lshl_b32 s%d, s%d, 10" % (sT0, sTok))
    a("v_lshlrev_b32 v6, 4, v%d" % vLane)
    a("buffer_load_dwordx4 v[24:27], v6, s[%d:%d], s%d offen" % (sX, sX + 3, sT0))
    a("s_lshl_b32 s%d, s%d, 4" % (sT1, sTok))
    a("s_add_u32 s46, s%d, 0x%x" % (sT1, WS_REC))
    a("v_mov_b32 v7, 0")
    a("buffer_load_dwordx2 v[22:23], v7, s[%d:%d], s46 offen" % (sWS, sWS + 3))
    a("s_waitcnt vmcnt(0)")
    stamp(a, 1)
    for i in range(4):
        a("v_lshlrev_b32 v%d, 16, v%d" % (64 + 2 * i, 24 + i))
        a("v_and_b32 v%d, 0xffff0000, v%d" % (65 + 2 * i, 24 + i))
    for i in range(8):
        a("v_sub_f32 v%d, v%d, v22" % (64 + i, 64 + i))
    for i in range(4):
        a("v_cvt_pk_bf16_f32 v%d, v%d, v%d" % (24 + i, 64 + 2 * i, 65 + 2 * i))
    for i in range(4):
        a("v_lshlrev_b32 v%d, 16, v%d" % (64 + 2 * i, 24 + i))
        a("v_and_b32 v%d, 0xffff0000, v%d" % (65 + 2 * i, 24 + i))
    for i in range(8):
        a("v_mul_f32 v%d, v%d, v23" % (64 + i, 64 + i))
    for i in range(4):
        a("v_cvt_pk_bf16_f32 v%d, v%d, v%d" % (24 + i, 64 + 2 * i, 65 + 2 * i))
    a("s_mul_i32 s%d, s%d, 1040" % (sT0, sW))
    a("s_add_u32 s%d, s%d, %d" % (sT0, sT0, M_XS))
    a("v_lshl_add_u32 v6, v%d, 4, s%d" % (vLane, sT0))
    a("ds_write_b128 v6, v[24:27]")
    a("s_and_b32 s%d, s%d, 1" % (sT0, sW))
    a("s_cmp_eq_u32 s%d, 0" % sT0)
    a("s_cselect_b32 s%d, s36, s38" % sWm)
    a("s_cselect_b32 s%d, s37, s39" % (sWm + 1))
    a("s_mov_b32 s%d, 0x%x" % (sWm + 2, 512 * 3584))
    a("s_mov_b32 s%d, 0x20000" % (sWm + 3))
    a("v_lshrrev_b32 v4, 2, v%d" % vLane)
    a("v_and_b32 v5, 3, v%d" % vLane)
    a("v_bfe_u32 v6, v%d, 5, 1" % vLane)
    a("v_lshlrev_b32 v6, 1, v6")
    a("v_xor_b32 v5, v5, v6")
    a("v_mul_u32_u24 v4, 0xe00, v4")
    a("v_lshl_add_u32 v4, v5, 4, v4")
    a("s_lshr_b32 s%d, s%d, 1" % (sT1, sW))
    a("s_mul_i32 s42, s%d, %d" % (sT1, 8 * 16 * 3584))
    a("s_lshl_b32 s43, s%d, 6" % sSl)
    a("s_add_u32 s42, s42, s43")
    a("s_lshl_b32 s43, s%d, 15" % sT0)
    a("s_lshl_b32 s44, s%d, 13" % sT1)
    a("s_add_u32 s43, s43, s44")
    for q in range(8):
        a("s_add_u32 m0, s43, %d" % (q * 1024))
        a("s_add_u32 s44, s42, %d" % (q * 16 * 3584))
        a("buffer_load_dwordx4 v4, s[%d:%d], s44 offen lds" % (sWm, sWm + 3))
    a("v_lshrrev_b32 v5, 4, v%d" % vLane)
    a("v_and_b32 v6, 15, v%d" % vLane)
    a("v_lshlrev_b32 v5, 13, v5")
    a("v_lshl_add_u32 v5, v6, 3, v5")
    a("s_lshl_b32 s44, s%d, 15" % sSl)
    a("s_lshl_b32 s45, s%d, 7" % sW)
    a("s_add_u32 s44, s44, s45")
    a("v_add_u32 v5, s44, v5")
    for e in range(8):
        if e < 4:
            a("buffer_load_dwordx2 %s, v5, s[%d:%d], 0 offen offset:%d" % (v(WR + 2 * e, 2), sWd, sWd + 3, e * 1024))
        else:
            if e == 4:
                a("s_movk_i32 s45, 0x1000")
            a("buffer_load_dwordx2 %s, v5, s[%d:%d], s45 offen offset:%d" % (v(WR + 2 * e, 2), sWd, sWd + 3, (e - 4) * 1024))
    stamp(a, 2)
    a("v_lshrrev_b32 v8, 4, v%d" % vLane)
    a("v_bfe_u32 v9, v%d, 2, 2" % vLane)
    a("v_and_b32 v10, 3, v%d" % vLane)
    a("v_lshl_add_u32 v9, v8, 3, v9")
    a("v_lshlrev_b32 v9, 6, v9")
    a("v_lshl_add_u32 v9, v10, 3, v9")
    a("s_bfe_u32 s%d, s%d, 0x10001" % (sI, sW))
    a("v_and_b32 v10, 1, v8")
    a("v_xor_b32 v10, s%d, v10" % sI)
    a("v_lshl_add_u32 v9, v10, 5, v9")
    a("s_and_b32 s%d, s%d, 1" % (sT0, sW))
    a("s_lshr_b32 s%d, s%d, 2" % (sT1, sW))
    a("s_lshl_b32 s44, s%d, 15" % sT0)
    a("s_lshl_b32 s45, s%d, 14" % sT1)
    a("s_add_u32 s44, s44, s45")
    a("v_add_u32 v9, s44, v9")
    a("v_and_b32 v10, 7, v%d" % vLane)
    a("v_mul_u32_u24 v10, 1040, v10")
    a("v_lshl_add_u32 v10, v8, 4, v10")
    a("s_lshl_b32 s45, s%d, 9" % sT1)
    a("s_add_u32 s45, s45, %d" % M_XS)
    a("v_add_u32 v10, s45, v10")
    a("s_lshl_b32 s44, s%d, 1" % sT1)
    a("s_add_u32 s44, s44, s%d" % sT0)
    a("s_lshl_b32 s44, s44, 10")
    a("s_lshl_b32 s45, s%d, 6" % sI)
    a("s_add_u32 s44, s44, s45")
    a("s_add_u32 s44, s44, %d" % M_GU)
    a("v_and_b32 v11, 15, v%d" % vLane)
    a("v_lshlrev_b32 v11, 7, v11")
    a("v_lshl_add_u32 v11, v8, 4, v11")
    a("v_add_u32 v11, s44, v11")
    for r in range(4):
        a("v_mov_b32 v%d, 0" % (28 + r))
    a("s_waitcnt vmcnt(0)")
    stamp(a, 4)
    a("s_setprio 1")
    a("s_mov_b32 s44, 0x05040100")
    a("s_mov_b32 s45, 0x07060302")
    for jj in range(4):
        for p in range(4):
            a("v_perm_b32 v%d, v%d, v%d, s%d" % (WF + 4 * jj + p, WR + 2 * (2 * p + 1) + (jj >> 1), WR + 2 * (2 * p) + (jj >> 1), 44 + (jj & 1)))
    a("s_waitcnt lgkmcnt(0)")
    a("s_barrier")
    stamp(a, 5)
    FA, FB = 64, 80
    def gu_reads(ks):
        a("ds_read_b64_tr_b16 %s, v9 offset:%d" % (v(FA + 4 * (ks % 4), 2), ks * 2048))
        a("ds_read_b64_tr_b16 %s, v9 offset:%d" % (v(FA + 4 * (ks % 4) + 2, 2), ks * 2048 + 256))
        a("ds_read_b128 %s, v10 offset:%d" % (v(FB + 4 * (ks % 4), 4), ks * 64))
    for ks in range(4):
        gu_reads(ks)
    for ks in range(8):
        if ks + 4 < 8:
            a("s_waitcnt lgkmcnt(9)")
        else:
            a("s_waitcnt lgkmcnt(%d)" % (3 * (7 - ks)))
        a("v_mfma_f32_16x16x32_bf16 v[28:31], %s, %s, v[28:31]" % (v(FA + 4 * (ks % 4), 4), v(FB + 4 * (ks % 4), 4)))
        if ks + 4 < 8:
            gu_reads(ks + 4)
    a("s_mov_b32 exec_lo, 0x00ff00ff")
    a("s_mov_b32 exec_hi, 0x00ff00ff")
    a("s_nop 7")
    a("ds_write_b128 v11, v[28:31]")
    a("s_mov_b64 exec, -1")
    a("s_waitcnt lgkmcnt(0)")
    a("s_barrier")
    a("s_cmp_ge_u32 s%d, 4" % sW)
    a("s_cbranch_scc1 L_moe_hdone")
    a("v_lshlrev_b32 v8, 2, v0")
    a("v_add_u32 v8, %d, v8" % M_GU)
    a("ds_read_b32 v12, v8")
    a("ds_read_b32 v13, v8 offset:2048")
    a("ds_read_b32 v14, v8 offset:1024")
    a("ds_read_b32 v15, v8 offset:3072")
    a("v_lshlrev_b32 v8, 1, v0")
    a("v_add_u32 v8, %d, v8" % M_HS)
    a("s_waitcnt lgkmcnt(0)")
    a("v_add_f32 v12, v12, v13")
    a("v_add_f32 v14, v14, v15")
    bf16r(a, "v12", "v12")
    bf16r(a, "v14", "v14")
    a("v_mul_f32 v13, %s, v12" % fhex(-LOG2E))
    a("v_exp_f32 v13, v13")
    a("s_nop 0")
    a("v_add_f32 v13, 1.0, v13")
    a("v_rcp_f32 v13, v13")
    a("s_nop 0")
    a("v_mul_f32 v12, v12, v13")
    bf16r(a, "v12", "v12")
    a("v_mul_f32 v12, v12, v14")
    a("v_cvt_pk_bf16_f32 v12, v12, v12")
    a("ds_write_b16 v8, v12")
    a("s_waitcnt lgkmcnt(0)")
    a.label("L_moe_hdone")
    a("s_barrier")
    stamp(a, 6)
    a("v_and_b32 v8, 7, v%d" % vLane)
    a("v_lshrrev_b32 v9, 4, v%d" % vLane)
    a("v_lshlrev_b32 v8, 6, v8")
    a("v_lshl_add_u32 v8, v9, 4, v8")
    a("v_add_u32 v8, %d, v8" % M_HS)
    a("ds_read_b128 v[64:67], v8")
    a("v_and_b32 v10, 15, v%d" % vLane)
    a("v_lshlrev_b32 v10, 11, v10")
    a("v_lshl_add_u32 v10, v9, 6, v10")
    a("s_lshl_b32 s44, s%d, 14" % sSl)
    a("s_lshl_b32 s45, s%d, 8" % sW)
    a("s_add_u32 s44, s44, s45")
    a("s_add_u32 s44, s44, 0x%x" % WS_PART)
    a("s_waitcnt lgkmcnt(0)")
    for jj in range(4):
        a("v_mfma_f32_16x16x32_bf16 %s, %s, v[64:67], 0" % (v(68 + 4 * jj, 4), v(WF + 4 * jj, 4)))
    a("s_mov_b32 exec_lo, 0x00ff00ff")
    a("s_mov_b32 exec_hi, 0x00ff00ff")
    a("s_nop 7")
    for jj in range(4):
        a("buffer_store_dwordx4 %s, v10, s[%d:%d], s44 offen offset:%d" % (v(68 + 4 * jj, 4), sWS, sWS + 3, jj * 16))
    stamp_flush(a, 1, sWS, sW)
    a("s_endpgm")

def gen_k2():
    a = Asm()
    N = "k2_kernel"
    a(kernel_head(N))
    a("s_cmp_ge_u32 s2, %d" % K2_GRID)
    a("s_cbranch_scc1 L_k2_end")
    stamp_begin(a, 127)
    a("s_load_dwordx2 s[6:7], s[0:1], 80")
    a("s_cmp_ge_u32 s2, 256")
    a("s_cbranch_scc1 L_moe")
    gen_attn(a)
    a.label("L_moe")
    gen_moe(a)
    a.label("L_k2_end")
    a("s_endpgm")
    return a.text(), 128
```

```python
import gen, k1, k2, k3, sys
from dsl import *
base = gen.build_text()
import re
lines = [l for l in base.splitlines(True) if l.startswith("; @launch")]
L1, L2, L3 = lines
LE = "; @launch kernel=e_kernel grid=(1,1,1) block=(64,1,1) lds=0\n"
def with_launches(ls, empty=False):
    t = base.replace(L1 + L2 + L3, "".join(ls))
    if empty:
        t = t.replace('.section .rodata,"a"\n', kernel_head("e_kernel") + "s_endpgm\n" + '.section .rodata,"a"\n.p2align 6\n' + kernel_desc("e_kernel", 8), 1)
    return t
open("v0.s", "w").write(base)
open("v1.s", "w").write(with_launches([L1, L2, L3] + [LE] * 5, True))
open("v2.s", "w").write(with_launches([L1, L2, L3] + [LE] * 10, True))
open("v3.s", "w").write(with_launches([L1, L2, L3] + [LE] * 20, True))
open("v4.s", "w").write(with_launches([LE, L1, L2, L3], True))
open("v5.s", "w").write(with_launches([LE] * 5 + [L1, L2, L3], True))
```

```python
import gen, k1, k2, k3, sys
from dsl import *
base = gen.build_text()
lines = [l for l in base.splitlines(True) if l.startswith("; @launch")]
L1, L2, L3 = lines
def k0(kind):
    a = Asm()
    a(kernel_head("p_kernel"))
    a("s_cmp_ge_u32 s2, 256"); a("s_cbranch_scc1 L_p_end")
    a("s_load_dwordx16 s[4:19], s[0:1], 0")
    a("s_load_dwordx4 s[20:23], s[0:1], 64")
    a("s_load_dwordx2 s[24:25], s[0:1], 80")
    a("v_lshlrev_b32 v1, 4, v0")
    a("s_waitcnt lgkmcnt(0)")
    bufs = []
    if "in" in kind:
        bufs += [(4, 2048 * 1024), (6, 512 * 3072), (8, 512 * 1024)]
    if "moe" in kind:
        bufs += [(14, 512 * 3584), (16, 512 * 3584), (18, 1792 * 1024)]
    r = 8
    for (p, n) in bufs:
        srd(a, 28, p, n)
        per = n // 256
        a("s_mul_i32 s32, s2, %d" % per)
        for off in range(0, per, 4096):
            a("buffer_load_dwordx4 v[%d:%d], v1, s[28:31], s32 offen" % (r, r + 3)); r = 8 + (r - 4) % 64
            a("s_add_u32 s32, s32, 4096")
    if "ws" in kind:
        srd(a, 28, 24, 0x900000)
        a("v_lshlrev_b32 v2, 7, v0")
        a("s_mul_i32 s32, s2, 0x9000")
        a("buffer_load_dword v4, v2, s[28:31], s32 offen")
        srd(a, 28, 20, 2048 * 1024)
        a("s_mul_i32 s32, s2, 0x2000")
        a("v_lshlrev_b32 v2, 5, v0")
        a("buffer_load_dword v5, v2, s[28:31], s32 offen")
    a("s_waitcnt vmcnt(0)")
    a.label("L_p_end")
    a("s_endpgm")
    return a.text()
LP = "; @launch kernel=p_kernel grid=(256,1,1) block=(256,1,1) lds=0\n"
def mk(name, kind):
    t = base.replace(L1 + L2 + L3, LP + L1 + L2 + L3)
    t = t.replace('.section .rodata,"a"\n', k0(kind) + '.section .rodata,"a"\n.p2align 6\n' + kernel_desc("p_kernel", 80), 1)
    open(name, "w").write(t)
open("v0.s", "w").write(base)
mk("v1.s", [])
mk("v2.s", ["in"])
mk("v3.s", ["in", "moe"])
mk("v4.s", ["ws"])
mk("v5.s", ["in", "moe", "ws"])
```

```python
class Asm:
    def __init__(self):
        self.L = []
    def __call__(self, s=""):
        for line in s.split("\n"):
            self.L.append(line)
    def label(self, n):
        self.L.append(n + ":")
    def c(self, s):
        self.L.append("; " + s)
    def text(self):
        return "\n".join(self.L) + "\n"

def v(i, n=1):
    return "v%d" % i if n == 1 else "v[%d:%d]" % (i, i + n - 1)
def s(i, n=1):
    return "s%d" % i if n == 1 else "s[%d:%d]" % (i, i + n - 1)

def srd(a, dst, base, nbytes):
    a("s_mov_b32 s%d, s%d" % (dst, base))
    a("s_mov_b32 s%d, s%d" % (dst + 1, base + 1))
    a("s_mov_b32 s%d, 0x%x" % (dst + 2, nbytes))
    a("s_mov_b32 s%d, 0x20000" % (dst + 3))

import os
WS_BASE = int(os.environ.get("WS_BASE", "0"), 0)
def ws_adjust(a, reg):
    if WS_BASE:
        a("s_add_u32 s%d, s%d, 0x%x" % (reg, reg, WS_BASE))
        a("s_addc_u32 s%d, s%d, 0" % (reg + 1, reg + 1))

def kernel_head(name):
    return ".globl %s\n.p2align 8\n.type %s,@function\n%s:\n" % (name, name, name)

def kernel_desc(name, nvgpr, nsgpr=102, accum=None):
    if accum is None:
        accum = (nvgpr + 3) // 4 * 4
    return (".amdhsa_kernel %s\n  .amdhsa_next_free_vgpr %d\n  .amdhsa_next_free_sgpr %d\n  .amdhsa_accum_offset %d\n"
            "  .amdhsa_group_segment_fixed_size 0\n  .amdhsa_kernarg_size 88\n  .amdhsa_user_sgpr_count 2\n"
            "  .amdhsa_user_sgpr_kernarg_segment_ptr 1\n  .amdhsa_system_sgpr_workgroup_id_x 1\n"
            "  .amdhsa_float_denorm_mode_32 3\n"
            ".end_amdhsa_kernel\n") % (name, nvgpr, nsgpr, accum)

def bf16r(a, dst, src, tmp=None):
    a("v_cvt_pk_bf16_f32 %s, %s, %s" % (dst, src, src))
    a("v_and_b32 %s, 0xffff0000, %s" % (dst, dst))

import os
PROF = int(os.environ.get("PROF", "0"))
WS_PROF = 0x900000
PV = [255]
def stamp_begin(a, pv):
    PV[0] = pv
    if PROF:
        a("s_memrealtime s[100:101]")
        a("s_memtime s[80:81]")
        a("v_mov_b32 v%d, 0" % pv)
        a("s_waitcnt lgkmcnt(0)")
        a("v_writelane_b32 v%d, s80, 0" % pv)
        a("v_writelane_b32 v%d, s100, 62" % pv)
def stamp(a, i):
    if PROF == 1 or (PROF and i == 60):
        a("s_memtime s[80:81]")
        if isinstance(i, str):
            reg, k = i.split("+")
            a("s_add_u32 m0, %s, %s" % (reg, k))
            a("s_waitcnt lgkmcnt(0)")
            a("v_writelane_b32 v%d, s80, m0" % PV[0])
        else:
            a("s_waitcnt lgkmcnt(0)")
            a("v_writelane_b32 v%d, s80, %d" % (PV[0], i))
def stamp_flush(a, kern, srd_reg, wave_sgpr):
    if PROF:
        a("s_waitcnt vmcnt(0)")
        stamp(a, 60)
        a("s_memrealtime s[98:99]")
        a("s_waitcnt lgkmcnt(0)")
        a("s_mov_b64 exec, -1")
        a("v_writelane_b32 v%d, s98, 63" % PV[0])
        a("s_getreg_b32 s96, hwreg(HW_REG_XCC_ID)")
        a("v_writelane_b32 v%d, s96, 61" % PV[0])
        a("s_lshl_b32 s96, s2, 4")
        a("s_add_u32 s96, s96, s%d" % wave_sgpr)
        a("s_lshl_b32 s96, s96, 8")
        a("s_add_u32 s96, s96, 0x%x" % (WS_PROF + kern * 320 * 16 * 256))
        a("v_mbcnt_lo_u32_b32 v15, -1, 0")
        a("v_mbcnt_hi_u32_b32 v15, -1, v15")
        a("v_lshlrev_b32 v15, 2, v15")
        a("buffer_store_dword v%d, v15, s[%d:%d], s96 offen" % (PV[0], srd_reg, srd_reg + 3))

def opt(name, default=0):
    return int(os.environ.get(name, str(default)))
```

```python
from dsl import *

WS_QF = 0x000000
WS_KF = 0x200000
WS_VF = 0x400000
WS_OF = WS_QF
WS_REC = 0x800000
WS_CSR = 0x808000
WS_SEL = 0x80e000
WS_PART = 0x810000
WS_SIZE = 0xD00000 if PROF else 0x900000
NSLICE = 28
K1_GRID = 256

QSCALE = 0.25 * 1.4426950408889634
LOG2E = 1.4426950408889634

def fhex(x):
    import struct
    return "0x%08x" % struct.unpack("<I", struct.pack("<f", x))[0]

G_ST = 131072
G_LDS = G_ST + 1024
M_XS = 131072
M_CAND = M_XS + 8 * 1056
M_GU = M_CAND + 256
M_HS = M_GU + 4096
M_LDS = M_HS + 1024
K1_LDS = max(G_LDS, M_LDS)

sXP, sWP, sWRP, sWGP, sWUP, sWDP, sDBG, sWSP = 4, 6, 12, 14, 16, 18, 20, 22
sWave = 3

def wave_max_u32(a, t):
    for dp in ["quad_perm:[1,0,3,2] row_mask:0xf", "quad_perm:[2,3,0,1] row_mask:0xf", "row_half_mirror row_mask:0xf", "row_mirror row_mask:0xf",
               "row_bcast:15 row_mask:0xa", "row_bcast:31 row_mask:0xc"]:
        a("s_nop 1")
        a("v_max_u32_dpp v%d, v%d, v%d %s bank_mask:0xf" % (t, t, t, dp))

def poll_flags(a, tag, vaddr, srdreg, lanes_mask_lo, tmp):
    a("s_mov_b32 s98, 0")
    a.label("L_poll_%s" % tag)
    a("buffer_load_dword v%d, v%d, s[%d:%d], 0 offen sc1" % (tmp, vaddr, srdreg, srdreg + 3))
    a("s_add_u32 s98, s98, 1")
    a("s_waitcnt vmcnt(0)")
    a("v_cmp_eq_u32 vcc, 0, v%d" % tmp)
    a("s_cmp_gt_u32 s98, 0x40000")
    a("s_cbranch_scc1 L_polld_%s" % tag)
    a("s_and_b32 s99, vcc_lo, 0x%x" % lanes_mask_lo)
    a("s_cbranch_scc0 L_polld_%s" % tag)
    a("s_sleep 8")
    a("s_branch L_poll_%s" % tag)
    a.label("L_polld_%s" % tag)

def get_nonce(a, tag, sdb, vtmp, vzero, sdst):
    a("v_mov_b32 v%d, 0" % vzero)
    a("s_mov_b32 s98, 0")
    a.label("L_nonce_%s" % tag)
    a("buffer_load_dword v%d, v%d, s[%d:%d], 0 offen sc1" % (vtmp, vzero, sdb, sdb + 3))
    a("s_add_u32 s98, s98, 1")
    a("s_waitcnt vmcnt(0)")
    a("v_readfirstlane_b32 s%d, v%d" % (sdst, vtmp))
    a("s_cmp_gt_u32 s98, 0x40000")
    a("s_cbranch_scc1 L_nonced_%s" % tag)
    a("s_cmp_lg_u32 s%d, 0" % sdst)
    a("s_cbranch_scc1 L_nonced_%s" % tag)
    a("s_sleep 4")
    a("s_branch L_nonce_%s" % tag)
    a.label("L_nonced_%s" % tag)

def gen_e(a):
    vLane = 1
    sX, sW, sWS, sDb, sWR = 24, 28, 32, 36, 40
    sT0, sT1, sEb, sStrip, sTag = 44, 45, 49, 50, 51
    L_CS = 0
    srd(a, sX, sXP, 2048 * 1024)
    srd(a, sWR, sWRP, 1024)
    a("s_and_b32 s%d, s2, 1" % sT0)
    a("s_bfe_u32 s%d, s2, 0x20001" % sT1)
    a("s_lshr_b32 s46, s2, 3")
    a("s_lshl_b32 s%d, s%d, 3" % (sEb, sT1))
    a("s_lshl_b32 s47, s%d, 2" % sT0)
    a("s_add_u32 s%d, s%d, s47" % (sEb, sEb))
    a("s_add_u32 s%d, s%d, s46" % (sEb, sEb))
    a("v_lshrrev_b32 v2, 4, v%d" % vLane)
    a("v_and_b32 v3, 15, v%d" % vLane)
    a("v_lshlrev_b32 v3, 4, v3")
    a("v_lshl_add_u32 v4, v2, 10, v3")
    WP = 16
    a("s_lshl_b32 s%d, s%d, 6" % (sT0, sEb))
    a("s_lshl_b32 s%d, s%d, 3" % (sT1, sWave))
    a("s_add_u32 s46, s%d, s%d" % (sT0, sT1))
    a("s_lshl_b32 s47, s46, 10")
    XP = 32
    for g in range(2):
        for q in range(4):
            a("buffer_load_dwordx4 %s, v4, s[%d:%d], s47 offen offset:%d" % (v(XP + 16 * g + 4 * q, 4), sX, sX + 3, q * 256))
        if g == 0:
            for q in range(4):
                a("buffer_load_dwordx4 %s, v3, s[%d:%d], 0 offen offset:%d" % (v(WP + 4 * q, 4), sWR, sWR + 3, q * 256))
            a("s_add_u32 s47, s47, 4096")
    srd(a, sDb, sDBG, 256)
    a("v_mov_b32 v13, 0")
    a("buffer_load_dword v12, v13, s[%d:%d], 0 offen sc1" % (sDb, sDb + 3))
    stamp(a, 1)
    srd(a, sWS, sWSP, WS_SIZE)
    a("v_mov_b32 v5, 0x3f803f80")
    a("v_mov_b32 v8, 0")
    a("v_add_u32 v15, s46, v2")
    dps = ["quad_perm:[1,0,3,2]", "quad_perm:[2,3,0,1]", "row_half_mirror", "row_mirror"]
    a("s_waitcnt vmcnt(5)")
    for i in range(16):
        a("v_dot2_f32_bf16 v8, v%d, v5, v8" % (WP + i))
    A0, A1, A2 = 9, 10, 11
    OUT = [100, 104]
    for g in range(2):
        if g == 1:
            a("s_waitcnt vmcnt(1)")
        if g == 0:
            stamp(a, 2)
        a("v_mov_b32 v%d, 0" % A0); a("v_mov_b32 v%d, 0" % A1); a("v_mov_b32 v%d, 0" % A2)
        for i in range(16):
            x = XP + 16 * g + i
            a("v_dot2_f32_bf16 v%d, v%d, v5, v%d" % (A0, x, A0))
            a("v_dot2_f32_bf16 v%d, v%d, v%d, v%d" % (A1, x, x, A1))
            a("v_dot2_f32_bf16 v%d, v%d, v%d, v%d" % (A2, x, WP + i, A2))
        a("s_nop 2")
        for dp in dps:
            for r in ((A0, A1, A2, 8) if g == 0 else (A0, A1, A2)):
                a("v_add_f32_dpp v%d, v%d, v%d %s row_mask:0xf bank_mask:0xf" % (r, r, r, dp))
        M, RS, KEY = OUT[g], OUT[g] + 1, OUT[g] + 2
        a("v_mul_f32 v%d, %s, v%d" % (M, fhex(1.0 / 512), A0))
        a("v_mul_f32 v14, %s, v%d" % (fhex(1.0 / 512), A1))
        a("v_fma_f32 v14, -v%d, v%d, v14" % (M, M))
        a("v_max_f32 v14, 0, v14")
        bf16r(a, "v%d" % M, "v%d" % M)
        bf16r(a, "v14", "v14")
        a("v_add_f32 v14, %s, v14" % fhex(1e-5))
        bf16r(a, "v14", "v14")
        a("v_sqrt_f32 v14, v14")
        a("s_nop 0")
        bf16r(a, "v14", "v14")
        a("v_rcp_f32 v%d, v14" % RS)
        a("v_fma_f32 v14, -v%d, v8, v%d" % (M, A2))
        a("v_mul_f32 v14, v14, v%d" % RS)
        a("v_cvt_pk_bf16_f32 v14, v14, v14")
        a("v_and_b32 v14, 0xffff, v14")
        a("v_cmp_gt_u32 vcc, 0x8000, v14")
        a("v_xor_b32 v96, 0x8000, v14")
        a("v_xor_b32 v97, 0xffff, v14")
        a("v_sub_u32 v98, 0xffff, v15")
        a("v_cndmask_b32 v14, v97, v96, vcc")
        a("v_lshl_or_b32 v%d, v14, 16, v98" % KEY)
        a("v_add_u32 v15, 4, v15")
    a("s_waitcnt vmcnt(0)")
    a("v_readfirstlane_b32 s%d, v12" % sTag)
    a("v_and_b32 v9, 15, v%d" % vLane)
    a("v_cmp_eq_u32 vcc, 1, v9")
    a("s_nop 1")
    a("s_cmp_lg_u32 s%d, 0" % sTag)
    a("s_cbranch_scc1 L_e_tag")
    get_nonce(a, "e", sDb, 12, 13, sTag)
    a.label("L_e_tag")
    for q in range(3):
        a("v_cndmask_b32 v%d, v%d, v%d, vcc" % (OUT[0] + q, OUT[0] + q, OUT[1] + q))
    a("v_mov_b32 v%d, s%d" % (OUT[0] + 3, sTag))
    a("v_lshl_add_u32 v10, v9, 2, v2")
    a("v_add_u32 v10, s46, v10")
    a("v_lshlrev_b32 v10, 4, v10")
    a("s_mov_b32 s47, 0x%x" % WS_REC)
    a("s_mov_b32 exec_lo, 0x00030003")
    a("s_mov_b32 exec_hi, 0x00030003")
    a("buffer_store_dwordx4 %s, v10, s[%d:%d], s47 offen sc1" % (v(OUT[0], 4), sWS, sWS + 3))
    a("s_mov_b64 exec, -1")
    stamp(a, 3)
    a.label("L_e_done")
    stamp_flush(a, 0, sWS, sWave)
    a("s_endpgm")

class Net:
    def __init__(self, a, free):
        self.a = a; self.free = list(free)
    def get(self): return self.free.pop(0)
    def put(self, r): self.free.append(r)
    def ce(self, L, i, j):
        hi, lo = self.get(), self.get()
        self.a("v_max_u32 v%d, v%d, v%d" % (hi, L[i], L[j]))
        self.a("v_min_u32 v%d, v%d, v%d" % (lo, L[i], L[j]))
        self.put(L[i]); self.put(L[j])
        L[i], L[j] = hi, lo
    def sort_bitonic8(self, L):
        for st in ([(0, 4), (1, 5), (2, 6), (3, 7)], [(0, 2), (1, 3), (4, 6), (5, 7)], [(0, 1), (2, 3), (4, 5), (6, 7)]):
            for (i, j) in st: self.ce(L, i, j)
    def top8(self, L, dpp, sort=True):
        T = [None] * 8
        for i in range(7, -1, -1):
            T[i] = self.get()
            self.a("v_max_u32_dpp v%d, v%d, v%d %s bank_mask:0xf" % (T[i], L[7 - i], L[i], dpp))
        for r in L: self.put(r)
        if sort: self.sort_bitonic8(T)
        return T

def top8_wave(a, keys, free, wave_sgpr, lds_cand):
    n = Net(a, free)
    L = list(keys)
    for (i, j) in ((0,1),(2,3),(4,5),(6,7),(0,2),(1,3),(4,6),(5,7),(1,2),(5,6),(0,4),(3,7),(1,5),(2,6),(1,4),(3,6),(2,4),(3,5),(3,4)):
        n.ce(L, i, j)
    a("s_nop 0")
    for dp in ("quad_perm:[1,0,3,2] row_mask:0xf", "quad_perm:[2,3,0,1] row_mask:0xf", "row_half_mirror row_mask:0xf", "row_mirror row_mask:0xf",
               "row_bcast:15 row_mask:0xa", "row_bcast:31 row_mask:0xc"):
        L = n.top8(L, dp)
    base = (max(free) + 4) // 4 * 4
    for i in range(8):
        a("v_mov_b32 v%d, v%d" % (base + i, L[i]))
    adr = n.get()
    a("s_lshl_b32 s98, s%d, 5" % wave_sgpr)
    a("s_add_u32 s98, s98, %d" % lds_cand)
    a("v_mov_b32 v%d, s98" % adr)
    a("s_mov_b32 exec_lo, 0")
    a("s_mov_b32 exec_hi, 0x80000000")
    a("ds_write_b128 v%d, %s" % (adr, v(base, 4)))
    a("ds_write_b128 v%d, %s offset:16" % (adr, v(base + 4, 4)))
    a("s_mov_b64 exec, -1")

def top8_final(a, free, lds_cand):
    n = Net(a, free)
    base = (max(free) + 4) // 4 * 4
    adr = n.get()
    a("v_mbcnt_lo_u32_b32 v%d, -1, 0" % adr)
    a("v_mbcnt_hi_u32_b32 v%d, -1, v%d" % (adr, adr))
    a("v_and_b32 v%d, 3, v%d" % (adr, adr))
    a("v_lshlrev_b32 v%d, 5, v%d" % (adr, adr))
    a("v_add_u32 v%d, %d, v%d" % (adr, lds_cand, adr))
    a("ds_read_b128 %s, v%d" % (v(base, 4), adr))
    a("ds_read_b128 %s, v%d offset:16" % (v(base + 4, 4), adr))
    L = [base + i for i in range(8)]
    a("s_waitcnt lgkmcnt(0)")
    L = n.top8(L, "quad_perm:[1,0,3,2] row_mask:0xf")
    L = n.top8(L, "quad_perm:[2,3,0,1] row_mask:0xf")
    return L

def gen_moe(a):
    NTM = " nt" if opt("NT_MOE", 1) else ""
    vLane = 1
    WR = 32
    WF = 64
    sWS, sX, sWm, sWd, sDb = 24, 28, 32, 36, 40
    sSl, sT0, sT1, sI, sTag, sTok = 44, 45, 46, 47, 48, 49
    a("s_sub_u32 s%d, s2, 32" % sSl)
    srd(a, sWS, sWSP, WS_SIZE)
    srd(a, sDb, sDBG, 256)
    srd(a, sX, sXP, 2048 * 1024)
    srd(a, sWd, sWDP, 1792 * 1024)
    def wd_loads():
        a("v_lshrrev_b32 v5, 4, v%d" % vLane)
        a("v_and_b32 v6, 15, v%d" % vLane)
        a("v_lshlrev_b32 v5, 13, v5")
        a("v_lshl_add_u32 v5, v6, 3, v5")
        a("s_lshl_b32 s52, s%d, 16" % sSl)
        a("s_lshl_b32 s53, s%d, 7" % sWave)
        a("s_add_u32 s52, s52, s53")
        for kk in range(2):
            for e in range(8):
                a("s_add_u32 s53, s52, %d" % (kk * 32768 + (e // 4) * 4096))
                a("buffer_load_dwordx2 %s, v5, s[%d:%d], s53 offen offset:%d%s" % (v(WR + 16 * kk + 2 * e, 2), sWd, sWd + 3, (e % 4) * 1024, NTM))
    if opt("MOE_DELAY", 1):
        get_nonce(a, "moe", sDb, 12, 13, sTag)
    a("s_and_b32 s%d, s%d, 1" % (sT0, sWave))
    a("s_cmp_eq_u32 s%d, 0" % sT0)
    a("s_cselect_b32 s%d, s%d, s%d" % (sWm, sWGP, sWUP))
    a("s_cselect_b32 s%d, s%d, s%d" % (sWm + 1, sWGP + 1, sWUP + 1))
    a("s_mov_b32 s%d, 0x%x" % (sWm + 2, 512 * 3584))
    a("s_mov_b32 s%d, 0x20000" % (sWm + 3))
    a("v_lshrrev_b32 v4, 3, v%d" % vLane)
    a("v_and_b32 v5, 7, v%d" % vLane)
    a("v_bfe_u32 v6, v4, 1, 1")
    a("v_lshlrev_b32 v6, 1, v6")
    a("v_xor_b32 v5, v5, v6")
    a("v_mul_u32_u24 v4, 0xe00, v4")
    a("v_xor_b32 v6, 4, v5")
    a("v_lshl_add_u32 v7, v6, 4, v4")
    a("v_lshl_add_u32 v4, v5, 4, v4")
    a("v_add_u32 v7, %d, v7" % (8 * 3584))
    a("s_lshr_b32 s%d, s%d, 1" % (sT1, sWave))
    a("s_mul_i32 s50, s%d, %d" % (sT1, 128 * 3584))
    a("s_lshl_b32 s51, s%d, 7" % sSl)
    a("s_add_u32 s50, s50, s51")
    a("s_lshl_b32 s51, s%d, 16" % sT0)
    a("s_lshl_b32 s52, s%d, 14" % sT1)
    a("s_add_u32 s51, s51, s52")
    a("s_mov_b32 s%d, 0" % sI)
    a.label("L_moe_dma")
    a("s_mov_b32 m0, s51")
    a("s_add_u32 s51, s51, 2048")
    a("buffer_load_dwordx4 v4, s[%d:%d], s50 offen%s lds" % (sWm, sWm + 3, NTM))
    a("s_add_u32 m0, m0, 1024")
    a("s_add_u32 s%d, s%d, 1" % (sI, sI))
    a("buffer_load_dwordx4 v7, s[%d:%d], s50 offen%s lds" % (sWm, sWm + 3, NTM))
    a("s_add_u32 s50, s50, %d" % (16 * 3584))
    a("s_cmp_lt_u32 s%d, 8" % sI)
    a("s_cbranch_scc1 L_moe_dma")
    wd_loads()
    stamp(a, 2)
    a("s_cmp_ge_u32 s%d, 4" % sWave)
    a("s_cbranch_scc0 L_moe_route")
    a("s_waitcnt vmcnt(0)")
    a("s_branch L_moe_sync")
    a.label("L_moe_route")
    if not opt("MOE_DELAY", 1):
        get_nonce(a, "moe", sDb, 12, 13, sTag)
    a("v_lshlrev_b32 v3, 4, v0")
    a("s_mov_b32 s98, 0")
    a.label("L_moe_poll")
    a("s_mov_b32 s%d, 0x%x" % (sT0, WS_REC))
    for q in range(8):
        a("buffer_load_dwordx2 %s, v3, s[%d:%d], s%d offen offset:8 sc1" % (v(96 + 2 * q, 2), sWS, sWS + 3, sT0))
        if q < 7:
            a("s_add_u32 s%d, s%d, 4096" % (sT0, sT0))
    a("s_add_u32 s98, s98, 1")
    a("s_waitcnt vmcnt(0)")
    for q in range(8):
        a("v_xor_b32 v%d, s%d, v%d" % (97 + 2 * q, sTag, 97 + 2 * q))
    a("v_or3_b32 v4, v97, v99, v101")
    a("v_or3_b32 v5, v103, v105, v107")
    a("v_or3_b32 v4, v4, v109, v111")
    a("v_or_b32 v4, v4, v5")
    a("v_cmp_ne_u32 vcc, 0, v4")
    a("s_cmp_gt_u32 s98, 0x40000")
    a("s_cbranch_scc1 L_moe_go")
    a("s_cmp_eq_u64 vcc, 0")
    a("s_cbranch_scc1 L_moe_go")
    a("s_sleep 8")
    a("s_branch L_moe_poll")
    a.label("L_moe_go")
    stamp(a, 3)
    top8_wave(a, [96 + 2 * q for q in range(8)], [97 + 2 * q for q in range(8)] + list(range(14, 24)) + [112, 113], sWave, M_CAND)
    a("s_waitcnt lgkmcnt(0)")
    a.label("L_moe_sync")
    a("s_barrier")
    stamp(a, 4)
    R = top8_final(a, list(range(96, 114)), M_CAND)
    stamp(a, 5)
    vRes = 20
    a("v_mov_b32 v%d, v%d" % (vRes, R[0]))
    for jx in range(1, 8):
        a("v_cmp_eq_u32 vcc, %d, v%d" % (jx, vLane))
        a("s_nop 1")
        a("v_cndmask_b32 v%d, v%d, v%d, vcc" % (vRes, vRes, R[jx]))
    a("s_nop 0")
    a("v_readlane_b32 s%d, v%d, s%d" % (sTok, vRes, sWave))
    a("s_nop 3")
    a("s_and_b32 s%d, s%d, 0xffff" % (sTok, sTok))
    a("s_sub_u32 s%d, 0xffff, s%d" % (sTok, sTok))
    a("s_lshl_b32 s%d, s%d, 10" % (sT0, sTok))
    a("v_lshlrev_b32 v6, 4, v%d" % vLane)
    a("buffer_load_dwordx4 v[24:27], v6, s[%d:%d], s%d offen" % (sX, sX + 3, sT0))
    a("s_lshl_b32 s%d, s%d, 4" % (sT1, sTok))
    a("s_add_u32 s50, s%d, 0x%x" % (sT1, WS_REC))
    a("v_mov_b32 v7, 0")
    a("buffer_load_dwordx2 v[22:23], v7, s[%d:%d], s50 offen sc1" % (sWS, sWS + 3))
    a("s_waitcnt vmcnt(2)")
    a("s_mov_b32 s52, 0x05040100")
    a("s_mov_b32 s53, 0x07060302")
    for kk in range(2):
        for jj in range(4):
            for p in range(4):
                a("v_perm_b32 v%d, v%d, v%d, s%d" % (WF + 16 * kk + 4 * jj + p, WR + 16 * kk + 2 * (2 * p + 1) + (jj >> 1), WR + 16 * kk + 2 * (2 * p) + (jj >> 1), 52 + (jj & 1)))
    a("s_or_b32 s%d, s%d, s%d" % (sT0, sSl, sWave))
    a("s_cmp_lg_u32 s%d, 0" % sT0)
    a("s_cbranch_scc1 L_moe_nosel")
    a("v_and_b32 v8, 0xffff, v%d" % vRes)
    a("v_sub_u32 v8, 0xffff, v8")
    a("v_lshrrev_b32 v9, 16, v%d" % vRes)
    a("v_cmp_le_u32 vcc, 0x8000, v9")
    a("v_xor_b32 v10, 0x8000, v9")
    a("v_xor_b32 v11, 0xffff, v9")
    a("v_cndmask_b32 v9, v11, v10, vcc")
    a("v_lshlrev_b32 v9, 16, v9")
    a("v_mul_f32 v9, %s, v9" % fhex(-LOG2E))
    a("v_exp_f32 v9, v9")
    a("s_nop 0")
    a("v_add_f32 v9, 1.0, v9")
    a("v_rcp_f32 v9, v9")
    a("s_nop 0")
    bf16r(a, "v9", "v9")
    a("v_lshlrev_b32 v10, 2, v%d" % vLane)
    a("s_mov_b32 s%d, 0x%x" % (sT0, WS_SEL))
    a("s_mov_b32 exec_lo, 0xff")
    a("s_mov_b32 exec_hi, 0")
    a("buffer_store_dword v8, v10, s[%d:%d], s%d offen" % (sWS, sWS + 3, sT0))
    a("buffer_store_dword v9, v10, s[%d:%d], s%d offen offset:32" % (sWS, sWS + 3, sT0))
    a("s_mov_b64 exec, -1")
    a("s_waitcnt vmcnt(2)")
    a("s_branch L_moe_sel")
    a.label("L_moe_nosel")
    a("s_waitcnt vmcnt(0)")
    a.label("L_moe_sel")
    stamp(a, 6)
    T = 96
    for i in range(4):
        a("v_lshlrev_b32 v%d, 16, v%d" % (T + 2 * i, 24 + i))
        a("v_and_b32 v%d, 0xffff0000, v%d" % (T + 1 + 2 * i, 24 + i))
    for i in range(8):
        a("v_sub_f32 v%d, v%d, v22" % (T + i, T + i))
    for i in range(4):
        a("v_cvt_pk_bf16_f32 v%d, v%d, v%d" % (24 + i, T + 2 * i, T + 1 + 2 * i))
    for i in range(4):
        a("v_lshlrev_b32 v%d, 16, v%d" % (T + 2 * i, 24 + i))
        a("v_and_b32 v%d, 0xffff0000, v%d" % (T + 1 + 2 * i, 24 + i))
    for i in range(8):
        a("v_mul_f32 v%d, v%d, v23" % (T + i, T + i))
    for i in range(4):
        a("v_cvt_pk_bf16_f32 v%d, v%d, v%d" % (24 + i, T + 2 * i, T + 1 + 2 * i))
    a("s_mul_i32 s%d, s%d, 1056" % (sT0, sWave))
    a("s_add_u32 s%d, s%d, %d" % (sT0, sT0, M_XS))
    a("v_add_u32 v6, s%d, v6" % sT0)
    a("ds_write_b128 v6, v[24:27]")
    a("v_lshrrev_b32 v8, 4, v%d" % vLane)
    a("v_bfe_u32 v9, v%d, 2, 2" % vLane)
    a("v_and_b32 v10, 3, v%d" % vLane)
    a("v_and_b32 v11, 1, v8")
    a("v_lshlrev_b32 v11, 1, v11")
    a("v_lshrrev_b32 v12, 1, v9")
    a("v_or_b32 v11, v11, v12")
    a("s_lshr_b32 s%d, s%d, 1" % (sI, sWave))
    a("v_xor_b32 v11, s%d, v11" % sI)
    a("v_lshl_add_u32 v9, v8, 3, v9")
    a("v_lshlrev_b32 v9, 7, v9")
    a("v_lshl_add_u32 v9, v11, 5, v9")
    a("v_lshl_add_u32 v9, v10, 3, v9")
    a("s_and_b32 s%d, s%d, 1" % (sT0, sWave))
    a("s_lshl_b32 s50, s%d, 16" % sT0)
    a("v_add_u32 v9, s50, v9")
    a("v_and_b32 v10, 7, v%d" % vLane)
    a("v_mul_u32_u24 v10, 1056, v10")
    a("v_lshl_add_u32 v10, v8, 4, v10")
    a("v_add_u32 v10, %d, v10" % M_XS)
    a("s_lshl_b32 s50, s%d, 11" % sT0)
    a("s_lshl_b32 s51, s%d, 6" % sI)
    a("s_add_u32 s50, s50, s51")
    a("s_add_u32 s50, s50, %d" % M_GU)
    a("v_and_b32 v11, 15, v%d" % vLane)
    a("v_lshlrev_b32 v11, 8, v11")
    a("v_lshl_add_u32 v11, v8, 4, v11")
    a("v_add_u32 v11, s50, v11")
    for r in range(4):
        a("v_mov_b32 v%d, 0" % (28 + r))
    a("s_waitcnt lgkmcnt(0)")
    a("s_barrier")
    stamp(a, 7)
    FA, FB = 96, 112
    def gu_reads(ks):
        a("ds_read_b64_tr_b16 %s, v9 offset:%d" % (v(FA + 4 * (ks % 4), 2), ks * 4096))
        a("ds_read_b64_tr_b16 %s, v9 offset:%d" % (v(FA + 4 * (ks % 4) + 2, 2), ks * 4096 + 512))
        a("ds_read_b128 %s, v10 offset:%d" % (v(FB + 4 * (ks % 4), 4), ks * 64))
    for ks in range(4):
        gu_reads(ks)
    for ks in range(16):
        a("s_waitcnt lgkmcnt(%d)" % (9 if ks <= 12 else 3 * (15 - ks)))
        a("v_mfma_f32_16x16x32_bf16 v[28:31], %s, %s, v[28:31]" % (v(FA + 4 * (ks % 4), 4), v(FB + 4 * (ks % 4), 4)))
        if ks + 4 < 16:
            gu_reads(ks + 4)
    a("s_mov_b32 exec_lo, 0x00ff00ff")
    a("s_mov_b32 exec_hi, 0x00ff00ff")
    a("s_nop 7")
    a("ds_write_b128 v11, v[28:31]")
    a("s_mov_b64 exec, -1")
    a("v_lshlrev_b32 v8, 2, v0")
    a("v_add_u32 v8, %d, v8" % M_GU)
    a("s_waitcnt lgkmcnt(0)")
    a("s_barrier")
    a("ds_read_b32 v12, v8")
    a("ds_read_b32 v14, v8 offset:2048")
    a("v_lshlrev_b32 v8, 1, v0")
    a("v_add_u32 v8, %d, v8" % M_HS)
    a("s_waitcnt lgkmcnt(0)")
    bf16r(a, "v12", "v12")
    bf16r(a, "v14", "v14")
    a("v_mul_f32 v13, %s, v12" % fhex(-LOG2E))
    a("v_exp_f32 v13, v13")
    a("s_nop 0")
    a("v_add_f32 v13, 1.0, v13")
    a("v_rcp_f32 v13, v13")
    a("s_nop 0")
    a("v_mul_f32 v12, v12, v13")
    bf16r(a, "v12", "v12")
    a("v_mul_f32 v12, v12, v14")
    a("v_cvt_pk_bf16_f32 v12, v12, v12")
    a("ds_write_b16 v8, v12")
    a("v_and_b32 v8, 7, v%d" % vLane)
    a("v_lshrrev_b32 v9, 4, v%d" % vLane)
    a("v_lshlrev_b32 v8, 7, v8")
    a("v_lshl_add_u32 v8, v9, 4, v8")
    a("v_add_u32 v8, %d, v8" % M_HS)
    a("s_waitcnt lgkmcnt(0)")
    a("s_barrier")
    stamp(a, 8)
    a("ds_read_b128 v[96:99], v8")
    a("ds_read_b128 v[100:103], v8 offset:64")
    a("v_and_b32 v10, 15, v%d" % vLane)
    a("v_lshlrev_b32 v10, 11, v10")
    a("v_lshl_add_u32 v10, v9, 6, v10")
    a("s_lshl_b32 s50, s%d, 14" % sSl)
    a("s_lshl_b32 s51, s%d, 8" % sWave)
    a("s_add_u32 s50, s50, s51")
    a("s_add_u32 s50, s50, 0x%x" % WS_PART)
    a("s_waitcnt lgkmcnt(1)")
    for jj in range(4):
        a("v_mfma_f32_16x16x32_bf16 %s, %s, v[96:99], 0" % (v(104 + 4 * jj, 4), v(WF + 4 * jj, 4)))
    a("s_waitcnt lgkmcnt(0)")
    for jj in range(4):
        a("v_mfma_f32_16x16x32_bf16 %s, %s, v[100:103], %s" % (v(104 + 4 * jj, 4), v(WF + 16 + 4 * jj, 4), v(104 + 4 * jj, 4)))
    a("s_mov_b32 exec_lo, 0x00ff00ff")
    a("s_mov_b32 exec_hi, 0x00ff00ff")
    a("s_nop 7")
    for jj in range(4):
        a("buffer_store_dwordx4 %s, v10, s[%d:%d], s50 offen offset:%d" % (v(104 + 4 * jj, 4), sWS, sWS + 3, jj * 16))
    stamp_flush(a, 0, sWS, sWave)
    a("s_endpgm")

def gen_tlb(a):
    step = opt("PF_TLB")
    a("s_load_dwordx2 s[40:41], s[0:1], 16")
    a("s_load_dwordx2 s[42:43], s[0:1], 64")
    a("v_mul_u32_u24 v3, %d, v1" % 1)
    a("v_lshlrev_b32 v3, %d, v1" % (step.bit_length() - 1))
    a("s_waitcnt lgkmcnt(0)")
    r = 16
    for (ptr, nbytes) in ((sWGP, 512 * 3584), (sWUP, 512 * 3584), (sWDP, 1792 * 1024), (40, 512 * 1024), (42, 2048 * 1024), (sWSP, WS_SIZE)):
        srd(a, 32, ptr, nbytes)
        a("s_mul_i32 s44, s%d, %d" % (sWave, 64 * step))
        a("v_add_u32 v4, s44, v3")
        a("buffer_load_dword v%d, v4, s[32:35], 0 offen" % r); r += 1
    a("s_endpgm")

def gen_touch(a):
    sB, sC4 = 32, 36
    srd(a, sB, sXP, 2048 * 1024)
    srd(a, sC4, sWP, 512 * 3072)
    a("s_sub_u32 s46, s2, 33")
    a("s_lshl_b32 s46, s46, 3")
    a("s_add_u32 s46, s46, s%d" % sWave)
    a("v_lshlrev_b32 v10, 10, v1")
    a("v_lshlrev_b32 v11, 7, v1")
    for rnd in range(2):
        if rnd:
            a("s_add_u32 s46, s46, 248")
            a("s_cmp_ge_u32 s46, 336")
            a("s_cbranch_scc1 L_pf_end")
        a("s_mul_i32 s47, s46, 1171")
        a("s_lshr_b32 s47, s47, 16")
        a("s_mul_i32 s48, s47, 56")
        a("s_sub_u32 s48, s46, s48")
        a("s_add_u32 s47, s47, 2")
        a("s_cmp_ge_u32 s48, 32")
        a("s_cbranch_scc1 L_pf_w%d" % rnd)
        a("s_lshl_b32 s49, s48, 16")
        a("s_lshl_b32 s50, s47, 7")
        a("s_add_u32 s49, s49, s50")
        a("buffer_load_dword v%d, v10, s[%d:%d], s49 offen" % (40 + rnd, sB, sB + 3))
        a("s_branch L_pf_n%d" % rnd)
        a.label("L_pf_w%d" % rnd)
        a("s_sub_u32 s48, s48, 32")
        a("s_lshl_b32 s49, s48, 13")
        a("s_mul_i32 s50, s47, 196608")
        a("s_add_u32 s49, s49, s50")
        a("buffer_load_dword v%d, v11, s[%d:%d], s49 offen" % (40 + rnd, sC4, sC4 + 3))
        a.label("L_pf_n%d" % rnd)
    a.label("L_pf_end")
    a("s_endpgm")

def gen_gemm(a):
    QST = " sc1" if opt("ST_QKV_SC1") else ""
    vLane = 1
    sX, sW, sWS, sDb = 24, 28, 32, 36
    sRb, sCb, sT0, sT1, sC, sSlot = 40, 41, 42, 43, 44, 45
    a("s_sub_u32 s%d, s2, 64" % sT0)
    a("s_and_b32 s%d, s%d, 7" % (sT1, sT0))
    a("s_lshr_b32 s%d, s%d, 3" % (sT0, sT0))
    a("s_lshr_b32 s%d, s%d, 1" % (sRb, sT1))
    a("s_lshl_b32 s%d, s%d, 2" % (sRb, sRb))
    a("s_and_b32 s46, s%d, 3" % sT0)
    a("s_add_u32 s%d, s%d, s46" % (sRb, sRb))
    a("s_and_b32 s%d, s%d, 1" % (sCb, sT1))
    a("s_mul_i32 s%d, s%d, 6" % (sCb, sCb))
    a("s_lshr_b32 s%d, s%d, 2" % (sT0, sT0))
    a("s_add_u32 s%d, s%d, s%d" % (sCb, sCb, sT0))
    srd(a, sWS, sWSP, WS_SIZE)
    a("s_cmp_ge_u32 s%d, 4" % sWave)
    a("s_cbranch_scc0 L_g_cons")
    vXa, vXb, vW = 10, 11, 12
    sLw, sXg, sXg2, sWg, sL4 = 46, 47, 48, 49, 50
    srd(a, sX, sXP, 2048 * 1024)
    srd(a, sW, sWP, 512 * 3072)
    a("s_sub_u32 s%d, s%d, 4" % (sLw, sWave))
    a("v_lshrrev_b32 v2, 3, v%d" % vLane)
    a("v_and_b32 v3, 7, v%d" % vLane)
    a("v_lshrrev_b32 v4, 1, v2")
    a("v_xor_b32 v3, v3, v4")
    a("v_xor_b32 v4, 4, v3")
    a("v_lshlrev_b32 v2, 10, v2")
    a("v_lshl_add_u32 v%d, v3, 4, v2" % vXa)
    a("v_lshl_add_u32 v%d, v4, 4, v2" % vXb)
    a("v_add_u32 v%d, 0x2000, v%d" % (vXb, vXb))
    a("v_lshrrev_b32 v2, 4, v%d" % vLane)
    a("v_bfe_u32 v3, v%d, 2, 2" % vLane)
    a("v_xor_b32 v3, v3, v2")
    a("v_and_b32 v4, 3, v%d" % vLane)
    a("v_lshl_add_u32 v3, v3, 2, v4")
    a("v_mul_u32_u24 v2, 0xc00, v2")
    a("v_lshl_add_u32 v%d, v3, 4, v2" % vW)
    for i in range(1, 4):
        a("v_add_u32 v%d, %d, v%d" % (vW + i, i * 12288, vW))
    a("s_lshl_b32 s%d, s%d, 17" % (sXg, sRb))
    a("s_lshl_b32 s%d, s%d, 15" % (sT0, sLw))
    a("s_add_u32 s%d, s%d, s%d" % (sXg, sXg, sT0))
    a("s_mul_i32 s%d, s%d, %d" % (sWg, sLw, 16 * 3072))
    a("s_lshl_b32 s%d, s%d, 8" % (sT0, sCb))
    a("s_add_u32 s%d, s%d, s%d" % (sWg, sWg, sT0))
    a("s_lshl_b32 s%d, s%d, 12" % (sL4, sLw))
    a("s_mov_b32 s%d, 0" % sSlot)
    def issue():
        a("s_add_u32 s%d, s%d, 0x4000" % (sXg2, sXg))
        a("s_add_u32 m0, s%d, s%d" % (sSlot, sL4))
        a("s_nop 0")
        for i in range(4):
            a("buffer_load_dwordx4 v%d, s[%d:%d], s%d offen%s lds" % (vXa if i % 2 == 0 else vXb, sX, sX + 3, sXg if i < 2 else sXg2, " nt" if opt("NT_X") else ""))
            a("s_add_u32 m0, m0, %d" % (1024 if i < 3 else 13312))
            a("s_nop 0")
        for i in range(4):
            a("buffer_load_dwordx4 v%d, s[%d:%d], s%d offen%s lds" % (vW + i, sW, sW + 3, sWg, " nt" if opt("NT_W") else ""))
            if i < 3:
                a("s_add_u32 m0, m0, 1024")
                a("s_nop 0")
        a("s_add_u32 s%d, s%d, 128" % (sXg, sXg))
        a("s_add_u32 s%d, s%d, %d" % (sWg, sWg, 64 * 3072))
        a("s_add_u32 s%d, s%d, 0x8000" % (sSlot, sSlot))
        a("s_and_b32 s%d, s%d, 0x1ffff" % (sSlot, sSlot))
    a("s_mov_b32 s%d, 0" % sC)
    a.label("L_g_lpro")
    issue()
    a("s_add_u32 s%d, s%d, 1" % (sC, sC))
    a("s_cmp_lt_u32 s%d, 2" % sC)
    a("s_cbranch_scc1 L_g_lpro")
    stamp(a, 1)
    a("s_mov_b32 s%d, 0" % sC)
    a.label("L_g_lloop")
    a("s_waitcnt vmcnt(8)")
    stamp(a, "s%d+10" % sC)
    a("s_barrier")
    issue()
    a("s_add_u32 s%d, s%d, 1" % (sC, sC))
    a("s_cmp_lt_u32 s%d, 4" % sC)
    a("s_cbranch_scc1 L_g_lloop")
    if opt("PF_MOE", 1):
        a("s_load_dwordx2 s[58:59], s[0:1], 16")
        a("s_sub_u32 s60, s2, 64")
        a("s_lshl_b32 s60, s60, 2")
        a("s_add_u32 s60, s60, s%d" % sLw)
        a("s_min_u32 s60, s60, 63")
        a("s_lshl_b32 s61, s60, 13")
        a("v_lshlrev_b32 v20, 7, v%d" % vLane)
        a("s_waitcnt lgkmcnt(0)")
        srd(a, 64, 58, 512 * 1024)
    srd(a, sDb, sDBG, 256)
    a("v_mov_b32 v4, 0")
    a("s_waitcnt vmcnt(8)")
    a("s_barrier")
    a("buffer_load_dword v5, v4, s[%d:%d], 0 offen sc1" % (sDb, sDb + 3))
    issue()
    a("s_lshl_b32 s%d, s%d, 11" % (sT0, sRb))
    a("s_add_u32 s51, s%d, 0x%x" % (sT0, WS_REC))
    a("v_and_b32 v7, 31, v%d" % vLane)
    a("s_lshl_b32 s%d, s%d, 9" % (sT0, sLw))
    a("v_lshl_add_u32 v6, v7, 4, s%d" % sT0)
    a("s_lshl_b32 s%d, s%d, 7" % (sT0, sLw))
    a("s_add_u32 s%d, s%d, %d" % (sT0, sT0, G_ST))
    a("v_lshl_add_u32 v7, v7, 2, s%d" % sT0)
    a("s_waitcnt vmcnt(8)")
    a("v_readfirstlane_b32 s52, v5")
    a("s_nop 3")
    a("s_cmp_lg_u32 s52, 0")
    a("s_cbranch_scc1 L_g_nonok")
    get_nonce(a, "g", sDb, 5, 4, 52)
    a.label("L_g_nonok")
    a("s_barrier")
    a("buffer_load_dwordx4 v[16:19], v6, s[%d:%d], s51 offen sc1" % (sWS, sWS + 3))
    issue()
    PFN = 1 if opt("PF_MOE", 1) else 0
    if PFN:
        a("buffer_load_dword v21, v20, s[64:67], s61 offen")
    a("s_waitcnt vmcnt(%d)" % (8 + PFN))
    a("s_mov_b32 s98, 0")
    a.label("L_g_rec")
    a("v_cmp_ne_u32 vcc, s52, v19")
    a("s_cmp_gt_u32 s98, 0x40000")
    a("s_cbranch_scc1 L_g_recok")
    a("s_cmp_eq_u64 vcc, 0")
    a("s_cbranch_scc1 L_g_recok")
    a("s_sleep 4")
    a("buffer_load_dwordx4 v[16:19], v6, s[%d:%d], s51 offen sc1" % (sWS, sWS + 3))
    a("s_add_u32 s98, s98, 1")
    a("s_waitcnt vmcnt(0)")
    a("s_branch L_g_rec")
    a.label("L_g_recok")
    a("ds_write_b32 v7, v16")
    a("ds_write_b32 v7, v17 offset:512")
    a("s_barrier")
    a("s_waitcnt vmcnt(%d) lgkmcnt(0)" % PFN)
    a("s_barrier")
    stamp_flush(a, 0, sWS, sWave)
    a("s_endpgm")
    a.label("L_g_cons")
    vXr = [4, 5, 6, 7]
    vWr = [8, 9]
    acc = [[64, 80], [96, 112]]
    XB = [[128, 132], [136, 140]]
    WB = [[144, 148], [152, 156]]
    NM, CSF = [160, 164], [168, 172]
    SEL, CSA = 176, [180, 184]
    sMt, sNt, sHi = 46, 47, 48
    a("s_and_b32 s%d, s%d, 1" % (sMt, sWave))
    a("s_lshr_b32 s%d, s%d, 1" % (sNt, sWave))
    a("v_and_b32 v2, 31, v%d" % vLane)
    a("v_lshrrev_b32 v3, 5, v%d" % vLane)
    a("v_cmp_eq_u32 s[%d:%d], 1, v3" % (sHi, sHi + 1))
    a("v_lshrrev_b32 v10, 1, v2")
    a("v_and_b32 v10, 7, v10")
    a("s_lshl_b32 s%d, s%d, 13" % (sT0, sMt))
    a("v_lshl_add_u32 v11, v2, 7, s%d" % sT0)
    for p in range(4):
        a("v_add_u32 v12, %d, v3" % (2 * p))
        a("v_xor_b32 v12, v12, v10")
        a("v_lshl_add_u32 v%d, v12, 4, v11" % vXr[p])
    a("v_bfe_u32 v12, v%d, 2, 2" % vLane)
    a("v_lshl_add_u32 v13, v3, 3, v12")
    a("v_lshlrev_b32 v13, 8, v13")
    a("v_bfe_u32 v14, v%d, 4, 1" % vLane)
    a("v_lshl_add_u32 v13, v14, 5, v13")
    a("v_and_b32 v14, 3, v%d" % vLane)
    a("v_lshl_add_u32 v13, v14, 3, v13")
    a("v_add_u32 v13, 0x4000, v13")
    a("s_lshl_b32 s%d, s%d, 1" % (sT0, sNt))
    a("v_xor_b32 v14, s%d, v12" % sT0)
    a("v_lshl_add_u32 v%d, v14, 6, v13" % vWr[0])
    a("v_xor_b32 v%d, 64, v%d" % (vWr[1], vWr[0]))
    for r in range(64, 128):
        a("v_mov_b32 v%d, 0" % r)
    for r in list(range(136, 144)) + list(range(152, 176)) + list(range(180, 188)):
        a("v_mov_b32 v%d, 0" % r)
    a("v_bfe_u32 v12, v%d, 4, 1" % vLane)
    a("v_and_b32 v13, 1, v%d" % vLane)
    a("v_cmp_eq_u32 vcc, v12, v13")
    a("v_cmp_eq_u32 s[56:57], 1, v12")
    a("v_mov_b32 v14, 0x3f803f80")
    a("v_cndmask_b32 v%d, 0, v14, vcc" % SEL)
    for i in range(1, 4):
        a("v_mov_b32 v%d, v%d" % (SEL + i, SEL))
    def csum(buf, n):
        a("v_mfma_f32_16x16x32_bf16 %s, %s, %s, %s" % (v(CSA[n], 4), v(SEL, 4), v(WB[buf][n], 4), v(CSA[n], 4)))
    def xread(p, buf, m):
        a("ds_read_b128 %s, v%d offset:%d" % (v(XB[buf][m], 4), vXr[p], m * 4096))
    def wread(p, buf, n, t):
        a("ds_read_b64_tr_b16 %s, v%d offset:%d" % (v(WB[buf][n] + 2 * t, 2), vWr[n], p * 4096 + t * 1024))
    def mm(kind, buf, m, n):
        if kind == 0:
            a("v_mfma_f32_32x32x16_bf16 %s, %s, %s, %s" % (v(acc[m][n], 16), v(WB[buf][n], 4), v(XB[buf][m], 4), v(acc[m][n], 16)))
        else:
            a("v_mfma_f32_32x32x16_bf16 %s, %s, %s, %s" % (v(acc[m][n], 16), v(XB[buf][m], 4), v(WB[buf][n], 4), v(acc[m][n], 16)))
    def step(kind, cur, p, filler=None):
        nxt = cur ^ 1
        a("s_waitcnt lgkmcnt(3)")
        mm(kind, cur, 0, 0)
        xread(p, nxt, 0); wread(p, nxt, 0, 0); wread(p, nxt, 0, 1)
        csum(cur, 0)
        a("s_waitcnt lgkmcnt(4)")
        mm(kind, cur, 0, 1)
        wread(p, nxt, 1, 0); wread(p, nxt, 1, 1); xread(p, nxt, 1)
        csum(cur, 1)
        a("s_waitcnt lgkmcnt(6)")
        mm(kind, cur, 1, 0)
        if filler: filler(0)
        mm(kind, cur, 1, 1)
        if filler: filler(1)
    def adv(h):
        regs = (vXr + vWr)[3 * h:3 * h + 3]
        for r in regs:
            a("v_add_u32 v%d, 0x8000, v%d" % (r, r))
        for r in regs:
            a("v_and_b32 v%d, 0x1ffff, v%d" % (r, r))
    def main_loop(kind, tag):
        a("s_mov_b32 s%d, 0" % sC)
        a.label("L_g_loop%s" % tag)
        a("s_waitcnt lgkmcnt(0)")
        a("s_barrier")
        stamp(a, "s%d+10" % sC)
        step(kind, 1, 0)
        step(kind, 0, 1)
        step(kind, 1, 2)
        step(kind, 0, 3, adv)
        a("s_add_u32 s%d, s%d, 1" % (sC, sC))
        a("s_cmp_lt_u32 s%d, 8" % sC)
        a("s_cbranch_scc1 L_g_loop%s" % tag)
        stamp(a, 20)
    vM, vRs, vCs = [10, 11], [12, 14], [16, 17]
    def stat_reads(kind):
        a("v_lshlrev_b32 v18, 2, v2")
        a("s_lshl_b32 s%d, s%d, 8" % (sT0, sMt))
        a("s_add_u32 s%d, s%d, %d" % (sT0, sT0, G_ST))
        a("v_add_u32 v19, s%d, v18" % sT0)
        for m in range(2):
            a("ds_read_b32 v%d, v19 offset:%d" % (vM[m], m * 128))
        if kind == 0:
            for m in range(2):
                a("ds_read_b32 v%d, v19 offset:%d" % (vRs[m], 512 + m * 128))
        else:
            a("v_lshl_add_u32 v19, v3, 4, s%d" % sT0)
            for m in range(2):
                for j in range(4):
                    a("ds_read_b128 %s, v19 offset:%d" % (v(24 + 16 * m + 4 * j, 4), 512 + m * 128 + j * 32))
    def last_step(kind):
        a("s_waitcnt lgkmcnt(%d)" % (4 if kind == 0 else 10))
        csum(1, 0)
        csum(1, 1)
        for m in range(2):
            for n in range(2):
                mm(kind, 1, m, n)
    def correction(kind, nwait):
        a("s_waitcnt lgkmcnt(%d)" % nwait)
        for m in range(2):
            a("v_sub_f32 v20, 0, v%d" % vM[m])
            a("v_cvt_pk_bf16_f32 v%d, v20, 0" % NM[m])
        for n in range(2):
            a("v_cndmask_b32 v%d, v%d, v%d, s[56:57]" % (vCs[n], CSA[n], CSA[n] + 1))
        for n in range(2):
            a("v_cvt_pk_bf16_f32 v20, v%d, v%d" % (vCs[n], vCs[n]))
            a("v_and_b32 v20, 0xffff0000, v20")
            a("v_sub_f32 v20, v%d, v20" % vCs[n])
            a("v_cndmask_b32 v20, v%d, v20, s[%d:%d]" % (vCs[n], sHi, sHi + 1))
            a("v_cvt_pk_bf16_f32 v%d, v20, 0" % CSF[n])
        a("s_nop 1")
        for m in range(2):
            for n in range(2):
                if kind == 0:
                    a("v_mfma_f32_32x32x16_bf16 %s, %s, %s, %s" % (v(acc[m][n], 16), v(CSF[n], 4), v(NM[m], 4), v(acc[m][n], 16)))
                else:
                    a("v_mfma_f32_32x32x16_bf16 %s, %s, %s, %s" % (v(acc[m][n], 16), v(NM[m], 4), v(CSF[n], 4), v(acc[m][n], 16)))
    def store_bases():
        a("s_and_b32 s%d, s%d, 3" % (sT0, sCb))
        a("s_lshl_b32 s%d, s%d, 3" % (sT0, sT0))
        a("s_lshl_b32 s%d, s%d, 2" % (sT1, sNt))
        a("s_add_u32 s%d, s%d, s%d" % (sT0, sT0, sT1))
        a("s_lshl_b32 s%d, s%d, 16" % (sT0, sT0))
        a("s_lshl_b32 s%d, s%d, 2" % (sT1, sRb))
        a("s_lshl_b32 s50, s%d, 1" % sMt)
        a("s_add_u32 s%d, s%d, s50" % (sT1, sT1))
        a("s_lshl_b32 s%d, s%d, 10" % (sT1, sT1))
        a("s_add_u32 s50, s%d, s%d" % (sT0, sT1))
        a("s_lshr_b32 s%d, s%d, 2" % (sT0, sCb))
        a("s_lshl_b32 s%d, s%d, 21" % (sT0, sT0))
        a("s_add_u32 s50, s50, s%d" % sT0)
    a("s_cmp_ge_u32 s%d, 8" % sCb)
    a("s_cbranch_scc1 L_g_v")
    main_loop(0, "q")
    stat_reads(0)
    last_step(0)
    store_bases()
    correction(0, 2)
    a("s_cmp_lt_u32 s%d, 4" % sCb)
    a("s_cselect_b32 s51, %s, 1.0" % fhex(QSCALE))
    a("v_lshlrev_b32 v21, 4, v%d" % vLane)
    a("s_waitcnt lgkmcnt(0)")
    for m in range(2):
        a("v_mul_f32 v%d, s51, v%d" % (vRs[m], vRs[m]))
    a("s_nop 4")
    for m in range(2):
        for n in range(2):
            A = acc[m][n]
            P = XB[0][0] + 8 * ((2 * m + n) % 2)
            for i in range(8):
                a("v_pk_mul_f32 %s, %s, %s op_sel_hi:[1,0]" % (v(A + 2 * i, 2), v(A + 2 * i, 2), v(vRs[m], 2)))
            for i in range(8):
                a("v_cvt_pk_bf16_f32 v%d, v%d, v%d" % (A + i, A + 2 * i, A + 2 * i + 1))
            a("s_add_u32 s52, s50, %d" % (m * 1024 + n * 0x20000))
            a("s_add_u32 s53, s52, 0x10000")
            a("buffer_store_dwordx4 %s, v21, s[%d:%d], s52 offen%s" % (v(A, 4), sWS, sWS + 3, QST))
            a("buffer_store_dwordx4 %s, v21, s[%d:%d], s53 offen%s" % (v(A + 4, 4), sWS, sWS + 3, QST))
    a("s_branch L_g_fin")
    a.label("L_g_v")
    main_loop(1, "v")
    stat_reads(1)
    last_step(1)
    store_bases()
    correction(1, 8)
    a("v_bfe_u32 v21, v%d, 4, 1" % vLane)
    a("v_lshlrev_b32 v21, 16, v21")
    a("v_lshl_add_u32 v21, v3, 8, v21")
    a("v_and_b32 v22, 15, v%d" % vLane)
    a("v_lshl_add_u32 v21, v22, 4, v21")
    a("s_waitcnt lgkmcnt(0)")
    a("s_nop 4")
    for m in range(2):
        for n in range(2):
            A = acc[m][n]
            for i in range(8):
                a("v_pk_mul_f32 %s, %s, %s" % (v(A + 2 * i, 2), v(A + 2 * i, 2), v(24 + 16 * m + 2 * i, 2)))
            for i in range(8):
                a("v_cvt_pk_bf16_f32 v%d, v%d, v%d" % (A + i, A + 2 * i, A + 2 * i + 1))
            a("s_add_u32 s52, s50, %d" % (m * 1024 + n * 0x20000))
            a("buffer_store_dwordx4 %s, v21, s[%d:%d], s52 offen%s" % (v(A, 4), sWS, sWS + 3, QST))
            a("buffer_store_dwordx4 %s, v21, s[%d:%d], s52 offen offset:512%s" % (v(A + 4, 4), sWS, sWS + 3, QST))
    a.label("L_g_fin")
    stamp(a, 21)
    stamp_flush(a, 0, sWS, sWave)
    a("s_endpgm")

def gen_k1():
    a = Asm()
    N = "k1_kernel"
    a(kernel_head(N))
    a("s_cmp_ge_u32 s2, %d" % K1_GRID)
    a("s_cbranch_scc1 L_k1_end")
    stamp_begin(a, 255)
    a("s_load_dwordx4 s[4:7], s[0:1], 0")
    a("s_load_dwordx8 s[12:19], s[0:1], 32")
    a("s_load_dwordx4 s[20:23], s[0:1], 72")
    a("v_lshrrev_b32 v2, 6, v0")
    a("v_and_b32 v1, 63, v0")
    a("v_readfirstlane_b32 s%d, v2" % sWave)
    a("s_waitcnt lgkmcnt(0)")
    ws_adjust(a, sWSP)
    a("s_or_b32 s24, s2, s%d" % sWave)
    a("s_cmp_lg_u32 s24, 0")
    a("s_cbranch_scc1 L_k1_non")
    a("s_memrealtime s[60:61]")
    srd(a, 24, sDBG, 256)
    a("v_mov_b32 v3, 0")
    a("s_waitcnt lgkmcnt(0)")
    a("s_or_b32 s60, s60, 1")
    a("v_mov_b32 v4, s60")
    a("s_mov_b32 exec_lo, 1")
    a("s_mov_b32 exec_hi, 0")
    a("buffer_store_dword v4, v3, s[24:27], 0 offen sc1")
    a("s_mov_b64 exec, -1")
    a.label("L_k1_non")
    a("s_cmp_ge_u32 s2, 64")
    a("s_cbranch_scc1 L_k1_gemm")
    a("s_cmp_ge_u32 s2, 60")
    if opt("PF_TLB"):
        a("s_cbranch_scc0 L_k1_aux")
        a("s_cmp_eq_u32 s2, 33")
        a("s_cbranch_scc0 L_k1_end")
        gen_tlb(a)
        a.label("L_k1_aux")
    else:
        a("s_cbranch_scc1 %s" % ("L_k1_touch" if opt("PF_IN") else "L_k1_end"))
    a("s_cmp_ge_u32 s2, 32")
    a("s_cbranch_scc1 L_k1_moe")
    gen_e(a)
    a.label("L_k1_moe")
    gen_moe(a)
    if opt("PF_IN"):
        a.label("L_k1_touch")
        gen_touch(a)
    a.label("L_k1_gemm")
    gen_gemm(a)
    a.label("L_k1_end")
    a("s_endpgm")
    return a.text(), (256 if PROF else 192)
```

```python
from dsl import *

WS_QF = 0x000000
WS_KF = 0x200000
WS_VF = 0x400000
WS_OF = WS_QF
WS_REC = 0x800000
WS_CSR = 0x808000
WS_SEL = 0x80e000
WS_PART = 0x810000
WS_SIZE = 0xD00000 if PROF else 0x900000
NSLICE = 28
K1_GRID = 256

QSCALE = 0.25 * 1.4426950408889634
LOG2E = 1.4426950408889634

def fhex(x):
    import struct
    return "0x%08x" % struct.unpack("<I", struct.pack("<f", x))[0]

G_ST = 131072
G_LDS = G_ST + 1024
K1_LDS = G_LDS

sXP, sWP, sWRP, sWGP, sWUP, sWDP, sDBG, sWSP = 4, 6, 12, 14, 16, 18, 20, 22
sWave = 3

def wave_max_u32(a, t):
    for dp in ["quad_perm:[1,0,3,2] row_mask:0xf", "quad_perm:[2,3,0,1] row_mask:0xf", "row_half_mirror row_mask:0xf", "row_mirror row_mask:0xf",
               "row_bcast:15 row_mask:0xa", "row_bcast:31 row_mask:0xc"]:
        a("s_nop 1")
        a("v_max_u32_dpp v%d, v%d, v%d %s bank_mask:0xf" % (t, t, t, dp))

def poll_flags(a, tag, vaddr, srdreg, lanes_mask_lo, tmp):
    a("s_mov_b32 s98, 0")
    a.label("L_poll_%s" % tag)
    a("buffer_load_dword v%d, v%d, s[%d:%d], 0 offen sc1" % (tmp, vaddr, srdreg, srdreg + 3))
    a("s_add_u32 s98, s98, 1")
    a("s_waitcnt vmcnt(0)")
    a("v_cmp_eq_u32 vcc, 0, v%d" % tmp)
    a("s_cmp_gt_u32 s98, 0x40000")
    a("s_cbranch_scc1 L_polld_%s" % tag)
    a("s_and_b32 s99, vcc_lo, 0x%x" % lanes_mask_lo)
    a("s_cbranch_scc0 L_polld_%s" % tag)
    a("s_sleep 8")
    a("s_branch L_poll_%s" % tag)
    a.label("L_polld_%s" % tag)

def get_nonce(a, tag, sdb, vtmp, vzero, sdst):
    a("v_mov_b32 v%d, 0" % vzero)
    a("s_mov_b32 s98, 0")
    a.label("L_nonce_%s" % tag)
    a("buffer_load_dword v%d, v%d, s[%d:%d], 0 offen sc1" % (vtmp, vzero, sdb, sdb + 3))
    a("s_add_u32 s98, s98, 1")
    a("s_waitcnt vmcnt(0)")
    a("v_readfirstlane_b32 s%d, v%d" % (sdst, vtmp))
    a("s_cmp_gt_u32 s98, 0x40000")
    a("s_cbranch_scc1 L_nonced_%s" % tag)
    a("s_cmp_lg_u32 s%d, 0" % sdst)
    a("s_cbranch_scc1 L_nonced_%s" % tag)
    a("s_sleep 4")
    a("s_branch L_nonce_%s" % tag)
    a.label("L_nonced_%s" % tag)

def gen_e(a):
    vLane = 1
    sX, sW, sWS, sDb, sWR = 24, 28, 32, 36, 40
    sT0, sT1, sEb, sStrip, sTag = 44, 45, 49, 50, 51
    L_CS = 0
    srd(a, sX, sXP, 2048 * 1024)
    srd(a, sWR, sWRP, 1024)
    a("s_and_b32 s%d, s2, 1" % sT0)
    a("s_bfe_u32 s%d, s2, 0x20001" % sT1)
    a("s_lshr_b32 s46, s2, 3")
    a("s_lshl_b32 s%d, s%d, 3" % (sEb, sT1))
    a("s_lshl_b32 s47, s%d, 2" % sT0)
    a("s_add_u32 s%d, s%d, s47" % (sEb, sEb))
    a("s_add_u32 s%d, s%d, s46" % (sEb, sEb))
    a("v_lshrrev_b32 v2, 4, v%d" % vLane)
    a("v_and_b32 v3, 15, v%d" % vLane)
    a("v_lshlrev_b32 v3, 4, v3")
    a("v_lshl_add_u32 v4, v2, 10, v3")
    WP = 16
    a("s_lshl_b32 s%d, s%d, 6" % (sT0, sEb))
    a("s_lshl_b32 s%d, s%d, 3" % (sT1, sWave))
    a("s_add_u32 s46, s%d, s%d" % (sT0, sT1))
    a("s_lshl_b32 s47, s46, 10")
    XP = 32
    for g in range(2):
        for q in range(4):
            a("buffer_load_dwordx4 %s, v4, s[%d:%d], s47 offen offset:%d" % (v(XP + 16 * g + 4 * q, 4), sX, sX + 3, q * 256))
        if g == 0:
            for q in range(4):
                a("buffer_load_dwordx4 %s, v3, s[%d:%d], 0 offen offset:%d" % (v(WP + 4 * q, 4), sWR, sWR + 3, q * 256))
            a("s_add_u32 s47, s47, 4096")
    srd(a, sDb, sDBG, 256)
    a("v_mov_b32 v13, 0")
    a("buffer_load_dword v12, v13, s[%d:%d], 0 offen sc1" % (sDb, sDb + 3))
    stamp(a, 1)
    srd(a, sWS, sWSP, WS_SIZE)
    a("v_mov_b32 v5, 0x3f803f80")
    a("v_mov_b32 v8, 0")
    a("v_add_u32 v15, s46, v2")
    dps = ["quad_perm:[1,0,3,2]", "quad_perm:[2,3,0,1]", "row_half_mirror", "row_mirror"]
    a("s_waitcnt vmcnt(5)")
    for i in range(16):
        a("v_dot2_f32_bf16 v8, v%d, v5, v8" % (WP + i))
    A0, A1, A2 = 9, 10, 11
    OUT = [100, 104]
    for g in range(2):
        if g == 1:
            a("s_waitcnt vmcnt(1)")
        if g == 0:
            stamp(a, 2)
        a("v_mov_b32 v%d, 0" % A0); a("v_mov_b32 v%d, 0" % A1); a("v_mov_b32 v%d, 0" % A2)
        for i in range(16):
            x = XP + 16 * g + i
            a("v_dot2_f32_bf16 v%d, v%d, v5, v%d" % (A0, x, A0))
            a("v_dot2_f32_bf16 v%d, v%d, v%d, v%d" % (A1, x, x, A1))
            a("v_dot2_f32_bf16 v%d, v%d, v%d, v%d" % (A2, x, WP + i, A2))
        a("s_nop 2")
        for dp in dps:
            for r in ((A0, A1, A2, 8) if g == 0 else (A0, A1, A2)):
                a("v_add_f32_dpp v%d, v%d, v%d %s row_mask:0xf bank_mask:0xf" % (r, r, r, dp))
        M, RS, KEY = OUT[g], OUT[g] + 1, OUT[g] + 2
        a("v_mul_f32 v%d, %s, v%d" % (M, fhex(1.0 / 512), A0))
        a("v_mul_f32 v14, %s, v%d" % (fhex(1.0 / 512), A1))
        a("v_fma_f32 v14, -v%d, v%d, v14" % (M, M))
        a("v_max_f32 v14, 0, v14")
        bf16r(a, "v%d" % M, "v%d" % M)
        bf16r(a, "v14", "v14")
        a("v_add_f32 v14, %s, v14" % fhex(1e-5))
        bf16r(a, "v14", "v14")
        a("v_sqrt_f32 v14, v14")
        a("s_nop 0")
        bf16r(a, "v14", "v14")
        a("v_rcp_f32 v%d, v14" % RS)
        a("v_fma_f32 v14, -v%d, v8, v%d" % (M, A2))
        a("v_mul_f32 v14, v14, v%d" % RS)
        a("v_cvt_pk_bf16_f32 v14, v14, v14")
        a("v_and_b32 v14, 0xffff, v14")
        a("v_cmp_gt_u32 vcc, 0x8000, v14")
        a("v_xor_b32 v96, 0x8000, v14")
        a("v_xor_b32 v97, 0xffff, v14")
        a("v_sub_u32 v98, 0xffff, v15")
        a("v_cndmask_b32 v14, v97, v96, vcc")
        a("v_lshl_or_b32 v%d, v14, 16, v98" % KEY)
        a("v_add_u32 v15, 4, v15")
    a("s_waitcnt vmcnt(0)")
    a("v_readfirstlane_b32 s%d, v12" % sTag)
    a("v_and_b32 v9, 15, v%d" % vLane)
    a("v_cmp_eq_u32 vcc, 1, v9")
    a("s_nop 1")
    a("s_cmp_lg_u32 s%d, 0" % sTag)
    a("s_cbranch_scc1 L_e_tag")
    get_nonce(a, "e", sDb, 12, 13, sTag)
    a.label("L_e_tag")
    for q in range(3):
        a("v_cndmask_b32 v%d, v%d, v%d, vcc" % (OUT[0] + q, OUT[0] + q, OUT[1] + q))
    a("v_mov_b32 v%d, s%d" % (OUT[0] + 3, sTag))
    a("v_lshl_add_u32 v10, v9, 2, v2")
    a("v_add_u32 v10, s46, v10")
    a("v_lshlrev_b32 v10, 4, v10")
    a("s_mov_b32 s47, 0x%x" % WS_REC)
    a("s_mov_b32 exec_lo, 0x00030003")
    a("s_mov_b32 exec_hi, 0x00030003")
    a("buffer_store_dwordx4 %s, v10, s[%d:%d], s47 offen sc1" % (v(OUT[0], 4), sWS, sWS + 3))
    a("s_mov_b64 exec, -1")
    stamp(a, 3)
    a.label("L_e_done")
    stamp_flush(a, 0, sWS, sWave)
    a("s_endpgm")

class Net:
    def __init__(self, a, free):
        self.a = a; self.free = list(free)
    def get(self): return self.free.pop(0)
    def put(self, r): self.free.append(r)
    def ce(self, L, i, j):
        hi, lo = self.get(), self.get()
        self.a("v_max_u32 v%d, v%d, v%d" % (hi, L[i], L[j]))
        self.a("v_min_u32 v%d, v%d, v%d" % (lo, L[i], L[j]))
        self.put(L[i]); self.put(L[j])
        L[i], L[j] = hi, lo
    def sort_bitonic8(self, L):
        for st in ([(0, 4), (1, 5), (2, 6), (3, 7)], [(0, 2), (1, 3), (4, 6), (5, 7)], [(0, 1), (2, 3), (4, 5), (6, 7)]):
            for (i, j) in st: self.ce(L, i, j)
    def top8(self, L, dpp, sort=True):
        T = [None] * 8
        for i in range(7, -1, -1):
            T[i] = self.get()
            self.a("v_max_u32_dpp v%d, v%d, v%d %s bank_mask:0xf" % (T[i], L[7 - i], L[i], dpp))
        for r in L: self.put(r)
        if sort: self.sort_bitonic8(T)
        return T

def top8_wave(a, keys, free, wave_sgpr, lds_cand):
    n = Net(a, free)
    L = list(keys)
    for (i, j) in ((0,1),(2,3),(4,5),(6,7),(0,2),(1,3),(4,6),(5,7),(1,2),(5,6),(0,4),(3,7),(1,5),(2,6),(1,4),(3,6),(2,4),(3,5),(3,4)):
        n.ce(L, i, j)
    a("s_nop 0")
    for dp in ("quad_perm:[1,0,3,2] row_mask:0xf", "quad_perm:[2,3,0,1] row_mask:0xf", "row_half_mirror row_mask:0xf", "row_mirror row_mask:0xf",
               "row_bcast:15 row_mask:0xa", "row_bcast:31 row_mask:0xc"):
        L = n.top8(L, dp)
    base = (max(free) + 4) // 4 * 4
    for i in range(8):
        a("v_mov_b32 v%d, v%d" % (base + i, L[i]))
    adr = n.get()
    a("s_lshl_b32 s98, s%d, 5" % wave_sgpr)
    a("s_add_u32 s98, s98, %d" % lds_cand)
    a("v_mov_b32 v%d, s98" % adr)
    a("s_mov_b32 exec_lo, 0")
    a("s_mov_b32 exec_hi, 0x80000000")
    a("ds_write_b128 v%d, %s" % (adr, v(base, 4)))
    a("ds_write_b128 v%d, %s offset:16" % (adr, v(base + 4, 4)))
    a("s_mov_b64 exec, -1")

def top8_final(a, free, lds_cand):
    n = Net(a, free)
    base = (max(free) + 4) // 4 * 4
    adr = n.get()
    a("v_mbcnt_lo_u32_b32 v%d, -1, 0" % adr)
    a("v_mbcnt_hi_u32_b32 v%d, -1, v%d" % (adr, adr))
    a("v_and_b32 v%d, 3, v%d" % (adr, adr))
    a("v_lshlrev_b32 v%d, 5, v%d" % (adr, adr))
    a("v_add_u32 v%d, %d, v%d" % (adr, lds_cand, adr))
    a("ds_read_b128 %s, v%d" % (v(base, 4), adr))
    a("ds_read_b128 %s, v%d offset:16" % (v(base + 4, 4), adr))
    L = [base + i for i in range(8)]
    a("s_waitcnt lgkmcnt(0)")
    L = n.top8(L, "quad_perm:[1,0,3,2] row_mask:0xf")
    L = n.top8(L, "quad_perm:[2,3,0,1] row_mask:0xf")
    return L

def gen_topk(a):
    vLane = 1
    sWS, sDb = 24, 40
    sT0, sT1, sTag = 45, 46, 48
    T_CAND = 0
    srd(a, sWS, sWSP, WS_SIZE)
    srd(a, sDb, sDBG, 256)
    a("s_cmp_ge_u32 s%d, 4" % sWave)
    a("s_cbranch_scc1 L_tk_sync")
    get_nonce(a, "tk", sDb, 12, 13, sTag)
    stamp(a, 1)
    a("v_lshlrev_b32 v3, 4, v0")
    a("s_mov_b32 s98, 0")
    a.label("L_tk_poll")
    a("s_mov_b32 s%d, 0x%x" % (sT0, WS_REC))
    for q in range(8):
        a("buffer_load_dwordx2 %s, v3, s[%d:%d], s%d offen offset:8 sc1" % (v(96 + 2 * q, 2), sWS, sWS + 3, sT0))
        if q < 7:
            a("s_add_u32 s%d, s%d, 4096" % (sT0, sT0))
    a("s_add_u32 s98, s98, 1")
    a("s_waitcnt vmcnt(0)")
    for q in range(8):
        a("v_xor_b32 v%d, s%d, v%d" % (97 + 2 * q, sTag, 97 + 2 * q))
    a("v_or3_b32 v4, v97, v99, v101")
    a("v_or3_b32 v5, v103, v105, v107")
    a("v_or3_b32 v4, v4, v109, v111")
    a("v_or_b32 v4, v4, v5")
    a("v_cmp_ne_u32 vcc, 0, v4")
    a("s_cmp_gt_u32 s98, 0x40000")
    a("s_cbranch_scc1 L_tk_go")
    a("s_cmp_eq_u64 vcc, 0")
    a("s_cbranch_scc1 L_tk_go")
    a("s_sleep 2")
    a("s_branch L_tk_poll")
    a.label("L_tk_go")
    stamp(a, 3)
    top8_wave(a, [96 + 2 * q for q in range(8)], [97 + 2 * q for q in range(8)] + list(range(14, 24)) + [112, 113], sWave, T_CAND)
    a("s_waitcnt lgkmcnt(0)")
    a.label("L_tk_sync")
    a("s_barrier")
    stamp(a, 4)
    a("s_cmp_lg_u32 s%d, 0" % sWave)
    a("s_cbranch_scc1 L_tk_done")
    R = top8_final(a, list(range(96, 114)), T_CAND)
    vRes = 20
    a("v_mov_b32 v%d, v%d" % (vRes, R[0]))
    for jx in range(1, 8):
        a("v_cmp_eq_u32 vcc, %d, v%d" % (jx, vLane))
        a("s_nop 1")
        a("v_cndmask_b32 v%d, v%d, v%d, vcc" % (vRes, vRes, R[jx]))
    stamp(a, 5)
    a("v_and_b32 v8, 0xffff, v%d" % vRes)
    a("v_sub_u32 v8, 0xffff, v8")
    a("v_lshrrev_b32 v9, 16, v%d" % vRes)
    a("v_cmp_le_u32 vcc, 0x8000, v9")
    a("v_xor_b32 v10, 0x8000, v9")
    a("v_xor_b32 v11, 0xffff, v9")
    a("v_cndmask_b32 v9, v11, v10, vcc")
    a("v_lshlrev_b32 v9, 16, v9")
    a("v_mul_f32 v9, %s, v9" % fhex(-LOG2E))
    a("v_exp_f32 v9, v9")
    a("s_nop 0")
    a("v_add_f32 v9, 1.0, v9")
    a("v_rcp_f32 v9, v9")
    a("s_nop 0")
    bf16r(a, "v9", "v9")
    a("v_lshlrev_b32 v10, 2, v%d" % vLane)
    a("s_mov_b32 s%d, 0x%x" % (sT0, WS_SEL))
    a("s_mov_b32 exec_lo, 0xff")
    a("s_mov_b32 exec_hi, 0")
    a("buffer_store_dword v8, v10, s[%d:%d], s%d offen" % (sWS, sWS + 3, sT0))
    a("buffer_store_dword v9, v10, s[%d:%d], s%d offen offset:32" % (sWS, sWS + 3, sT0))
    a("s_mov_b64 exec, -1")
    a.label("L_tk_done")
    stamp_flush(a, 0, sWS, sWave)
    a("s_endpgm")

def gen_tlb(a):
    step = opt("PF_TLB")
    a("s_load_dwordx2 s[40:41], s[0:1], 16")
    a("s_load_dwordx2 s[42:43], s[0:1], 64")
    a("v_mul_u32_u24 v3, %d, v1" % 1)
    a("v_lshlrev_b32 v3, %d, v1" % (step.bit_length() - 1))
    a("s_waitcnt lgkmcnt(0)")
    r = 16
    for (ptr, nbytes) in ((sWGP, 512 * 3584), (sWUP, 512 * 3584), (sWDP, 1792 * 1024), (40, 512 * 1024), (42, 2048 * 1024), (sWSP, WS_SIZE)):
        srd(a, 32, ptr, nbytes)
        a("s_mul_i32 s44, s%d, %d" % (sWave, 64 * step))
        a("v_add_u32 v4, s44, v3")
        a("buffer_load_dword v%d, v4, s[32:35], 0 offen" % r); r += 1
    a("s_endpgm")

def gen_touch(a):
    sB, sC4 = 32, 36
    srd(a, sB, sXP, 2048 * 1024)
    srd(a, sC4, sWP, 512 * 3072)
    a("s_sub_u32 s46, s2, 33")
    a("s_lshl_b32 s46, s46, 3")
    a("s_add_u32 s46, s46, s%d" % sWave)
    a("v_lshlrev_b32 v10, 10, v1")
    a("v_lshlrev_b32 v11, 7, v1")
    for rnd in range(2):
        if rnd:
            a("s_add_u32 s46, s46, 248")
            a("s_cmp_ge_u32 s46, 336")
            a("s_cbranch_scc1 L_pf_end")
        a("s_mul_i32 s47, s46, 1171")
        a("s_lshr_b32 s47, s47, 16")
        a("s_mul_i32 s48, s47, 56")
        a("s_sub_u32 s48, s46, s48")
        a("s_add_u32 s47, s47, 2")
        a("s_cmp_ge_u32 s48, 32")
        a("s_cbranch_scc1 L_pf_w%d" % rnd)
        a("s_lshl_b32 s49, s48, 16")
        a("s_lshl_b32 s50, s47, 7")
        a("s_add_u32 s49, s49, s50")
        a("buffer_load_dword v%d, v10, s[%d:%d], s49 offen" % (40 + rnd, sB, sB + 3))
        a("s_branch L_pf_n%d" % rnd)
        a.label("L_pf_w%d" % rnd)
        a("s_sub_u32 s48, s48, 32")
        a("s_lshl_b32 s49, s48, 13")
        a("s_mul_i32 s50, s47, 196608")
        a("s_add_u32 s49, s49, s50")
        a("buffer_load_dword v%d, v11, s[%d:%d], s49 offen" % (40 + rnd, sC4, sC4 + 3))
        a.label("L_pf_n%d" % rnd)
    a.label("L_pf_end")
    a("s_endpgm")

def gen_gemm(a):
    QST = " sc1" if opt("ST_QKV_SC1") else ""
    vLane = 1
    sX, sW, sWS, sDb = 24, 28, 32, 36
    sRb, sCb, sT0, sT1, sC, sSlot = 40, 41, 42, 43, 44, 45
    a("s_sub_u32 s%d, s2, 64" % sT0)
    a("s_and_b32 s%d, s%d, 7" % (sT1, sT0))
    a("s_lshr_b32 s%d, s%d, 3" % (sT0, sT0))
    a("s_lshr_b32 s%d, s%d, 1" % (sRb, sT1))
    a("s_lshl_b32 s%d, s%d, 2" % (sRb, sRb))
    a("s_and_b32 s46, s%d, 3" % sT0)
    a("s_add_u32 s%d, s%d, s46" % (sRb, sRb))
    a("s_and_b32 s%d, s%d, 1" % (sCb, sT1))
    a("s_mul_i32 s%d, s%d, 6" % (sCb, sCb))
    a("s_lshr_b32 s%d, s%d, 2" % (sT0, sT0))
    a("s_add_u32 s%d, s%d, s%d" % (sCb, sCb, sT0))
    srd(a, sWS, sWSP, WS_SIZE)
    a("s_cmp_ge_u32 s%d, 4" % sWave)
    a("s_cbranch_scc0 L_g_cons")
    vXa, vXb, vW = 10, 11, 12
    sLw, sXg, sXg2, sWg, sL4 = 46, 47, 48, 49, 50
    srd(a, sX, sXP, 2048 * 1024)
    srd(a, sW, sWP, 512 * 3072)
    a("s_sub_u32 s%d, s%d, 4" % (sLw, sWave))
    a("v_lshrrev_b32 v2, 3, v%d" % vLane)
    a("v_and_b32 v3, 7, v%d" % vLane)
    a("v_lshrrev_b32 v4, 1, v2")
    a("v_xor_b32 v3, v3, v4")
    a("v_xor_b32 v4, 4, v3")
    a("v_lshlrev_b32 v2, 10, v2")
    a("v_lshl_add_u32 v%d, v3, 4, v2" % vXa)
    a("v_lshl_add_u32 v%d, v4, 4, v2" % vXb)
    a("v_add_u32 v%d, 0x2000, v%d" % (vXb, vXb))
    a("v_lshrrev_b32 v2, 4, v%d" % vLane)
    a("v_bfe_u32 v3, v%d, 2, 2" % vLane)
    a("v_xor_b32 v3, v3, v2")
    a("v_and_b32 v4, 3, v%d" % vLane)
    a("v_lshl_add_u32 v3, v3, 2, v4")
    a("v_mul_u32_u24 v2, 0xc00, v2")
    a("v_lshl_add_u32 v%d, v3, 4, v2" % vW)
    for i in range(1, 4):
        a("v_add_u32 v%d, %d, v%d" % (vW + i, i * 12288, vW))
    a("s_lshl_b32 s%d, s%d, 17" % (sXg, sRb))
    a("s_lshl_b32 s%d, s%d, 15" % (sT0, sLw))
    a("s_add_u32 s%d, s%d, s%d" % (sXg, sXg, sT0))
    a("s_mul_i32 s%d, s%d, %d" % (sWg, sLw, 16 * 3072))
    a("s_lshl_b32 s%d, s%d, 8" % (sT0, sCb))
    a("s_add_u32 s%d, s%d, s%d" % (sWg, sWg, sT0))
    a("s_lshl_b32 s%d, s%d, 12" % (sL4, sLw))
    a("s_mov_b32 s%d, 0" % sSlot)
    def issue():
        a("s_add_u32 s%d, s%d, 0x4000" % (sXg2, sXg))
        a("s_add_u32 m0, s%d, s%d" % (sSlot, sL4))
        a("s_nop 0")
        for i in range(4):
            a("buffer_load_dwordx4 v%d, s[%d:%d], s%d offen%s lds" % (vXa if i % 2 == 0 else vXb, sX, sX + 3, sXg if i < 2 else sXg2, " nt" if opt("NT_X") else ""))
            a("s_add_u32 m0, m0, %d" % (1024 if i < 3 else 13312))
            a("s_nop 0")
        for i in range(4):
            a("buffer_load_dwordx4 v%d, s[%d:%d], s%d offen%s lds" % (vW + i, sW, sW + 3, sWg, " nt" if opt("NT_W") else ""))
            if i < 3:
                a("s_add_u32 m0, m0, 1024")
                a("s_nop 0")
        a("s_add_u32 s%d, s%d, 128" % (sXg, sXg))
        a("s_add_u32 s%d, s%d, %d" % (sWg, sWg, 64 * 3072))
        a("s_add_u32 s%d, s%d, 0x8000" % (sSlot, sSlot))
        a("s_and_b32 s%d, s%d, 0x1ffff" % (sSlot, sSlot))
    a("s_mov_b32 s%d, 0" % sC)
    a.label("L_g_lpro")
    issue()
    a("s_add_u32 s%d, s%d, 1" % (sC, sC))
    a("s_cmp_lt_u32 s%d, 2" % sC)
    a("s_cbranch_scc1 L_g_lpro")
    stamp(a, 1)
    a("s_mov_b32 s%d, 0" % sC)
    a.label("L_g_lloop")
    a("s_waitcnt vmcnt(8)")
    stamp(a, "s%d+10" % sC)
    a("s_barrier")
    issue()
    a("s_add_u32 s%d, s%d, 1" % (sC, sC))
    a("s_cmp_lt_u32 s%d, 4" % sC)
    a("s_cbranch_scc1 L_g_lloop")
    if opt("PF_MOE", 1):
        a("s_load_dwordx2 s[58:59], s[0:1], 16")
        a("s_sub_u32 s60, s2, 64")
        a("s_and_b32 s62, s60, 7")
        a("s_lshr_b32 s60, s60, 3")
        a("s_lshl_b32 s60, s60, 2")
        a("s_add_u32 s60, s60, s%d" % sLw)
        a("s_mul_i32 s61, s60, 2731")
        a("s_lshr_b32 s61, s61, 16")
        a("s_mul_i32 s63, s61, 24")
        a("s_sub_u32 s63, s60, s63")
        a("s_lshl_b32 s61, s61, 3")
        a("s_add_u32 s61, s61, s62")
        a("s_waitcnt lgkmcnt(0)")
        a("v_mul_u32_u24 v20, 0xe00, v%d" % vLane)
        a("v_lshlrev_b32 v22, 7, v%d" % vLane)
        a("s_mov_b32 s64, s%d" % sWGP); a("s_mov_b32 s65, s%d" % (sWGP + 1))
        a("s_mov_b32 s66, %d" % (512 * 3584)); a("s_mov_b32 s67, 0x20000")
        a("s_cmp_ge_u32 s63, 8")
        a("s_cselect_b32 s64, s%d, s64" % sWUP); a("s_cselect_b32 s65, s%d, s65" % (sWUP + 1))
        a("s_and_b32 s68, s63, 7")
        a("s_mul_i32 s69, s68, %d" % (64 * 3584))
        a("s_lshl_b32 s70, s61, 7")
        a("s_add_u32 s69, s69, s70")
        a("s_cmp_ge_u32 s63, 16")
        a("s_cbranch_scc0 L_g_pfa")
        a("s_mov_b32 s64, s%d" % sWDP); a("s_mov_b32 s65, s%d" % (sWDP + 1))
        a("s_lshl_b32 s69, s61, 16")
        a("s_lshl_b32 s70, s68, 13")
        a("s_add_u32 s69, s69, s70")
        a("v_mov_b32 v20, v22")
        a.label("L_g_pfa")
        a("s_cmp_ge_u32 s61, 28")
        a("s_cbranch_scc0 L_g_pfb")
        a("s_mov_b32 s64, s58"); a("s_mov_b32 s65, s59"); a("s_mov_b32 s66, %d" % (512 * 1024))
        a("s_sub_u32 s69, s62, 4")
        a("s_lshl_b32 s69, s69, 4")
        a("s_and_b32 s70, s63, 15")
        a("s_add_u32 s69, s69, s70")
        a("s_lshl_b32 s69, s69, 13")
        a("v_mov_b32 v20, v22")
        a.label("L_g_pfb")
        a("s_mov_b32 s61, s69")
    srd(a, sDb, sDBG, 256)
    a("v_mov_b32 v4, 0")
    a("s_waitcnt vmcnt(8)")
    a("s_barrier")
    a("buffer_load_dword v5, v4, s[%d:%d], 0 offen sc1" % (sDb, sDb + 3))
    issue()
    a("s_lshl_b32 s%d, s%d, 11" % (sT0, sRb))
    a("s_add_u32 s51, s%d, 0x%x" % (sT0, WS_REC))
    a("v_and_b32 v7, 31, v%d" % vLane)
    a("s_lshl_b32 s%d, s%d, 9" % (sT0, sLw))
    a("v_lshl_add_u32 v6, v7, 4, s%d" % sT0)
    a("s_lshl_b32 s%d, s%d, 7" % (sT0, sLw))
    a("s_add_u32 s%d, s%d, %d" % (sT0, sT0, G_ST))
    a("v_lshl_add_u32 v7, v7, 2, s%d" % sT0)
    a("s_waitcnt vmcnt(8)")
    a("v_readfirstlane_b32 s52, v5")
    a("s_nop 3")
    a("s_cmp_lg_u32 s52, 0")
    a("s_cbranch_scc1 L_g_nonok")
    get_nonce(a, "g", sDb, 5, 4, 52)
    a.label("L_g_nonok")
    a("s_barrier")
    a("buffer_load_dwordx4 v[16:19], v6, s[%d:%d], s51 offen sc1" % (sWS, sWS + 3))
    issue()
    PFN = 1 if opt("PF_MOE", 1) else 0
    if PFN:
        a("buffer_load_dword v21, v20, s[64:67], s61 offen")
    a("s_waitcnt vmcnt(%d)" % (8 + PFN))
    a("s_mov_b32 s98, 0")
    a.label("L_g_rec")
    a("v_cmp_ne_u32 vcc, s52, v19")
    a("s_cmp_gt_u32 s98, 0x40000")
    a("s_cbranch_scc1 L_g_recok")
    a("s_cmp_eq_u64 vcc, 0")
    a("s_cbranch_scc1 L_g_recok")
    a("s_sleep 4")
    a("buffer_load_dwordx4 v[16:19], v6, s[%d:%d], s51 offen sc1" % (sWS, sWS + 3))
    a("s_add_u32 s98, s98, 1")
    a("s_waitcnt vmcnt(0)")
    a("s_branch L_g_rec")
    a.label("L_g_recok")
    a("ds_write_b32 v7, v16")
    a("ds_write_b32 v7, v17 offset:512")
    a("s_barrier")
    a("s_waitcnt vmcnt(%d) lgkmcnt(0)" % PFN)
    a("s_barrier")
    stamp_flush(a, 0, sWS, sWave)
    a("s_endpgm")
    a.label("L_g_cons")
    vXr = [4, 5, 6, 7]
    vWr = [8, 9]
    acc = [[64, 80], [96, 112]]
    XB = [[128, 132], [136, 140]]
    WB = [[144, 148], [152, 156]]
    NM, CSF = [160, 164], [168, 172]
    SEL, CSA = 176, [180, 184]
    sMt, sNt, sHi = 46, 47, 48
    a("s_and_b32 s%d, s%d, 1" % (sMt, sWave))
    a("s_lshr_b32 s%d, s%d, 1" % (sNt, sWave))
    a("v_and_b32 v2, 31, v%d" % vLane)
    a("v_lshrrev_b32 v3, 5, v%d" % vLane)
    a("v_cmp_eq_u32 s[%d:%d], 1, v3" % (sHi, sHi + 1))
    a("v_lshrrev_b32 v10, 1, v2")
    a("v_and_b32 v10, 7, v10")
    a("s_lshl_b32 s%d, s%d, 13" % (sT0, sMt))
    a("v_lshl_add_u32 v11, v2, 7, s%d" % sT0)
    for p in range(4):
        a("v_add_u32 v12, %d, v3" % (2 * p))
        a("v_xor_b32 v12, v12, v10")
        a("v_lshl_add_u32 v%d, v12, 4, v11" % vXr[p])
    a("v_bfe_u32 v12, v%d, 2, 2" % vLane)
    a("v_lshl_add_u32 v13, v3, 3, v12")
    a("v_lshlrev_b32 v13, 8, v13")
    a("v_bfe_u32 v14, v%d, 4, 1" % vLane)
    a("v_lshl_add_u32 v13, v14, 5, v13")
    a("v_and_b32 v14, 3, v%d" % vLane)
    a("v_lshl_add_u32 v13, v14, 3, v13")
    a("v_add_u32 v13, 0x4000, v13")
    a("s_lshl_b32 s%d, s%d, 1" % (sT0, sNt))
    a("v_xor_b32 v14, s%d, v12" % sT0)
    a("v_lshl_add_u32 v%d, v14, 6, v13" % vWr[0])
    a("v_xor_b32 v%d, 64, v%d" % (vWr[1], vWr[0]))
    for r in range(64, 128):
        a("v_mov_b32 v%d, 0" % r)
    for r in list(range(136, 144)) + list(range(152, 176)) + list(range(180, 188)):
        a("v_mov_b32 v%d, 0" % r)
    a("v_bfe_u32 v12, v%d, 4, 1" % vLane)
    a("v_and_b32 v13, 1, v%d" % vLane)
    a("v_cmp_eq_u32 vcc, v12, v13")
    a("v_cmp_eq_u32 s[56:57], 1, v12")
    a("v_mov_b32 v14, 0x3f803f80")
    a("v_cndmask_b32 v%d, 0, v14, vcc" % SEL)
    for i in range(1, 4):
        a("v_mov_b32 v%d, v%d" % (SEL + i, SEL))
    def csum(buf, n):
        a("v_mfma_f32_16x16x32_bf16 %s, %s, %s, %s" % (v(CSA[n], 4), v(SEL, 4), v(WB[buf][n], 4), v(CSA[n], 4)))
    def xread(p, buf, m):
        a("ds_read_b128 %s, v%d offset:%d" % (v(XB[buf][m], 4), vXr[p], m * 4096))
    def wread(p, buf, n, t):
        a("ds_read_b64_tr_b16 %s, v%d offset:%d" % (v(WB[buf][n] + 2 * t, 2), vWr[n], p * 4096 + t * 1024))
    def mm(kind, buf, m, n):
        if kind == 0:
            a("v_mfma_f32_32x32x16_bf16 %s, %s, %s, %s" % (v(acc[m][n], 16), v(WB[buf][n], 4), v(XB[buf][m], 4), v(acc[m][n], 16)))
        else:
            a("v_mfma_f32_32x32x16_bf16 %s, %s, %s, %s" % (v(acc[m][n], 16), v(XB[buf][m], 4), v(WB[buf][n], 4), v(acc[m][n], 16)))
    def step(kind, cur, p, filler=None):
        nxt = cur ^ 1
        a("s_waitcnt lgkmcnt(3)")
        mm(kind, cur, 0, 0)
        xread(p, nxt, 0); wread(p, nxt, 0, 0); wread(p, nxt, 0, 1)
        csum(cur, 0)
        a("s_waitcnt lgkmcnt(4)")
        mm(kind, cur, 0, 1)
        wread(p, nxt, 1, 0); wread(p, nxt, 1, 1); xread(p, nxt, 1)
        csum(cur, 1)
        a("s_waitcnt lgkmcnt(6)")
        mm(kind, cur, 1, 0)
        if filler: filler(0)
        mm(kind, cur, 1, 1)
        if filler: filler(1)
    def adv(h):
        regs = (vXr + vWr)[3 * h:3 * h + 3]
        for r in regs:
            a("v_add_u32 v%d, 0x8000, v%d" % (r, r))
        for r in regs:
            a("v_and_b32 v%d, 0x1ffff, v%d" % (r, r))
    def main_loop(kind, tag):
        a("s_mov_b32 s%d, 0" % sC)
        a.label("L_g_loop%s" % tag)
        a("s_waitcnt lgkmcnt(0)")
        a("s_barrier")
        stamp(a, "s%d+10" % sC)
        step(kind, 1, 0)
        step(kind, 0, 1)
        step(kind, 1, 2)
        step(kind, 0, 3, adv)
        a("s_add_u32 s%d, s%d, 1" % (sC, sC))
        a("s_cmp_lt_u32 s%d, 8" % sC)
        a("s_cbranch_scc1 L_g_loop%s" % tag)
        stamp(a, 20)
    vM, vRs, vCs = [10, 11], [12, 14], [16, 17]
    def stat_reads(kind):
        a("v_lshlrev_b32 v18, 2, v2")
        a("s_lshl_b32 s%d, s%d, 8" % (sT0, sMt))
        a("s_add_u32 s%d, s%d, %d" % (sT0, sT0, G_ST))
        a("v_add_u32 v19, s%d, v18" % sT0)
        for m in range(2):
            a("ds_read_b32 v%d, v19 offset:%d" % (vM[m], m * 128))
        if kind == 0:
            for m in range(2):
                a("ds_read_b32 v%d, v19 offset:%d" % (vRs[m], 512 + m * 128))
        else:
            a("v_lshl_add_u32 v19, v3, 4, s%d" % sT0)
            for m in range(2):
                for j in range(4):
                    a("ds_read_b128 %s, v19 offset:%d" % (v(24 + 16 * m + 4 * j, 4), 512 + m * 128 + j * 32))
    def last_step(kind):
        a("s_waitcnt lgkmcnt(%d)" % (4 if kind == 0 else 10))
        csum(1, 0)
        csum(1, 1)
        for m in range(2):
            for n in range(2):
                mm(kind, 1, m, n)
    def correction(kind, nwait):
        a("s_waitcnt lgkmcnt(%d)" % nwait)
        for m in range(2):
            a("v_sub_f32 v20, 0, v%d" % vM[m])
            a("v_cvt_pk_bf16_f32 v%d, v20, 0" % NM[m])
        for n in range(2):
            a("v_cndmask_b32 v%d, v%d, v%d, s[56:57]" % (vCs[n], CSA[n], CSA[n] + 1))
        for n in range(2):
            a("v_cvt_pk_bf16_f32 v20, v%d, v%d" % (vCs[n], vCs[n]))
            a("v_and_b32 v20, 0xffff0000, v20")
            a("v_sub_f32 v20, v%d, v20" % vCs[n])
            a("v_cndmask_b32 v20, v%d, v20, s[%d:%d]" % (vCs[n], sHi, sHi + 1))
            a("v_cvt_pk_bf16_f32 v%d, v20, 0" % CSF[n])
        a("s_nop 1")
        for m in range(2):
            for n in range(2):
                if kind == 0:
                    a("v_mfma_f32_32x32x16_bf16 %s, %s, %s, %s" % (v(acc[m][n], 16), v(CSF[n], 4), v(NM[m], 4), v(acc[m][n], 16)))
                else:
                    a("v_mfma_f32_32x32x16_bf16 %s, %s, %s, %s" % (v(acc[m][n], 16), v(NM[m], 4), v(CSF[n], 4), v(acc[m][n], 16)))
    def store_bases():
        a("s_and_b32 s%d, s%d, 3" % (sT0, sCb))
        a("s_lshl_b32 s%d, s%d, 3" % (sT0, sT0))
        a("s_lshl_b32 s%d, s%d, 2" % (sT1, sNt))
        a("s_add_u32 s%d, s%d, s%d" % (sT0, sT0, sT1))
        a("s_lshl_b32 s%d, s%d, 16" % (sT0, sT0))
        a("s_lshl_b32 s%d, s%d, 2" % (sT1, sRb))
        a("s_lshl_b32 s50, s%d, 1" % sMt)
        a("s_add_u32 s%d, s%d, s50" % (sT1, sT1))
        a("s_lshl_b32 s%d, s%d, 10" % (sT1, sT1))
        a("s_add_u32 s50, s%d, s%d" % (sT0, sT1))
        a("s_lshr_b32 s%d, s%d, 2" % (sT0, sCb))
        a("s_lshl_b32 s%d, s%d, 21" % (sT0, sT0))
        a("s_add_u32 s50, s50, s%d" % sT0)
    a("s_cmp_ge_u32 s%d, 8" % sCb)
    a("s_cbranch_scc1 L_g_v")
    main_loop(0, "q")
    stat_reads(0)
    last_step(0)
    store_bases()
    correction(0, 2)
    a("s_cmp_lt_u32 s%d, 4" % sCb)
    a("s_cselect_b32 s51, %s, 1.0" % fhex(QSCALE))
    a("v_lshlrev_b32 v21, 4, v%d" % vLane)
    a("s_waitcnt lgkmcnt(0)")
    for m in range(2):
        a("v_mul_f32 v%d, s51, v%d" % (vRs[m], vRs[m]))
    a("s_nop 4")
    for m in range(2):
        for n in range(2):
            A = acc[m][n]
            P = XB[0][0] + 8 * ((2 * m + n) % 2)
            for i in range(8):
                a("v_pk_mul_f32 %s, %s, %s op_sel_hi:[1,0]" % (v(A + 2 * i, 2), v(A + 2 * i, 2), v(vRs[m], 2)))
            for i in range(8):
                a("v_cvt_pk_bf16_f32 v%d, v%d, v%d" % (A + i, A + 2 * i, A + 2 * i + 1))
            a("s_add_u32 s52, s50, %d" % (m * 1024 + n * 0x20000))
            a("s_add_u32 s53, s52, 0x10000")
            a("buffer_store_dwordx4 %s, v21, s[%d:%d], s52 offen%s" % (v(A, 4), sWS, sWS + 3, QST))
            a("buffer_store_dwordx4 %s, v21, s[%d:%d], s53 offen%s" % (v(A + 4, 4), sWS, sWS + 3, QST))
    a("s_branch L_g_fin")
    a.label("L_g_v")
    main_loop(1, "v")
    stat_reads(1)
    last_step(1)
    store_bases()
    correction(1, 8)
    a("v_bfe_u32 v21, v%d, 4, 1" % vLane)
    a("v_lshlrev_b32 v21, 16, v21")
    a("v_lshl_add_u32 v21, v3, 8, v21")
    a("v_and_b32 v22, 15, v%d" % vLane)
    a("v_lshl_add_u32 v21, v22, 4, v21")
    a("s_waitcnt lgkmcnt(0)")
    a("s_nop 4")
    for m in range(2):
        for n in range(2):
            A = acc[m][n]
            for i in range(8):
                a("v_pk_mul_f32 %s, %s, %s" % (v(A + 2 * i, 2), v(A + 2 * i, 2), v(24 + 16 * m + 2 * i, 2)))
            for i in range(8):
                a("v_cvt_pk_bf16_f32 v%d, v%d, v%d" % (A + i, A + 2 * i, A + 2 * i + 1))
            a("s_add_u32 s52, s50, %d" % (m * 1024 + n * 0x20000))
            a("buffer_store_dwordx4 %s, v21, s[%d:%d], s52 offen%s" % (v(A, 4), sWS, sWS + 3, QST))
            a("buffer_store_dwordx4 %s, v21, s[%d:%d], s52 offen offset:512%s" % (v(A + 4, 4), sWS, sWS + 3, QST))
    a.label("L_g_fin")
    stamp(a, 21)
    stamp_flush(a, 0, sWS, sWave)
    a("s_endpgm")

def gen_k1():
    a = Asm()
    N = "k1_kernel"
    a(kernel_head(N))
    a("s_cmp_ge_u32 s2, %d" % K1_GRID)
    a("s_cbranch_scc1 L_k1_end")
    stamp_begin(a, 255)
    a("s_load_dwordx4 s[4:7], s[0:1], 0")
    a("s_load_dwordx8 s[12:19], s[0:1], 32")
    a("s_load_dwordx4 s[20:23], s[0:1], 72")
    a("v_lshrrev_b32 v2, 6, v0")
    a("v_and_b32 v1, 63, v0")
    a("v_readfirstlane_b32 s%d, v2" % sWave)
    a("s_waitcnt lgkmcnt(0)")
    ws_adjust(a, sWSP)
    a("s_or_b32 s24, s2, s%d" % sWave)
    a("s_cmp_lg_u32 s24, 0")
    a("s_cbranch_scc1 L_k1_non")
    a("s_memrealtime s[60:61]")
    srd(a, 24, sDBG, 256)
    a("v_mov_b32 v3, 0")
    a("s_waitcnt lgkmcnt(0)")
    a("s_or_b32 s60, s60, 1")
    a("v_mov_b32 v4, s60")
    a("s_mov_b32 exec_lo, 1")
    a("s_mov_b32 exec_hi, 0")
    a("buffer_store_dword v4, v3, s[24:27], 0 offen sc1")
    a("s_mov_b64 exec, -1")
    a.label("L_k1_non")
    a("s_cmp_ge_u32 s2, 64")
    a("s_cbranch_scc1 L_k1_gemm")
    a("s_cmp_gt_u32 s2, 32")
    if opt("PF_TLB"):
        a("s_cbranch_scc0 L_k1_aux")
        a("s_cmp_eq_u32 s2, 33")
        a("s_cbranch_scc0 L_k1_end")
        gen_tlb(a)
        a.label("L_k1_aux")
    else:
        a("s_cbranch_scc1 %s" % ("L_k1_touch" if opt("PF_IN") else "L_k1_end"))
    a("s_cmp_eq_u32 s2, 32")
    a("s_cbranch_scc1 L_k1_topk")
    gen_e(a)
    a.label("L_k1_topk")
    gen_topk(a)
    if opt("PF_IN"):
        a.label("L_k1_touch")
        gen_touch(a)
    a.label("L_k1_gemm")
    gen_gemm(a)
    a.label("L_k1_end")
    a("s_endpgm")
    return a.text(), (256 if PROF else 192)
```

```python
from dsl import *
from k1 import *

K2_GRID = 256
M_W = 32768
M_CNT = 8160
M_HS = 4224
M_GU = 5248
M_GUD = 20736 - 5248

K2_LDS = 163840
NEGBIG = 0xf149f2ca
LOG2E = 1.4426950408889634

def gen_attn(a):
    vLane = 1
    vK, vV, mx0, mx1, vT0, vT1, vZ, vOff = 2, 3, 4, 5, 6, 7, 8, 9
    SA, SB, CB, O, P, mA = 16, 32, 48, 64, 80, 88
    KF, VF, V0F, QF = 96, 100, 108, 116
    sWS = 8
    sH, sQb, sW, sT, sBase, sTs, sN = 20, 21, 22, 23, 24, 25, 26
    sT0, sT1 = 27, 28
    sVM = 30
    sCond = 40
    a("s_and_b32 s%d, s2, 7" % sH)
    a("s_bfe_u32 s%d, s2, 0x20003" % sT0)
    a("s_lshl_b32 s%d, s%d, 3" % (sT0, sT0))
    a("s_add_u32 s%d, s%d, s%d" % (sH, sH, sT0))
    a("s_lshr_b32 s%d, s2, 5" % sQb)
    a("v_lshlrev_b32 v%d, 4, v%d" % (vOff, vLane))
    a("s_lshl_b32 s%d, s%d, 3" % (sT, sQb))
    a("s_add_u32 s%d, s%d, s%d" % (sT, sT, sW))
    a("s_lshl_b32 s%d, s%d, 6" % (sBase, sH))
    a("s_add_u32 s%d, s%d, s%d" % (sBase, sBase, sT))
    a("s_lshl_b32 s%d, s%d, 10" % (sBase, sBase))
    a("s_lshl_b32 s%d, s%d, 10" % (sT1, sW))
    a("s_waitcnt lgkmcnt(0)")
    stamp(a, 1)
    ws_adjust(a, 6)
    srd(a, sWS, 6, WS_SIZE)
    a("s_add_u32 s%d, s%d, 0x%x" % (sT0, sBase, WS_KF))
    a("s_add_u32 m0, s%d, 8192" % sT1)
    a("s_nop 0")
    a("buffer_load_dwordx4 v%d, s[%d:%d], s%d offen lds" % (vOff, sWS, sWS + 3, sT0))
    a("s_add_u32 s%d, s%d, 0x%x" % (sT0, sBase, WS_QF))
    a("buffer_load_dwordx4 %s, v%d, s[%d:%d], s%d offen" % (v(QF, 4), vOff, sWS, sWS + 3, sT0))
    a("s_cmp_eq_u32 s%d, 0" % sQb)
    a("s_cbranch_scc1 L_at_noprev")
    a("s_add_u32 s%d, s%d, 0x%x" % (sT0, sBase, WS_KF - 8192))
    a("s_mov_b32 m0, s%d" % sT1)
    a("s_nop 0")
    a("buffer_load_dwordx4 v%d, s[%d:%d], s%d offen lds" % (vOff, sWS, sWS + 3, sT0))
    a("s_add_u32 s%d, s%d, 0x%x" % (sT0, sBase, WS_VF - 8192))
    a("s_add_u32 m0, s%d, 16384" % sT1)
    a("s_nop 0")
    a("buffer_load_dwordx4 v%d, s[%d:%d], s%d offen lds" % (vOff, sWS, sWS + 3, sT0))
    a.label("L_at_noprev")
    a("s_add_u32 s%d, s%d, 0x%x" % (sT0, sBase, WS_VF))
    a("s_add_u32 m0, s%d, %d" % (sT1, 16384 + 8192))
    a("s_nop 0")
    a("buffer_load_dwordx4 v%d, s[%d:%d], s%d offen lds" % (vOff, sWS, sWS + 3, sT0))
    a("v_and_b32 v%d, 31, v%d" % (vT0, vLane))
    a("v_lshrrev_b32 v%d, 5, v%d" % (vT1, vLane))
    a("v_lshlrev_b32 v%d, 2, v%d" % (vZ, vT1))
    a("v_sub_u32 v%d, v%d, v%d" % (vZ, vT0, vZ))
    for r in range(16):
        a("v_cmp_gt_i32 s[%d:%d], %d, v%d" % (sCond + 2 * r, sCond + 2 * r + 1, 8 * (r >> 2) + (r & 3), vZ))
    a("v_mov_b32 v10, 0xffff")
    a("v_mov_b32 v11, 0xffff0000")
    for j in range(8):
        a("v_cndmask_b32 v%d, 0, v10, s[%d:%d]" % (mA + j, sCond + 4 * j, sCond + 4 * j + 1))
        a("v_cndmask_b32 v12, 0, v11, s[%d:%d]" % (sCond + 4 * j + 2, sCond + 4 * j + 3))
        a("v_or_b32 v%d, v%d, v12" % (mA + j, mA + j))
    a("v_mov_b32 v10, 0x3f803f80")
    for r in range(16):
        a("v_mov_b32 v%d, v10" % (VF + r))
    for r in range(16):
        a("v_mov_b32 v%d, 0" % (O + r))
    a("s_mov_b32 s%d, 0xffff" % sVM)
    a("s_mov_b32 s%d, 0xffff" % (sVM + 1))
    a("s_sub_u32 s%d, 8, s%d" % (sTs, sW))
    a("s_cmp_eq_u32 s%d, 0" % sQb)
    a("s_cselect_b32 s%d, s%d, 1" % (sTs, sTs))
    a("v_add_u32 v%d, s%d, v%d" % (vK, sT1, vOff))
    a("v_and_b32 v%d, 15, v%d" % (vV, vLane))
    a("v_lshlrev_b32 v%d, 4, v%d" % (vV, vV))
    a("v_lshl_add_u32 v%d, v%d, 8, v%d" % (vV, vT1, vV))
    a("s_add_u32 s%d, s%d, 16384" % (sT0, sT1))
    a("v_add_u32 v%d, s%d, v%d" % (vV, sT0, vV))
    a("s_lshl_b32 s%d, s%d, 10" % (sT0, sTs))
    a("v_add_u32 v13, s%d, v%d" % (sT0, vK))
    a("v_add_u32 v14, s%d, v%d" % (sT0, vV))
    a("v_mov_b32 v%d, 0x%x" % (mx0, NEGBIG))
    a("v_mov_b32 v%d, 0x%x" % (mx1, NEGBIG))
    stamp(a, 2)
    a("s_waitcnt vmcnt(0)")
    stamp(a, 3)
    a("s_cmp_ge_u32 s2, %d" % NSLICE)
    a("s_cbranch_scc1 L_at_plain")
    lds_sync(a, "at", M_CNT, 8, 10, 11)
    a("s_branch L_at_go")
    a.label("L_at_plain")
    a("s_barrier")
    a.label("L_at_go")
    stamp(a, 4)

    def mfma_s(dst, c):
        a("v_mfma_f32_32x32x16_bf16 %s, %s, %s, %s" % (v(dst, 16), v(KF, 4), v(QF, 4), c))
    def vread(dst, addr):
        a("s_mov_b64 exec, s[%d:%d]" % (sVM, sVM + 1))
        a("ds_read_b128 %s, v%d" % (v(dst, 4), addr))
        a("ds_read_b128 %s, v%d offset:512" % (v(dst + 4, 4), addr))
        a("s_mov_b64 exec, -1")
    def maxes():
        for i in range(8):
            m = mx0 if i % 2 == 0 else mx1
            a("v_max3_f32 v%d, v%d, v%d, v%d" % (m, m, SB + 2 * i, SB + 2 * i + 1))
    def sel():
        for r in range(16):
            a("v_cndmask_b32 v%d, v%d, v%d, s[%d:%d]" % (SB + r, SB + r, SA + r, sCond + 2 * r, sCond + 2 * r + 1))
    def exps():
        for r in range(16):
            a("v_exp_f32 v%d, v%d" % (SB + r, SB + r))
        for j in range(8):
            a("v_cvt_pk_bf16_f32 v%d, v%d, v%d" % (P + j, SB + 2 * j, SB + 2 * j + 1))
    def pv(vf, p):
        a("v_mfma_f32_32x32x16_bf16 %s, %s, %s, %s" % (v(O, 16), v(vf, 4), v(p, 4), v(O, 16)))
        a("v_mfma_f32_32x32x16_bf16 %s, %s, %s, %s" % (v(O, 16), v(vf + 4, 4), v(p + 4, 4), v(O, 16)))

    a("s_cmp_eq_u32 s%d, 0" % sQb)
    a("s_cbranch_scc1 L_at_p1_no0")
    a("ds_read_b128 %s, v%d" % (v(KF, 4), vK))
    vread(V0F, vV)
    a("s_waitcnt lgkmcnt(2)")
    mfma_s(SA, "0")
    a("s_branch L_at_p1_go")
    a.label("L_at_p1_no0")
    for r in range(16):
        a("v_mov_b32 v%d, 0x%x" % (SA + r, NEGBIG))
    a.label("L_at_p1_go")
    a("v_mov_b32 v15, v13")
    a("ds_read_b128 %s, v15" % v(KF, 4))
    a("s_sub_u32 s%d, 8, s%d" % (sN, sTs))
    a("s_cmp_eq_u32 s%d, 0" % sN)
    a("s_cbranch_scc1 L_at_p1_fin")
    a.label("L_at_p1_loop")
    a("s_waitcnt lgkmcnt(0)")
    mfma_s(SB, "0")
    a("v_add_u32 v15, 0x400, v15")
    a("ds_read_b128 %s, v15" % v(KF, 4))
    a("s_sub_u32 s%d, s%d, 1" % (sN, sN))
    a("s_nop 8")
    maxes()
    a("s_cmp_lg_u32 s%d, 0" % sN)
    a("s_cbranch_scc1 L_at_p1_loop")
    a.label("L_at_p1_fin")
    a("s_waitcnt lgkmcnt(0)")
    mfma_s(SB, "0")
    a("s_cmp_eq_u32 s%d, 0" % sQb)
    a("s_cselect_b32 s%d, s%d, 0" % (sT1, sT0))
    a("v_add_u32 v15, s%d, v%d" % (sT1, vK))
    a("ds_read_b128 %s, v15" % v(KF, 4))
    a("s_nop 7")
    sel()
    maxes()
    a("v_max_f32 v%d, v%d, v%d" % (mx0, mx0, mx1))
    a("v_mov_b32 v%d, v%d" % (mx1, mx0))
    a("s_nop 1")
    a("v_permlane32_swap_b32 v%d, v%d" % (mx0, mx1))
    a("s_nop 0")
    a("v_max_f32 v%d, v%d, v%d" % (mx0, mx0, mx1))
    for r in range(16):
        a("v_sub_f32 v%d, 0, v%d" % (CB + r, mx0))
    stamp(a, 5)
    a("s_cmp_eq_u32 s%d, 0" % sQb)
    a("s_cbranch_scc1 L_at_p2_go")
    a("s_waitcnt lgkmcnt(0)")
    mfma_s(SA, v(CB, 16))
    a("ds_read_b128 %s, v13" % v(KF, 4))
    a.label("L_at_p2_go")
    a("s_sub_u32 s%d, 8, s%d" % (sN, sTs))
    a("s_cmp_eq_u32 s%d, 0" % sN)
    a("s_cbranch_scc1 L_at_p2_fin")
    a.label("L_at_p2_loop")
    vread(VF, 14)
    a("s_waitcnt lgkmcnt(2)")
    mfma_s(SB, v(CB, 16))
    a("v_add_u32 v13, 0x400, v13")
    a("v_add_u32 v14, 0x400, v14")
    a("ds_read_b128 %s, v13" % v(KF, 4))
    a("s_sub_u32 s%d, s%d, 1" % (sN, sN))
    a("s_nop 7")
    exps()
    a("s_waitcnt lgkmcnt(1)")
    pv(VF, P)
    a("s_cmp_lg_u32 s%d, 0" % sN)
    a("s_cbranch_scc1 L_at_p2_loop")
    a.label("L_at_p2_fin")
    vread(VF, 14)
    a("s_waitcnt lgkmcnt(2)")
    mfma_s(SB, v(CB, 16))
    a("s_nop 11")
    sel()
    exps()
    for j in range(8):
        a("v_and_b32 v%d, v%d, v%d" % (SA + j, P + j, mA + j))
    for j in range(8):
        a("v_xor_b32 v%d, v%d, v%d" % (P + j, P + j, SA + j))
    a("s_waitcnt lgkmcnt(0)")
    a("s_nop 0")
    pv(VF, P)
    a("s_cmp_eq_u32 s%d, 0" % sQb)
    a("s_cbranch_scc1 L_at_fin")
    pv(V0F, SA)
    a.label("L_at_fin")
    stamp(a, 6)
    a("s_add_u32 s%d, s%d, 0x%x" % (sT0, sBase, WS_OF))
    a("s_nop 10")
    a("v_rcp_f32 v10, v%d" % (O + 8))
    a("s_nop 0")
    for r in range(8):
        a("v_mul_f32 v%d, v%d, v10" % (O + r, O + r))
    for j in range(4):
        a("v_cvt_pk_bf16_f32 v%d, v%d, v%d" % (P + j, O + 2 * j, O + 2 * j + 1))
    a("buffer_store_dwordx4 %s, v%d, s[%d:%d], s%d offen" % (v(P, 4), vOff, sWS, sWS + 3, sT0))
    stamp_flush(a, 1, sWS, sW)
    a("s_endpgm")

def lds_sync(a, tag, addr, n, vt, vo):
    a("v_mov_b32 v%d, %d" % (vt, addr))
    a("v_mov_b32 v%d, 1" % vo)
    a("s_mov_b64 s[34:35], exec")
    a("s_mov_b32 exec_lo, 1")
    a("s_mov_b32 exec_hi, 0")
    a("s_waitcnt lgkmcnt(0)")
    a("ds_add_u32 v%d, v%d" % (vt, vo))
    a("s_mov_b64 exec, s[34:35]")
    a("s_mov_b32 s33, 0")
    a.label("L_sync_%s" % tag)
    a("ds_read_b32 v%d, v%d" % (vo, vt))
    a("s_add_u32 s33, s33, 1")
    a("s_waitcnt lgkmcnt(0)")
    a("v_readfirstlane_b32 s36, v%d" % vo)
    a("s_cmp_gt_u32 s33, 0x100000")
    a("s_cbranch_scc1 L_syncd_%s" % tag)
    a("s_cmp_ge_u32 s36, %d" % n)
    a("s_cbranch_scc1 L_syncd_%s" % tag)
    a("s_sleep 1")
    a("s_branch L_sync_%s" % tag)
    a.label("L_syncd_%s" % tag)

def gen_moe(a):
    vLane = 1
    WR, WF = 32, 64
    XROW, XST, D = 16, 20, 24
    sWS, sX, sWm, sWd = 8, 12, 16, 72
    sW, sT0, sT1, sI, sTok = 22, 26, 27, 28, 29
    a("s_sub_u32 s%d, s%d, 8" % (sW, sW))
    if opt("MOE_PRIO", 2):
        a("s_setprio %d" % opt("MOE_PRIO", 2))
    a("s_waitcnt lgkmcnt(0)")
    ws_adjust(a, 6)
    srd(a, sWS, 6, WS_SIZE)
    a("s_lshl_b32 s%d, s%d, 2" % (sT0, sW))
    a("s_add_u32 s%d, s%d, 0x%x" % (sT0, sT0, WS_SEL))
    a("s_buffer_load_dword s%d, s[%d:%d], s%d" % (sTok, sWS, sWS + 3, sT0))
    srd(a, sX, 84, 2048 * 1024)
    srd(a, sWd, 92, 1792 * 1024)
    a("s_and_b32 s94, s%d, 1" % sW)
    a("s_cmp_eq_u32 s94, 0")
    a("s_cselect_b32 s%d, s88, s90" % sWm)
    a("s_cselect_b32 s%d, s89, s91" % (sWm + 1))
    a("s_mov_b32 s%d, 0x%x" % (sWm + 2, 512 * 3584))
    a("s_mov_b32 s%d, 0x20000" % (sWm + 3))
    a("v_lshrrev_b32 v4, 3, v%d" % vLane)
    a("v_and_b32 v5, 7, v%d" % vLane)
    a("v_bfe_u32 v6, v4, 1, 1")
    a("v_lshlrev_b32 v6, 1, v6")
    a("v_xor_b32 v5, v5, v6")
    a("v_mul_u32_u24 v4, 0xe00, v4")
    a("v_xor_b32 v6, 4, v5")
    a("v_lshl_add_u32 v7, v6, 4, v4")
    a("v_lshl_add_u32 v4, v5, 4, v4")
    a("v_add_u32 v7, %d, v7" % (8 * 3584))
    a("s_lshr_b32 s%d, s%d, 1" % (sT1, sW))
    a("s_mul_i32 s82, s%d, %d" % (sT1, 128 * 3584))
    a("s_lshl_b32 s83, s2, 7")
    a("s_add_u32 s82, s82, s83")
    a("s_lshl_b32 s83, s94, 16")
    a("s_lshl_b32 s95, s%d, 14" % sT1)
    a("s_add_u32 s83, s83, s95")
    a("s_add_u32 s83, s83, %d" % M_W)
    a("s_waitcnt lgkmcnt(0)")
    a("s_lshl_b32 s%d, s%d, 10" % (sT0, sTok))
    a("v_lshlrev_b32 v8, 4, v%d" % vLane)
    a("buffer_load_dwordx4 %s, v8, s[%d:%d], s%d offen" % (v(XROW, 4), sX, sX + 3, sT0))
    a("s_lshl_b32 s%d, s%d, 4" % (sT0, sTok))
    a("s_add_u32 s%d, s%d, 0x%x" % (sT0, sT0, WS_REC))
    a("v_mov_b32 v9, 0")
    a("buffer_load_dwordx2 %s, v9, s[%d:%d], s%d offen" % (v(XST, 2), sWS, sWS + 3, sT0))
    for q in range(8):
        a("s_mov_b32 m0, s83")
        a("s_add_u32 s83, s83, 2048")
        a("buffer_load_dwordx4 v4, s[%d:%d], s82 offen lds" % (sWm, sWm + 3))
        a("s_add_u32 m0, m0, 1024")
        a("s_nop 0")
        a("buffer_load_dwordx4 v7, s[%d:%d], s82 offen lds" % (sWm, sWm + 3))
        a("s_add_u32 s82, s82, %d" % (16 * 3584))
    a("v_lshrrev_b32 v5, 4, v%d" % vLane)
    a("v_and_b32 v6, 15, v%d" % vLane)
    a("v_lshlrev_b32 v5, 13, v5")
    a("v_lshl_add_u32 v5, v6, 3, v5")
    a("s_lshl_b32 s82, s2, 16")
    a("s_lshl_b32 s83, s%d, 7" % sW)
    a("s_add_u32 s32, s82, s83")
    stamp(a, 1)
    a("s_waitcnt vmcnt(16)")
    T = 96
    for i in range(4):
        a("v_lshlrev_b32 v%d, 16, v%d" % (T + 2 * i, XROW + i))
        a("v_and_b32 v%d, 0xffff0000, v%d" % (T + 1 + 2 * i, XROW + i))
    for i in range(8):
        a("v_sub_f32 v%d, v%d, v%d" % (T + i, T + i, XST))
    for i in range(4):
        a("v_cvt_pk_bf16_f32 v%d, v%d, v%d" % (XROW + i, T + 2 * i, T + 1 + 2 * i))
    for i in range(4):
        a("v_lshlrev_b32 v%d, 16, v%d" % (T + 2 * i, XROW + i))
        a("v_and_b32 v%d, 0xffff0000, v%d" % (T + 1 + 2 * i, XROW + i))
    for i in range(8):
        a("v_mul_f32 v%d, v%d, v%d" % (T + i, T + i, XST + 1))
    for i in range(4):
        a("v_cvt_pk_bf16_f32 v%d, v%d, v%d" % (XROW + i, T + 2 * i, T + 1 + 2 * i))
    a("s_and_b32 s82, s%d, 3" % sW)
    a("s_mul_i32 s82, s82, 1056")
    a("s_lshr_b32 s83, s%d, 2" % sW)
    a("s_mul_i32 s83, s83, 16512")
    a("s_add_u32 s82, s82, s83")
    a("v_lshl_add_u32 v10, v%d, 4, s82" % vLane)
    a("ds_write_b128 v10, %s" % v(XROW, 4))
    a("v_lshrrev_b32 v8, 4, v%d" % vLane)
    a("v_bfe_u32 v9, v%d, 2, 2" % vLane)
    a("v_and_b32 v10, 3, v%d" % vLane)
    a("v_and_b32 v11, 1, v8")
    a("v_lshlrev_b32 v11, 1, v11")
    a("v_lshrrev_b32 v12, 1, v9")
    a("v_or_b32 v11, v11, v12")
    a("s_lshr_b32 s%d, s%d, 1" % (sI, sW))
    a("v_xor_b32 v11, s%d, v11" % sI)
    a("v_lshl_add_u32 v9, v8, 3, v9")
    a("v_lshlrev_b32 v9, 7, v9")
    a("v_lshl_add_u32 v9, v11, 5, v9")
    a("v_lshl_add_u32 v9, v10, 3, v9")
    a("s_lshl_b32 s95, s94, 16")
    a("s_add_u32 s95, s95, %d" % M_W)
    a("v_add_u32 v9, s95, v9")
    a("v_and_b32 v10, 3, v%d" % vLane)
    a("v_mul_u32_u24 v10, 1056, v10")
    a("v_bfe_u32 v11, v%d, 2, 1" % vLane)
    a("v_mul_u32_u24 v11, 16512, v11")
    a("v_add_u32 v10, v10, v11")
    a("v_lshl_add_u32 v10, v8, 4, v10")
    a("s_mul_i32 s95, s94, %d" % M_GUD)
    a("s_lshl_b32 s82, s%d, 6" % sI)
    a("s_add_u32 s95, s95, s82")
    a("s_add_u32 s95, s95, %d" % M_GU)
    a("v_and_b32 v11, 15, v%d" % vLane)
    a("v_lshlrev_b32 v11, 8, v11")
    a("v_lshl_add_u32 v11, v8, 4, v11")
    a("v_add_u32 v11, s95, v11")
    a("s_waitcnt vmcnt(0)")
    stamp(a, 2)
    lds_sync(a, "m0", M_CNT + 4, 8, 12, 13)
    stamp(a, 3)
    for kk in range(2):
        for e in range(8):
            a("s_add_u32 s83, s32, %d" % (kk * 32768 + (e // 4) * 4096))
            a("buffer_load_dwordx2 %s, v5, s[%d:%d], s83 offen offset:%d" % (v(WR + 16 * kk + 2 * e, 2), sWd, sWd + 3, (e % 4) * 1024))
    stamp(a, 5)
    FA, FB, NB = 96, 108, 3
    def gu_reads(ks):
        a("ds_read_b64_tr_b16 %s, v9 offset:%d" % (v(FA + 4 * (ks % NB), 2), ks * 4096))
        a("ds_read_b64_tr_b16 %s, v9 offset:%d" % (v(FA + 4 * (ks % NB) + 2, 2), ks * 4096 + 512))
        a("ds_read_b128 %s, v10 offset:%d" % (v(FB + 4 * (ks % NB), 4), ks * 64))
    for ks in range(NB):
        gu_reads(ks)
    for ks in range(16):
        a("s_waitcnt lgkmcnt(%d)" % (3 * min(NB - 1, 15 - ks)))
        a("v_mfma_f32_16x16x32_bf16 %s, %s, %s, %s" % (v(D, 4), v(FA + 4 * (ks % NB), 4), v(FB + 4 * (ks % NB), 4), "0" if ks == 0 else v(D, 4)))
        if ks + NB < 16:
            gu_reads(ks + NB)
    a("s_mov_b32 exec_lo, 0x00ff00ff")
    a("s_mov_b32 exec_hi, 0x00ff00ff")
    a("s_nop 7")
    a("ds_write_b128 v11, %s" % v(D, 4))
    a("s_mov_b64 exec, -1")
    a("s_mov_b32 s94, 0x05040100")
    a("s_mov_b32 s95, 0x07060302")
    a("s_waitcnt vmcnt(0)")
    for kk in range(2):
        for jj in range(4):
            for p in range(4):
                a("v_perm_b32 v%d, v%d, v%d, s%d" % (WF + 16 * kk + 4 * jj + p, WR + 16 * kk + 2 * (2 * p + 1) + (jj >> 1), WR + 16 * kk + 2 * (2 * p) + (jj >> 1), 94 + (jj & 1)))
    stamp(a, 6)
    lds_sync(a, "m1", M_CNT + 8, 8, 12, 13)
    stamp(a, 7)
    a("s_lshl_b32 s82, s%d, 8" % sW)
    a("s_add_u32 s82, s82, %d" % M_GU)
    a("v_lshl_add_u32 v8, v%d, 2, s82" % vLane)
    a("ds_read_b32 v12, v8")
    a("ds_read_b32 v14, v8 offset:%d" % M_GUD)
    a("s_lshl_b32 s82, s%d, 7" % sW)
    a("s_add_u32 s82, s82, %d" % M_HS)
    a("v_lshl_add_u32 v8, v%d, 1, s82" % vLane)
    a("s_waitcnt lgkmcnt(0)")
    bf16r(a, "v12", "v12")
    bf16r(a, "v14", "v14")
    a("v_mul_f32 v13, %s, v12" % fhex(-LOG2E))
    a("v_exp_f32 v13, v13")
    a("s_nop 0")
    a("v_add_f32 v13, 1.0, v13")
    a("v_rcp_f32 v13, v13")
    a("s_nop 0")
    a("v_mul_f32 v12, v12, v13")
    bf16r(a, "v12", "v12")
    a("v_mul_f32 v12, v12, v14")
    a("v_cvt_pk_bf16_f32 v12, v12, v12")
    a("ds_write_b16 v8, v12")
    a("v_and_b32 v8, 7, v%d" % vLane)
    a("v_lshrrev_b32 v9, 4, v%d" % vLane)
    a("v_lshlrev_b32 v8, 7, v8")
    a("v_lshl_add_u32 v8, v9, 4, v8")
    a("v_add_u32 v8, %d, v8" % M_HS)
    lds_sync(a, "m2", M_CNT + 12, 8, 12, 13)
    stamp(a, 4)
    a("ds_read_b128 v[96:99], v8")
    a("ds_read_b128 v[100:103], v8 offset:64")
    a("v_and_b32 v10, 15, v%d" % vLane)
    a("v_lshlrev_b32 v10, 11, v10")
    a("v_lshl_add_u32 v10, v9, 6, v10")
    a("s_lshl_b32 s94, s2, 14")
    a("s_lshl_b32 s95, s%d, 8" % sW)
    a("s_add_u32 s94, s94, s95")
    a("s_add_u32 s94, s94, 0x%x" % WS_PART)
    a("s_waitcnt lgkmcnt(1)")
    for jj in range(4):
        a("v_mfma_f32_16x16x32_bf16 %s, %s, v[96:99], 0" % (v(104 + 4 * jj, 4), v(WF + 4 * jj, 4)))
    a("s_waitcnt lgkmcnt(0)")
    for jj in range(4):
        a("v_mfma_f32_16x16x32_bf16 %s, %s, v[100:103], %s" % (v(104 + 4 * jj, 4), v(WF + 16 + 4 * jj, 4), v(104 + 4 * jj, 4)))
    a("s_mov_b32 exec_lo, 0x00ff00ff")
    a("s_mov_b32 exec_hi, 0x00ff00ff")
    a("s_nop 7")
    for jj in range(4):
        a("buffer_store_dwordx4 %s, v10, s[%d:%d], s94 offen offset:%d" % (v(104 + 4 * jj, 4), sWS, sWS + 3, jj * 16))
    a("s_add_u32 s%d, s%d, 8" % (sW, sW))
    stamp_flush(a, 1, sWS, sW)
    a("s_endpgm")

def gen_k2():
    a = Asm()
    N = "k2_kernel"
    a(kernel_head(N))
    a("s_cmp_ge_u32 s2, %d" % K2_GRID)
    a("s_cbranch_scc1 L_k2_end")
    stamp_begin(a, 127)
    a("s_load_dwordx2 s[6:7], s[0:1], 80")
    a("v_lshrrev_b32 v2, 6, v0")
    a("v_and_b32 v1, 63, v0")
    a("v_readfirstlane_b32 s22, v2")
    a("s_cmp_lt_u32 s2, %d" % NSLICE)
    a("s_cbranch_scc1 L_k2_mixed")
    a("s_cmp_ge_u32 s22, 8")
    a("s_cbranch_scc1 L_k2_end")
    a("s_branch L_k2_attn")
    a.label("L_k2_mixed")
    a("s_load_dwordx2 s[84:85], s[0:1], 0")
    a("s_load_dwordx4 s[88:91], s[0:1], 40")
    a("s_load_dwordx2 s[92:93], s[0:1], 56")
    a("s_cmp_lg_u32 s22, 0")
    a("s_cbranch_scc1 L_k2_z")
    a("v_mov_b32 v3, %d" % M_CNT)
    a("v_mov_b32 v4, 0"); a("v_mov_b32 v5, 0"); a("v_mov_b32 v6, 0"); a("v_mov_b32 v7, 0")
    a("ds_write_b128 v3, v[4:7]")
    a("s_waitcnt lgkmcnt(0)")
    a.label("L_k2_z")
    a("s_barrier")
    a("s_cmp_ge_u32 s22, 8")
    a("s_cbranch_scc1 L_k2_moe")
    a.label("L_k2_attn")
    gen_attn(a)
    a.label("L_k2_moe")
    gen_moe(a)
    a.label("L_k2_end")
    a("s_endpgm")
    return a.text(), 128
```

```python
from dsl import *
from k1 import *

K3_Y = 131072
K3_LDS = K3_Y + 2048

def gen_k3():
    a = Asm()
    N = "k3_kernel"
    a(kernel_head(N))
    vLane = 1
    sWS, sX, sWo, sOut = 8, 12, 16, 20
    sRb, sCb, sW, sMt, sNt, sT0, sT1, sPh, sTile = 28, 29, 30, 31, 32, 33, 34, 35, 36
    sIdx, sSig = 40, 48
    a("s_cmp_ge_u32 s2, 256")
    a("s_cbranch_scc1 L_k3_end")
    stamp_begin(a, 62)
    a("s_load_dwordx2 s[4:5], s[0:1], 0")
    a("s_load_dwordx2 s[6:7], s[0:1], 16")
    a("s_load_dwordx4 s[24:27], s[0:1], 64")
    a("s_load_dwordx2 s[38:39], s[0:1], 80")
    a("s_and_b32 s%d, s2, 7" % sT0)
    a("s_lshr_b32 s%d, s2, 3" % sT1)
    a("s_lshl_b32 s%d, s%d, 2" % (sRb, sT0))
    a("s_and_b32 s%d, s%d, 3" % (sCb, sT1))
    a("s_add_u32 s%d, s%d, s%d" % (sRb, sRb, sCb))
    a("s_lshr_b32 s%d, s%d, 2" % (sCb, sT1))
    a("v_lshrrev_b32 v2, 6, v0")
    a("v_and_b32 v%d, 63, v0" % vLane)
    a("v_readfirstlane_b32 s%d, v2" % sW)
    a("s_cmp_ge_u32 s%d, 4" % sW)
    a("s_cbranch_scc0 L_k3_cons")
    vOa, vWa = 4, 5
    a("v_lshlrev_b32 v%d, 4, v%d" % (vOa, vLane))
    a("v_lshrrev_b32 v2, 3, v%d" % vLane)
    a("v_and_b32 v3, 7, v%d" % vLane)
    a("v_bfe_u32 v9, v%d, 4, 1" % vLane)
    a("v_lshlrev_b32 v9, 2, v9")
    a("v_xor_b32 v3, v3, v9")
    a("v_lshlrev_b32 v3, 4, v3")
    a("v_lshl_add_u32 v%d, v2, 10, v3" % vWa)
    a("s_sub_u32 s%d, s%d, 4" % (sW, sW))
    a("s_and_b32 s%d, s%d, 1" % (sMt, sW))
    a("s_lshr_b32 s%d, s%d, 1" % (sNt, sW))
    a("s_lshl_b32 s68, s%d, 1" % sRb)
    a("s_add_u32 s68, s68, s%d" % sMt)
    a("s_lshl_b32 s68, s68, 10")
    a("s_lshl_b32 s69, s%d, 17" % sNt)
    a("s_add_u32 s68, s68, s69")
    a("s_add_u32 s68, s68, 0x%x" % WS_OF)
    a("s_lshl_b32 s70, s%d, 15" % sMt)
    a("s_lshl_b32 s69, s%d, 11" % sNt)
    a("s_add_u32 s70, s70, s69")
    a("s_lshl_b32 s71, s%d, 14" % sW)
    a("s_lshl_b32 s69, s%d, 7" % sCb)
    a("s_add_u32 s71, s71, s69")
    a("s_lshl_b32 s72, s%d, 11" % sW)
    a("s_add_u32 s72, s72, 65536")
    a("s_waitcnt lgkmcnt(0)")
    ws_adjust(a, 38)
    srd(a, sWS, 38, WS_SIZE)
    srd(a, sWo, 6, 512 * 1024)
    a("s_add_u32 s62, s38, 0x%x" % WS_SEL)
    a("s_addc_u32 s63, s39, 0")
    a("s_load_dwordx16 s[%d:%d], s[62:63], 0" % (sIdx, sIdx + 15))
    stamp(a, 1)
    def issue():
        a("s_mov_b32 m0, s72")
        a("s_add_u32 s69, s71, 8192")
        a("buffer_load_dwordx4 v%d, s[%d:%d], s71 offen lds" % (vWa, sWo, sWo + 3))
        a("s_add_u32 m0, m0, 1024")
        a("s_add_u32 s71, s71, 131072")
        a("buffer_load_dwordx4 v%d, s[%d:%d], s69 offen lds" % (vWa, sWo, sWo + 3))
        a("s_mov_b32 m0, s70")
        a("s_add_u32 s69, s68, 0x10000")
        a("buffer_load_dwordx4 v%d, s[%d:%d], s68 offen lds" % (vOa, sWS, sWS + 3))
        a("s_add_u32 m0, m0, 1024")
        a("s_add_u32 s68, s68, 0x80000")
        a("buffer_load_dwordx4 v%d, s[%d:%d], s69 offen lds" % (vOa, sWS, sWS + 3))
        a("s_add_u32 s70, s70, 8192")
        a("s_add_u32 s72, s72, 16384")
    issue()
    issue()
    Y = 64
    a("v_lshrrev_b32 v12, 4, v%d" % vLane)
    a("v_and_b32 v13, 15, v%d" % vLane)
    a("v_lshlrev_b32 v12, 14, v12")
    a("v_lshl_add_u32 v12, v13, 4, v12")
    a("s_lshl_b32 s%d, s%d, 8" % (sT0, sCb))
    a("s_lshl_b32 s%d, s%d, 11" % (sT1, sW))
    a("s_add_u32 s73, s%d, s%d" % (sT0, sT1))
    a("s_add_u32 s73, s73, 0x%x" % WS_PART)
    a("v_lshrrev_b32 v14, 2, v13")
    a("v_lshlrev_b32 v14, 4, v14")
    a("v_and_b32 v15, 3, v13")
    a("v_add_u32 v14, v14, v15")
    a("s_lshl_b32 s%d, s%d, 8" % (sT1, sW))
    a("s_add_u32 s%d, s%d, %d" % (sT1, sT1, K3_Y))
    a("v_lshl_add_u32 v14, v14, 2, s%d" % sT1)
    a("s_mov_b32 m0, s%d" % sW)
    a("s_waitcnt lgkmcnt(0)")
    a("s_movrels_b32 s59, s%d" % sIdx)
    a("s_movrels_b32 s60, s%d" % sSig)
    a("s_lshr_b32 s%d, s59, 6" % sT1)
    a("s_waitcnt vmcnt(4)")
    a("s_barrier")
    a("s_cmp_eq_u32 s%d, s%d" % (sT1, sRb))
    a("s_cbranch_scc1 L_k3_tok")
    issue()
    a("s_waitcnt vmcnt(4)")
    a("s_barrier")
    issue()
    a("s_waitcnt vmcnt(4)")
    a("s_barrier")
    a("s_branch L_k3_ldfin")
    a.label("L_k3_tok")
    for q in range(7):
        a("buffer_load_dwordx4 %s, v12, s[%d:%d], s73 offen" % (v(Y + 4 * q, 4), sWS, sWS + 3))
        a("s_add_u32 s73, s73, 0x10000")
    issue()
    a("s_waitcnt vmcnt(11)")
    a("s_barrier")
    issue()
    a("s_waitcnt vmcnt(4)")
    a("s_barrier")
    for (x, y) in ((0, 1), (2, 3), (4, 5), (0, 2), (4, 6), (0, 4)):
        a("v_pk_add_f32 %s, %s, %s" % (v(Y + 4 * x, 2), v(Y + 4 * x, 2), v(Y + 4 * y, 2)))
        a("v_pk_add_f32 %s, %s, %s" % (v(Y + 4 * x + 2, 2), v(Y + 4 * x + 2, 2), v(Y + 4 * y + 2, 2)))
    for sw in ("v_permlane16_swap_b32", "v_permlane32_swap_b32"):
        for e in range(4):
            a("v_mov_b32 v%d, v%d" % (Y + 4 + e, Y + e))
        a("s_nop 1")
        for e in range(4):
            a("%s v%d, v%d" % (sw, Y + e, Y + 4 + e))
        a("s_nop 0")
        for e in range(4):
            a("v_add_f32 v%d, v%d, v%d" % (Y + e, Y + e, Y + 4 + e))
    for e in range(4):
        bf16r(a, "v%d" % (Y + e), "v%d" % (Y + e))
        a("v_mul_f32 v%d, s60, v%d" % (Y + e, Y + e))
        bf16r(a, "v%d" % (Y + e), "v%d" % (Y + e))
    for e in range(4):
        a("ds_write_b32 v14, v%d offset:%d" % (Y + e, e * 16))
    a.label("L_k3_ldfin")
    stamp(a, 2)
    a("s_waitcnt vmcnt(0) lgkmcnt(0)")
    a("s_barrier")
    a("s_add_u32 s%d, s%d, 4" % (sW, sW))
    stamp_flush(a, 2, sWS, sW)
    a("s_endpgm")
    a.label("L_k3_cons")
    vOr, vWr, vXo = 6, 7, 8
    acc = 16
    XR = 32
    base = 40
    FB, FA = 64, 96
    XN = 128
    a("s_and_b32 s%d, s%d, 1" % (sMt, sW))
    a("s_lshr_b32 s%d, s%d, 1" % (sNt, sW))
    a("s_lshl_b32 s%d, s%d, 1" % (sTile, sRb))
    a("s_add_u32 s%d, s%d, s%d" % (sTile, sTile, sMt))
    a("v_and_b32 v2, 31, v%d" % vLane)
    a("v_lshrrev_b32 v3, 5, v%d" % vLane)
    a("s_lshl_b32 s%d, s%d, 5" % (sT0, sTile))
    a("v_add_u32 v9, s%d, v2" % sT0)
    a("v_lshlrev_b32 v%d, 10, v9" % vXo)
    a("v_lshl_add_u32 v%d, v3, 4, v%d" % (vXo, vXo))
    a("s_lshl_b32 s%d, s%d, 7" % (sT0, sCb))
    a("s_lshl_b32 s%d, s%d, 6" % (sT1, sNt))
    a("s_add_u32 s%d, s%d, s%d" % (sT0, sT0, sT1))
    a("v_add_u32 v%d, s%d, v%d" % (vXo, sT0, vXo))
    a("v_lshlrev_b32 v9, 4, v9")
    a("s_waitcnt lgkmcnt(0)")
    ws_adjust(a, 38)
    srd(a, sWS, 38, WS_SIZE)
    srd(a, sX, 4, 2048 * 1024)
    a("s_add_u32 s62, s38, 0x%x" % WS_SEL)
    a("s_addc_u32 s63, s39, 0")
    a("s_load_dwordx16 s[%d:%d], s[62:63], 0" % (sIdx, sIdx + 15))
    a("buffer_load_dwordx4 %s, v%d, s[%d:%d], 0 offen" % (v(XR, 4), vXo, sX, sX + 3))
    a("buffer_load_dwordx4 %s, v%d, s[%d:%d], 0 offen offset:32" % (v(XR + 4, 4), vXo, sX, sX + 3))
    a("s_mov_b32 s%d, 0x%x" % (sT0, WS_REC))
    a("buffer_load_dwordx2 v[10:11], v9, s[%d:%d], s%d offen" % (sWS, sWS + 3, sT0))
    srd(a, sOut, 24, 2048 * 1024)
    a("s_lshl_b32 s%d, s%d, 15" % (sT0, sMt))
    a("v_lshl_add_u32 v%d, v%d, 4, s%d" % (vOr, vLane, sT0))
    a("v_bfe_u32 v12, v%d, 2, 2" % vLane)
    a("v_lshl_add_u32 v13, v3, 2, v12")
    a("v_lshlrev_b32 v13, 7, v13")
    a("v_lshrrev_b32 v12, 1, v12")
    a("v_xor_b32 v12, s%d, v12" % sNt)
    a("v_lshl_add_u32 v13, v12, 6, v13")
    a("v_bfe_u32 v12, v%d, 4, 1" % vLane)
    a("v_lshl_add_u32 v13, v12, 5, v13")
    a("v_and_b32 v12, 3, v%d" % vLane)
    a("v_lshl_add_u32 v13, v12, 3, v13")
    a("v_add_u32 v%d, 0x10000, v13" % vWr)
    for r in range(16):
        a("v_mov_b32 v%d, 0" % (acc + r))
    stamp(a, 1)
    a("s_waitcnt vmcnt(0) lgkmcnt(0)")
    stamp(a, 3)
    for i in range(8):
        a("v_lshlrev_b32 v%d, 16, v%d" % (base + 2 * i, XR + i))
        a("v_and_b32 v%d, 0xffff0000, v%d" % (base + 2 * i + 1, XR + i))
    for i in range(16):
        a("v_sub_f32 v%d, v%d, v10" % (XN + i, base + i))
    for i in range(8):
        a("v_cvt_pk_bf16_f32 v%d, v%d, v%d" % (XR + i, XN + 2 * i, XN + 2 * i + 1))
    for i in range(8):
        a("v_lshlrev_b32 v%d, 16, v%d" % (XN + 2 * i, XR + i))
        a("v_and_b32 v%d, 0xffff0000, v%d" % (XN + 2 * i + 1, XR + i))
    for i in range(16):
        a("v_mul_f32 v%d, v%d, v11" % (XN + i, XN + i))
    for i in range(8):
        a("v_cvt_pk_bf16_f32 v%d, v%d, v%d" % (XR + i, XN + 2 * i, XN + 2 * i + 1))
    for i in range(8):
        a("v_lshlrev_b32 v%d, 16, v%d" % (XN + 2 * i, XR + i))
        a("v_and_b32 v%d, 0xffff0000, v%d" % (XN + 2 * i + 1, XR + i))
    for i in range(16):
        a("v_add_f32 v%d, v%d, v%d" % (base + i, base + i, XN + i))
    a("s_mov_b32 s67, 0")
    for jx in range(8):
        a("s_lshr_b32 s%d, s%d, 5" % (sT1, sIdx + jx))
        a("s_cmp_eq_u32 s%d, s%d" % (sT1, sTile))
        a("s_cselect_b32 s%d, %d, 0" % (sT1, 1 << jx))
        a("s_or_b32 s67, s67, s%d" % sT1)
    stamp(a, 4)
    def step_reads(ks, buf):
        a("ds_read_b128 %s, v%d offset:%d" % (v(FB + 4 * buf, 4), vOr, ks * 1024))
        a("ds_read_b64_tr_b16 %s, v%d offset:%d" % (v(FA + 4 * buf, 2), vWr, ks * 2048))
        a("ds_read_b64_tr_b16 %s, v%d offset:%d" % (v(FA + 4 * buf + 2, 2), vWr, ks * 2048 + 1024))
    a("s_mov_b32 s%d, 0" % sPh)
    a.label("L_k3_loop")
    a("s_barrier")
    stamp(a, "s%d+10" % sPh)
    for ks in range(4):
        step_reads(ks, ks)
    for ks in range(8):
        a("s_waitcnt lgkmcnt(%d)" % (9 if ks < 5 else 3 * (7 - ks)))
        a("v_mfma_f32_32x32x16_bf16 %s, %s, %s, %s" % (v(acc, 16), v(FA + 4 * ks, 4), v(FB + 4 * ks, 4), v(acc, 16)))
        if ks + 4 < 8:
            step_reads(ks + 4, ks + 4)
    a("v_add_u32 v%d, 0x2000, v%d" % (vOr, vOr))
    a("v_add_u32 v%d, 0x4000, v%d" % (vWr, vWr))
    a("s_add_u32 s%d, s%d, 1" % (sPh, sPh))
    a("s_cmp_lt_u32 s%d, 4" % sPh)
    a("s_cbranch_scc1 L_k3_loop")
    stamp(a, 5)
    a("s_cmp_eq_u32 s67, 0")
    a("s_cbranch_scc1 L_k3_fin")
    a("s_lshl_b32 s%d, s%d, 7" % (sT0, sNt))
    a("s_add_u32 s%d, s%d, %d" % (sT0, sT0, K3_Y))
    a("v_lshl_add_u32 v14, v3, 5, s%d" % sT0)
    a.label("L_k3_ap")
    a("s_ff1_i32_b32 s58, s67")
    a("s_bitset0_b32 s67, s58")
    a("s_mov_b32 m0, s58")
    a("s_lshl_b32 s%d, s58, 8" % sT1)
    a("s_movrels_b32 s59, s%d" % sIdx)
    a("v_add_u32 v15, s%d, v14" % sT1)
    a("ds_read_b128 v[64:67], v15")
    a("ds_read_b128 v[68:71], v15 offset:16")
    a("ds_read_b128 v[72:75], v15 offset:64")
    a("ds_read_b128 v[76:79], v15 offset:80")
    a("s_and_b32 s59, s59, 31")
    a("v_cmp_eq_u32 vcc, s59, v2")
    a("s_waitcnt lgkmcnt(0)")
    a("s_and_saveexec_b64 s[64:65], vcc")
    for r in range(16):
        a("v_add_f32 v%d, v%d, v%d" % (base + r, base + r, 64 + r))
    a("s_mov_b64 exec, s[64:65]")
    a("s_cmp_lg_u32 s67, 0")
    a("s_cbranch_scc1 L_k3_ap")
    a.label("L_k3_fin")
    a("s_nop 7")
    for r in range(4):
        a("v_permlane32_swap_b32 v%d, v%d" % (acc + r, acc + 4 + r))
        a("v_permlane32_swap_b32 v%d, v%d" % (acc + 8 + r, acc + 12 + r))
    for i in range(8):
        a("v_pk_add_f32 %s, %s, %s" % (v(base + 2 * i, 2), v(base + 2 * i, 2), v(acc + 2 * i, 2)))
    for i in range(8):
        a("v_cvt_pk_bf16_f32 v%d, v%d, v%d" % (XR + i, base + 2 * i, base + 2 * i + 1))
    OST = " sc1" if opt("ST_OUT_SC1") else (" nt" if opt("ST_OUT_NT") else "")
    a("buffer_store_dwordx4 %s, v%d, s[%d:%d], 0 offen%s" % (v(XR, 4), vXo, sOut, sOut + 3, OST))
    a("buffer_store_dwordx4 %s, v%d, s[%d:%d], 0 offen offset:32%s" % (v(XR + 4, 4), vXo, sOut, sOut + 3, OST))
    stamp_flush(a, 2, sWS, sW)
    a.label("L_k3_end")
    a("s_endpgm")
    return a.text(), 144
```

```python
import sys
from dsl import *
import k1, k2, k3

HEADER = """; parallel: x + sliding-window-attention(LN(x)) + LN(x) + routed SwiGLU on the top-8 tokens
"""
def build_text(extra_launches=""):
    t1, n1 = k1.gen_k1()
    t2, n2 = k2.gen_k2()
    t3, n3 = k3.gen_k3()
    out = HEADER
    out += "; @launch kernel=k1_kernel grid=(%d,1,1) block=(512,1,1) lds=%d\n" % (k1.K1_GRID, k1.K1_LDS)
    out += "; @launch kernel=k2_kernel grid=(%d,1,1) block=(1024,1,1) lds=%d\n" % (k2.K2_GRID, k2.K2_LDS)
    out += "; @launch kernel=k3_kernel grid=(256,1,1) block=(768,1,1) lds=%d\n" % k3.K3_LDS
    out += extra_launches
    out += '.amdgcn_target "amdgcn-amd-amdhsa--gfx950"\n.text\n'
    out += t1 + t2 + t3
    out += '.section .rodata,"a"\n'
    for n, c in (("k1_kernel", n1), ("k2_kernel", n2), ("k3_kernel", n3)):
        out += ".p2align 6\n" + kernel_desc(n, c)
    return out

if __name__ == "__main__":
    path = sys.argv[1] if len(sys.argv) > 1 else "parallel_sum__sliding_block__moe_arch_mod__prompt.s"
    open(path, "w").write(build_text())
    print("wrote", path)
```

```python
from dsl import *
from k1 import *

K2_GRID = 256
M_W = 32768
M_CNT = 8160
M_HS = 4224
M_GU = 5248
M_GUD = 20736 - 5248

K2_LDS = 163840
NEGBIG = 0xf149f2ca
LOG2E = 1.4426950408889634

def gen_attn(a):
    vLane = 1
    vK, vV, mx0, mx1, vT0, vT1, vZ, vOff = 2, 3, 4, 5, 6, 7, 8, 9
    SA, SB, CB, O, P, mA = 16, 32, 48, 64, 80, 88
    KF, VF, V0F, QF = 96, 100, 108, 116
    sWS = 8
    sH, sQb, sWid, sT, sBase, sTs, sN = 20, 21, 22, 23, 24, 25, 26
    sW = 19
    sT0, sT1 = 27, 28
    sVM = 30
    sCond = 40
    a("s_sub_u32 s%d, 11, s%d" % (sW, sWid))
    a("s_cmp_lt_u32 s%d, 4" % sWid)
    a("s_cselect_b32 s%d, s%d, s%d" % (sW, sWid, sW))
    a("s_and_b32 s%d, s2, 7" % sH)
    a("s_bfe_u32 s%d, s2, 0x20003" % sT0)
    a("s_lshl_b32 s%d, s%d, 3" % (sT0, sT0))
    a("s_add_u32 s%d, s%d, s%d" % (sH, sH, sT0))
    a("s_lshr_b32 s%d, s2, 5" % sQb)
    a("v_lshlrev_b32 v%d, 4, v%d" % (vOff, vLane))
    a("s_lshl_b32 s%d, s%d, 3" % (sT, sQb))
    a("s_add_u32 s%d, s%d, s%d" % (sT, sT, sW))
    a("s_lshl_b32 s%d, s%d, 6" % (sBase, sH))
    a("s_add_u32 s%d, s%d, s%d" % (sBase, sBase, sT))
    a("s_lshl_b32 s%d, s%d, 10" % (sBase, sBase))
    a("s_lshl_b32 s%d, s%d, 10" % (sT1, sW))
    a("s_waitcnt lgkmcnt(0)")
    stamp(a, 1)
    ws_adjust(a, 6)
    srd(a, sWS, 6, WS_SIZE)
    a("s_add_u32 s%d, s%d, 0x%x" % (sT0, sBase, WS_KF))
    a("s_add_u32 m0, s%d, 8192" % sT1)
    a("s_nop 0")
    a("buffer_load_dwordx4 v%d, s[%d:%d], s%d offen lds" % (vOff, sWS, sWS + 3, sT0))
    a("s_add_u32 s%d, s%d, 0x%x" % (sT0, sBase, WS_QF))
    a("buffer_load_dwordx4 %s, v%d, s[%d:%d], s%d offen" % (v(QF, 4), vOff, sWS, sWS + 3, sT0))
    a("s_cmp_eq_u32 s%d, 0" % sQb)
    a("s_cbranch_scc1 L_at_noprev")
    a("s_add_u32 s%d, s%d, 0x%x" % (sT0, sBase, WS_KF - 8192))
    a("s_mov_b32 m0, s%d" % sT1)
    a("s_nop 0")
    a("buffer_load_dwordx4 v%d, s[%d:%d], s%d offen lds" % (vOff, sWS, sWS + 3, sT0))
    a("s_add_u32 s%d, s%d, 0x%x" % (sT0, sBase, WS_VF - 8192))
    a("s_add_u32 m0, s%d, 16384" % sT1)
    a("s_nop 0")
    a("buffer_load_dwordx4 v%d, s[%d:%d], s%d offen lds" % (vOff, sWS, sWS + 3, sT0))
    a.label("L_at_noprev")
    a("s_add_u32 s%d, s%d, 0x%x" % (sT0, sBase, WS_VF))
    a("s_add_u32 m0, s%d, %d" % (sT1, 16384 + 8192))
    a("s_nop 0")
    a("buffer_load_dwordx4 v%d, s[%d:%d], s%d offen lds" % (vOff, sWS, sWS + 3, sT0))
    a("s_cmp_ge_u32 s2, %d" % NSLICE)
    a("s_cbranch_scc1 L_at_iss")
    lds_arrive(a, M_CNT + 12, 10, 11)
    a.label("L_at_iss")
    a("v_and_b32 v%d, 31, v%d" % (vT0, vLane))
    a("v_lshrrev_b32 v%d, 5, v%d" % (vT1, vLane))
    a("v_lshlrev_b32 v%d, 2, v%d" % (vZ, vT1))
    a("v_sub_u32 v%d, v%d, v%d" % (vZ, vT0, vZ))
    for r in range(16):
        a("v_cmp_gt_i32 s[%d:%d], %d, v%d" % (sCond + 2 * r, sCond + 2 * r + 1, 8 * (r >> 2) + (r & 3), vZ))
    a("v_mov_b32 v10, 0xffff")
    a("v_mov_b32 v11, 0xffff0000")
    for j in range(8):
        a("v_cndmask_b32 v%d, 0, v10, s[%d:%d]" % (mA + j, sCond + 4 * j, sCond + 4 * j + 1))
        a("v_cndmask_b32 v12, 0, v11, s[%d:%d]" % (sCond + 4 * j + 2, sCond + 4 * j + 3))
        a("v_or_b32 v%d, v%d, v12" % (mA + j, mA + j))
    a("v_mov_b32 v10, 0x3f803f80")
    for r in range(16):
        a("v_mov_b32 v%d, v10" % (VF + r))
    for r in range(16):
        a("v_mov_b32 v%d, 0" % (O + r))
    a("s_mov_b32 s%d, 0xffff" % sVM)
    a("s_mov_b32 s%d, 0xffff" % (sVM + 1))
    a("s_sub_u32 s%d, 8, s%d" % (sTs, sW))
    a("s_cmp_eq_u32 s%d, 0" % sQb)
    a("s_cselect_b32 s%d, s%d, 1" % (sTs, sTs))
    a("v_add_u32 v%d, s%d, v%d" % (vK, sT1, vOff))
    a("v_and_b32 v%d, 15, v%d" % (vV, vLane))
    a("v_lshlrev_b32 v%d, 4, v%d" % (vV, vV))
    a("v_lshl_add_u32 v%d, v%d, 8, v%d" % (vV, vT1, vV))
    a("s_add_u32 s%d, s%d, 16384" % (sT0, sT1))
    a("v_add_u32 v%d, s%d, v%d" % (vV, sT0, vV))
    a("s_lshl_b32 s%d, s%d, 10" % (sT0, sTs))
    a("v_add_u32 v13, s%d, v%d" % (sT0, vK))
    a("v_add_u32 v14, s%d, v%d" % (sT0, vV))
    a("s_mov_b32 s29, s%d" % sT0)
    a("s_mov_b32 s37, 0")
    for r in range(16):
        a("v_mov_b32 v%d, 0" % (CB + r))
    a("s_cmp_eq_u32 s%d, 0" % sQb)
    a("s_cbranch_scc0 L_at_sa")
    for r in range(16):
        a("v_mov_b32 v%d, 0x%x" % (SA + r, NEGBIG))
    a.label("L_at_sa")
    stamp(a, 2)
    a("s_waitcnt vmcnt(0)")
    stamp(a, 3)
    a("s_cmp_ge_u32 s2, %d" % NSLICE)
    a("s_cbranch_scc1 L_at_plain")
    lds_sync(a, "at", M_CNT, 8, 10, 11)
    a("s_branch L_at_go")
    a.label("L_at_plain")
    a("s_barrier")
    a.label("L_at_go")
    stamp(a, 4)

    def mfma_s(dst, c):
        a("v_mfma_f32_32x32x16_bf16 %s, %s, %s, %s" % (v(dst, 16), v(KF, 4), v(QF, 4), c))
    def vread(dst, addr):
        a("s_mov_b64 exec, s[%d:%d]" % (sVM, sVM + 1))
        a("ds_read_b128 %s, v%d" % (v(dst, 4), addr))
        a("ds_read_b128 %s, v%d offset:512" % (v(dst + 4, 4), addr))
        a("s_mov_b64 exec, -1")
    def maxes():
        for i in range(8):
            m = mx0 if i % 2 == 0 else mx1
            a("v_max3_f32 v%d, v%d, v%d, v%d" % (m, m, SB + 2 * i, SB + 2 * i + 1))
    def sel():
        for r in range(16):
            a("v_cndmask_b32 v%d, v%d, v%d, s[%d:%d]" % (SB + r, SB + r, SA + r, sCond + 2 * r, sCond + 2 * r + 1))
    def exps():
        for r in range(16):
            a("v_exp_f32 v%d, v%d" % (SB + r, SB + r))
        for j in range(8):
            a("v_cvt_pk_bf16_f32 v%d, v%d, v%d" % (P + j, SB + 2 * j, SB + 2 * j + 1))
    def pv(vf, p):
        a("v_mfma_f32_32x32x16_bf16 %s, %s, %s, %s" % (v(O, 16), v(vf, 4), v(p, 4), v(O, 16)))
        a("v_mfma_f32_32x32x16_bf16 %s, %s, %s, %s" % (v(O, 16), v(vf + 4, 4), v(p + 4, 4), v(O, 16)))

    a("s_cmp_eq_u32 s%d, 0" % sQb)
    a("s_cbranch_scc1 L_at_f_no0")
    a("ds_read_b128 %s, v%d" % (v(KF, 4), vK))
    vread(V0F, vV)
    a("s_branch L_at_p2")
    a.label("L_at_f_no0")
    a("ds_read_b128 %s, v13" % v(KF, 4))
    a.label("L_at_p2")
    a("s_cmp_eq_u32 s%d, 0" % sQb)
    a("s_cbranch_scc1 L_at_p2_go")
    a("s_waitcnt lgkmcnt(0)")
    mfma_s(SA, v(CB, 16))
    a("ds_read_b128 %s, v13" % v(KF, 4))
    a.label("L_at_p2_go")
    a("s_sub_u32 s%d, 8, s%d" % (sN, sTs))
    a("s_cmp_eq_u32 s%d, 0" % sN)
    a("s_cbranch_scc1 L_at_p2_fin")
    a.label("L_at_p2_loop")
    vread(VF, 14)
    a("s_waitcnt lgkmcnt(2)")
    mfma_s(SB, v(CB, 16))
    a("v_add_u32 v13, 0x400, v13")
    a("v_add_u32 v14, 0x400, v14")
    a("ds_read_b128 %s, v13" % v(KF, 4))
    a("s_sub_u32 s%d, s%d, 1" % (sN, sN))
    a("s_nop 7")
    exps()
    a("s_waitcnt lgkmcnt(1)")
    pv(VF, P)
    a("s_cmp_lg_u32 s%d, 0" % sN)
    a("s_cbranch_scc1 L_at_p2_loop")
    a.label("L_at_p2_fin")
    vread(VF, 14)
    a("s_waitcnt lgkmcnt(2)")
    mfma_s(SB, v(CB, 16))
    a("s_nop 11")
    sel()
    exps()
    for j in range(8):
        a("v_and_b32 v%d, v%d, v%d" % (SA + j, P + j, mA + j))
    for j in range(8):
        a("v_xor_b32 v%d, v%d, v%d" % (P + j, P + j, SA + j))
    a("s_waitcnt lgkmcnt(0)")
    a("s_nop 0")
    pv(VF, P)
    a("s_cmp_eq_u32 s%d, 0" % sQb)
    a("s_cbranch_scc1 L_at_fin")
    pv(V0F, SA)
    a.label("L_at_fin")
    stamp(a, 6)
    a("s_add_u32 s%d, s%d, 0x%x" % (sT0, sBase, WS_OF))
    a("s_mov_b32 s38, 0x21800000")
    a("s_mov_b32 s39, 0x5d800000")
    a("s_nop 8")
    a("v_cmp_le_f32 vcc, s38, v%d" % (O + 8))
    a("v_cmp_ge_f32 s[72:73], s39, v%d" % (O + 8))
    a("v_rcp_f32 v10, v%d" % (O + 8))
    a("s_and_b64 vcc, vcc, s[72:73]")
    a("s_cmp_eq_u64 vcc, -1")
    a("s_cselect_b32 s38, 1, s37")
    a("s_cmp_eq_u32 s38, 0")
    a("s_cbranch_scc1 L_at_redo")
    a("s_nop 0")
    for r in range(8):
        a("v_mul_f32 v%d, v%d, v10" % (O + r, O + r))
    for j in range(4):
        a("v_cvt_pk_bf16_f32 v%d, v%d, v%d" % (P + j, O + 2 * j, O + 2 * j + 1))
    a("buffer_store_dwordx4 %s, v%d, s[%d:%d], s%d offen%s" % (v(P, 4), vOff, sWS, sWS + 3, sT0, " sc1" if opt("ST_O_SC1") else ""))
    stamp_flush(a, 1, sWS, sWid)
    a("s_endpgm")
    a.label("L_at_redo")
    a("s_mov_b32 s37, 1")
    for r in range(16):
        a("v_mov_b32 v%d, 0" % (O + r))
    a("v_add_u32 v13, s29, v%d" % vK)
    a("v_add_u32 v14, s29, v%d" % vV)
    a("v_mov_b32 v%d, 0x%x" % (mx0, NEGBIG))
    a("v_mov_b32 v%d, 0x%x" % (mx1, NEGBIG))
    a("s_cmp_eq_u32 s%d, 0" % sQb)
    a("s_cbranch_scc1 L_at_p1_no0")
    a("ds_read_b128 %s, v%d" % (v(KF, 4), vK))
    vread(V0F, vV)
    a("s_waitcnt lgkmcnt(2)")
    mfma_s(SA, "0")
    a("s_branch L_at_p1_go")
    a.label("L_at_p1_no0")
    for r in range(16):
        a("v_mov_b32 v%d, 0x%x" % (SA + r, NEGBIG))
    a.label("L_at_p1_go")
    a("v_mov_b32 v15, v13")
    a("ds_read_b128 %s, v15" % v(KF, 4))
    a("s_sub_u32 s%d, 8, s%d" % (sN, sTs))
    a("s_cmp_eq_u32 s%d, 0" % sN)
    a("s_cbranch_scc1 L_at_p1_fin")
    a.label("L_at_p1_loop")
    a("s_waitcnt lgkmcnt(0)")
    mfma_s(SB, "0")
    a("v_add_u32 v15, 0x400, v15")
    a("ds_read_b128 %s, v15" % v(KF, 4))
    a("s_sub_u32 s%d, s%d, 1" % (sN, sN))
    a("s_nop 8")
    maxes()
    a("s_cmp_lg_u32 s%d, 0" % sN)
    a("s_cbranch_scc1 L_at_p1_loop")
    a.label("L_at_p1_fin")
    a("s_waitcnt lgkmcnt(0)")
    mfma_s(SB, "0")
    a("s_cmp_eq_u32 s%d, 0" % sQb)
    a("s_cselect_b32 s%d, s29, 0" % sT1)
    a("v_add_u32 v15, s%d, v%d" % (sT1, vK))
    a("ds_read_b128 %s, v15" % v(KF, 4))
    a("s_nop 7")
    sel()
    maxes()
    a("v_max_f32 v%d, v%d, v%d" % (mx0, mx0, mx1))
    a("v_mov_b32 v%d, v%d" % (mx1, mx0))
    a("s_nop 1")
    a("v_permlane32_swap_b32 v%d, v%d" % (mx0, mx1))
    a("s_nop 0")
    a("v_max_f32 v%d, v%d, v%d" % (mx0, mx0, mx1))
    for r in range(16):
        a("v_sub_f32 v%d, 0, v%d" % (CB + r, mx0))
    a("s_branch L_at_p2")

def lds_arrive(a, addr, vt, vo):
    a("v_mov_b32 v%d, %d" % (vt, addr))
    a("v_mov_b32 v%d, 1" % vo)
    a("s_mov_b64 s[34:35], exec")
    a("s_mov_b32 exec_lo, 1")
    a("s_mov_b32 exec_hi, 0")
    a("s_waitcnt lgkmcnt(0)")
    a("ds_add_u32 v%d, v%d" % (vt, vo))
    a("s_mov_b64 exec, s[34:35]")

def lds_wait(a, tag, addr, n, vt, vo):
    a("v_mov_b32 v%d, %d" % (vt, addr))
    a("s_mov_b32 s33, 0")
    a.label("L_sync_%s" % tag)
    a("ds_read_b32 v%d, v%d" % (vo, vt))
    a("s_add_u32 s33, s33, 1")
    a("s_waitcnt lgkmcnt(0)")
    a("v_readfirstlane_b32 s36, v%d" % vo)
    a("s_cmp_gt_u32 s33, 0x100000")
    a("s_cbranch_scc1 L_syncd_%s" % tag)
    a("s_cmp_ge_u32 s36, %d" % n)
    a("s_cbranch_scc1 L_syncd_%s" % tag)
    a("s_sleep 1")
    a("s_branch L_sync_%s" % tag)
    a.label("L_syncd_%s" % tag)

def lds_sync(a, tag, addr, n, vt, vo):
    lds_arrive(a, addr, vt, vo)
    lds_wait(a, tag, addr, n, vt, vo)

def gen_moe(a):
    vLane = 1
    sWS, sX, sWm, sWd = 8, 12, 16, 72
    sW, sT0, sT1, sI = 22, 26, 27, 28
    a("s_sub_u32 s%d, s%d, 8" % (sW, sW))
    if opt("MOE_PRIO", 1):
        a("s_setprio %d" % opt("MOE_PRIO", 1))
    a("s_cmp_ge_u32 s%d, 4" % sW)
    a("s_cbranch_scc1 L_moe_d")
    a("v_lshrrev_b32 v4, 3, v%d" % vLane)
    a("v_and_b32 v5, 7, v%d" % vLane)
    a("v_bfe_u32 v6, v4, 1, 1")
    a("v_lshlrev_b32 v6, 1, v6")
    a("v_xor_b32 v5, v5, v6")
    a("v_mul_u32_u24 v4, 0xe00, v4")
    a("v_xor_b32 v6, 4, v5")
    a("v_lshl_add_u32 v7, v6, 4, v4")
    a("v_lshl_add_u32 v4, v5, 4, v4")
    a("v_add_u32 v7, %d, v7" % (8 * 3584))
    a("s_and_b32 s94, s%d, 1" % sW)
    a("s_lshr_b32 s%d, s%d, 1" % (sT1, sW))
    a("s_mul_i32 s82, s%d, %d" % (sT1, 256 * 3584))
    a("s_lshl_b32 s83, s2, 7")
    a("s_add_u32 s82, s82, s83")
    a("s_lshl_b32 s83, s94, 16")
    a("s_lshl_b32 s95, s%d, 15" % sT1)
    a("s_add_u32 s83, s83, s95")
    a("s_add_u32 s83, s83, %d" % M_W)
    a("s_waitcnt lgkmcnt(0)")
    ws_adjust(a, 6)
    srd(a, sWS, 6, WS_SIZE)
    a("s_cmp_eq_u32 s94, 0")
    a("s_cselect_b32 s%d, s88, s90" % sWm)
    a("s_cselect_b32 s%d, s89, s91" % (sWm + 1))
    a("s_mov_b32 s%d, 0x%x" % (sWm + 2, 512 * 3584))
    a("s_mov_b32 s%d, 0x20000" % (sWm + 3))
    lds_wait(a, "go", M_CNT + 12, 12, 12, 13)
    a("s_mov_b32 s%d, 0" % sI)
    a.label("L_moe_dma")
    a("s_mov_b32 m0, s83")
    a("s_add_u32 s83, s83, 2048")
    a("buffer_load_dwordx4 v4, s[%d:%d], s82 offen lds" % (sWm, sWm + 3))
    a("s_add_u32 m0, m0, 1024")
    a("s_add_u32 s%d, s%d, 1" % (sI, sI))
    a("buffer_load_dwordx4 v7, s[%d:%d], s82 offen lds" % (sWm, sWm + 3))
    a("s_add_u32 s82, s82, %d" % (16 * 3584))
    a("s_cmp_lt_u32 s%d, 16" % sI)
    a("s_cbranch_scc1 L_moe_dma")
    stamp(a, 1)
    a("v_lshrrev_b32 v8, 4, v%d" % vLane)
    a("v_bfe_u32 v9, v%d, 2, 2" % vLane)
    a("v_and_b32 v10, 3, v%d" % vLane)
    a("v_and_b32 v11, 1, v8")
    a("v_lshlrev_b32 v11, 1, v11")
    a("v_lshrrev_b32 v12, 1, v9")
    a("v_or_b32 v11, v11, v12")
    a("v_xor_b32 v11, s%d, v11" % sW)
    a("v_lshl_add_u32 v9, v8, 3, v9")
    a("v_lshlrev_b32 v9, 7, v9")
    a("v_lshl_add_u32 v9, v11, 5, v9")
    a("v_lshl_add_u32 v9, v10, 3, v9")
    a("v_add_u32 v9, %d, v9" % M_W)
    a("v_add_u32 v14, 0x10000, v9")
    a("v_and_b32 v10, 3, v%d" % vLane)
    a("v_mul_u32_u24 v10, 1056, v10")
    a("v_bfe_u32 v11, v%d, 2, 1" % vLane)
    a("v_mul_u32_u24 v11, 16512, v11")
    a("v_add_u32 v10, v10, v11")
    a("v_lshl_add_u32 v10, v8, 4, v10")
    a("v_and_b32 v11, 15, v%d" % vLane)
    a("v_lshlrev_b32 v11, 7, v11")
    a("v_lshl_add_u32 v11, v8, 3, v11")
    a("s_lshl_b32 s82, s%d, 5" % sW)
    a("s_add_u32 s82, s82, %d" % M_HS)
    a("v_add_u32 v11, s82, v11")
    a("s_waitcnt vmcnt(0)")
    stamp(a, 2)
    lds_sync(a, "m0", M_CNT + 4, 8, 12, 13)
    stamp(a, 3)
    FG, FU, FB, DG, DU, NB = 16, 32, 48, 64, 68, 4
    def gu_reads(ks):
        b = ks % NB
        a("ds_read_b64_tr_b16 %s, v9 offset:%d" % (v(FG + 4 * b, 2), ks * 4096))
        a("ds_read_b64_tr_b16 %s, v9 offset:%d" % (v(FG + 4 * b + 2, 2), ks * 4096 + 512))
        a("ds_read_b128 %s, v10 offset:%d" % (v(FB + 4 * b, 4), ks * 64))
        a("ds_read_b64_tr_b16 %s, v14 offset:%d" % (v(FU + 4 * b, 2), ks * 4096))
        a("ds_read_b64_tr_b16 %s, v14 offset:%d" % (v(FU + 4 * b + 2, 2), ks * 4096 + 512))
    for ks in range(3):
        gu_reads(ks)
    for ks in range(16):
        b = ks % NB
        a("s_waitcnt lgkmcnt(%d)" % (5 * min(2, 15 - ks)))
        a("v_mfma_f32_16x16x32_bf16 %s, %s, %s, %s" % (v(DG, 4), v(FG + 4 * b, 4), v(FB + 4 * b, 4), "0" if ks == 0 else v(DG, 4)))
        a("v_mfma_f32_16x16x32_bf16 %s, %s, %s, %s" % (v(DU, 4), v(FU + 4 * b, 4), v(FB + 4 * b, 4), "0" if ks == 0 else v(DU, 4)))
        if ks + 3 < 16:
            gu_reads(ks + 3)
    a("s_nop 7")
    for e in range(4):
        bf16r(a, "v%d" % (DG + e), "v%d" % (DG + e))
        bf16r(a, "v%d" % (DU + e), "v%d" % (DU + e))
    for e in range(4):
        a("v_mul_f32 v%d, %s, v%d" % (72 + e, fhex(-LOG2E), DG + e))
    for e in range(4):
        a("v_exp_f32 v%d, v%d" % (72 + e, 72 + e))
    for e in range(4):
        a("v_add_f32 v%d, 1.0, v%d" % (72 + e, 72 + e))
    for e in range(4):
        a("v_rcp_f32 v%d, v%d" % (72 + e, 72 + e))
    a("s_nop 0")
    for e in range(4):
        a("v_mul_f32 v%d, v%d, v%d" % (DG + e, DG + e, 72 + e))
    for e in range(4):
        bf16r(a, "v%d" % (DG + e), "v%d" % (DG + e))
    for e in range(4):
        a("v_mul_f32 v%d, v%d, v%d" % (DG + e, DG + e, DU + e))
    a("v_cvt_pk_bf16_f32 v72, v%d, v%d" % (DG, DG + 1))
    a("v_cvt_pk_bf16_f32 v73, v%d, v%d" % (DG + 2, DG + 3))
    a("s_mov_b32 exec_lo, 0x00ff00ff")
    a("s_mov_b32 exec_hi, 0x00ff00ff")
    a("ds_write_b64 v11, v[72:73]")
    a("s_mov_b64 exec, -1")
    lds_arrive(a, M_CNT + 8, 12, 13)
    stamp(a, 4)
    a("s_add_u32 s%d, s%d, 8" % (sW, sW))
    stamp_flush(a, 1, sWS, sW)
    a("s_endpgm")
    a.label("L_moe_d")
    XROW, XST = 16, 24
    R0, R1, F0, F1, D, HF = 28, 60, 92, 28, 60, 16
    a("s_sub_u32 s%d, s%d, 4" % (sW, sW))
    a("s_waitcnt lgkmcnt(0)")
    ws_adjust(a, 6)
    srd(a, sWS, 6, WS_SIZE)
    a("s_lshl_b32 s%d, s%d, 3" % (sT0, sW))
    a("s_add_u32 s%d, s%d, 0x%x" % (sT0, sT0, WS_SEL))
    a("s_buffer_load_dwordx2 s[82:83], s[%d:%d], s%d" % (sWS, sWS + 3, sT0))
    srd(a, sX, 84, 2048 * 1024)
    srd(a, sWd, 92, 1792 * 1024)
    a("v_lshlrev_b32 v8, 4, v%d" % vLane)
    a("v_mov_b32 v9, 0")
    a("v_lshrrev_b32 v5, 4, v%d" % vLane)
    a("v_and_b32 v6, 15, v%d" % vLane)
    a("v_lshlrev_b32 v5, 13, v5")
    a("v_lshl_add_u32 v5, v6, 4, v5")
    a("s_lshl_b32 s94, s2, 16")
    a("s_lshl_b32 s95, s%d, 8" % sW)
    a("s_add_u32 s32, s94, s95")
    a("s_waitcnt lgkmcnt(0)")
    for k in range(2):
        a("s_lshl_b32 s%d, s%d, 10" % (sT0, 82 + k))
        a("buffer_load_dwordx4 %s, v8, s[%d:%d], s%d offen" % (v(XROW + 4 * k, 4), sX, sX + 3, sT0))
        a("s_lshl_b32 s%d, s%d, 4" % (sT1, 82 + k))
        a("s_add_u32 s%d, s%d, 0x%x" % (sT1, sT1, WS_REC))
        a("buffer_load_dwordx2 %s, v9, s[%d:%d], s%d offen" % (v(XST + 2 * k, 2), sWS, sWS + 3, sT1))
    lds_arrive(a, M_CNT + 12, 12, 13)
    a("s_waitcnt vmcnt(0)")
    stamp(a, 1)
    T = 92
    for k in range(2):
        X, ST = XROW + 4 * k, XST + 2 * k
        for i in range(4):
            a("v_lshlrev_b32 v%d, 16, v%d" % (T + 2 * i, X + i))
            a("v_and_b32 v%d, 0xffff0000, v%d" % (T + 1 + 2 * i, X + i))
        for i in range(8):
            a("v_sub_f32 v%d, v%d, v%d" % (T + i, T + i, ST))
        for i in range(4):
            a("v_cvt_pk_bf16_f32 v%d, v%d, v%d" % (X + i, T + 2 * i, T + 1 + 2 * i))
        for i in range(4):
            a("v_lshlrev_b32 v%d, 16, v%d" % (T + 2 * i, X + i))
            a("v_and_b32 v%d, 0xffff0000, v%d" % (T + 1 + 2 * i, X + i))
        for i in range(8):
            a("v_mul_f32 v%d, v%d, v%d" % (T + i, T + i, ST + 1))
        for i in range(4):
            a("v_cvt_pk_bf16_f32 v%d, v%d, v%d" % (X + i, T + 2 * i, T + 1 + 2 * i))
    a("s_lshr_b32 s82, s%d, 1" % sW)
    a("s_mul_i32 s82, s82, 16512")
    a("s_and_b32 s83, s%d, 1" % sW)
    a("s_mul_i32 s83, s83, 2112")
    a("s_add_u32 s82, s82, s83")
    a("v_add_u32 v10, s82, v8")
    a("ds_write_b128 v10, %s" % v(XROW, 4))
    a("ds_write_b128 v10, %s offset:1056" % v(XROW + 4, 4))
    lds_arrive(a, M_CNT + 4, 12, 13)
    stamp(a, 2)
    for kk in range(2):
        for e in range(8):
            a("s_add_u32 s83, s32, %d" % (kk * 32768 + (e // 4) * 4096))
            a("buffer_load_dwordx4 %s, v5, s[%d:%d], s83 offen offset:%d" % (v((R0 if kk == 0 else R1) + 4 * e, 4), sWd, sWd + 3, (e % 4) * 1024))
    a("s_mov_b32 s94, 0x05040100")
    a("s_mov_b32 s95, 0x07060302")
    a("v_and_b32 v10, 7, v%d" % vLane)
    a("v_lshrrev_b32 v9, 4, v%d" % vLane)
    a("v_lshlrev_b32 v10, 7, v10")
    a("v_lshl_add_u32 v10, v9, 4, v10")
    a("v_add_u32 v10, %d, v10" % M_HS)
    a("v_and_b32 v11, 15, v%d" % vLane)
    a("v_lshlrev_b32 v11, 11, v11")
    a("v_lshl_add_u32 v11, v9, 7, v11")
    a("s_lshl_b32 s82, s2, 14")
    a("s_lshl_b32 s83, s%d, 9" % sW)
    a("s_add_u32 s82, s82, s83")
    a("s_add_u32 s82, s82, 0x%x" % WS_PART)
    a("s_waitcnt vmcnt(8)")
    for jj in range(8):
        for p in range(4):
            a("v_perm_b32 v%d, v%d, v%d, s%d" % (F0 + 4 * jj + p, R0 + 4 * (2 * p + 1) + (jj >> 1), R0 + 4 * (2 * p) + (jj >> 1), 94 + (jj & 1)))
    a("s_waitcnt vmcnt(0)")
    for jj in range(8):
        for p in range(4):
            a("v_perm_b32 v%d, v%d, v%d, s%d" % (F1 + 4 * jj + p, R1 + 4 * (2 * p + 1) + (jj >> 1), R1 + 4 * (2 * p) + (jj >> 1), 94 + (jj & 1)))
    stamp(a, 3)
    lds_wait(a, "m2", M_CNT + 8, 4, 12, 13)
    stamp(a, 4)
    a("ds_read_b128 %s, v10" % v(HF, 4))
    a("ds_read_b128 %s, v10 offset:64" % v(HF + 4, 4))
    a("s_waitcnt lgkmcnt(1)")
    for jj in range(8):
        a("v_mfma_f32_16x16x32_bf16 %s, %s, %s, 0" % (v(D + 4 * jj, 4), v(F0 + 4 * jj, 4), v(HF, 4)))
    a("s_waitcnt lgkmcnt(0)")
    for jj in range(8):
        a("v_mfma_f32_16x16x32_bf16 %s, %s, %s, %s" % (v(D + 4 * jj, 4), v(F1 + 4 * jj, 4), v(HF + 4, 4), v(D + 4 * jj, 4)))
    a("s_mov_b32 exec_lo, 0x00ff00ff")
    a("s_mov_b32 exec_hi, 0x00ff00ff")
    a("s_nop 0")
    for jj in range(8):
        if jj == 7:
            a("s_nop 4")
        a("buffer_store_dwordx4 %s, v11, s[%d:%d], s82 offen offset:%d" % (v(D + 4 * jj, 4), sWS, sWS + 3, jj * 16))
    a("s_add_u32 s%d, s%d, 12" % (sW, sW))
    stamp_flush(a, 1, sWS, sW)
    a("s_endpgm")

def gen_k2():
    a = Asm()
    N = "k2_kernel"
    a(kernel_head(N))
    a("s_cmp_ge_u32 s2, %d" % K2_GRID)
    a("s_cbranch_scc1 L_k2_end")
    stamp_begin(a, 127)
    a("s_load_dwordx2 s[6:7], s[0:1], 80")
    a("v_lshrrev_b32 v2, 6, v0")
    a("v_and_b32 v1, 63, v0")
    a("v_readfirstlane_b32 s22, v2")
    a("s_cmp_lt_u32 s2, %d" % NSLICE)
    a("s_cbranch_scc1 L_k2_mixed")
    a("s_cmp_ge_u32 s22, 8")
    a("s_cbranch_scc1 L_k2_end")
    a("s_branch L_k2_attn")
    a.label("L_k2_mixed")
    a("s_load_dwordx2 s[84:85], s[0:1], 0")
    a("s_load_dwordx4 s[88:91], s[0:1], 40")
    a("s_load_dwordx2 s[92:93], s[0:1], 56")
    a("s_cmp_lg_u32 s22, 0")
    a("s_cbranch_scc1 L_k2_z")
    a("v_mov_b32 v3, %d" % M_CNT)
    a("v_mov_b32 v4, 0"); a("v_mov_b32 v5, 0"); a("v_mov_b32 v6, 0"); a("v_mov_b32 v7, 0")
    a("ds_write_b128 v3, v[4:7]")
    a("s_waitcnt lgkmcnt(0)")
    a.label("L_k2_z")
    a("s_barrier")
    a("s_cmp_ge_u32 s22, 8")
    a("s_cbranch_scc1 L_k2_moe")
    a.label("L_k2_attn")
    gen_attn(a)
    a.label("L_k2_moe")
    gen_moe(a)
    a.label("L_k2_end")
    a("s_endpgm")
    return a.text(), 128
```

```python
from dsl import *
from k1 import *

K3_Y = 131072
K3_LDS = K3_Y + 2048

def gen_k3():
    a = Asm()
    N = "k3_kernel"
    a(kernel_head(N))
    vLane = 1
    sWS, sX, sWo, sOut = 8, 12, 16, 20
    sRb, sCb, sW, sMt, sNt, sT0, sT1, sPh, sTile = 28, 29, 30, 31, 32, 33, 34, 35, 36
    sIdx, sSig = 40, 48
    a("s_cmp_ge_u32 s2, 256")
    a("s_cbranch_scc1 L_k3_end")
    stamp_begin(a, 62)
    a("s_load_dwordx2 s[4:5], s[0:1], 0")
    a("s_load_dwordx2 s[6:7], s[0:1], 16")
    a("s_load_dwordx4 s[24:27], s[0:1], 64")
    a("s_load_dwordx2 s[38:39], s[0:1], 80")
    a("s_and_b32 s%d, s2, 7" % sT0)
    a("s_lshr_b32 s%d, s2, 3" % sT1)
    a("s_lshl_b32 s%d, s%d, 2" % (sRb, sT0))
    a("s_and_b32 s%d, s%d, 3" % (sCb, sT1))
    a("s_add_u32 s%d, s%d, s%d" % (sRb, sRb, sCb))
    a("s_lshr_b32 s%d, s%d, 2" % (sCb, sT1))
    a("v_lshrrev_b32 v2, 6, v0")
    a("v_and_b32 v%d, 63, v0" % vLane)
    a("v_readfirstlane_b32 s%d, v2" % sW)
    a("s_cmp_ge_u32 s%d, 4" % sW)
    a("s_cbranch_scc0 L_k3_cons")
    vOa, vWa = 4, 5
    a("v_lshlrev_b32 v%d, 4, v%d" % (vOa, vLane))
    a("v_lshrrev_b32 v2, 3, v%d" % vLane)
    a("v_and_b32 v3, 7, v%d" % vLane)
    a("v_bfe_u32 v9, v%d, 4, 1" % vLane)
    a("v_lshlrev_b32 v9, 2, v9")
    a("v_xor_b32 v3, v3, v9")
    a("v_lshlrev_b32 v3, 4, v3")
    a("v_lshl_add_u32 v%d, v2, 10, v3" % vWa)
    a("s_sub_u32 s%d, s%d, 4" % (sW, sW))
    a("s_and_b32 s%d, s%d, 1" % (sMt, sW))
    a("s_lshr_b32 s%d, s%d, 1" % (sNt, sW))
    a("s_lshl_b32 s68, s%d, 1" % sRb)
    a("s_add_u32 s68, s68, s%d" % sMt)
    a("s_lshl_b32 s68, s68, 10")
    a("s_lshl_b32 s69, s%d, 17" % sNt)
    a("s_add_u32 s68, s68, s69")
    a("s_add_u32 s68, s68, 0x%x" % WS_OF)
    a("s_lshl_b32 s70, s%d, 15" % sMt)
    a("s_lshl_b32 s69, s%d, 11" % sNt)
    a("s_add_u32 s70, s70, s69")
    a("s_lshl_b32 s71, s%d, 14" % sW)
    a("s_lshl_b32 s69, s%d, 7" % sCb)
    a("s_add_u32 s71, s71, s69")
    a("s_lshl_b32 s72, s%d, 11" % sW)
    a("s_add_u32 s72, s72, 65536")
    a("s_waitcnt lgkmcnt(0)")
    ws_adjust(a, 38)
    srd(a, sWS, 38, WS_SIZE)
    srd(a, sWo, 6, 512 * 1024)
    a("s_add_u32 s62, s38, 0x%x" % WS_SEL)
    a("s_addc_u32 s63, s39, 0")
    a("s_load_dwordx16 s[%d:%d], s[62:63], 0" % (sIdx, sIdx + 15))
    stamp(a, 1)
    def issue():
        a("s_mov_b32 m0, s72")
        a("s_add_u32 s69, s71, 8192")
        a("buffer_load_dwordx4 v%d, s[%d:%d], s71 offen lds" % (vWa, sWo, sWo + 3))
        a("s_add_u32 m0, m0, 1024")
        a("s_add_u32 s71, s71, 131072")
        a("buffer_load_dwordx4 v%d, s[%d:%d], s69 offen lds" % (vWa, sWo, sWo + 3))
        a("s_mov_b32 m0, s70")
        a("s_add_u32 s69, s68, 0x10000")
        a("buffer_load_dwordx4 v%d, s[%d:%d], s68 offen lds" % (vOa, sWS, sWS + 3))
        a("s_add_u32 m0, m0, 1024")
        a("s_add_u32 s68, s68, 0x80000")
        a("buffer_load_dwordx4 v%d, s[%d:%d], s69 offen lds" % (vOa, sWS, sWS + 3))
        a("s_add_u32 s70, s70, 8192")
        a("s_add_u32 s72, s72, 16384")
    issue()
    issue()
    Y = 64
    a("v_lshrrev_b32 v12, 4, v%d" % vLane)
    a("v_and_b32 v13, 15, v%d" % vLane)
    a("v_lshlrev_b32 v12, 14, v12")
    a("v_lshl_add_u32 v12, v13, 4, v12")
    a("s_lshl_b32 s%d, s%d, 8" % (sT0, sCb))
    a("s_lshl_b32 s%d, s%d, 11" % (sT1, sW))
    a("s_add_u32 s73, s%d, s%d" % (sT0, sT1))
    a("s_add_u32 s73, s73, 0x%x" % WS_PART)
    a("v_lshrrev_b32 v14, 3, v13")
    a("v_lshlrev_b32 v14, 5, v14")
    a("v_and_b32 v15, 7, v13")
    a("v_add_u32 v14, v14, v15")
    a("s_lshl_b32 s%d, s%d, 8" % (sT1, sW))
    a("s_add_u32 s%d, s%d, %d" % (sT1, sT1, K3_Y))
    a("v_lshl_add_u32 v14, v14, 2, s%d" % sT1)
    a("s_mov_b32 m0, s%d" % sW)
    a("s_waitcnt lgkmcnt(0)")
    a("s_movrels_b32 s59, s%d" % sIdx)
    a("s_movrels_b32 s60, s%d" % sSig)
    a("s_lshr_b32 s%d, s59, 6" % sT1)
    a("s_waitcnt vmcnt(4)")
    a("s_barrier")
    a("s_cmp_eq_u32 s%d, s%d" % (sT1, sRb))
    a("s_cbranch_scc1 L_k3_tok")
    issue()
    a("s_waitcnt vmcnt(4)")
    a("s_barrier")
    issue()
    a("s_waitcnt vmcnt(4)")
    a("s_barrier")
    a("s_branch L_k3_ldfin")
    a.label("L_k3_tok")
    for q in range(7):
        a("buffer_load_dwordx4 %s, v12, s[%d:%d], s73 offen" % (v(Y + 4 * q, 4), sWS, sWS + 3))
        a("s_add_u32 s73, s73, 0x10000")
    issue()
    a("s_waitcnt vmcnt(11)")
    a("s_barrier")
    issue()
    a("s_waitcnt vmcnt(4)")
    a("s_barrier")
    for (x, y) in ((0, 1), (2, 3), (4, 5), (0, 2), (4, 6), (0, 4)):
        a("v_pk_add_f32 %s, %s, %s" % (v(Y + 4 * x, 2), v(Y + 4 * x, 2), v(Y + 4 * y, 2)))
        a("v_pk_add_f32 %s, %s, %s" % (v(Y + 4 * x + 2, 2), v(Y + 4 * x + 2, 2), v(Y + 4 * y + 2, 2)))
    for sw in ("v_permlane16_swap_b32", "v_permlane32_swap_b32"):
        for e in range(4):
            a("v_mov_b32 v%d, v%d" % (Y + 4 + e, Y + e))
        a("s_nop 1")
        for e in range(4):
            a("%s v%d, v%d" % (sw, Y + e, Y + 4 + e))
        a("s_nop 0")
        for e in range(4):
            a("v_add_f32 v%d, v%d, v%d" % (Y + e, Y + e, Y + 4 + e))
    for e in range(4):
        bf16r(a, "v%d" % (Y + e), "v%d" % (Y + e))
        a("v_mul_f32 v%d, s60, v%d" % (Y + e, Y + e))
        bf16r(a, "v%d" % (Y + e), "v%d" % (Y + e))
    for e in range(4):
        a("ds_write_b32 v14, v%d offset:%d" % (Y + e, e * 32))
    a.label("L_k3_ldfin")
    stamp(a, 2)
    a("s_waitcnt vmcnt(0) lgkmcnt(0)")
    a("s_barrier")
    a("s_add_u32 s%d, s%d, 4" % (sW, sW))
    stamp_flush(a, 2, sWS, sW)
    a("s_endpgm")
    a.label("L_k3_cons")
    vOr, vWr, vXo = 6, 7, 8
    acc = 16
    XR = 32
    base = 40
    FB, FA = 64, 96
    XN = 128
    a("s_and_b32 s%d, s%d, 1" % (sMt, sW))
    a("s_lshr_b32 s%d, s%d, 1" % (sNt, sW))
    a("s_lshl_b32 s%d, s%d, 1" % (sTile, sRb))
    a("s_add_u32 s%d, s%d, s%d" % (sTile, sTile, sMt))
    a("v_and_b32 v2, 31, v%d" % vLane)
    a("v_lshrrev_b32 v3, 5, v%d" % vLane)
    a("s_lshl_b32 s%d, s%d, 5" % (sT0, sTile))
    a("v_add_u32 v9, s%d, v2" % sT0)
    a("v_lshlrev_b32 v%d, 10, v9" % vXo)
    a("v_lshl_add_u32 v%d, v3, 4, v%d" % (vXo, vXo))
    a("s_lshl_b32 s%d, s%d, 7" % (sT0, sCb))
    a("s_lshl_b32 s%d, s%d, 6" % (sT1, sNt))
    a("s_add_u32 s%d, s%d, s%d" % (sT0, sT0, sT1))
    a("v_add_u32 v%d, s%d, v%d" % (vXo, sT0, vXo))
    a("v_lshlrev_b32 v9, 4, v9")
    a("s_waitcnt lgkmcnt(0)")
    ws_adjust(a, 38)
    srd(a, sWS, 38, WS_SIZE)
    srd(a, sX, 4, 2048 * 1024)
    a("s_add_u32 s62, s38, 0x%x" % WS_SEL)
    a("s_addc_u32 s63, s39, 0")
    a("s_load_dwordx16 s[%d:%d], s[62:63], 0" % (sIdx, sIdx + 15))
    a("buffer_load_dwordx4 %s, v%d, s[%d:%d], 0 offen" % (v(XR, 4), vXo, sX, sX + 3))
    a("buffer_load_dwordx4 %s, v%d, s[%d:%d], 0 offen offset:32" % (v(XR + 4, 4), vXo, sX, sX + 3))
    a("s_mov_b32 s%d, 0x%x" % (sT0, WS_REC))
    a("buffer_load_dwordx2 v[10:11], v9, s[%d:%d], s%d offen" % (sWS, sWS + 3, sT0))
    srd(a, sOut, 24, 2048 * 1024)
    a("s_lshl_b32 s%d, s%d, 15" % (sT0, sMt))
    a("v_lshl_add_u32 v%d, v%d, 4, s%d" % (vOr, vLane, sT0))
    a("v_bfe_u32 v12, v%d, 2, 2" % vLane)
    a("v_lshl_add_u32 v13, v3, 2, v12")
    a("v_lshlrev_b32 v13, 7, v13")
    a("v_lshrrev_b32 v12, 1, v12")
    a("v_xor_b32 v12, s%d, v12" % sNt)
    a("v_lshl_add_u32 v13, v12, 6, v13")
    a("v_bfe_u32 v12, v%d, 4, 1" % vLane)
    a("v_lshl_add_u32 v13, v12, 5, v13")
    a("v_and_b32 v12, 3, v%d" % vLane)
    a("v_lshl_add_u32 v13, v12, 3, v13")
    a("v_add_u32 v%d, 0x10000, v13" % vWr)
    for r in range(16):
        a("v_mov_b32 v%d, 0" % (acc + r))
    stamp(a, 1)
    a("s_waitcnt vmcnt(0) lgkmcnt(0)")
    stamp(a, 3)
    for i in range(8):
        a("v_lshlrev_b32 v%d, 16, v%d" % (base + 2 * i, XR + i))
        a("v_and_b32 v%d, 0xffff0000, v%d" % (base + 2 * i + 1, XR + i))
    for i in range(16):
        a("v_sub_f32 v%d, v%d, v10" % (XN + i, base + i))
    for i in range(8):
        a("v_cvt_pk_bf16_f32 v%d, v%d, v%d" % (XR + i, XN + 2 * i, XN + 2 * i + 1))
    for i in range(8):
        a("v_lshlrev_b32 v%d, 16, v%d" % (XN + 2 * i, XR + i))
        a("v_and_b32 v%d, 0xffff0000, v%d" % (XN + 2 * i + 1, XR + i))
    for i in range(16):
        a("v_mul_f32 v%d, v%d, v11" % (XN + i, XN + i))
    for i in range(8):
        a("v_cvt_pk_bf16_f32 v%d, v%d, v%d" % (XR + i, XN + 2 * i, XN + 2 * i + 1))
    for i in range(8):
        a("v_lshlrev_b32 v%d, 16, v%d" % (XN + 2 * i, XR + i))
        a("v_and_b32 v%d, 0xffff0000, v%d" % (XN + 2 * i + 1, XR + i))
    for i in range(16):
        a("v_add_f32 v%d, v%d, v%d" % (base + i, base + i, XN + i))
    a("s_mov_b32 s67, 0")
    for jx in range(8):
        a("s_lshr_b32 s%d, s%d, 5" % (sT1, sIdx + jx))
        a("s_cmp_eq_u32 s%d, s%d" % (sT1, sTile))
        a("s_cselect_b32 s%d, %d, 0" % (sT1, 1 << jx))
        a("s_or_b32 s67, s67, s%d" % sT1)
    stamp(a, 4)
    def step_reads(ks, buf):
        a("ds_read_b128 %s, v%d offset:%d" % (v(FB + 4 * buf, 4), vOr, ks * 1024))
        a("ds_read_b64_tr_b16 %s, v%d offset:%d" % (v(FA + 4 * buf, 2), vWr, ks * 2048))
        a("ds_read_b64_tr_b16 %s, v%d offset:%d" % (v(FA + 4 * buf + 2, 2), vWr, ks * 2048 + 1024))
    a("s_mov_b32 s%d, 0" % sPh)
    a.label("L_k3_loop")
    a("s_barrier")
    stamp(a, "s%d+10" % sPh)
    for ks in range(4):
        step_reads(ks, ks)
    for ks in range(8):
        a("s_waitcnt lgkmcnt(%d)" % (9 if ks < 5 else 3 * (7 - ks)))
        a("v_mfma_f32_32x32x16_bf16 %s, %s, %s, %s" % (v(acc, 16), v(FA + 4 * ks, 4), v(FB + 4 * ks, 4), v(acc, 16)))
        if ks + 4 < 8:
            step_reads(ks + 4, ks + 4)
    a("v_add_u32 v%d, 0x2000, v%d" % (vOr, vOr))
    a("v_add_u32 v%d, 0x4000, v%d" % (vWr, vWr))
    a("s_add_u32 s%d, s%d, 1" % (sPh, sPh))
    a("s_cmp_lt_u32 s%d, 4" % sPh)
    a("s_cbranch_scc1 L_k3_loop")
    stamp(a, 5)
    a("s_cmp_eq_u32 s67, 0")
    a("s_cbranch_scc1 L_k3_fin")
    a("s_lshl_b32 s%d, s%d, 7" % (sT0, sNt))
    a("s_add_u32 s%d, s%d, %d" % (sT0, sT0, K3_Y))
    a("v_lshl_add_u32 v14, v3, 5, s%d" % sT0)
    a.label("L_k3_ap")
    a("s_ff1_i32_b32 s58, s67")
    a("s_bitset0_b32 s67, s58")
    a("s_mov_b32 m0, s58")
    a("s_lshl_b32 s%d, s58, 8" % sT1)
    a("s_movrels_b32 s59, s%d" % sIdx)
    a("v_add_u32 v15, s%d, v14" % sT1)
    a("ds_read_b128 v[64:67], v15")
    a("ds_read_b128 v[68:71], v15 offset:16")
    a("ds_read_b128 v[72:75], v15 offset:64")
    a("ds_read_b128 v[76:79], v15 offset:80")
    a("s_and_b32 s59, s59, 31")
    a("v_cmp_eq_u32 vcc, s59, v2")
    a("s_waitcnt lgkmcnt(0)")
    a("s_and_saveexec_b64 s[64:65], vcc")
    for r in range(16):
        a("v_add_f32 v%d, v%d, v%d" % (base + r, base + r, 64 + r))
    a("s_mov_b64 exec, s[64:65]")
    a("s_cmp_lg_u32 s67, 0")
    a("s_cbranch_scc1 L_k3_ap")
    a.label("L_k3_fin")
    a("s_nop 7")
    for r in range(4):
        a("v_permlane32_swap_b32 v%d, v%d" % (acc + r, acc + 4 + r))
        a("v_permlane32_swap_b32 v%d, v%d" % (acc + 8 + r, acc + 12 + r))
    for i in range(8):
        a("v_pk_add_f32 %s, %s, %s" % (v(base + 2 * i, 2), v(base + 2 * i, 2), v(acc + 2 * i, 2)))
    for i in range(8):
        a("v_cvt_pk_bf16_f32 v%d, v%d, v%d" % (XR + i, base + 2 * i, base + 2 * i + 1))
    OST = " sc1" if opt("ST_OUT_SC1") else (" nt" if opt("ST_OUT_NT") else "")
    a("buffer_store_dwordx4 %s, v%d, s[%d:%d], 0 offen%s" % (v(XR, 4), vXo, sOut, sOut + 3, OST))
    a("buffer_store_dwordx4 %s, v%d, s[%d:%d], 0 offen offset:32%s" % (v(XR + 4, 4), vXo, sOut, sOut + 3, OST))
    stamp_flush(a, 2, sWS, sW)
    a.label("L_k3_end")
    a("s_endpgm")
    return a.text(), 144
```

```python
from dsl import *

WS_QF = 0x000000
WS_KF = 0x200000
WS_VF = 0x400000
WS_OF = WS_QF
WS_REC = 0x800000
WS_CSR = 0x808000
WS_SEL = 0x80e000
WS_PART = 0x810000
WS_SIZE = 0xD00000 if PROF else 0x900000
NSLICE = 28
K1_GRID = 256

QSCALE = 0.25 * 1.4426950408889634
LOG2E = 1.4426950408889634

def fhex(x):
    import struct
    return "0x%08x" % struct.unpack("<I", struct.pack("<f", x))[0]

G_ST = 131072
G_LDS = G_ST + 1024
K1_LDS = G_LDS

sXP, sWP, sWRP, sWGP, sWUP, sWDP, sDBG, sWSP = 4, 6, 12, 14, 16, 18, 20, 22
sWave = 3

def wave_max_u32(a, t):
    for dp in ["quad_perm:[1,0,3,2] row_mask:0xf", "quad_perm:[2,3,0,1] row_mask:0xf", "row_half_mirror row_mask:0xf", "row_mirror row_mask:0xf",
               "row_bcast:15 row_mask:0xa", "row_bcast:31 row_mask:0xc"]:
        a("s_nop 1")
        a("v_max_u32_dpp v%d, v%d, v%d %s bank_mask:0xf" % (t, t, t, dp))

def poll_flags(a, tag, vaddr, srdreg, lanes_mask_lo, tmp):
    a("s_mov_b32 s98, 0")
    a.label("L_poll_%s" % tag)
    a("buffer_load_dword v%d, v%d, s[%d:%d], 0 offen sc1" % (tmp, vaddr, srdreg, srdreg + 3))
    a("s_add_u32 s98, s98, 1")
    a("s_waitcnt vmcnt(0)")
    a("v_cmp_eq_u32 vcc, 0, v%d" % tmp)
    a("s_cmp_gt_u32 s98, 0x40000")
    a("s_cbranch_scc1 L_polld_%s" % tag)
    a("s_and_b32 s99, vcc_lo, 0x%x" % lanes_mask_lo)
    a("s_cbranch_scc0 L_polld_%s" % tag)
    a("s_sleep 8")
    a("s_branch L_poll_%s" % tag)
    a.label("L_polld_%s" % tag)

def get_nonce(a, tag, sdb, vtmp, vzero, sdst):
    a("v_mov_b32 v%d, 0" % vzero)
    a("s_mov_b32 s98, 0")
    a.label("L_nonce_%s" % tag)
    a("buffer_load_dword v%d, v%d, s[%d:%d], 0 offen sc1" % (vtmp, vzero, sdb, sdb + 3))
    a("s_add_u32 s98, s98, 1")
    a("s_waitcnt vmcnt(0)")
    a("v_readfirstlane_b32 s%d, v%d" % (sdst, vtmp))
    a("s_cmp_gt_u32 s98, 0x40000")
    a("s_cbranch_scc1 L_nonced_%s" % tag)
    a("s_cmp_lg_u32 s%d, 0" % sdst)
    a("s_cbranch_scc1 L_nonced_%s" % tag)
    a("s_sleep 4")
    a("s_branch L_nonce_%s" % tag)
    a.label("L_nonced_%s" % tag)

def gen_e(a):
    vLane = 1
    sX, sW, sWS, sDb, sWR = 24, 28, 32, 36, 40
    sT0, sT1, sEb, sStrip, sTag = 44, 45, 49, 50, 51
    L_CS = 0
    srd(a, sX, sXP, 2048 * 1024)
    srd(a, sWR, sWRP, 1024)
    a("s_and_b32 s%d, s2, 1" % sT0)
    a("s_bfe_u32 s%d, s2, 0x20001" % sT1)
    a("s_lshr_b32 s46, s2, 3")
    a("s_lshl_b32 s%d, s%d, 3" % (sEb, sT1))
    a("s_lshl_b32 s47, s%d, 2" % sT0)
    a("s_add_u32 s%d, s%d, s47" % (sEb, sEb))
    a("s_add_u32 s%d, s%d, s46" % (sEb, sEb))
    a("v_lshrrev_b32 v2, 4, v%d" % vLane)
    a("v_and_b32 v3, 15, v%d" % vLane)
    a("v_lshlrev_b32 v3, 4, v3")
    a("v_lshl_add_u32 v4, v2, 10, v3")
    WP = 16
    a("s_lshl_b32 s%d, s%d, 6" % (sT0, sEb))
    a("s_lshl_b32 s%d, s%d, 3" % (sT1, sWave))
    a("s_add_u32 s46, s%d, s%d" % (sT0, sT1))
    a("s_lshl_b32 s47, s46, 10")
    XP = 32
    for g in range(2):
        for q in range(4):
            a("buffer_load_dwordx4 %s, v4, s[%d:%d], s47 offen offset:%d" % (v(XP + 16 * g + 4 * q, 4), sX, sX + 3, q * 256))
        if g == 0:
            for q in range(4):
                a("buffer_load_dwordx4 %s, v3, s[%d:%d], 0 offen offset:%d" % (v(WP + 4 * q, 4), sWR, sWR + 3, q * 256))
            a("s_add_u32 s47, s47, 4096")
    srd(a, sDb, sDBG, 256)
    a("v_mov_b32 v13, 0")
    a("buffer_load_dword v12, v13, s[%d:%d], 0 offen sc1" % (sDb, sDb + 3))
    stamp(a, 1)
    srd(a, sWS, sWSP, WS_SIZE)
    a("v_mov_b32 v5, 0x3f803f80")
    a("v_mov_b32 v8, 0")
    a("v_add_u32 v15, s46, v2")
    dps = ["quad_perm:[1,0,3,2]", "quad_perm:[2,3,0,1]", "row_half_mirror", "row_mirror"]
    a("s_waitcnt vmcnt(5)")
    for i in range(16):
        a("v_dot2_f32_bf16 v8, v%d, v5, v8" % (WP + i))
    A0, A1, A2 = 9, 10, 11
    OUT = [100, 104]
    for g in range(2):
        if g == 1:
            a("s_waitcnt vmcnt(1)")
        if g == 0:
            stamp(a, 2)
        a("v_mov_b32 v%d, 0" % A0); a("v_mov_b32 v%d, 0" % A1); a("v_mov_b32 v%d, 0" % A2)
        for i in range(16):
            x = XP + 16 * g + i
            a("v_dot2_f32_bf16 v%d, v%d, v5, v%d" % (A0, x, A0))
            a("v_dot2_f32_bf16 v%d, v%d, v%d, v%d" % (A1, x, x, A1))
            a("v_dot2_f32_bf16 v%d, v%d, v%d, v%d" % (A2, x, WP + i, A2))
        a("s_nop 2")
        for dp in dps:
            for r in ((A0, A1, A2, 8) if g == 0 else (A0, A1, A2)):
                a("v_add_f32_dpp v%d, v%d, v%d %s row_mask:0xf bank_mask:0xf" % (r, r, r, dp))
        M, RS, KEY = OUT[g], OUT[g] + 1, OUT[g] + 2
        a("v_mul_f32 v%d, %s, v%d" % (M, fhex(1.0 / 512), A0))
        a("v_mul_f32 v14, %s, v%d" % (fhex(1.0 / 512), A1))
        a("v_fma_f32 v14, -v%d, v%d, v14" % (M, M))
        a("v_max_f32 v14, 0, v14")
        bf16r(a, "v%d" % M, "v%d" % M)
        bf16r(a, "v14", "v14")
        a("v_add_f32 v14, %s, v14" % fhex(1e-5))
        bf16r(a, "v14", "v14")
        a("v_sqrt_f32 v14, v14")
        a("s_nop 0")
        bf16r(a, "v14", "v14")
        a("v_rcp_f32 v%d, v14" % RS)
        a("v_fma_f32 v14, -v%d, v8, v%d" % (M, A2))
        a("v_mul_f32 v14, v14, v%d" % RS)
        a("v_cvt_pk_bf16_f32 v14, v14, v14")
        a("v_and_b32 v14, 0xffff, v14")
        a("v_cmp_gt_u32 vcc, 0x8000, v14")
        a("v_xor_b32 v96, 0x8000, v14")
        a("v_xor_b32 v97, 0xffff, v14")
        a("v_sub_u32 v98, 0xffff, v15")
        a("v_cndmask_b32 v14, v97, v96, vcc")
        a("v_lshl_or_b32 v%d, v14, 16, v98" % KEY)
        a("v_add_u32 v15, 4, v15")
    a("s_waitcnt vmcnt(0)")
    a("v_readfirstlane_b32 s%d, v12" % sTag)
    a("v_and_b32 v9, 15, v%d" % vLane)
    a("v_cmp_eq_u32 vcc, 1, v9")
    a("s_nop 1")
    a("s_cmp_lg_u32 s%d, 0" % sTag)
    a("s_cbranch_scc1 L_e_tag")
    get_nonce(a, "e", sDb, 12, 13, sTag)
    a.label("L_e_tag")
    for q in range(3):
        a("v_cndmask_b32 v%d, v%d, v%d, vcc" % (OUT[0] + q, OUT[0] + q, OUT[1] + q))
    a("v_mov_b32 v%d, s%d" % (OUT[0] + 3, sTag))
    a("v_lshl_add_u32 v10, v9, 2, v2")
    a("v_add_u32 v10, s46, v10")
    a("v_lshlrev_b32 v10, 4, v10")
    a("s_mov_b32 s47, 0x%x" % WS_REC)
    a("s_mov_b32 exec_lo, 0x00030003")
    a("s_mov_b32 exec_hi, 0x00030003")
    a("buffer_store_dwordx4 %s, v10, s[%d:%d], s47 offen sc1" % (v(OUT[0], 4), sWS, sWS + 3))
    a("s_mov_b64 exec, -1")
    stamp(a, 3)
    a.label("L_e_done")
    stamp_flush(a, 0, sWS, sWave)
    a("s_endpgm")

class Net:
    def __init__(self, a, free):
        self.a = a; self.free = list(free)
    def get(self): return self.free.pop(0)
    def put(self, r): self.free.append(r)
    def ce(self, L, i, j):
        hi, lo = self.get(), self.get()
        self.a("v_max_u32 v%d, v%d, v%d" % (hi, L[i], L[j]))
        self.a("v_min_u32 v%d, v%d, v%d" % (lo, L[i], L[j]))
        self.put(L[i]); self.put(L[j])
        L[i], L[j] = hi, lo
    def sort_bitonic8(self, L):
        for st in ([(0, 4), (1, 5), (2, 6), (3, 7)], [(0, 2), (1, 3), (4, 6), (5, 7)], [(0, 1), (2, 3), (4, 5), (6, 7)]):
            for (i, j) in st: self.ce(L, i, j)
    def top8(self, L, dpp, sort=True):
        T = [None] * 8
        for i in range(7, -1, -1):
            T[i] = self.get()
            self.a("v_max_u32_dpp v%d, v%d, v%d %s bank_mask:0xf" % (T[i], L[7 - i], L[i], dpp))
        for r in L: self.put(r)
        if sort: self.sort_bitonic8(T)
        return T

def top8_wave(a, keys, free, wave_sgpr, lds_cand):
    n = Net(a, free)
    L = list(keys)
    for (i, j) in ((0,1),(2,3),(4,5),(6,7),(0,2),(1,3),(4,6),(5,7),(1,2),(5,6),(0,4),(3,7),(1,5),(2,6),(1,4),(3,6),(2,4),(3,5),(3,4)):
        n.ce(L, i, j)
    a("s_nop 0")
    for dp in ("quad_perm:[1,0,3,2] row_mask:0xf", "quad_perm:[2,3,0,1] row_mask:0xf", "row_half_mirror row_mask:0xf", "row_mirror row_mask:0xf",
               "row_bcast:15 row_mask:0xa", "row_bcast:31 row_mask:0xc"):
        L = n.top8(L, dp)
    base = (max(free) + 4) // 4 * 4
    for i in range(8):
        a("v_mov_b32 v%d, v%d" % (base + i, L[i]))
    adr = n.get()
    a("s_lshl_b32 s98, s%d, 5" % wave_sgpr)
    a("s_add_u32 s98, s98, %d" % lds_cand)
    a("v_mov_b32 v%d, s98" % adr)
    a("s_mov_b32 exec_lo, 0")
    a("s_mov_b32 exec_hi, 0x80000000")
    a("ds_write_b128 v%d, %s" % (adr, v(base, 4)))
    a("ds_write_b128 v%d, %s offset:16" % (adr, v(base + 4, 4)))
    a("s_mov_b64 exec, -1")

def top8_final(a, free, lds_cand):
    n = Net(a, free)
    base = (max(free) + 4) // 4 * 4
    adr = n.get()
    a("v_mbcnt_lo_u32_b32 v%d, -1, 0" % adr)
    a("v_mbcnt_hi_u32_b32 v%d, -1, v%d" % (adr, adr))
    a("v_and_b32 v%d, 3, v%d" % (adr, adr))
    a("v_lshlrev_b32 v%d, 5, v%d" % (adr, adr))
    a("v_add_u32 v%d, %d, v%d" % (adr, lds_cand, adr))
    a("ds_read_b128 %s, v%d" % (v(base, 4), adr))
    a("ds_read_b128 %s, v%d offset:16" % (v(base + 4, 4), adr))
    L = [base + i for i in range(8)]
    a("s_waitcnt lgkmcnt(0)")
    L = n.top8(L, "quad_perm:[1,0,3,2] row_mask:0xf")
    L = n.top8(L, "quad_perm:[2,3,0,1] row_mask:0xf")
    return L

def gen_topk(a):
    vLane = 1
    sWS, sDb = 24, 40
    sT0, sT1, sTag = 45, 46, 48
    T_CAND = 0
    srd(a, sWS, sWSP, WS_SIZE)
    srd(a, sDb, sDBG, 256)
    a("s_cmp_ge_u32 s%d, 4" % sWave)
    a("s_cbranch_scc1 L_tk_sync")
    get_nonce(a, "tk", sDb, 12, 13, sTag)
    stamp(a, 1)
    a("v_lshlrev_b32 v3, 4, v0")
    a("s_mov_b32 s98, 0")
    a.label("L_tk_poll")
    a("s_mov_b32 s%d, 0x%x" % (sT0, WS_REC))
    for q in range(8):
        a("buffer_load_dwordx2 %s, v3, s[%d:%d], s%d offen offset:8 sc1" % (v(96 + 2 * q, 2), sWS, sWS + 3, sT0))
        if q < 7:
            a("s_add_u32 s%d, s%d, 4096" % (sT0, sT0))
    a("s_add_u32 s98, s98, 1")
    a("s_waitcnt vmcnt(0)")
    for q in range(8):
        a("v_xor_b32 v%d, s%d, v%d" % (97 + 2 * q, sTag, 97 + 2 * q))
    a("v_or3_b32 v4, v97, v99, v101")
    a("v_or3_b32 v5, v103, v105, v107")
    a("v_or3_b32 v4, v4, v109, v111")
    a("v_or_b32 v4, v4, v5")
    a("v_cmp_ne_u32 vcc, 0, v4")
    a("s_cmp_gt_u32 s98, 0x40000")
    a("s_cbranch_scc1 L_tk_go")
    a("s_cmp_eq_u64 vcc, 0")
    a("s_cbranch_scc1 L_tk_go")
    a("s_sleep 2")
    a("s_branch L_tk_poll")
    a.label("L_tk_go")
    stamp(a, 3)
    top8_wave(a, [96 + 2 * q for q in range(8)], [97 + 2 * q for q in range(8)] + list(range(14, 24)) + [112, 113], sWave, T_CAND)
    a("s_waitcnt lgkmcnt(0)")
    a.label("L_tk_sync")
    a("s_barrier")
    stamp(a, 4)
    a("s_cmp_lg_u32 s%d, 0" % sWave)
    a("s_cbranch_scc1 L_tk_done")
    R = top8_final(a, list(range(96, 114)), T_CAND)
    vRes = 20
    a("v_mov_b32 v%d, v%d" % (vRes, R[0]))
    for jx in range(1, 8):
        a("v_cmp_eq_u32 vcc, %d, v%d" % (jx, vLane))
        a("s_nop 1")
        a("v_cndmask_b32 v%d, v%d, v%d, vcc" % (vRes, vRes, R[jx]))
    stamp(a, 5)
    a("v_and_b32 v8, 0xffff, v%d" % vRes)
    a("v_sub_u32 v8, 0xffff, v8")
    a("v_lshrrev_b32 v9, 16, v%d" % vRes)
    a("v_cmp_le_u32 vcc, 0x8000, v9")
    a("v_xor_b32 v10, 0x8000, v9")
    a("v_xor_b32 v11, 0xffff, v9")
    a("v_cndmask_b32 v9, v11, v10, vcc")
    a("v_lshlrev_b32 v9, 16, v9")
    a("v_mul_f32 v9, %s, v9" % fhex(-LOG2E))
    a("v_exp_f32 v9, v9")
    a("s_nop 0")
    a("v_add_f32 v9, 1.0, v9")
    a("v_rcp_f32 v9, v9")
    a("s_nop 0")
    bf16r(a, "v9", "v9")
    a("v_lshlrev_b32 v10, 2, v%d" % vLane)
    a("s_mov_b32 s%d, 0x%x" % (sT0, WS_SEL))
    a("s_mov_b32 exec_lo, 0xff")
    a("s_mov_b32 exec_hi, 0")
    a("buffer_store_dword v8, v10, s[%d:%d], s%d offen" % (sWS, sWS + 3, sT0))
    a("buffer_store_dword v9, v10, s[%d:%d], s%d offen offset:32" % (sWS, sWS + 3, sT0))
    a("s_mov_b64 exec, -1")
    a.label("L_tk_done")
    stamp_flush(a, 0, sWS, sWave)
    a("s_endpgm")

def gen_codepf(a):
    a("s_cmp_ge_u32 s%d, 4" % sWave)
    a("s_cbranch_scc1 L_k1_end")
    a("s_getpc_b64 s[40:41]")
    a.label("L_k1_anchor")
    a("s_mov_b32 s42, L_code_end-L_k1_anchor")
    a("s_mov_b32 s43, 0x20000")
    a("s_lshl_b32 s44, s%d, 13" % sWave)
    a("v_lshlrev_b32 v3, 7, v1")
    a("v_add_u32 v3, s44, v3")
    a("buffer_load_dword v4, v3, s[40:43], 0 offen")
    a("s_endpgm")

def gen_tlb(a):
    step = opt("PF_TLB")
    a("s_load_dwordx2 s[40:41], s[0:1], 16")
    a("s_load_dwordx2 s[42:43], s[0:1], 64")
    a("v_mul_u32_u24 v3, %d, v1" % 1)
    a("v_lshlrev_b32 v3, %d, v1" % (step.bit_length() - 1))
    a("s_waitcnt lgkmcnt(0)")
    r = 16
    for (ptr, nbytes) in ((sWGP, 512 * 3584), (sWUP, 512 * 3584), (sWDP, 1792 * 1024), (40, 512 * 1024), (42, 2048 * 1024), (sWSP, WS_SIZE)):
        srd(a, 32, ptr, nbytes)
        a("s_mul_i32 s44, s%d, %d" % (sWave, 64 * step))
        a("v_add_u32 v4, s44, v3")
        a("buffer_load_dword v%d, v4, s[32:35], 0 offen" % r); r += 1
    a("s_endpgm")

def gen_touch(a):
    sB, sC4 = 32, 36
    srd(a, sB, sXP, 2048 * 1024)
    srd(a, sC4, sWP, 512 * 3072)
    a("s_sub_u32 s46, s2, 33")
    a("s_lshl_b32 s46, s46, 3")
    a("s_add_u32 s46, s46, s%d" % sWave)
    a("v_lshlrev_b32 v10, 10, v1")
    a("v_lshlrev_b32 v11, 7, v1")
    for rnd in range(2):
        if rnd:
            a("s_add_u32 s46, s46, 248")
            a("s_cmp_ge_u32 s46, 336")
            a("s_cbranch_scc1 L_pf_end")
        a("s_mul_i32 s47, s46, 1171")
        a("s_lshr_b32 s47, s47, 16")
        a("s_mul_i32 s48, s47, 56")
        a("s_sub_u32 s48, s46, s48")
        a("s_add_u32 s47, s47, 2")
        a("s_cmp_ge_u32 s48, 32")
        a("s_cbranch_scc1 L_pf_w%d" % rnd)
        a("s_lshl_b32 s49, s48, 16")
        a("s_lshl_b32 s50, s47, 7")
        a("s_add_u32 s49, s49, s50")
        a("buffer_load_dword v%d, v10, s[%d:%d], s49 offen" % (40 + rnd, sB, sB + 3))
        a("s_branch L_pf_n%d" % rnd)
        a.label("L_pf_w%d" % rnd)
        a("s_sub_u32 s48, s48, 32")
        a("s_lshl_b32 s49, s48, 13")
        a("s_mul_i32 s50, s47, 196608")
        a("s_add_u32 s49, s49, s50")
        a("buffer_load_dword v%d, v11, s[%d:%d], s49 offen" % (40 + rnd, sC4, sC4 + 3))
        a.label("L_pf_n%d" % rnd)
    a.label("L_pf_end")
    a("s_endpgm")

def gen_gemm(a):
    QST = " sc1" if opt("ST_QKV_SC1") else ""
    vLane = 1
    sX, sW, sWS, sDb = 24, 28, 32, 36
    sRb, sCb, sT0, sT1, sC, sSlot = 40, 41, 42, 43, 44, 45
    a("s_sub_u32 s%d, s2, 64" % sT0)
    a("s_and_b32 s%d, s%d, 7" % (sT1, sT0))
    a("s_lshr_b32 s%d, s%d, 3" % (sT0, sT0))
    a("s_lshr_b32 s%d, s%d, 1" % (sRb, sT1))
    a("s_lshl_b32 s%d, s%d, 2" % (sRb, sRb))
    a("s_and_b32 s46, s%d, 3" % sT0)
    a("s_add_u32 s%d, s%d, s46" % (sRb, sRb))
    a("s_and_b32 s%d, s%d, 1" % (sCb, sT1))
    a("s_mul_i32 s%d, s%d, 6" % (sCb, sCb))
    a("s_lshr_b32 s%d, s%d, 2" % (sT0, sT0))
    a("s_add_u32 s%d, s%d, s%d" % (sCb, sCb, sT0))
    srd(a, sWS, sWSP, WS_SIZE)
    a("s_cmp_ge_u32 s%d, 4" % sWave)
    a("s_cbranch_scc0 L_g_cons")
    vXa, vXb, vW = 10, 11, 12
    sLw, sXg, sXg2, sWg, sL4 = 46, 47, 48, 49, 50
    srd(a, sX, sXP, 2048 * 1024)
    srd(a, sW, sWP, 512 * 3072)
    a("s_sub_u32 s%d, s%d, 4" % (sLw, sWave))
    a("v_lshrrev_b32 v2, 3, v%d" % vLane)
    a("v_and_b32 v3, 7, v%d" % vLane)
    a("v_lshrrev_b32 v4, 1, v2")
    a("v_xor_b32 v3, v3, v4")
    a("v_xor_b32 v4, 4, v3")
    a("v_lshlrev_b32 v2, 10, v2")
    a("v_lshl_add_u32 v%d, v3, 4, v2" % vXa)
    a("v_lshl_add_u32 v%d, v4, 4, v2" % vXb)
    a("v_add_u32 v%d, 0x2000, v%d" % (vXb, vXb))
    a("v_lshrrev_b32 v2, 4, v%d" % vLane)
    a("v_bfe_u32 v3, v%d, 2, 2" % vLane)
    a("v_xor_b32 v3, v3, v2")
    a("v_and_b32 v4, 3, v%d" % vLane)
    a("v_lshl_add_u32 v3, v3, 2, v4")
    a("v_mul_u32_u24 v2, 0xc00, v2")
    a("v_lshl_add_u32 v%d, v3, 4, v2" % vW)
    for i in range(1, 4):
        a("v_add_u32 v%d, %d, v%d" % (vW + i, i * 12288, vW))
    a("s_lshl_b32 s%d, s%d, 17" % (sXg, sRb))
    a("s_lshl_b32 s%d, s%d, 15" % (sT0, sLw))
    a("s_add_u32 s%d, s%d, s%d" % (sXg, sXg, sT0))
    a("s_mul_i32 s%d, s%d, %d" % (sWg, sLw, 16 * 3072))
    a("s_lshl_b32 s%d, s%d, 8" % (sT0, sCb))
    a("s_add_u32 s%d, s%d, s%d" % (sWg, sWg, sT0))
    a("s_lshl_b32 s%d, s%d, 12" % (sL4, sLw))
    a("s_mov_b32 s%d, 0" % sSlot)
    def issue():
        a("s_add_u32 s%d, s%d, 0x4000" % (sXg2, sXg))
        a("s_add_u32 m0, s%d, s%d" % (sSlot, sL4))
        a("s_nop 0")
        for i in range(4):
            a("buffer_load_dwordx4 v%d, s[%d:%d], s%d offen%s lds" % (vXa if i % 2 == 0 else vXb, sX, sX + 3, sXg if i < 2 else sXg2, " nt" if opt("NT_X") else ""))
            a("s_add_u32 m0, m0, %d" % (1024 if i < 3 else 13312))
            a("s_nop 0")
        for i in range(4):
            a("buffer_load_dwordx4 v%d, s[%d:%d], s%d offen%s lds" % (vW + i, sW, sW + 3, sWg, " nt" if opt("NT_W") else ""))
            if i < 3:
                a("s_add_u32 m0, m0, 1024")
                a("s_nop 0")
        a("s_add_u32 s%d, s%d, 128" % (sXg, sXg))
        a("s_add_u32 s%d, s%d, %d" % (sWg, sWg, 64 * 3072))
        a("s_add_u32 s%d, s%d, 0x8000" % (sSlot, sSlot))
        a("s_and_b32 s%d, s%d, 0x1ffff" % (sSlot, sSlot))
    a("s_mov_b32 s%d, 0" % sC)
    a.label("L_g_lpro")
    issue()
    a("s_add_u32 s%d, s%d, 1" % (sC, sC))
    a("s_cmp_lt_u32 s%d, 2" % sC)
    a("s_cbranch_scc1 L_g_lpro")
    stamp(a, 1)
    a("s_mov_b32 s%d, 0" % sC)
    a.label("L_g_lloop")
    a("s_waitcnt vmcnt(8)")
    stamp(a, "s%d+10" % sC)
    a("s_barrier")
    issue()
    a("s_add_u32 s%d, s%d, 1" % (sC, sC))
    a("s_cmp_lt_u32 s%d, 4" % sC)
    a("s_cbranch_scc1 L_g_lloop")
    if opt("PF_MOE", 1):
        a("s_load_dwordx2 s[58:59], s[0:1], 16")
        a("s_sub_u32 s60, s2, 64")
        a("s_and_b32 s62, s60, 7")
        a("s_lshr_b32 s60, s60, 3")
        a("s_lshl_b32 s60, s60, 2")
        a("s_add_u32 s60, s60, s%d" % sLw)
        a("s_mul_i32 s61, s60, 2731")
        a("s_lshr_b32 s61, s61, 16")
        a("s_mul_i32 s63, s61, 24")
        a("s_sub_u32 s63, s60, s63")
        a("s_lshl_b32 s61, s61, 3")
        a("s_add_u32 s61, s61, s62")
        a("s_waitcnt lgkmcnt(0)")
        a("v_mul_u32_u24 v20, 0xe00, v%d" % vLane)
        a("v_lshlrev_b32 v22, 7, v%d" % vLane)
        a("s_mov_b32 s64, s%d" % sWGP); a("s_mov_b32 s65, s%d" % (sWGP + 1))
        a("s_mov_b32 s66, %d" % (512 * 3584)); a("s_mov_b32 s67, 0x20000")
        a("s_cmp_ge_u32 s63, 8")
        a("s_cselect_b32 s64, s%d, s64" % sWUP); a("s_cselect_b32 s65, s%d, s65" % (sWUP + 1))
        a("s_and_b32 s68, s63, 7")
        a("s_mul_i32 s69, s68, %d" % (64 * 3584))
        a("s_lshl_b32 s70, s61, 7")
        a("s_add_u32 s69, s69, s70")
        a("s_cmp_ge_u32 s63, 16")
        a("s_cbranch_scc0 L_g_pfa")
        a("s_mov_b32 s64, s%d" % sWDP); a("s_mov_b32 s65, s%d" % (sWDP + 1))
        a("s_lshl_b32 s69, s61, 16")
        a("s_lshl_b32 s70, s68, 13")
        a("s_add_u32 s69, s69, s70")
        a("v_mov_b32 v20, v22")
        a.label("L_g_pfa")
        a("s_cmp_ge_u32 s61, 28")
        a("s_cbranch_scc0 L_g_pfb")
        a("s_mov_b32 s64, s58"); a("s_mov_b32 s65, s59"); a("s_mov_b32 s66, %d" % (512 * 1024))
        a("s_sub_u32 s69, s62, 4")
        a("s_lshl_b32 s69, s69, 4")
        a("s_and_b32 s70, s63, 15")
        a("s_add_u32 s69, s69, s70")
        a("s_lshl_b32 s69, s69, 13")
        a("v_mov_b32 v20, v22")
        a.label("L_g_pfb")
        a("s_mov_b32 s61, s69")
    srd(a, sDb, sDBG, 256)
    a("v_mov_b32 v4, 0")
    a("s_waitcnt vmcnt(8)")
    a("s_barrier")
    a("buffer_load_dword v5, v4, s[%d:%d], 0 offen sc1" % (sDb, sDb + 3))
    issue()
    a("s_lshl_b32 s%d, s%d, 11" % (sT0, sRb))
    a("s_add_u32 s51, s%d, 0x%x" % (sT0, WS_REC))
    a("v_and_b32 v7, 31, v%d" % vLane)
    a("s_lshl_b32 s%d, s%d, 9" % (sT0, sLw))
    a("v_lshl_add_u32 v6, v7, 4, s%d" % sT0)
    a("s_lshl_b32 s%d, s%d, 7" % (sT0, sLw))
    a("s_add_u32 s%d, s%d, %d" % (sT0, sT0, G_ST))
    a("v_lshl_add_u32 v7, v7, 2, s%d" % sT0)
    a("s_waitcnt vmcnt(8)")
    a("v_readfirstlane_b32 s52, v5")
    a("s_nop 3")
    a("s_cmp_lg_u32 s52, 0")
    a("s_cbranch_scc1 L_g_nonok")
    get_nonce(a, "g", sDb, 5, 4, 52)
    a.label("L_g_nonok")
    a("s_barrier")
    a("buffer_load_dwordx4 v[16:19], v6, s[%d:%d], s51 offen sc1" % (sWS, sWS + 3))
    issue()
    PFN = 1 if opt("PF_MOE", 1) else 0
    if PFN:
        a("buffer_load_dword v21, v20, s[64:67], s61 offen")
    a("s_waitcnt vmcnt(%d)" % (8 + PFN))
    a("s_mov_b32 s98, 0")
    a.label("L_g_rec")
    a("v_cmp_ne_u32 vcc, s52, v19")
    a("s_cmp_gt_u32 s98, 0x40000")
    a("s_cbranch_scc1 L_g_recok")
    a("s_cmp_eq_u64 vcc, 0")
    a("s_cbranch_scc1 L_g_recok")
    a("s_sleep 4")
    a("buffer_load_dwordx4 v[16:19], v6, s[%d:%d], s51 offen sc1" % (sWS, sWS + 3))
    a("s_add_u32 s98, s98, 1")
    a("s_waitcnt vmcnt(0)")
    a("s_branch L_g_rec")
    a.label("L_g_recok")
    a("ds_write_b32 v7, v16")
    a("ds_write_b32 v7, v17 offset:512")
    a("s_barrier")
    a("s_waitcnt vmcnt(%d) lgkmcnt(0)" % PFN)
    a("s_barrier")
    stamp_flush(a, 0, sWS, sWave)
    a("s_endpgm")
    a.label("L_g_cons")
    vXr = [4, 5, 6, 7]
    vWr = [8, 9]
    acc = [[64, 80], [96, 112]]
    XB = [[128, 132], [136, 140]]
    WB = [[144, 148], [152, 156]]
    NM, CSF = [160, 164], [168, 172]
    SEL, CSA = 176, [180, 184]
    sMt, sNt, sHi = 46, 47, 48
    a("s_and_b32 s%d, s%d, 1" % (sMt, sWave))
    a("s_lshr_b32 s%d, s%d, 1" % (sNt, sWave))
    a("v_and_b32 v2, 31, v%d" % vLane)
    a("v_lshrrev_b32 v3, 5, v%d" % vLane)
    a("v_cmp_eq_u32 s[%d:%d], 1, v3" % (sHi, sHi + 1))
    a("v_lshrrev_b32 v10, 1, v2")
    a("v_and_b32 v10, 7, v10")
    a("s_lshl_b32 s%d, s%d, 13" % (sT0, sMt))
    a("v_lshl_add_u32 v11, v2, 7, s%d" % sT0)
    for p in range(4):
        a("v_add_u32 v12, %d, v3" % (2 * p))
        a("v_xor_b32 v12, v12, v10")
        a("v_lshl_add_u32 v%d, v12, 4, v11" % vXr[p])
    a("v_bfe_u32 v12, v%d, 2, 2" % vLane)
    a("v_lshl_add_u32 v13, v3, 3, v12")
    a("v_lshlrev_b32 v13, 8, v13")
    a("v_bfe_u32 v14, v%d, 4, 1" % vLane)
    a("v_lshl_add_u32 v13, v14, 5, v13")
    a("v_and_b32 v14, 3, v%d" % vLane)
    a("v_lshl_add_u32 v13, v14, 3, v13")
    a("v_add_u32 v13, 0x4000, v13")
    a("s_lshl_b32 s%d, s%d, 1" % (sT0, sNt))
    a("v_xor_b32 v14, s%d, v12" % sT0)
    a("v_lshl_add_u32 v%d, v14, 6, v13" % vWr[0])
    a("v_xor_b32 v%d, 64, v%d" % (vWr[1], vWr[0]))
    for r in range(64, 128):
        a("v_mov_b32 v%d, 0" % r)
    for r in list(range(136, 144)) + list(range(152, 176)) + list(range(180, 188)):
        a("v_mov_b32 v%d, 0" % r)
    a("v_bfe_u32 v12, v%d, 4, 1" % vLane)
    a("v_and_b32 v13, 1, v%d" % vLane)
    a("v_cmp_eq_u32 vcc, v12, v13")
    a("v_cmp_eq_u32 s[56:57], 1, v12")
    a("v_mov_b32 v14, 0x3f803f80")
    a("v_cndmask_b32 v%d, 0, v14, vcc" % SEL)
    for i in range(1, 4):
        a("v_mov_b32 v%d, v%d" % (SEL + i, SEL))
    def csum(buf, n):
        a("v_mfma_f32_16x16x32_bf16 %s, %s, %s, %s" % (v(CSA[n], 4), v(SEL, 4), v(WB[buf][n], 4), v(CSA[n], 4)))
    def xread(p, buf, m):
        a("ds_read_b128 %s, v%d offset:%d" % (v(XB[buf][m], 4), vXr[p], m * 4096))
    def wread(p, buf, n, t):
        a("ds_read_b64_tr_b16 %s, v%d offset:%d" % (v(WB[buf][n] + 2 * t, 2), vWr[n], p * 4096 + t * 1024))
    def mm(kind, buf, m, n):
        if kind == 0:
            a("v_mfma_f32_32x32x16_bf16 %s, %s, %s, %s" % (v(acc[m][n], 16), v(WB[buf][n], 4), v(XB[buf][m], 4), v(acc[m][n], 16)))
        else:
            a("v_mfma_f32_32x32x16_bf16 %s, %s, %s, %s" % (v(acc[m][n], 16), v(XB[buf][m], 4), v(WB[buf][n], 4), v(acc[m][n], 16)))
    def step(kind, cur, p, filler=None):
        nxt = cur ^ 1
        a("s_waitcnt lgkmcnt(3)")
        mm(kind, cur, 0, 0)
        xread(p, nxt, 0); wread(p, nxt, 0, 0); wread(p, nxt, 0, 1)
        csum(cur, 0)
        a("s_waitcnt lgkmcnt(4)")
        mm(kind, cur, 0, 1)
        wread(p, nxt, 1, 0); wread(p, nxt, 1, 1); xread(p, nxt, 1)
        csum(cur, 1)
        a("s_waitcnt lgkmcnt(6)")
        mm(kind, cur, 1, 0)
        if filler: filler(0)
        mm(kind, cur, 1, 1)
        if filler: filler(1)
    def adv(h):
        regs = (vXr + vWr)[3 * h:3 * h + 3]
        for r in regs:
            a("v_add_u32 v%d, 0x8000, v%d" % (r, r))
        for r in regs:
            a("v_and_b32 v%d, 0x1ffff, v%d" % (r, r))
    def main_loop(kind, tag):
        a("s_mov_b32 s%d, 0" % sC)
        a.label("L_g_loop%s" % tag)
        a("s_waitcnt lgkmcnt(0)")
        a("s_barrier")
        stamp(a, "s%d+10" % sC)
        step(kind, 1, 0)
        step(kind, 0, 1)
        step(kind, 1, 2)
        step(kind, 0, 3, adv)
        a("s_add_u32 s%d, s%d, 1" % (sC, sC))
        a("s_cmp_lt_u32 s%d, 8" % sC)
        a("s_cbranch_scc1 L_g_loop%s" % tag)
        stamp(a, 20)
    vM, vRs, vCs = [10, 11], [12, 14], [16, 17]
    def stat_reads(kind):
        a("v_lshlrev_b32 v18, 2, v2")
        a("s_lshl_b32 s%d, s%d, 8" % (sT0, sMt))
        a("s_add_u32 s%d, s%d, %d" % (sT0, sT0, G_ST))
        a("v_add_u32 v19, s%d, v18" % sT0)
        for m in range(2):
            a("ds_read_b32 v%d, v19 offset:%d" % (vM[m], m * 128))
        if kind == 0:
            for m in range(2):
                a("ds_read_b32 v%d, v19 offset:%d" % (vRs[m], 512 + m * 128))
        else:
            a("v_lshl_add_u32 v19, v3, 4, s%d" % sT0)
            for m in range(2):
                for j in range(4):
                    a("ds_read_b128 %s, v19 offset:%d" % (v(24 + 16 * m + 4 * j, 4), 512 + m * 128 + j * 32))
    def last_step(kind):
        a("s_waitcnt lgkmcnt(%d)" % (4 if kind == 0 else 10))
        csum(1, 0)
        csum(1, 1)
        for m in range(2):
            for n in range(2):
                mm(kind, 1, m, n)
    def correction(kind, nwait):
        a("s_waitcnt lgkmcnt(%d)" % nwait)
        for m in range(2):
            a("v_sub_f32 v20, 0, v%d" % vM[m])
            a("v_cvt_pk_bf16_f32 v%d, v20, 0" % NM[m])
        for n in range(2):
            a("v_cndmask_b32 v%d, v%d, v%d, s[56:57]" % (vCs[n], CSA[n], CSA[n] + 1))
        for n in range(2):
            a("v_cvt_pk_bf16_f32 v20, v%d, v%d" % (vCs[n], vCs[n]))
            a("v_and_b32 v20, 0xffff0000, v20")
            a("v_sub_f32 v20, v%d, v20" % vCs[n])
            a("v_cndmask_b32 v20, v%d, v20, s[%d:%d]" % (vCs[n], sHi, sHi + 1))
            a("v_cvt_pk_bf16_f32 v%d, v20, 0" % CSF[n])
        a("s_nop 1")
        for m in range(2):
            for n in range(2):
                if kind == 0:
                    a("v_mfma_f32_32x32x16_bf16 %s, %s, %s, %s" % (v(acc[m][n], 16), v(CSF[n], 4), v(NM[m], 4), v(acc[m][n], 16)))
                else:
                    a("v_mfma_f32_32x32x16_bf16 %s, %s, %s, %s" % (v(acc[m][n], 16), v(NM[m], 4), v(CSF[n], 4), v(acc[m][n], 16)))
    def store_bases():
        a("s_and_b32 s%d, s%d, 3" % (sT0, sCb))
        a("s_lshl_b32 s%d, s%d, 3" % (sT0, sT0))
        a("s_lshl_b32 s%d, s%d, 2" % (sT1, sNt))
        a("s_add_u32 s%d, s%d, s%d" % (sT0, sT0, sT1))
        a("s_lshl_b32 s%d, s%d, 16" % (sT0, sT0))
        a("s_lshl_b32 s%d, s%d, 2" % (sT1, sRb))
        a("s_lshl_b32 s50, s%d, 1" % sMt)
        a("s_add_u32 s%d, s%d, s50" % (sT1, sT1))
        a("s_lshl_b32 s%d, s%d, 10" % (sT1, sT1))
        a("s_add_u32 s50, s%d, s%d" % (sT0, sT1))
        a("s_lshr_b32 s%d, s%d, 2" % (sT0, sCb))
        a("s_lshl_b32 s%d, s%d, 21" % (sT0, sT0))
        a("s_add_u32 s50, s50, s%d" % sT0)
    a("s_cmp_ge_u32 s%d, 8" % sCb)
    a("s_cbranch_scc1 L_g_v")
    main_loop(0, "q")
    stat_reads(0)
    last_step(0)
    store_bases()
    correction(0, 2)
    a("s_cmp_lt_u32 s%d, 4" % sCb)
    a("s_cselect_b32 s51, %s, 1.0" % fhex(QSCALE))
    a("v_lshlrev_b32 v21, 4, v%d" % vLane)
    a("s_waitcnt lgkmcnt(0)")
    for m in range(2):
        a("v_mul_f32 v%d, s51, v%d" % (vRs[m], vRs[m]))
    a("s_nop 4")
    for m in range(2):
        for n in range(2):
            A = acc[m][n]
            P = XB[0][0] + 8 * ((2 * m + n) % 2)
            for i in range(8):
                a("v_pk_mul_f32 %s, %s, %s op_sel_hi:[1,0]" % (v(A + 2 * i, 2), v(A + 2 * i, 2), v(vRs[m], 2)))
            for i in range(8):
                a("v_cvt_pk_bf16_f32 v%d, v%d, v%d" % (A + i, A + 2 * i, A + 2 * i + 1))
            a("s_add_u32 s52, s50, %d" % (m * 1024 + n * 0x20000))
            a("s_add_u32 s53, s52, 0x10000")
            a("buffer_store_dwordx4 %s, v21, s[%d:%d], s52 offen%s" % (v(A, 4), sWS, sWS + 3, QST))
            a("buffer_store_dwordx4 %s, v21, s[%d:%d], s53 offen%s" % (v(A + 4, 4), sWS, sWS + 3, QST))
    a("s_branch L_g_fin")
    a.label("L_g_v")
    main_loop(1, "v")
    stat_reads(1)
    last_step(1)
    store_bases()
    correction(1, 8)
    a("v_bfe_u32 v21, v%d, 4, 1" % vLane)
    a("v_lshlrev_b32 v21, 16, v21")
    a("v_lshl_add_u32 v21, v3, 8, v21")
    a("v_and_b32 v22, 15, v%d" % vLane)
    a("v_lshl_add_u32 v21, v22, 4, v21")
    a("s_waitcnt lgkmcnt(0)")
    a("s_nop 4")
    for m in range(2):
        for n in range(2):
            A = acc[m][n]
            for i in range(8):
                a("v_pk_mul_f32 %s, %s, %s" % (v(A + 2 * i, 2), v(A + 2 * i, 2), v(24 + 16 * m + 2 * i, 2)))
            for i in range(8):
                a("v_cvt_pk_bf16_f32 v%d, v%d, v%d" % (A + i, A + 2 * i, A + 2 * i + 1))
            a("s_add_u32 s52, s50, %d" % (m * 1024 + n * 0x20000))
            a("buffer_store_dwordx4 %s, v21, s[%d:%d], s52 offen%s" % (v(A, 4), sWS, sWS + 3, QST))
            a("buffer_store_dwordx4 %s, v21, s[%d:%d], s52 offen offset:512%s" % (v(A + 4, 4), sWS, sWS + 3, QST))
    a.label("L_g_fin")
    stamp(a, 21)
    stamp_flush(a, 0, sWS, sWave)
    a("s_endpgm")

def gen_k1():
    a = Asm()
    N = "k1_kernel"
    a(kernel_head(N))
    a("s_cmp_ge_u32 s2, %d" % K1_GRID)
    a("s_cbranch_scc1 L_k1_end")
    stamp_begin(a, 255)
    a("s_load_dwordx4 s[4:7], s[0:1], 0")
    a("s_load_dwordx8 s[12:19], s[0:1], 32")
    a("s_load_dwordx4 s[20:23], s[0:1], 72")
    a("v_lshrrev_b32 v2, 6, v0")
    a("v_and_b32 v1, 63, v0")
    a("v_readfirstlane_b32 s%d, v2" % sWave)
    a("s_waitcnt lgkmcnt(0)")
    ws_adjust(a, sWSP)
    a("s_or_b32 s24, s2, s%d" % sWave)
    a("s_cmp_lg_u32 s24, 0")
    a("s_cbranch_scc1 L_k1_non")
    a("s_memrealtime s[60:61]")
    srd(a, 24, sDBG, 256)
    a("v_mov_b32 v3, 0")
    a("s_waitcnt lgkmcnt(0)")
    a("s_or_b32 s60, s60, 1")
    a("v_mov_b32 v4, s60")
    a("s_mov_b32 exec_lo, 1")
    a("s_mov_b32 exec_hi, 0")
    a("buffer_store_dword v4, v3, s[24:27], 0 offen sc1")
    a("s_mov_b64 exec, -1")
    a.label("L_k1_non")
    a("s_cmp_ge_u32 s2, 64")
    a("s_cbranch_scc1 L_k1_gemm")
    if opt("PF_CODE", 1):
        a("s_cmp_gt_u32 s2, 40")
        a("s_cbranch_scc1 L_k1_nocode")
        a("s_cmp_gt_u32 s2, 32")
        a("s_cbranch_scc0 L_k1_nocode")
        gen_codepf(a)
        a.label("L_k1_nocode")
    a("s_cmp_gt_u32 s2, 32")
    if opt("PF_TLB"):
        a("s_cbranch_scc0 L_k1_aux")
        a("s_cmp_eq_u32 s2, 33")
        a("s_cbranch_scc0 L_k1_end")
        gen_tlb(a)
        a.label("L_k1_aux")
    else:
        a("s_cbranch_scc1 %s" % ("L_k1_touch" if opt("PF_IN") else "L_k1_end"))
    a("s_cmp_eq_u32 s2, 32")
    a("s_cbranch_scc1 L_k1_topk")
    gen_e(a)
    a.label("L_k1_topk")
    gen_topk(a)
    if opt("PF_IN"):
        a.label("L_k1_touch")
        gen_touch(a)
    a.label("L_k1_gemm")
    gen_gemm(a)
    a.label("L_k1_end")
    a("s_endpgm")
    return a.text(), (256 if PROF else 192)
```

```python
from dsl import *

WS_QF = 0x000000
WS_KF = 0x200000
WS_VF = 0x400000
WS_OF = WS_QF
WS_REC = 0x800000
WS_CSR = 0x808000
WS_SEL = 0x80e000
WS_PART = 0x810000
WS_SIZE = 0xD00000 if PROF else 0x900000
NSLICE = 28
K1_GRID = 256

QSCALE = 0.25 * 1.4426950408889634
LOG2E = 1.4426950408889634

def fhex(x):
    import struct
    return "0x%08x" % struct.unpack("<I", struct.pack("<f", x))[0]

G_ST = 131072
G_LDS = G_ST + 1024
K1_LDS = G_LDS

sXP, sWP, sWRP, sWGP, sWUP, sWDP, sDBG, sWSP = 4, 6, 12, 14, 16, 18, 20, 22
sWave = 3

def wave_max_u32(a, t):
    for dp in ["quad_perm:[1,0,3,2] row_mask:0xf", "quad_perm:[2,3,0,1] row_mask:0xf", "row_half_mirror row_mask:0xf", "row_mirror row_mask:0xf",
               "row_bcast:15 row_mask:0xa", "row_bcast:31 row_mask:0xc"]:
        a("s_nop 1")
        a("v_max_u32_dpp v%d, v%d, v%d %s bank_mask:0xf" % (t, t, t, dp))

def poll_flags(a, tag, vaddr, srdreg, lanes_mask_lo, tmp):
    a("s_mov_b32 s98, 0")
    a.label("L_poll_%s" % tag)
    a("buffer_load_dword v%d, v%d, s[%d:%d], 0 offen sc1" % (tmp, vaddr, srdreg, srdreg + 3))
    a("s_add_u32 s98, s98, 1")
    a("s_waitcnt vmcnt(0)")
    a("v_cmp_eq_u32 vcc, 0, v%d" % tmp)
    a("s_cmp_gt_u32 s98, 0x40000")
    a("s_cbranch_scc1 L_polld_%s" % tag)
    a("s_and_b32 s99, vcc_lo, 0x%x" % lanes_mask_lo)
    a("s_cbranch_scc0 L_polld_%s" % tag)
    a("s_sleep 8")
    a("s_branch L_poll_%s" % tag)
    a.label("L_polld_%s" % tag)

def get_nonce(a, tag, sdb, vtmp, vzero, sdst):
    a("v_mov_b32 v%d, 0" % vzero)
    a("s_mov_b32 s98, 0")
    a.label("L_nonce_%s" % tag)
    a("buffer_load_dword v%d, v%d, s[%d:%d], 0 offen sc1" % (vtmp, vzero, sdb, sdb + 3))
    a("s_add_u32 s98, s98, 1")
    a("s_waitcnt vmcnt(0)")
    a("v_readfirstlane_b32 s%d, v%d" % (sdst, vtmp))
    a("s_cmp_gt_u32 s98, 0x40000")
    a("s_cbranch_scc1 L_nonced_%s" % tag)
    a("s_cmp_lg_u32 s%d, 0" % sdst)
    a("s_cbranch_scc1 L_nonced_%s" % tag)
    a("s_sleep 4")
    a("s_branch L_nonce_%s" % tag)
    a.label("L_nonced_%s" % tag)

def gen_e(a):
    vLane = 1
    sX, sW, sWS, sDb, sWR = 24, 28, 32, 36, 40
    sT0, sT1, sEb, sStrip, sTag = 44, 45, 49, 50, 51
    L_CS = 0
    srd(a, sX, sXP, 2048 * 1024)
    srd(a, sWR, sWRP, 1024)
    a("s_and_b32 s%d, s2, 1" % sT0)
    a("s_bfe_u32 s%d, s2, 0x20001" % sT1)
    a("s_lshr_b32 s46, s2, 3")
    a("s_lshl_b32 s%d, s%d, 3" % (sEb, sT1))
    a("s_lshl_b32 s47, s%d, 2" % sT0)
    a("s_add_u32 s%d, s%d, s47" % (sEb, sEb))
    a("s_add_u32 s%d, s%d, s46" % (sEb, sEb))
    a("v_lshrrev_b32 v2, 4, v%d" % vLane)
    a("v_and_b32 v3, 15, v%d" % vLane)
    a("v_lshlrev_b32 v3, 4, v3")
    a("v_lshl_add_u32 v4, v2, 10, v3")
    WP = 16
    a("s_lshl_b32 s%d, s%d, 6" % (sT0, sEb))
    a("s_lshl_b32 s%d, s%d, 3" % (sT1, sWave))
    a("s_add_u32 s46, s%d, s%d" % (sT0, sT1))
    a("s_lshl_b32 s47, s46, 10")
    XP = 32
    for g in range(2):
        for q in range(4):
            a("buffer_load_dwordx4 %s, v4, s[%d:%d], s47 offen offset:%d" % (v(XP + 16 * g + 4 * q, 4), sX, sX + 3, q * 256))
        if g == 0:
            for q in range(4):
                a("buffer_load_dwordx4 %s, v3, s[%d:%d], 0 offen offset:%d" % (v(WP + 4 * q, 4), sWR, sWR + 3, q * 256))
            a("s_add_u32 s47, s47, 4096")
    srd(a, sDb, sDBG, 256)
    a("v_mov_b32 v13, 0")
    a("buffer_load_dword v12, v13, s[%d:%d], 0 offen sc1" % (sDb, sDb + 3))
    stamp(a, 1)
    srd(a, sWS, sWSP, WS_SIZE)
    a("v_mov_b32 v5, 0x3f803f80")
    a("v_mov_b32 v8, 0")
    a("v_add_u32 v15, s46, v2")
    dps = ["quad_perm:[1,0,3,2]", "quad_perm:[2,3,0,1]", "row_half_mirror", "row_mirror"]
    a("s_waitcnt vmcnt(5)")
    for i in range(16):
        a("v_dot2_f32_bf16 v8, v%d, v5, v8" % (WP + i))
    A0, A1, A2 = 9, 10, 11
    OUT = [100, 104]
    for g in range(2):
        if g == 1:
            a("s_waitcnt vmcnt(1)")
        if g == 0:
            stamp(a, 2)
        a("v_mov_b32 v%d, 0" % A0); a("v_mov_b32 v%d, 0" % A1); a("v_mov_b32 v%d, 0" % A2)
        for i in range(16):
            x = XP + 16 * g + i
            a("v_dot2_f32_bf16 v%d, v%d, v5, v%d" % (A0, x, A0))
            a("v_dot2_f32_bf16 v%d, v%d, v%d, v%d" % (A1, x, x, A1))
            a("v_dot2_f32_bf16 v%d, v%d, v%d, v%d" % (A2, x, WP + i, A2))
        a("s_nop 2")
        for dp in dps:
            for r in ((A0, A1, A2, 8) if g == 0 else (A0, A1, A2)):
                a("v_add_f32_dpp v%d, v%d, v%d %s row_mask:0xf bank_mask:0xf" % (r, r, r, dp))
        M, RS, KEY = OUT[g], OUT[g] + 1, OUT[g] + 2
        a("v_mul_f32 v%d, %s, v%d" % (M, fhex(1.0 / 512), A0))
        a("v_mul_f32 v14, %s, v%d" % (fhex(1.0 / 512), A1))
        a("v_fma_f32 v14, -v%d, v%d, v14" % (M, M))
        a("v_max_f32 v14, 0, v14")
        bf16r(a, "v%d" % M, "v%d" % M)
        bf16r(a, "v14", "v14")
        a("v_add_f32 v14, %s, v14" % fhex(1e-5))
        bf16r(a, "v14", "v14")
        a("v_sqrt_f32 v14, v14")
        a("s_nop 0")
        bf16r(a, "v14", "v14")
        a("v_rcp_f32 v%d, v14" % RS)
        a("v_fma_f32 v14, -v%d, v8, v%d" % (M, A2))
        a("v_mul_f32 v14, v14, v%d" % RS)
        a("v_cvt_pk_bf16_f32 v14, v14, v14")
        a("v_and_b32 v14, 0xffff, v14")
        a("v_cmp_gt_u32 vcc, 0x8000, v14")
        a("v_xor_b32 v96, 0x8000, v14")
        a("v_xor_b32 v97, 0xffff, v14")
        a("v_sub_u32 v98, 0xffff, v15")
        a("v_cndmask_b32 v14, v97, v96, vcc")
        a("v_lshl_or_b32 v%d, v14, 16, v98" % KEY)
        a("v_add_u32 v15, 4, v15")
    a("s_waitcnt vmcnt(0)")
    a("v_readfirstlane_b32 s%d, v12" % sTag)
    a("v_and_b32 v9, 15, v%d" % vLane)
    a("v_cmp_eq_u32 vcc, 1, v9")
    a("s_nop 1")
    a("s_cmp_lg_u32 s%d, 0" % sTag)
    a("s_cbranch_scc1 L_e_tag")
    get_nonce(a, "e", sDb, 12, 13, sTag)
    a.label("L_e_tag")
    for q in range(3):
        a("v_cndmask_b32 v%d, v%d, v%d, vcc" % (OUT[0] + q, OUT[0] + q, OUT[1] + q))
    a("v_mov_b32 v%d, s%d" % (OUT[0] + 3, sTag))
    a("v_lshl_add_u32 v10, v9, 2, v2")
    a("v_add_u32 v10, s46, v10")
    a("v_lshlrev_b32 v10, 4, v10")
    a("s_mov_b32 s47, 0x%x" % WS_REC)
    a("s_mov_b32 exec_lo, 0x00030003")
    a("s_mov_b32 exec_hi, 0x00030003")
    a("buffer_store_dwordx4 %s, v10, s[%d:%d], s47 offen sc1" % (v(OUT[0], 4), sWS, sWS + 3))
    a("s_mov_b64 exec, -1")
    stamp(a, 3)
    a.label("L_e_done")
    stamp_flush(a, 0, sWS, sWave)
    a("s_endpgm")

class Net:
    def __init__(self, a, free):
        self.a = a; self.free = list(free)
    def get(self): return self.free.pop(0)
    def put(self, r): self.free.append(r)
    def ce(self, L, i, j):
        hi, lo = self.get(), self.get()
        self.a("v_max_u32 v%d, v%d, v%d" % (hi, L[i], L[j]))
        self.a("v_min_u32 v%d, v%d, v%d" % (lo, L[i], L[j]))
        self.put(L[i]); self.put(L[j])
        L[i], L[j] = hi, lo
    def sort_bitonic8(self, L):
        for st in ([(0, 4), (1, 5), (2, 6), (3, 7)], [(0, 2), (1, 3), (4, 6), (5, 7)], [(0, 1), (2, 3), (4, 5), (6, 7)]):
            for (i, j) in st: self.ce(L, i, j)
    def top8(self, L, dpp, sort=True):
        T = [None] * 8
        for i in range(7, -1, -1):
            T[i] = self.get()
            self.a("v_max_u32_dpp v%d, v%d, v%d %s bank_mask:0xf" % (T[i], L[7 - i], L[i], dpp))
        for r in L: self.put(r)
        if sort: self.sort_bitonic8(T)
        return T

def top8_wave(a, keys, free, wave_sgpr, lds_cand):
    n = Net(a, free)
    L = list(keys)
    for (i, j) in ((0,1),(2,3),(4,5),(6,7),(0,2),(1,3),(4,6),(5,7),(1,2),(5,6),(0,4),(3,7),(1,5),(2,6),(1,4),(3,6),(2,4),(3,5),(3,4)):
        n.ce(L, i, j)
    a("s_nop 0")
    for dp in ("quad_perm:[1,0,3,2] row_mask:0xf", "quad_perm:[2,3,0,1] row_mask:0xf", "row_half_mirror row_mask:0xf", "row_mirror row_mask:0xf",
               "row_bcast:15 row_mask:0xa", "row_bcast:31 row_mask:0xc"):
        L = n.top8(L, dp)
    base = (max(free) + 4) // 4 * 4
    for i in range(8):
        a("v_mov_b32 v%d, v%d" % (base + i, L[i]))
    adr = n.get()
    a("s_lshl_b32 s98, s%d, 5" % wave_sgpr)
    a("s_add_u32 s98, s98, %d" % lds_cand)
    a("v_mov_b32 v%d, s98" % adr)
    a("s_mov_b32 exec_lo, 0")
    a("s_mov_b32 exec_hi, 0x80000000")
    a("ds_write_b128 v%d, %s" % (adr, v(base, 4)))
    a("ds_write_b128 v%d, %s offset:16" % (adr, v(base + 4, 4)))
    a("s_mov_b64 exec, -1")

def top8_final(a, free, lds_cand):
    n = Net(a, free)
    base = (max(free) + 4) // 4 * 4
    adr = n.get()
    a("v_mbcnt_lo_u32_b32 v%d, -1, 0" % adr)
    a("v_mbcnt_hi_u32_b32 v%d, -1, v%d" % (adr, adr))
    a("v_and_b32 v%d, 3, v%d" % (adr, adr))
    a("v_lshlrev_b32 v%d, 5, v%d" % (adr, adr))
    a("v_add_u32 v%d, %d, v%d" % (adr, lds_cand, adr))
    a("ds_read_b128 %s, v%d" % (v(base, 4), adr))
    a("ds_read_b128 %s, v%d offset:16" % (v(base + 4, 4), adr))
    L = [base + i for i in range(8)]
    a("s_waitcnt lgkmcnt(0)")
    L = n.top8(L, "quad_perm:[1,0,3,2] row_mask:0xf")
    L = n.top8(L, "quad_perm:[2,3,0,1] row_mask:0xf")
    return L

def gen_topk(a):
    vLane = 1
    sWS, sDb = 24, 40
    sT0, sT1, sTag = 45, 46, 48
    T_CAND = 0
    srd(a, sWS, sWSP, WS_SIZE)
    srd(a, sDb, sDBG, 256)
    a("s_cmp_ge_u32 s%d, 4" % sWave)
    a("s_cbranch_scc1 L_tk_sync")
    get_nonce(a, "tk", sDb, 12, 13, sTag)
    stamp(a, 1)
    a("v_lshlrev_b32 v3, 4, v0")
    a("s_mov_b32 s98, 0")
    a.label("L_tk_poll")
    a("s_mov_b32 s%d, 0x%x" % (sT0, WS_REC))
    for q in range(8):
        a("buffer_load_dwordx2 %s, v3, s[%d:%d], s%d offen offset:8 sc1" % (v(96 + 2 * q, 2), sWS, sWS + 3, sT0))
        if q < 7:
            a("s_add_u32 s%d, s%d, 4096" % (sT0, sT0))
    a("s_add_u32 s98, s98, 1")
    a("s_waitcnt vmcnt(0)")
    for q in range(8):
        a("v_xor_b32 v%d, s%d, v%d" % (97 + 2 * q, sTag, 97 + 2 * q))
    a("v_or3_b32 v4, v97, v99, v101")
    a("v_or3_b32 v5, v103, v105, v107")
    a("v_or3_b32 v4, v4, v109, v111")
    a("v_or_b32 v4, v4, v5")
    a("v_cmp_ne_u32 vcc, 0, v4")
    a("s_cmp_gt_u32 s98, 0x40000")
    a("s_cbranch_scc1 L_tk_go")
    a("s_cmp_eq_u64 vcc, 0")
    a("s_cbranch_scc1 L_tk_go")
    a("s_sleep 2")
    a("s_branch L_tk_poll")
    a.label("L_tk_go")
    stamp(a, 3)
    top8_wave(a, [96 + 2 * q for q in range(8)], [97 + 2 * q for q in range(8)] + list(range(14, 24)) + [112, 113], sWave, T_CAND)
    a("s_waitcnt lgkmcnt(0)")
    a.label("L_tk_sync")
    a("s_barrier")
    stamp(a, 4)
    a("s_cmp_lg_u32 s%d, 0" % sWave)
    a("s_cbranch_scc1 L_tk_done")
    R = top8_final(a, list(range(96, 114)), T_CAND)
    vRes = 20
    a("v_mov_b32 v%d, v%d" % (vRes, R[0]))
    for jx in range(1, 8):
        a("v_cmp_eq_u32 vcc, %d, v%d" % (jx, vLane))
        a("s_nop 1")
        a("v_cndmask_b32 v%d, v%d, v%d, vcc" % (vRes, vRes, R[jx]))
    stamp(a, 5)
    a("v_and_b32 v8, 0xffff, v%d" % vRes)
    a("v_sub_u32 v8, 0xffff, v8")
    a("v_lshrrev_b32 v9, 16, v%d" % vRes)
    a("v_cmp_le_u32 vcc, 0x8000, v9")
    a("v_xor_b32 v10, 0x8000, v9")
    a("v_xor_b32 v11, 0xffff, v9")
    a("v_cndmask_b32 v9, v11, v10, vcc")
    a("v_lshlrev_b32 v9, 16, v9")
    a("v_mul_f32 v9, %s, v9" % fhex(-LOG2E))
    a("v_exp_f32 v9, v9")
    a("s_nop 0")
    a("v_add_f32 v9, 1.0, v9")
    a("v_rcp_f32 v9, v9")
    a("s_nop 0")
    bf16r(a, "v9", "v9")
    a("v_lshlrev_b32 v10, 2, v%d" % vLane)
    a("s_mov_b32 s%d, 0x%x" % (sT0, WS_SEL))
    a("s_mov_b32 exec_lo, 0xff")
    a("s_mov_b32 exec_hi, 0")
    a("buffer_store_dword v8, v10, s[%d:%d], s%d offen" % (sWS, sWS + 3, sT0))
    a("buffer_store_dword v9, v10, s[%d:%d], s%d offen offset:32" % (sWS, sWS + 3, sT0))
    a("s_mov_b64 exec, -1")
    a.label("L_tk_done")
    stamp_flush(a, 0, sWS, sWave)
    a("s_endpgm")

def gen_codepf(a):
    a("s_cmp_ge_u32 s%d, 4" % sWave)
    a("s_cbranch_scc1 L_k1_end")
    a("s_getpc_b64 s[40:41]")
    a.label("L_k1_anchor")
    a("s_mov_b32 s42, L_code_end-L_k1_anchor")
    a("s_mov_b32 s43, 0x20000")
    a("s_lshl_b32 s44, s%d, 13" % sWave)
    a("v_lshlrev_b32 v3, 7, v1")
    a("v_add_u32 v3, s44, v3")
    a("buffer_load_dword v4, v3, s[40:43], 0 offen")
    a("s_endpgm")

def gen_tlb(a):
    step = opt("PF_TLB")
    a("s_load_dwordx2 s[40:41], s[0:1], 16")
    a("s_load_dwordx2 s[42:43], s[0:1], 64")
    a("v_mul_u32_u24 v3, %d, v1" % 1)
    a("v_lshlrev_b32 v3, %d, v1" % (step.bit_length() - 1))
    a("s_waitcnt lgkmcnt(0)")
    r = 16
    for (ptr, nbytes) in ((sWGP, 512 * 3584), (sWUP, 512 * 3584), (sWDP, 1792 * 1024), (40, 512 * 1024), (42, 2048 * 1024), (sWSP, WS_SIZE)):
        srd(a, 32, ptr, nbytes)
        a("s_mul_i32 s44, s%d, %d" % (sWave, 64 * step))
        a("v_add_u32 v4, s44, v3")
        a("buffer_load_dword v%d, v4, s[32:35], 0 offen" % r); r += 1
    a("s_endpgm")

def gen_touch(a):
    sB, sC4 = 32, 36
    srd(a, sB, sXP, 2048 * 1024)
    srd(a, sC4, sWP, 512 * 3072)
    a("s_sub_u32 s46, s2, 33")
    a("s_lshl_b32 s46, s46, 3")
    a("s_add_u32 s46, s46, s%d" % sWave)
    a("v_lshlrev_b32 v10, 10, v1")
    a("v_lshlrev_b32 v11, 7, v1")
    for rnd in range(2):
        if rnd:
            a("s_add_u32 s46, s46, 248")
            a("s_cmp_ge_u32 s46, 336")
            a("s_cbranch_scc1 L_pf_end")
        a("s_mul_i32 s47, s46, 1171")
        a("s_lshr_b32 s47, s47, 16")
        a("s_mul_i32 s48, s47, 56")
        a("s_sub_u32 s48, s46, s48")
        a("s_add_u32 s47, s47, 2")
        a("s_cmp_ge_u32 s48, 32")
        a("s_cbranch_scc1 L_pf_w%d" % rnd)
        a("s_lshl_b32 s49, s48, 16")
        a("s_lshl_b32 s50, s47, 7")
        a("s_add_u32 s49, s49, s50")
        a("buffer_load_dword v%d, v10, s[%d:%d], s49 offen" % (40 + rnd, sB, sB + 3))
        a("s_branch L_pf_n%d" % rnd)
        a.label("L_pf_w%d" % rnd)
        a("s_sub_u32 s48, s48, 32")
        a("s_lshl_b32 s49, s48, 13")
        a("s_mul_i32 s50, s47, 196608")
        a("s_add_u32 s49, s49, s50")
        a("buffer_load_dword v%d, v11, s[%d:%d], s49 offen" % (40 + rnd, sC4, sC4 + 3))
        a.label("L_pf_n%d" % rnd)
    a.label("L_pf_end")
    a("s_endpgm")

def gen_gemm(a):
    QST = " sc1" if opt("ST_QKV_SC1") else ""
    vLane = 1
    sX, sW, sWS, sDb = 24, 28, 32, 36
    sRb, sCb, sT0, sT1, sC, sSlot = 40, 41, 42, 43, 44, 45
    a("s_sub_u32 s%d, s2, 64" % sT0)
    a("s_and_b32 s%d, s%d, 7" % (sT1, sT0))
    a("s_lshr_b32 s%d, s%d, 3" % (sT0, sT0))
    a("s_lshr_b32 s%d, s%d, 1" % (sRb, sT1))
    a("s_lshl_b32 s%d, s%d, 2" % (sRb, sRb))
    a("s_and_b32 s46, s%d, 3" % sT0)
    a("s_add_u32 s%d, s%d, s46" % (sRb, sRb))
    a("s_and_b32 s%d, s%d, 1" % (sCb, sT1))
    a("s_mul_i32 s%d, s%d, 6" % (sCb, sCb))
    a("s_lshr_b32 s%d, s%d, 2" % (sT0, sT0))
    a("s_add_u32 s%d, s%d, s%d" % (sCb, sCb, sT0))
    srd(a, sWS, sWSP, WS_SIZE)
    a("s_cmp_ge_u32 s%d, 4" % sWave)
    a("s_cbranch_scc0 L_g_cons")
    vXa, vXb, vW = 10, 11, 12
    sLw, sXg, sXg2, sWg, sL4 = 46, 47, 48, 49, 50
    srd(a, sX, sXP, 2048 * 1024)
    srd(a, sW, sWP, 512 * 3072)
    a("s_sub_u32 s%d, s%d, 4" % (sLw, sWave))
    a("v_lshrrev_b32 v2, 3, v%d" % vLane)
    a("v_and_b32 v3, 7, v%d" % vLane)
    a("v_lshrrev_b32 v4, 1, v2")
    a("v_xor_b32 v3, v3, v4")
    a("v_xor_b32 v4, 4, v3")
    a("v_lshlrev_b32 v2, 10, v2")
    a("v_lshl_add_u32 v%d, v3, 4, v2" % vXa)
    a("v_lshl_add_u32 v%d, v4, 4, v2" % vXb)
    a("v_add_u32 v%d, 0x2000, v%d" % (vXb, vXb))
    a("v_lshrrev_b32 v2, 4, v%d" % vLane)
    a("v_bfe_u32 v3, v%d, 2, 2" % vLane)
    a("v_xor_b32 v3, v3, v2")
    a("v_and_b32 v4, 3, v%d" % vLane)
    a("v_lshl_add_u32 v3, v3, 2, v4")
    a("v_mul_u32_u24 v2, 0xc00, v2")
    a("v_lshl_add_u32 v%d, v3, 4, v2" % vW)
    for i in range(1, 4):
        a("v_add_u32 v%d, %d, v%d" % (vW + i, i * 12288, vW))
    a("s_lshl_b32 s%d, s%d, 17" % (sXg, sRb))
    a("s_lshl_b32 s%d, s%d, 15" % (sT0, sLw))
    a("s_add_u32 s%d, s%d, s%d" % (sXg, sXg, sT0))
    a("s_mul_i32 s%d, s%d, %d" % (sWg, sLw, 16 * 3072))
    a("s_lshl_b32 s%d, s%d, 8" % (sT0, sCb))
    a("s_add_u32 s%d, s%d, s%d" % (sWg, sWg, sT0))
    a("s_lshl_b32 s%d, s%d, 12" % (sL4, sLw))
    a("s_mov_b32 s%d, 0" % sSlot)
    def issue():
        a("s_add_u32 s%d, s%d, 0x4000" % (sXg2, sXg))
        a("s_add_u32 m0, s%d, s%d" % (sSlot, sL4))
        a("s_nop 0")
        for i in range(4):
            a("buffer_load_dwordx4 v%d, s[%d:%d], s%d offen%s lds" % (vXa if i % 2 == 0 else vXb, sX, sX + 3, sXg if i < 2 else sXg2, " nt" if opt("NT_X") else ""))
            a("s_add_u32 m0, m0, %d" % (1024 if i < 3 else 13312))
            a("s_nop 0")
        for i in range(4):
            a("buffer_load_dwordx4 v%d, s[%d:%d], s%d offen%s lds" % (vW + i, sW, sW + 3, sWg, " nt" if opt("NT_W") else ""))
            if i < 3:
                a("s_add_u32 m0, m0, 1024")
                a("s_nop 0")
        a("s_add_u32 s%d, s%d, 128" % (sXg, sXg))
        a("s_add_u32 s%d, s%d, %d" % (sWg, sWg, 64 * 3072))
        a("s_add_u32 s%d, s%d, 0x8000" % (sSlot, sSlot))
        a("s_and_b32 s%d, s%d, 0x1ffff" % (sSlot, sSlot))
    a("s_mov_b32 s%d, 0" % sC)
    a.label("L_g_lpro")
    issue()
    a("s_add_u32 s%d, s%d, 1" % (sC, sC))
    a("s_cmp_lt_u32 s%d, 2" % sC)
    a("s_cbranch_scc1 L_g_lpro")
    stamp(a, 1)
    a("s_mov_b32 s%d, 0" % sC)
    a.label("L_g_lloop")
    a("s_waitcnt vmcnt(8)")
    stamp(a, "s%d+10" % sC)
    a("s_barrier")
    issue()
    a("s_add_u32 s%d, s%d, 1" % (sC, sC))
    a("s_cmp_lt_u32 s%d, 4" % sC)
    a("s_cbranch_scc1 L_g_lloop")
    if opt("PF_MOE", 1):
        a("s_load_dwordx2 s[58:59], s[0:1], 16")
        a("s_sub_u32 s60, s2, 64")
        a("s_and_b32 s62, s60, 7")
        a("s_lshr_b32 s60, s60, 3")
        a("s_lshl_b32 s60, s60, 2")
        a("s_add_u32 s60, s60, s%d" % sLw)
        a("s_mul_i32 s61, s60, 2731")
        a("s_lshr_b32 s61, s61, 16")
        a("s_mul_i32 s63, s61, 24")
        a("s_sub_u32 s63, s60, s63")
        a("s_lshl_b32 s61, s61, 3")
        a("s_add_u32 s61, s61, s62")
        a("s_waitcnt lgkmcnt(0)")
        a("v_mul_u32_u24 v20, 0xe00, v%d" % vLane)
        a("v_lshlrev_b32 v22, 7, v%d" % vLane)
        a("s_mov_b32 s64, s%d" % sWGP); a("s_mov_b32 s65, s%d" % (sWGP + 1))
        a("s_mov_b32 s66, %d" % (512 * 3584)); a("s_mov_b32 s67, 0x20000")
        a("s_cmp_ge_u32 s63, 8")
        a("s_cselect_b32 s64, s%d, s64" % sWUP); a("s_cselect_b32 s65, s%d, s65" % (sWUP + 1))
        a("s_and_b32 s68, s63, 7")
        a("s_mul_i32 s69, s68, %d" % (64 * 3584))
        a("s_lshl_b32 s70, s61, 7")
        a("s_add_u32 s69, s69, s70")
        a("s_cmp_ge_u32 s63, 16")
        a("s_cbranch_scc0 L_g_pfa")
        a("s_mov_b32 s64, s%d" % sWDP); a("s_mov_b32 s65, s%d" % (sWDP + 1))
        a("s_lshl_b32 s69, s61, 16")
        a("s_lshl_b32 s70, s68, 13")
        a("s_add_u32 s69, s69, s70")
        a("v_mov_b32 v20, v22")
        a.label("L_g_pfa")
        a("s_cmp_ge_u32 s61, 28")
        a("s_cbranch_scc0 L_g_pfb")
        a("s_mov_b32 s64, s58"); a("s_mov_b32 s65, s59"); a("s_mov_b32 s66, %d" % (512 * 1024))
        a("s_sub_u32 s69, s62, 4")
        a("s_lshl_b32 s69, s69, 4")
        a("s_and_b32 s70, s63, 15")
        a("s_add_u32 s69, s69, s70")
        a("s_lshl_b32 s69, s69, 13")
        a("v_mov_b32 v20, v22")
        a.label("L_g_pfb")
        a("s_mov_b32 s61, s69")
    srd(a, sDb, sDBG, 256)
    a("v_mov_b32 v4, 0")
    a("s_waitcnt vmcnt(8)")
    a("s_barrier")
    a("buffer_load_dword v5, v4, s[%d:%d], 0 offen sc1" % (sDb, sDb + 3))
    issue()
    a("s_lshl_b32 s%d, s%d, 11" % (sT0, sRb))
    a("s_add_u32 s51, s%d, 0x%x" % (sT0, WS_REC))
    a("v_and_b32 v7, 31, v%d" % vLane)
    a("s_lshl_b32 s%d, s%d, 9" % (sT0, sLw))
    a("v_lshl_add_u32 v6, v7, 4, s%d" % sT0)
    a("s_lshl_b32 s%d, s%d, 7" % (sT0, sLw))
    a("s_add_u32 s%d, s%d, %d" % (sT0, sT0, G_ST))
    a("v_lshl_add_u32 v7, v7, 2, s%d" % sT0)
    a("s_waitcnt vmcnt(8)")
    a("v_readfirstlane_b32 s52, v5")
    a("s_nop 3")
    a("s_cmp_lg_u32 s52, 0")
    a("s_cbranch_scc1 L_g_nonok")
    get_nonce(a, "g", sDb, 5, 4, 52)
    a.label("L_g_nonok")
    a("s_barrier")
    a("buffer_load_dwordx4 v[16:19], v6, s[%d:%d], s51 offen sc1" % (sWS, sWS + 3))
    issue()
    PFN = 1 if opt("PF_MOE", 1) else 0
    if PFN:
        a("buffer_load_dword v21, v20, s[64:67], s61 offen")
    a("s_waitcnt vmcnt(%d)" % (8 + PFN))
    a("s_mov_b32 s98, 0")
    a.label("L_g_rec")
    a("v_cmp_ne_u32 vcc, s52, v19")
    a("s_cmp_gt_u32 s98, 0x40000")
    a("s_cbranch_scc1 L_g_recok")
    a("s_cmp_eq_u64 vcc, 0")
    a("s_cbranch_scc1 L_g_recok")
    a("s_sleep 4")
    a("buffer_load_dwordx4 v[16:19], v6, s[%d:%d], s51 offen sc1" % (sWS, sWS + 3))
    a("s_add_u32 s98, s98, 1")
    a("s_waitcnt vmcnt(0)")
    a("s_branch L_g_rec")
    a.label("L_g_recok")
    a("ds_write_b32 v7, v16")
    a("ds_write_b32 v7, v17 offset:512")
    a("s_barrier")
    a("s_waitcnt vmcnt(%d) lgkmcnt(0)" % PFN)
    a("s_barrier")
    stamp_flush(a, 0, sWS, sWave)
    a("s_endpgm")
    a.label("L_g_cons")
    vXr = [4, 5, 6, 7]
    vWr = [8, 9]
    acc = [[64, 80], [96, 112]]
    XB = [[128, 132], [136, 140]]
    WB = [[144, 148], [152, 156]]
    NM, CSF = [160, 164], [168, 172]
    SEL, CSA = 176, [180, 184]
    sMt, sNt, sHi = 46, 47, 48
    a("s_and_b32 s%d, s%d, 1" % (sMt, sWave))
    a("s_lshr_b32 s%d, s%d, 1" % (sNt, sWave))
    a("v_and_b32 v2, 31, v%d" % vLane)
    a("v_lshrrev_b32 v3, 5, v%d" % vLane)
    a("v_cmp_eq_u32 s[%d:%d], 1, v3" % (sHi, sHi + 1))
    a("v_lshrrev_b32 v10, 1, v2")
    a("v_and_b32 v10, 7, v10")
    a("s_lshl_b32 s%d, s%d, 13" % (sT0, sMt))
    a("v_lshl_add_u32 v11, v2, 7, s%d" % sT0)
    for p in range(4):
        a("v_add_u32 v12, %d, v3" % (2 * p))
        a("v_xor_b32 v12, v12, v10")
        a("v_lshl_add_u32 v%d, v12, 4, v11" % vXr[p])
    a("v_bfe_u32 v12, v%d, 2, 2" % vLane)
    a("v_lshl_add_u32 v13, v3, 3, v12")
    a("v_lshlrev_b32 v13, 8, v13")
    a("v_bfe_u32 v14, v%d, 4, 1" % vLane)
    a("v_lshl_add_u32 v13, v14, 5, v13")
    a("v_and_b32 v14, 3, v%d" % vLane)
    a("v_lshl_add_u32 v13, v14, 3, v13")
    a("v_add_u32 v13, 0x4000, v13")
    a("s_lshl_b32 s%d, s%d, 1" % (sT0, sNt))
    a("v_xor_b32 v14, s%d, v12" % sT0)
    a("v_lshl_add_u32 v%d, v14, 6, v13" % vWr[0])
    a("v_xor_b32 v%d, 64, v%d" % (vWr[1], vWr[0]))
    for r in range(64, 128):
        a("v_mov_b32 v%d, 0" % r)
    for r in list(range(136, 144)) + list(range(152, 176)) + list(range(180, 188)):
        a("v_mov_b32 v%d, 0" % r)
    a("v_bfe_u32 v12, v%d, 4, 1" % vLane)
    a("v_and_b32 v13, 1, v%d" % vLane)
    a("v_cmp_eq_u32 vcc, v12, v13")
    a("v_cmp_eq_u32 s[56:57], 1, v12")
    a("v_mov_b32 v14, 0x3f803f80")
    a("v_cndmask_b32 v%d, 0, v14, vcc" % SEL)
    for i in range(1, 4):
        a("v_mov_b32 v%d, v%d" % (SEL + i, SEL))
    def csum(buf, n):
        a("v_mfma_f32_16x16x32_bf16 %s, %s, %s, %s" % (v(CSA[n], 4), v(SEL, 4), v(WB[buf][n], 4), v(CSA[n], 4)))
    def xread(p, buf, m):
        a("ds_read_b128 %s, v%d offset:%d" % (v(XB[buf][m], 4), vXr[p], m * 4096))
    def wread(p, buf, n, t):
        a("ds_read_b64_tr_b16 %s, v%d offset:%d" % (v(WB[buf][n] + 2 * t, 2), vWr[n], p * 4096 + t * 1024))
    def mm(kind, buf, m, n):
        if kind == 0:
            a("v_mfma_f32_32x32x16_bf16 %s, %s, %s, %s" % (v(acc[m][n], 16), v(WB[buf][n], 4), v(XB[buf][m], 4), v(acc[m][n], 16)))
        else:
            a("v_mfma_f32_32x32x16_bf16 %s, %s, %s, %s" % (v(acc[m][n], 16), v(XB[buf][m], 4), v(WB[buf][n], 4), v(acc[m][n], 16)))
    def step(kind, cur, p, filler=None):
        nxt = cur ^ 1
        a("s_waitcnt lgkmcnt(3)")
        mm(kind, cur, 0, 0)
        xread(p, nxt, 0); wread(p, nxt, 0, 0); wread(p, nxt, 0, 1)
        csum(cur, 0)
        a("s_waitcnt lgkmcnt(4)")
        mm(kind, cur, 0, 1)
        wread(p, nxt, 1, 0); wread(p, nxt, 1, 1); xread(p, nxt, 1)
        csum(cur, 1)
        a("s_waitcnt lgkmcnt(6)")
        mm(kind, cur, 1, 0)
        if filler: filler(0)
        mm(kind, cur, 1, 1)
        if filler: filler(1)
    def adv(h):
        regs = (vXr + vWr)[3 * h:3 * h + 3]
        for r in regs:
            a("v_add_u32 v%d, 0x8000, v%d" % (r, r))
        for r in regs:
            a("v_and_b32 v%d, 0x1ffff, v%d" % (r, r))
    def main_loop(kind, tag):
        a("s_mov_b32 s%d, 0" % sC)
        a.label("L_g_loop%s" % tag)
        a("s_waitcnt lgkmcnt(0)")
        a("s_barrier")
        stamp(a, "s%d+10" % sC)
        step(kind, 1, 0)
        step(kind, 0, 1)
        step(kind, 1, 2)
        step(kind, 0, 3, adv)
        a("s_add_u32 s%d, s%d, 1" % (sC, sC))
        a("s_cmp_lt_u32 s%d, 8" % sC)
        a("s_cbranch_scc1 L_g_loop%s" % tag)
        stamp(a, 20)
    vM, vRs, vCs = [10, 11], [12, 14], [16, 17]
    def stat_reads(kind):
        a("v_lshlrev_b32 v18, 2, v2")
        a("s_lshl_b32 s%d, s%d, 8" % (sT0, sMt))
        a("s_add_u32 s%d, s%d, %d" % (sT0, sT0, G_ST))
        a("v_add_u32 v19, s%d, v18" % sT0)
        for m in range(2):
            a("ds_read_b32 v%d, v19 offset:%d" % (vM[m], m * 128))
        if kind == 0:
            for m in range(2):
                a("ds_read_b32 v%d, v19 offset:%d" % (vRs[m], 512 + m * 128))
        else:
            a("v_lshl_add_u32 v19, v3, 4, s%d" % sT0)
            for m in range(2):
                for j in range(4):
                    a("ds_read_b128 %s, v19 offset:%d" % (v(24 + 16 * m + 4 * j, 4), 512 + m * 128 + j * 32))
    def last_step(kind):
        a("s_waitcnt lgkmcnt(%d)" % (4 if kind == 0 else 10))
        csum(1, 0)
        csum(1, 1)
        for m in range(2):
            for n in range(2):
                mm(kind, 1, m, n)
    def correction(kind, nwait):
        a("s_waitcnt lgkmcnt(%d)" % nwait)
        for m in range(2):
            a("v_sub_f32 v20, 0, v%d" % vM[m])
            a("v_cvt_pk_bf16_f32 v%d, v20, 0" % NM[m])
        for n in range(2):
            a("v_cndmask_b32 v%d, v%d, v%d, s[56:57]" % (vCs[n], CSA[n], CSA[n] + 1))
        for n in range(2):
            a("v_cvt_pk_bf16_f32 v20, v%d, v%d" % (vCs[n], vCs[n]))
            a("v_and_b32 v20, 0xffff0000, v20")
            a("v_sub_f32 v20, v%d, v20" % vCs[n])
            a("v_cndmask_b32 v20, v%d, v20, s[%d:%d]" % (vCs[n], sHi, sHi + 1))
            a("v_cvt_pk_bf16_f32 v%d, v20, 0" % CSF[n])
        a("s_nop 1")
        for m in range(2):
            for n in range(2):
                if kind == 0:
                    a("v_mfma_f32_32x32x16_bf16 %s, %s, %s, %s" % (v(acc[m][n], 16), v(CSF[n], 4), v(NM[m], 4), v(acc[m][n], 16)))
                else:
                    a("v_mfma_f32_32x32x16_bf16 %s, %s, %s, %s" % (v(acc[m][n], 16), v(NM[m], 4), v(CSF[n], 4), v(acc[m][n], 16)))
    def store_bases():
        a("s_and_b32 s%d, s%d, 3" % (sT0, sCb))
        a("s_lshl_b32 s%d, s%d, 3" % (sT0, sT0))
        a("s_lshl_b32 s%d, s%d, 2" % (sT1, sNt))
        a("s_add_u32 s%d, s%d, s%d" % (sT0, sT0, sT1))
        a("s_lshl_b32 s%d, s%d, 16" % (sT0, sT0))
        a("s_lshl_b32 s%d, s%d, 2" % (sT1, sRb))
        a("s_lshl_b32 s50, s%d, 1" % sMt)
        a("s_add_u32 s%d, s%d, s50" % (sT1, sT1))
        a("s_lshl_b32 s%d, s%d, 10" % (sT1, sT1))
        a("s_add_u32 s50, s%d, s%d" % (sT0, sT1))
        a("s_lshr_b32 s%d, s%d, 2" % (sT0, sCb))
        a("s_lshl_b32 s%d, s%d, 21" % (sT0, sT0))
        a("s_add_u32 s50, s50, s%d" % sT0)
    a("s_cmp_ge_u32 s%d, 8" % sCb)
    a("s_cbranch_scc1 L_g_v")
    main_loop(0, "q")
    stat_reads(0)
    last_step(0)
    store_bases()
    correction(0, 2)
    a("s_cmp_lt_u32 s%d, 4" % sCb)
    a("s_cselect_b32 s51, %s, 1.0" % fhex(QSCALE))
    a("v_lshlrev_b32 v21, 4, v%d" % vLane)
    a("s_waitcnt lgkmcnt(0)")
    for m in range(2):
        a("v_mul_f32 v%d, s51, v%d" % (vRs[m], vRs[m]))
    a("s_nop 4")
    for m in range(2):
        for n in range(2):
            A = acc[m][n]
            P = XB[0][0] + 8 * ((2 * m + n) % 2)
            for i in range(8):
                a("v_pk_mul_f32 %s, %s, %s op_sel_hi:[1,0]" % (v(A + 2 * i, 2), v(A + 2 * i, 2), v(vRs[m], 2)))
            for i in range(8):
                a("v_cvt_pk_bf16_f32 v%d, v%d, v%d" % (A + i, A + 2 * i, A + 2 * i + 1))
            a("s_add_u32 s52, s50, %d" % (m * 1024 + n * 0x20000))
            a("s_add_u32 s53, s52, 0x10000")
            a("buffer_store_dwordx4 %s, v21, s[%d:%d], s52 offen%s" % (v(A, 4), sWS, sWS + 3, QST))
            a("buffer_store_dwordx4 %s, v21, s[%d:%d], s53 offen%s" % (v(A + 4, 4), sWS, sWS + 3, QST))
    a("s_branch L_g_fin")
    a.label("L_g_v")
    main_loop(1, "v")
    stat_reads(1)
    last_step(1)
    store_bases()
    correction(1, 8)
    a("v_bfe_u32 v21, v%d, 4, 1" % vLane)
    a("v_lshlrev_b32 v21, 16, v21")
    a("v_lshl_add_u32 v21, v3, 8, v21")
    a("v_and_b32 v22, 15, v%d" % vLane)
    a("v_lshl_add_u32 v21, v22, 4, v21")
    a("s_waitcnt lgkmcnt(0)")
    a("s_nop 4")
    for m in range(2):
        for n in range(2):
            A = acc[m][n]
            for i in range(8):
                a("v_pk_mul_f32 %s, %s, %s" % (v(A + 2 * i, 2), v(A + 2 * i, 2), v(24 + 16 * m + 2 * i, 2)))
            for i in range(8):
                a("v_cvt_pk_bf16_f32 v%d, v%d, v%d" % (A + i, A + 2 * i, A + 2 * i + 1))
            a("s_add_u32 s52, s50, %d" % (m * 1024 + n * 0x20000))
            a("buffer_store_dwordx4 %s, v21, s[%d:%d], s52 offen%s" % (v(A, 4), sWS, sWS + 3, QST))
            a("buffer_store_dwordx4 %s, v21, s[%d:%d], s52 offen offset:512%s" % (v(A + 4, 4), sWS, sWS + 3, QST))
    a.label("L_g_fin")
    stamp(a, 21)
    stamp_flush(a, 0, sWS, sWave)
    a("s_endpgm")

def gen_k1():
    a = Asm()
    N = "k1_kernel"
    a(kernel_head(N))
    a("s_cmp_ge_u32 s2, %d" % K1_GRID)
    a("s_cbranch_scc1 L_k1_end")
    stamp_begin(a, 255)
    a("s_load_dwordx4 s[4:7], s[0:1], 0")
    a("s_load_dwordx8 s[12:19], s[0:1], 32")
    a("s_load_dwordx4 s[20:23], s[0:1], 72")
    a("v_lshrrev_b32 v2, 6, v0")
    a("v_and_b32 v1, 63, v0")
    a("v_readfirstlane_b32 s%d, v2" % sWave)
    if opt("PF_CODE", 1):
        a("s_cmp_ge_u32 s2, 8")
        a("s_cbranch_scc1 L_k1_nocode")
        a("s_cmp_lt_u32 s%d, 4" % sWave)
        a("s_cbranch_scc1 L_k1_nocode")
        a("s_getpc_b64 s[40:41]")
        a.label("L_k1_anchor")
        a("s_mov_b32 s42, L_code_end-L_k1_anchor")
        a("s_mov_b32 s43, 0x20000")
        a("s_sub_u32 s44, s%d, 4" % sWave)
        a("s_lshl_b32 s44, s44, 13")
        a("v_lshlrev_b32 v3, 7, v1")
        a("v_add_u32 v3, s44, v3")
        a("buffer_load_dword v250, v3, s[40:43], 0 offen") if PROF else a("buffer_load_dword v191, v3, s[40:43], 0 offen")
        a.label("L_k1_nocode")
    a("s_cmp_lt_u32 s2, 64")
    a("s_cbranch_scc1 L_k1_aux")
    a("s_waitcnt lgkmcnt(0)")
    ws_adjust(a, sWSP)
    gen_gemm(a)
    a.label("L_k1_aux")
    a("s_waitcnt lgkmcnt(0)")
    ws_adjust(a, sWSP)
    a("s_or_b32 s24, s2, s%d" % sWave)
    a("s_cmp_lg_u32 s24, 0")
    a("s_cbranch_scc1 L_k1_non")
    a("s_memrealtime s[60:61]")
    srd(a, 24, sDBG, 256)
    a("v_mov_b32 v3, 0")
    a("s_waitcnt lgkmcnt(0)")
    a("s_or_b32 s60, s60, 1")
    a("v_mov_b32 v4, s60")
    a("s_mov_b32 exec_lo, 1")
    a("s_mov_b32 exec_hi, 0")
    a("buffer_store_dword v4, v3, s[24:27], 0 offen sc1")
    a("s_mov_b64 exec, -1")
    a.label("L_k1_non")
    a("s_cmp_gt_u32 s2, 32")
    a("s_cbranch_scc1 L_k1_end")
    a("s_cmp_eq_u32 s2, 32")
    a("s_cbranch_scc1 L_k1_topk")
    gen_e(a)
    a.label("L_k1_topk")
    gen_topk(a)
    a.label("L_k1_end")
    a("s_endpgm")
    return a.text(), (256 if PROF else 192)
```

```python
from dsl import *

WS_QF = 0x000000
WS_KF = 0x200000
WS_VF = 0x400000
WS_OF = WS_QF
WS_REC = 0x800000
WS_CSR = 0x808000
WS_SEL = 0x80e000
WS_PART = 0x810000
WS_SIZE = 0xD00000 if PROF else 0x900000
NSLICE = 28
K1_GRID = 256

QSCALE = 0.25 * 1.4426950408889634
LOG2E = 1.4426950408889634

def fhex(x):
    import struct
    return "0x%08x" % struct.unpack("<I", struct.pack("<f", x))[0]

G_ST = 131072
G_LDS = G_ST + 1024
K1_LDS = G_LDS

sXP, sWP, sWRP, sWGP, sWUP, sWDP, sDBG, sWSP = 4, 6, 12, 14, 16, 18, 20, 22
sWave = 3

def wave_max_u32(a, t):
    for dp in ["quad_perm:[1,0,3,2] row_mask:0xf", "quad_perm:[2,3,0,1] row_mask:0xf", "row_half_mirror row_mask:0xf", "row_mirror row_mask:0xf",
               "row_bcast:15 row_mask:0xa", "row_bcast:31 row_mask:0xc"]:
        a("s_nop 1")
        a("v_max_u32_dpp v%d, v%d, v%d %s bank_mask:0xf" % (t, t, t, dp))

def poll_flags(a, tag, vaddr, srdreg, lanes_mask_lo, tmp):
    a("s_mov_b32 s98, 0")
    a.label("L_poll_%s" % tag)
    a("buffer_load_dword v%d, v%d, s[%d:%d], 0 offen sc1" % (tmp, vaddr, srdreg, srdreg + 3))
    a("s_add_u32 s98, s98, 1")
    a("s_waitcnt vmcnt(0)")
    a("v_cmp_eq_u32 vcc, 0, v%d" % tmp)
    a("s_cmp_gt_u32 s98, 0x40000")
    a("s_cbranch_scc1 L_polld_%s" % tag)
    a("s_and_b32 s99, vcc_lo, 0x%x" % lanes_mask_lo)
    a("s_cbranch_scc0 L_polld_%s" % tag)
    a("s_sleep 8")
    a("s_branch L_poll_%s" % tag)
    a.label("L_polld_%s" % tag)

def get_nonce(a, tag, sdb, vtmp, vzero, sdst):
    a("v_mov_b32 v%d, 0" % vzero)
    a("s_mov_b32 s98, 0")
    a.label("L_nonce_%s" % tag)
    a("buffer_load_dword v%d, v%d, s[%d:%d], 0 offen sc1" % (vtmp, vzero, sdb, sdb + 3))
    a("s_add_u32 s98, s98, 1")
    a("s_waitcnt vmcnt(0)")
    a("v_readfirstlane_b32 s%d, v%d" % (sdst, vtmp))
    a("s_cmp_gt_u32 s98, 0x40000")
    a("s_cbranch_scc1 L_nonced_%s" % tag)
    a("s_cmp_lg_u32 s%d, 0" % sdst)
    a("s_cbranch_scc1 L_nonced_%s" % tag)
    a("s_sleep 4")
    a("s_branch L_nonce_%s" % tag)
    a.label("L_nonced_%s" % tag)

def gen_e(a):
    vLane = 1
    sX, sW, sWS, sDb, sWR = 24, 28, 32, 36, 40
    sT0, sT1, sEb, sStrip, sTag = 44, 45, 49, 50, 51
    L_CS = 0
    srd(a, sX, sXP, 2048 * 1024)
    srd(a, sWR, sWRP, 1024)
    a("s_and_b32 s%d, s2, 1" % sT0)
    a("s_bfe_u32 s%d, s2, 0x20001" % sT1)
    a("s_lshr_b32 s46, s2, 3")
    a("s_lshl_b32 s%d, s%d, 3" % (sEb, sT1))
    a("s_lshl_b32 s47, s%d, 2" % sT0)
    a("s_add_u32 s%d, s%d, s47" % (sEb, sEb))
    a("s_add_u32 s%d, s%d, s46" % (sEb, sEb))
    a("v_lshrrev_b32 v2, 4, v%d" % vLane)
    a("v_and_b32 v3, 15, v%d" % vLane)
    a("v_lshlrev_b32 v3, 4, v3")
    a("v_lshl_add_u32 v4, v2, 10, v3")
    WP = 16
    a("s_lshl_b32 s%d, s%d, 6" % (sT0, sEb))
    a("s_lshl_b32 s%d, s%d, 3" % (sT1, sWave))
    a("s_add_u32 s46, s%d, s%d" % (sT0, sT1))
    a("s_lshl_b32 s47, s46, 10")
    XP = 32
    for g in range(2):
        for q in range(4):
            a("buffer_load_dwordx4 %s, v4, s[%d:%d], s47 offen offset:%d" % (v(XP + 16 * g + 4 * q, 4), sX, sX + 3, q * 256))
        if g == 0:
            for q in range(4):
                a("buffer_load_dwordx4 %s, v3, s[%d:%d], 0 offen offset:%d" % (v(WP + 4 * q, 4), sWR, sWR + 3, q * 256))
            a("s_add_u32 s47, s47, 4096")
    srd(a, sDb, sDBG, 256)
    a("v_mov_b32 v13, 0")
    a("buffer_load_dword v12, v13, s[%d:%d], 0 offen sc1" % (sDb, sDb + 3))
    stamp(a, 1)
    srd(a, sWS, sWSP, WS_SIZE)
    a("v_mov_b32 v5, 0x3f803f80")
    a("v_mov_b32 v8, 0")
    a("v_add_u32 v15, s46, v2")
    dps = ["quad_perm:[1,0,3,2]", "quad_perm:[2,3,0,1]", "row_half_mirror", "row_mirror"]
    a("s_waitcnt vmcnt(5)")
    for i in range(16):
        a("v_dot2_f32_bf16 v8, v%d, v5, v8" % (WP + i))
    A0, A1, A2 = 9, 10, 11
    OUT = [100, 104]
    for g in range(2):
        if g == 1:
            a("s_waitcnt vmcnt(1)")
        if g == 0:
            stamp(a, 2)
        a("v_mov_b32 v%d, 0" % A0); a("v_mov_b32 v%d, 0" % A1); a("v_mov_b32 v%d, 0" % A2)
        for i in range(16):
            x = XP + 16 * g + i
            a("v_dot2_f32_bf16 v%d, v%d, v5, v%d" % (A0, x, A0))
            a("v_dot2_f32_bf16 v%d, v%d, v%d, v%d" % (A1, x, x, A1))
            a("v_dot2_f32_bf16 v%d, v%d, v%d, v%d" % (A2, x, WP + i, A2))
        a("s_nop 2")
        for dp in dps:
            for r in ((A0, A1, A2, 8) if g == 0 else (A0, A1, A2)):
                a("v_add_f32_dpp v%d, v%d, v%d %s row_mask:0xf bank_mask:0xf" % (r, r, r, dp))
        M, RS, KEY = OUT[g], OUT[g] + 1, OUT[g] + 2
        a("v_mul_f32 v%d, %s, v%d" % (M, fhex(1.0 / 512), A0))
        a("v_mul_f32 v14, %s, v%d" % (fhex(1.0 / 512), A1))
        a("v_fma_f32 v14, -v%d, v%d, v14" % (M, M))
        a("v_max_f32 v14, 0, v14")
        bf16r(a, "v%d" % M, "v%d" % M)
        bf16r(a, "v14", "v14")
        a("v_add_f32 v14, %s, v14" % fhex(1e-5))
        bf16r(a, "v14", "v14")
        a("v_sqrt_f32 v14, v14")
        a("s_nop 0")
        bf16r(a, "v14", "v14")
        a("v_rcp_f32 v%d, v14" % RS)
        a("v_fma_f32 v14, -v%d, v8, v%d" % (M, A2))
        a("v_mul_f32 v14, v14, v%d" % RS)
        a("v_cvt_pk_bf16_f32 v14, v14, v14")
        a("v_and_b32 v14, 0xffff, v14")
        a("v_cmp_gt_u32 vcc, 0x8000, v14")
        a("v_xor_b32 v96, 0x8000, v14")
        a("v_xor_b32 v97, 0xffff, v14")
        a("v_sub_u32 v98, 0xffff, v15")
        a("v_cndmask_b32 v14, v97, v96, vcc")
        a("v_lshl_or_b32 v%d, v14, 16, v98" % KEY)
        a("v_add_u32 v15, 4, v15")
    a("s_waitcnt vmcnt(0)")
    a("v_readfirstlane_b32 s%d, v12" % sTag)
    a("v_and_b32 v9, 15, v%d" % vLane)
    a("v_cmp_eq_u32 vcc, 1, v9")
    a("s_nop 1")
    a("s_cmp_lg_u32 s%d, 0" % sTag)
    a("s_cbranch_scc1 L_e_tag")
    get_nonce(a, "e", sDb, 12, 13, sTag)
    a.label("L_e_tag")
    for q in range(3):
        a("v_cndmask_b32 v%d, v%d, v%d, vcc" % (OUT[0] + q, OUT[0] + q, OUT[1] + q))
    a("v_mov_b32 v%d, s%d" % (OUT[0] + 3, sTag))
    a("v_lshl_add_u32 v10, v9, 2, v2")
    a("v_add_u32 v10, s46, v10")
    a("v_lshlrev_b32 v10, 4, v10")
    a("s_mov_b32 s47, 0x%x" % WS_REC)
    a("s_mov_b32 exec_lo, 0x00030003")
    a("s_mov_b32 exec_hi, 0x00030003")
    a("buffer_store_dwordx4 %s, v10, s[%d:%d], s47 offen sc1" % (v(OUT[0], 4), sWS, sWS + 3))
    a("s_mov_b64 exec, -1")
    stamp(a, 3)
    a.label("L_e_done")
    stamp_flush(a, 0, sWS, sWave)
    a("s_endpgm")

class Net:
    def __init__(self, a, free):
        self.a = a; self.free = list(free)
    def get(self): return self.free.pop(0)
    def put(self, r): self.free.append(r)
    def ce(self, L, i, j):
        hi, lo = self.get(), self.get()
        self.a("v_max_u32 v%d, v%d, v%d" % (hi, L[i], L[j]))
        self.a("v_min_u32 v%d, v%d, v%d" % (lo, L[i], L[j]))
        self.put(L[i]); self.put(L[j])
        L[i], L[j] = hi, lo
    def sort_bitonic8(self, L):
        for st in ([(0, 4), (1, 5), (2, 6), (3, 7)], [(0, 2), (1, 3), (4, 6), (5, 7)], [(0, 1), (2, 3), (4, 5), (6, 7)]):
            for (i, j) in st: self.ce(L, i, j)
    def top8(self, L, dpp, sort=True):
        T = [None] * 8
        for i in range(7, -1, -1):
            T[i] = self.get()
            self.a("v_max_u32_dpp v%d, v%d, v%d %s bank_mask:0xf" % (T[i], L[7 - i], L[i], dpp))
        for r in L: self.put(r)
        if sort: self.sort_bitonic8(T)
        return T

def top8_wave(a, keys, free, wave_sgpr, lds_cand):
    n = Net(a, free)
    L = list(keys)
    for (i, j) in ((0,1),(2,3),(4,5),(6,7),(0,2),(1,3),(4,6),(5,7),(1,2),(5,6),(0,4),(3,7),(1,5),(2,6),(1,4),(3,6),(2,4),(3,5),(3,4)):
        n.ce(L, i, j)
    a("s_nop 0")
    for dp in ("quad_perm:[1,0,3,2] row_mask:0xf", "quad_perm:[2,3,0,1] row_mask:0xf", "row_half_mirror row_mask:0xf", "row_mirror row_mask:0xf",
               "row_bcast:15 row_mask:0xa", "row_bcast:31 row_mask:0xc"):
        L = n.top8(L, dp)
    base = (max(free) + 4) // 4 * 4
    for i in range(8):
        a("v_mov_b32 v%d, v%d" % (base + i, L[i]))
    adr = n.get()
    a("s_lshl_b32 s98, s%d, 5" % wave_sgpr)
    a("s_add_u32 s98, s98, %d" % lds_cand)
    a("v_mov_b32 v%d, s98" % adr)
    a("s_mov_b32 exec_lo, 0")
    a("s_mov_b32 exec_hi, 0x80000000")
    a("ds_write_b128 v%d, %s" % (adr, v(base, 4)))
    a("ds_write_b128 v%d, %s offset:16" % (adr, v(base + 4, 4)))
    a("s_mov_b64 exec, -1")

def top8_final(a, free, lds_cand):
    n = Net(a, free)
    base = (max(free) + 4) // 4 * 4
    adr = n.get()
    a("v_mbcnt_lo_u32_b32 v%d, -1, 0" % adr)
    a("v_mbcnt_hi_u32_b32 v%d, -1, v%d" % (adr, adr))
    a("v_and_b32 v%d, 3, v%d" % (adr, adr))
    a("v_lshlrev_b32 v%d, 5, v%d" % (adr, adr))
    a("v_add_u32 v%d, %d, v%d" % (adr, lds_cand, adr))
    a("ds_read_b128 %s, v%d" % (v(base, 4), adr))
    a("ds_read_b128 %s, v%d offset:16" % (v(base + 4, 4), adr))
    L = [base + i for i in range(8)]
    a("s_waitcnt lgkmcnt(0)")
    L = n.top8(L, "quad_perm:[1,0,3,2] row_mask:0xf")
    L = n.top8(L, "quad_perm:[2,3,0,1] row_mask:0xf")
    return L

def gen_topk(a):
    vLane = 1
    sWS, sDb = 24, 40
    sT0, sT1, sTag = 45, 46, 48
    T_CAND = 0
    srd(a, sWS, sWSP, WS_SIZE)
    srd(a, sDb, sDBG, 256)
    a("s_cmp_ge_u32 s%d, 4" % sWave)
    a("s_cbranch_scc1 L_tk_sync")
    get_nonce(a, "tk", sDb, 12, 13, sTag)
    stamp(a, 1)
    a("v_lshlrev_b32 v3, 4, v0")
    a("s_mov_b32 s98, 0")
    a.label("L_tk_poll")
    a("s_mov_b32 s%d, 0x%x" % (sT0, WS_REC))
    for q in range(8):
        a("buffer_load_dwordx2 %s, v3, s[%d:%d], s%d offen offset:8 sc1" % (v(96 + 2 * q, 2), sWS, sWS + 3, sT0))
        if q < 7:
            a("s_add_u32 s%d, s%d, 4096" % (sT0, sT0))
    a("s_add_u32 s98, s98, 1")
    a("s_waitcnt vmcnt(0)")
    for q in range(8):
        a("v_xor_b32 v%d, s%d, v%d" % (97 + 2 * q, sTag, 97 + 2 * q))
    a("v_or3_b32 v4, v97, v99, v101")
    a("v_or3_b32 v5, v103, v105, v107")
    a("v_or3_b32 v4, v4, v109, v111")
    a("v_or_b32 v4, v4, v5")
    a("v_cmp_ne_u32 vcc, 0, v4")
    a("s_cmp_gt_u32 s98, 0x40000")
    a("s_cbranch_scc1 L_tk_go")
    a("s_cmp_eq_u64 vcc, 0")
    a("s_cbranch_scc1 L_tk_go")
    a("s_sleep 2")
    a("s_branch L_tk_poll")
    a.label("L_tk_go")
    stamp(a, 3)
    top8_wave(a, [96 + 2 * q for q in range(8)], [97 + 2 * q for q in range(8)] + list(range(14, 24)) + [112, 113], sWave, T_CAND)
    a("s_waitcnt lgkmcnt(0)")
    a.label("L_tk_sync")
    a("s_barrier")
    stamp(a, 4)
    a("s_cmp_lg_u32 s%d, 0" % sWave)
    a("s_cbranch_scc1 L_tk_done")
    R = top8_final(a, list(range(96, 114)), T_CAND)
    vRes = 20
    a("v_mov_b32 v%d, v%d" % (vRes, R[0]))
    for jx in range(1, 8):
        a("v_cmp_eq_u32 vcc, %d, v%d" % (jx, vLane))
        a("s_nop 1")
        a("v_cndmask_b32 v%d, v%d, v%d, vcc" % (vRes, vRes, R[jx]))
    stamp(a, 5)
    a("v_and_b32 v8, 0xffff, v%d" % vRes)
    a("v_sub_u32 v8, 0xffff, v8")
    a("v_lshrrev_b32 v9, 16, v%d" % vRes)
    a("v_cmp_le_u32 vcc, 0x8000, v9")
    a("v_xor_b32 v10, 0x8000, v9")
    a("v_xor_b32 v11, 0xffff, v9")
    a("v_cndmask_b32 v9, v11, v10, vcc")
    a("v_lshlrev_b32 v9, 16, v9")
    a("v_mul_f32 v9, %s, v9" % fhex(-LOG2E))
    a("v_exp_f32 v9, v9")
    a("s_nop 0")
    a("v_add_f32 v9, 1.0, v9")
    a("v_rcp_f32 v9, v9")
    a("s_nop 0")
    bf16r(a, "v9", "v9")
    a("v_lshlrev_b32 v10, 2, v%d" % vLane)
    a("s_mov_b32 s%d, 0x%x" % (sT0, WS_SEL))
    a("s_mov_b32 exec_lo, 0xff")
    a("s_mov_b32 exec_hi, 0")
    a("buffer_store_dword v8, v10, s[%d:%d], s%d offen" % (sWS, sWS + 3, sT0))
    a("buffer_store_dword v9, v10, s[%d:%d], s%d offen offset:32" % (sWS, sWS + 3, sT0))
    a("s_mov_b64 exec, -1")
    a.label("L_tk_done")
    stamp_flush(a, 0, sWS, sWave)
    a("s_endpgm")

def gen_codepf(a):
    a("s_cmp_ge_u32 s%d, 4" % sWave)
    a("s_cbranch_scc1 L_k1_end")
    a("s_getpc_b64 s[40:41]")
    a.label("L_k1_anchor")
    a("s_mov_b32 s42, L_code_end-L_k1_anchor")
    a("s_mov_b32 s43, 0x20000")
    a("s_lshl_b32 s44, s%d, 13" % sWave)
    a("v_lshlrev_b32 v3, 7, v1")
    a("v_add_u32 v3, s44, v3")
    a("buffer_load_dword v4, v3, s[40:43], 0 offen")
    a("s_endpgm")

def gen_tlb(a):
    step = opt("PF_TLB")
    a("s_load_dwordx2 s[40:41], s[0:1], 16")
    a("s_load_dwordx2 s[42:43], s[0:1], 64")
    a("v_mul_u32_u24 v3, %d, v1" % 1)
    a("v_lshlrev_b32 v3, %d, v1" % (step.bit_length() - 1))
    a("s_waitcnt lgkmcnt(0)")
    r = 16
    for (ptr, nbytes) in ((sWGP, 512 * 3584), (sWUP, 512 * 3584), (sWDP, 1792 * 1024), (40, 512 * 1024), (42, 2048 * 1024), (sWSP, WS_SIZE)):
        srd(a, 32, ptr, nbytes)
        a("s_mul_i32 s44, s%d, %d" % (sWave, 64 * step))
        a("v_add_u32 v4, s44, v3")
        a("buffer_load_dword v%d, v4, s[32:35], 0 offen" % r); r += 1
    a("s_endpgm")

def gen_touch(a):
    sB, sC4 = 32, 36
    srd(a, sB, sXP, 2048 * 1024)
    srd(a, sC4, sWP, 512 * 3072)
    a("s_sub_u32 s46, s2, 33")
    a("s_lshl_b32 s46, s46, 3")
    a("s_add_u32 s46, s46, s%d" % sWave)
    a("v_lshlrev_b32 v10, 10, v1")
    a("v_lshlrev_b32 v11, 7, v1")
    for rnd in range(2):
        if rnd:
            a("s_add_u32 s46, s46, 248")
            a("s_cmp_ge_u32 s46, 336")
            a("s_cbranch_scc1 L_pf_end")
        a("s_mul_i32 s47, s46, 1171")
        a("s_lshr_b32 s47, s47, 16")
        a("s_mul_i32 s48, s47, 56")
        a("s_sub_u32 s48, s46, s48")
        a("s_add_u32 s47, s47, %d" % opt("PF_C0", 2))
        a("s_cmp_ge_u32 s48, 32")
        a("s_cbranch_scc1 L_pf_w%d" % rnd)
        a("s_lshl_b32 s49, s48, 16")
        a("s_lshl_b32 s50, s47, 7")
        a("s_add_u32 s49, s49, s50")
        a("buffer_load_dword v%d, v10, s[%d:%d], s49 offen" % (40 + rnd, sB, sB + 3))
        a("s_branch L_pf_n%d" % rnd)
        a.label("L_pf_w%d" % rnd)
        a("s_sub_u32 s48, s48, 32")
        a("s_lshl_b32 s49, s48, 13")
        a("s_mul_i32 s50, s47, 196608")
        a("s_add_u32 s49, s49, s50")
        a("buffer_load_dword v%d, v11, s[%d:%d], s49 offen" % (40 + rnd, sC4, sC4 + 3))
        a.label("L_pf_n%d" % rnd)
    a.label("L_pf_end")
    a("s_endpgm")

def gen_gemm(a):
    QST = " sc1" if opt("ST_QKV_SC1") else ""
    vLane = 1
    sX, sW, sWS, sDb = 24, 28, 32, 36
    sRb, sCb, sT0, sT1, sC, sSlot = 40, 41, 42, 43, 44, 45
    a("s_sub_u32 s%d, s2, 64" % sT0)
    a("s_and_b32 s%d, s%d, 7" % (sT1, sT0))
    a("s_lshr_b32 s%d, s%d, 3" % (sT0, sT0))
    a("s_lshr_b32 s%d, s%d, 1" % (sRb, sT1))
    a("s_lshl_b32 s%d, s%d, 2" % (sRb, sRb))
    a("s_and_b32 s46, s%d, 3" % sT0)
    a("s_add_u32 s%d, s%d, s46" % (sRb, sRb))
    a("s_and_b32 s%d, s%d, 1" % (sCb, sT1))
    a("s_mul_i32 s%d, s%d, 6" % (sCb, sCb))
    a("s_lshr_b32 s%d, s%d, 2" % (sT0, sT0))
    a("s_add_u32 s%d, s%d, s%d" % (sCb, sCb, sT0))
    srd(a, sWS, sWSP, WS_SIZE)
    a("s_cmp_ge_u32 s%d, 4" % sWave)
    a("s_cbranch_scc0 L_g_cons")
    vXa, vXb, vW = 10, 11, 12
    sLw, sXg, sXg2, sWg, sL4 = 46, 47, 48, 49, 50
    srd(a, sX, sXP, 2048 * 1024)
    srd(a, sW, sWP, 512 * 3072)
    a("s_sub_u32 s%d, s%d, 4" % (sLw, sWave))
    a("v_lshrrev_b32 v2, 3, v%d" % vLane)
    a("v_and_b32 v3, 7, v%d" % vLane)
    a("v_lshrrev_b32 v4, 1, v2")
    a("v_xor_b32 v3, v3, v4")
    a("v_xor_b32 v4, 4, v3")
    a("v_lshlrev_b32 v2, 10, v2")
    a("v_lshl_add_u32 v%d, v3, 4, v2" % vXa)
    a("v_lshl_add_u32 v%d, v4, 4, v2" % vXb)
    a("v_add_u32 v%d, 0x2000, v%d" % (vXb, vXb))
    a("v_lshrrev_b32 v2, 4, v%d" % vLane)
    a("v_bfe_u32 v3, v%d, 2, 2" % vLane)
    a("v_xor_b32 v3, v3, v2")
    a("v_and_b32 v4, 3, v%d" % vLane)
    a("v_lshl_add_u32 v3, v3, 2, v4")
    a("v_mul_u32_u24 v2, 0xc00, v2")
    a("v_lshl_add_u32 v%d, v3, 4, v2" % vW)
    for i in range(1, 4):
        a("v_add_u32 v%d, %d, v%d" % (vW + i, i * 12288, vW))
    a("s_lshl_b32 s%d, s%d, 17" % (sXg, sRb))
    a("s_lshl_b32 s%d, s%d, 15" % (sT0, sLw))
    a("s_add_u32 s%d, s%d, s%d" % (sXg, sXg, sT0))
    a("s_mul_i32 s%d, s%d, %d" % (sWg, sLw, 16 * 3072))
    a("s_lshl_b32 s%d, s%d, 8" % (sT0, sCb))
    a("s_add_u32 s%d, s%d, s%d" % (sWg, sWg, sT0))
    a("s_lshl_b32 s%d, s%d, 12" % (sL4, sLw))
    a("s_mov_b32 s%d, 0" % sSlot)
    def issue():
        a("s_add_u32 s%d, s%d, 0x4000" % (sXg2, sXg))
        a("s_add_u32 m0, s%d, s%d" % (sSlot, sL4))
        a("s_nop 0")
        for i in range(4):
            a("buffer_load_dwordx4 v%d, s[%d:%d], s%d offen%s lds" % (vXa if i % 2 == 0 else vXb, sX, sX + 3, sXg if i < 2 else sXg2, " nt" if opt("NT_X") else ""))
            a("s_add_u32 m0, m0, %d" % (1024 if i < 3 else 13312))
            a("s_nop 0")
        for i in range(4):
            a("buffer_load_dwordx4 v%d, s[%d:%d], s%d offen%s lds" % (vW + i, sW, sW + 3, sWg, " nt" if opt("NT_W") else ""))
            if i < 3:
                a("s_add_u32 m0, m0, 1024")
                a("s_nop 0")
        a("s_add_u32 s%d, s%d, 128" % (sXg, sXg))
        a("s_add_u32 s%d, s%d, %d" % (sWg, sWg, 64 * 3072))
        a("s_add_u32 s%d, s%d, 0x8000" % (sSlot, sSlot))
        a("s_and_b32 s%d, s%d, 0x1ffff" % (sSlot, sSlot))
    a("s_mov_b32 s%d, 0" % sC)
    a.label("L_g_lpro")
    issue()
    a("s_add_u32 s%d, s%d, 1" % (sC, sC))
    a("s_cmp_lt_u32 s%d, 2" % sC)
    a("s_cbranch_scc1 L_g_lpro")
    stamp(a, 1)
    a("s_mov_b32 s%d, 0" % sC)
    a.label("L_g_lloop")
    a("s_waitcnt vmcnt(8)")
    stamp(a, "s%d+10" % sC)
    a("s_barrier")
    issue()
    a("s_add_u32 s%d, s%d, 1" % (sC, sC))
    a("s_cmp_lt_u32 s%d, 4" % sC)
    a("s_cbranch_scc1 L_g_lloop")
    if opt("PF_MOE", 1):
        a("s_load_dwordx2 s[58:59], s[0:1], 16")
        a("s_sub_u32 s60, s2, 64")
        a("s_and_b32 s62, s60, 7")
        a("s_lshr_b32 s60, s60, 3")
        a("s_lshl_b32 s60, s60, 2")
        a("s_add_u32 s60, s60, s%d" % sLw)
        a("s_mul_i32 s61, s60, 2731")
        a("s_lshr_b32 s61, s61, 16")
        a("s_mul_i32 s63, s61, 24")
        a("s_sub_u32 s63, s60, s63")
        a("s_lshl_b32 s61, s61, 3")
        a("s_add_u32 s61, s61, s62")
        a("s_waitcnt lgkmcnt(0)")
        a("v_mul_u32_u24 v20, 0xe00, v%d" % vLane)
        a("v_lshlrev_b32 v22, 7, v%d" % vLane)
        a("s_mov_b32 s64, s%d" % sWGP); a("s_mov_b32 s65, s%d" % (sWGP + 1))
        a("s_mov_b32 s66, %d" % (512 * 3584)); a("s_mov_b32 s67, 0x20000")
        a("s_cmp_ge_u32 s63, 8")
        a("s_cselect_b32 s64, s%d, s64" % sWUP); a("s_cselect_b32 s65, s%d, s65" % (sWUP + 1))
        a("s_and_b32 s68, s63, 7")
        a("s_mul_i32 s69, s68, %d" % (64 * 3584))
        a("s_lshl_b32 s70, s61, 7")
        a("s_add_u32 s69, s69, s70")
        a("s_cmp_ge_u32 s63, 16")
        a("s_cbranch_scc0 L_g_pfa")
        a("s_mov_b32 s64, s%d" % sWDP); a("s_mov_b32 s65, s%d" % (sWDP + 1))
        a("s_lshl_b32 s69, s61, 16")
        a("s_lshl_b32 s70, s68, 13")
        a("s_add_u32 s69, s69, s70")
        a("v_mov_b32 v20, v22")
        a.label("L_g_pfa")
        a("s_cmp_ge_u32 s61, 28")
        a("s_cbranch_scc0 L_g_pfb")
        a("s_mov_b32 s64, s58"); a("s_mov_b32 s65, s59"); a("s_mov_b32 s66, %d" % (512 * 1024))
        a("s_sub_u32 s69, s62, 4")
        a("s_lshl_b32 s69, s69, 4")
        a("s_and_b32 s70, s63, 15")
        a("s_add_u32 s69, s69, s70")
        a("s_lshl_b32 s69, s69, 13")
        a("v_mov_b32 v20, v22")
        a.label("L_g_pfb")
        a("s_mov_b32 s61, s69")
    srd(a, sDb, sDBG, 256)
    a("v_mov_b32 v4, 0")
    a("s_waitcnt vmcnt(8)")
    a("s_barrier")
    a("buffer_load_dword v5, v4, s[%d:%d], 0 offen sc1" % (sDb, sDb + 3))
    issue()
    a("s_lshl_b32 s%d, s%d, 11" % (sT0, sRb))
    a("s_add_u32 s51, s%d, 0x%x" % (sT0, WS_REC))
    a("v_and_b32 v7, 31, v%d" % vLane)
    a("s_lshl_b32 s%d, s%d, 9" % (sT0, sLw))
    a("v_lshl_add_u32 v6, v7, 4, s%d" % sT0)
    a("s_lshl_b32 s%d, s%d, 7" % (sT0, sLw))
    a("s_add_u32 s%d, s%d, %d" % (sT0, sT0, G_ST))
    a("v_lshl_add_u32 v7, v7, 2, s%d" % sT0)
    a("s_waitcnt vmcnt(8)")
    a("v_readfirstlane_b32 s52, v5")
    a("s_nop 3")
    a("s_cmp_lg_u32 s52, 0")
    a("s_cbranch_scc1 L_g_nonok")
    get_nonce(a, "g", sDb, 5, 4, 52)
    a.label("L_g_nonok")
    a("s_barrier")
    a("buffer_load_dwordx4 v[16:19], v6, s[%d:%d], s51 offen sc1" % (sWS, sWS + 3))
    issue()
    PFN = 1 if opt("PF_MOE", 1) else 0
    if PFN:
        a("buffer_load_dword v21, v20, s[64:67], s61 offen")
    a("s_waitcnt vmcnt(%d)" % (8 + PFN))
    a("s_mov_b32 s98, 0")
    a.label("L_g_rec")
    a("v_cmp_ne_u32 vcc, s52, v19")
    a("s_cmp_gt_u32 s98, 0x40000")
    a("s_cbranch_scc1 L_g_recok")
    a("s_cmp_eq_u64 vcc, 0")
    a("s_cbranch_scc1 L_g_recok")
    a("s_sleep 4")
    a("buffer_load_dwordx4 v[16:19], v6, s[%d:%d], s51 offen sc1" % (sWS, sWS + 3))
    a("s_add_u32 s98, s98, 1")
    a("s_waitcnt vmcnt(0)")
    a("s_branch L_g_rec")
    a.label("L_g_recok")
    a("ds_write_b32 v7, v16")
    a("ds_write_b32 v7, v17 offset:512")
    a("s_barrier")
    a("s_waitcnt vmcnt(%d) lgkmcnt(0)" % PFN)
    a("s_barrier")
    stamp_flush(a, 0, sWS, sWave)
    a("s_endpgm")
    a.label("L_g_cons")
    vXr = [4, 5, 6, 7]
    vWr = [8, 9]
    acc = [[64, 80], [96, 112]]
    XB = [[128, 132], [136, 140]]
    WB = [[144, 148], [152, 156]]
    NM, CSF = [160, 164], [168, 172]
    SEL, CSA = 176, [180, 184]
    sMt, sNt, sHi = 46, 47, 48
    a("s_and_b32 s%d, s%d, 1" % (sMt, sWave))
    a("s_lshr_b32 s%d, s%d, 1" % (sNt, sWave))
    a("v_and_b32 v2, 31, v%d" % vLane)
    a("v_lshrrev_b32 v3, 5, v%d" % vLane)
    a("v_cmp_eq_u32 s[%d:%d], 1, v3" % (sHi, sHi + 1))
    a("v_lshrrev_b32 v10, 1, v2")
    a("v_and_b32 v10, 7, v10")
    a("s_lshl_b32 s%d, s%d, 13" % (sT0, sMt))
    a("v_lshl_add_u32 v11, v2, 7, s%d" % sT0)
    for p in range(4):
        a("v_add_u32 v12, %d, v3" % (2 * p))
        a("v_xor_b32 v12, v12, v10")
        a("v_lshl_add_u32 v%d, v12, 4, v11" % vXr[p])
    a("v_bfe_u32 v12, v%d, 2, 2" % vLane)
    a("v_lshl_add_u32 v13, v3, 3, v12")
    a("v_lshlrev_b32 v13, 8, v13")
    a("v_bfe_u32 v14, v%d, 4, 1" % vLane)
    a("v_lshl_add_u32 v13, v14, 5, v13")
    a("v_and_b32 v14, 3, v%d" % vLane)
    a("v_lshl_add_u32 v13, v14, 3, v13")
    a("v_add_u32 v13, 0x4000, v13")
    a("s_lshl_b32 s%d, s%d, 1" % (sT0, sNt))
    a("v_xor_b32 v14, s%d, v12" % sT0)
    a("v_lshl_add_u32 v%d, v14, 6, v13" % vWr[0])
    a("v_xor_b32 v%d, 64, v%d" % (vWr[1], vWr[0]))
    for r in range(64, 128):
        a("v_mov_b32 v%d, 0" % r)
    for r in list(range(136, 144)) + list(range(152, 176)) + list(range(180, 188)):
        a("v_mov_b32 v%d, 0" % r)
    a("v_bfe_u32 v12, v%d, 4, 1" % vLane)
    a("v_and_b32 v13, 1, v%d" % vLane)
    a("v_cmp_eq_u32 vcc, v12, v13")
    a("v_cmp_eq_u32 s[56:57], 1, v12")
    a("v_mov_b32 v14, 0x3f803f80")
    a("v_cndmask_b32 v%d, 0, v14, vcc" % SEL)
    for i in range(1, 4):
        a("v_mov_b32 v%d, v%d" % (SEL + i, SEL))
    def csum(buf, n):
        a("v_mfma_f32_16x16x32_bf16 %s, %s, %s, %s" % (v(CSA[n], 4), v(SEL, 4), v(WB[buf][n], 4), v(CSA[n], 4)))
    def xread(p, buf, m):
        a("ds_read_b128 %s, v%d offset:%d" % (v(XB[buf][m], 4), vXr[p], m * 4096))
    def wread(p, buf, n, t):
        a("ds_read_b64_tr_b16 %s, v%d offset:%d" % (v(WB[buf][n] + 2 * t, 2), vWr[n], p * 4096 + t * 1024))
    def mm(kind, buf, m, n):
        if kind == 0:
            a("v_mfma_f32_32x32x16_bf16 %s, %s, %s, %s" % (v(acc[m][n], 16), v(WB[buf][n], 4), v(XB[buf][m], 4), v(acc[m][n], 16)))
        else:
            a("v_mfma_f32_32x32x16_bf16 %s, %s, %s, %s" % (v(acc[m][n], 16), v(XB[buf][m], 4), v(WB[buf][n], 4), v(acc[m][n], 16)))
    def step(kind, cur, p, filler=None):
        nxt = cur ^ 1
        a("s_waitcnt lgkmcnt(3)")
        mm(kind, cur, 0, 0)
        xread(p, nxt, 0); wread(p, nxt, 0, 0); wread(p, nxt, 0, 1)
        csum(cur, 0)
        a("s_waitcnt lgkmcnt(4)")
        mm(kind, cur, 0, 1)
        wread(p, nxt, 1, 0); wread(p, nxt, 1, 1); xread(p, nxt, 1)
        csum(cur, 1)
        a("s_waitcnt lgkmcnt(6)")
        mm(kind, cur, 1, 0)
        if filler: filler(0)
        mm(kind, cur, 1, 1)
        if filler: filler(1)
    def adv(h):
        regs = (vXr + vWr)[3 * h:3 * h + 3]
        for r in regs:
            a("v_add_u32 v%d, 0x8000, v%d" % (r, r))
        for r in regs:
            a("v_and_b32 v%d, 0x1ffff, v%d" % (r, r))
    def main_loop(kind, tag):
        a("s_mov_b32 s%d, 0" % sC)
        a.label("L_g_loop%s" % tag)
        a("s_waitcnt lgkmcnt(0)")
        a("s_barrier")
        stamp(a, "s%d+10" % sC)
        step(kind, 1, 0)
        step(kind, 0, 1)
        step(kind, 1, 2)
        step(kind, 0, 3, adv)
        a("s_add_u32 s%d, s%d, 1" % (sC, sC))
        a("s_cmp_lt_u32 s%d, 8" % sC)
        a("s_cbranch_scc1 L_g_loop%s" % tag)
        stamp(a, 20)
    vM, vRs, vCs = [10, 11], [12, 14], [16, 17]
    def stat_reads(kind):
        a("v_lshlrev_b32 v18, 2, v2")
        a("s_lshl_b32 s%d, s%d, 8" % (sT0, sMt))
        a("s_add_u32 s%d, s%d, %d" % (sT0, sT0, G_ST))
        a("v_add_u32 v19, s%d, v18" % sT0)
        for m in range(2):
            a("ds_read_b32 v%d, v19 offset:%d" % (vM[m], m * 128))
        if kind == 0:
            for m in range(2):
                a("ds_read_b32 v%d, v19 offset:%d" % (vRs[m], 512 + m * 128))
        else:
            a("v_lshl_add_u32 v19, v3, 4, s%d" % sT0)
            for m in range(2):
                for j in range(4):
                    a("ds_read_b128 %s, v19 offset:%d" % (v(24 + 16 * m + 4 * j, 4), 512 + m * 128 + j * 32))
    def last_step(kind):
        a("s_waitcnt lgkmcnt(%d)" % (4 if kind == 0 else 10))
        csum(1, 0)
        csum(1, 1)
        for m in range(2):
            for n in range(2):
                mm(kind, 1, m, n)
    def correction(kind, nwait):
        a("s_waitcnt lgkmcnt(%d)" % nwait)
        for m in range(2):
            a("v_sub_f32 v20, 0, v%d" % vM[m])
            a("v_cvt_pk_bf16_f32 v%d, v20, 0" % NM[m])
        for n in range(2):
            a("v_cndmask_b32 v%d, v%d, v%d, s[56:57]" % (vCs[n], CSA[n], CSA[n] + 1))
        for n in range(2):
            a("v_cvt_pk_bf16_f32 v20, v%d, v%d" % (vCs[n], vCs[n]))
            a("v_and_b32 v20, 0xffff0000, v20")
            a("v_sub_f32 v20, v%d, v20" % vCs[n])
            a("v_cndmask_b32 v20, v%d, v20, s[%d:%d]" % (vCs[n], sHi, sHi + 1))
            a("v_cvt_pk_bf16_f32 v%d, v20, 0" % CSF[n])
        a("s_nop 1")
        for m in range(2):
            for n in range(2):
                if kind == 0:
                    a("v_mfma_f32_32x32x16_bf16 %s, %s, %s, %s" % (v(acc[m][n], 16), v(CSF[n], 4), v(NM[m], 4), v(acc[m][n], 16)))
                else:
                    a("v_mfma_f32_32x32x16_bf16 %s, %s, %s, %s" % (v(acc[m][n], 16), v(NM[m], 4), v(CSF[n], 4), v(acc[m][n], 16)))
    def store_bases():
        a("s_and_b32 s%d, s%d, 3" % (sT0, sCb))
        a("s_lshl_b32 s%d, s%d, 3" % (sT0, sT0))
        a("s_lshl_b32 s%d, s%d, 2" % (sT1, sNt))
        a("s_add_u32 s%d, s%d, s%d" % (sT0, sT0, sT1))
        a("s_lshl_b32 s%d, s%d, 16" % (sT0, sT0))
        a("s_lshl_b32 s%d, s%d, 2" % (sT1, sRb))
        a("s_lshl_b32 s50, s%d, 1" % sMt)
        a("s_add_u32 s%d, s%d, s50" % (sT1, sT1))
        a("s_lshl_b32 s%d, s%d, 10" % (sT1, sT1))
        a("s_add_u32 s50, s%d, s%d" % (sT0, sT1))
        a("s_lshr_b32 s%d, s%d, 2" % (sT0, sCb))
        a("s_lshl_b32 s%d, s%d, 21" % (sT0, sT0))
        a("s_add_u32 s50, s50, s%d" % sT0)
    a("s_cmp_ge_u32 s%d, 8" % sCb)
    a("s_cbranch_scc1 L_g_v")
    main_loop(0, "q")
    stat_reads(0)
    last_step(0)
    store_bases()
    correction(0, 2)
    a("s_cmp_lt_u32 s%d, 4" % sCb)
    a("s_cselect_b32 s51, %s, 1.0" % fhex(QSCALE))
    a("v_lshlrev_b32 v21, 4, v%d" % vLane)
    a("s_waitcnt lgkmcnt(0)")
    for m in range(2):
        a("v_mul_f32 v%d, s51, v%d" % (vRs[m], vRs[m]))
    a("s_nop 4")
    for m in range(2):
        for n in range(2):
            A = acc[m][n]
            P = XB[0][0] + 8 * ((2 * m + n) % 2)
            for i in range(8):
                a("v_pk_mul_f32 %s, %s, %s op_sel_hi:[1,0]" % (v(A + 2 * i, 2), v(A + 2 * i, 2), v(vRs[m], 2)))
            for i in range(8):
                a("v_cvt_pk_bf16_f32 v%d, v%d, v%d" % (A + i, A + 2 * i, A + 2 * i + 1))
            a("s_add_u32 s52, s50, %d" % (m * 1024 + n * 0x20000))
            a("s_add_u32 s53, s52, 0x10000")
            a("buffer_store_dwordx4 %s, v21, s[%d:%d], s52 offen%s" % (v(A, 4), sWS, sWS + 3, QST))
            a("buffer_store_dwordx4 %s, v21, s[%d:%d], s53 offen%s" % (v(A + 4, 4), sWS, sWS + 3, QST))
    a("s_branch L_g_fin")
    a.label("L_g_v")
    main_loop(1, "v")
    stat_reads(1)
    last_step(1)
    store_bases()
    correction(1, 8)
    a("v_bfe_u32 v21, v%d, 4, 1" % vLane)
    a("v_lshlrev_b32 v21, 16, v21")
    a("v_lshl_add_u32 v21, v3, 8, v21")
    a("v_and_b32 v22, 15, v%d" % vLane)
    a("v_lshl_add_u32 v21, v22, 4, v21")
    a("s_waitcnt lgkmcnt(0)")
    a("s_nop 4")
    for m in range(2):
        for n in range(2):
            A = acc[m][n]
            for i in range(8):
                a("v_pk_mul_f32 %s, %s, %s" % (v(A + 2 * i, 2), v(A + 2 * i, 2), v(24 + 16 * m + 2 * i, 2)))
            for i in range(8):
                a("v_cvt_pk_bf16_f32 v%d, v%d, v%d" % (A + i, A + 2 * i, A + 2 * i + 1))
            a("s_add_u32 s52, s50, %d" % (m * 1024 + n * 0x20000))
            a("buffer_store_dwordx4 %s, v21, s[%d:%d], s52 offen%s" % (v(A, 4), sWS, sWS + 3, QST))
            a("buffer_store_dwordx4 %s, v21, s[%d:%d], s52 offen offset:512%s" % (v(A + 4, 4), sWS, sWS + 3, QST))
    a.label("L_g_fin")
    stamp(a, 21)
    stamp_flush(a, 0, sWS, sWave)
    a("s_endpgm")

def gen_k1():
    a = Asm()
    N = "k1_kernel"
    a(kernel_head(N))
    a("s_cmp_ge_u32 s2, %d" % K1_GRID)
    a("s_cbranch_scc1 L_k1_end")
    stamp_begin(a, 255)
    a("s_load_dwordx4 s[4:7], s[0:1], 0")
    a("s_load_dwordx8 s[12:19], s[0:1], 32")
    a("s_load_dwordx4 s[20:23], s[0:1], 72")
    a("v_lshrrev_b32 v2, 6, v0")
    a("v_and_b32 v1, 63, v0")
    a("v_readfirstlane_b32 s%d, v2" % sWave)
    if opt("PF_CODE", 1):
        a("s_cmp_ge_u32 s2, 8")
        a("s_cbranch_scc1 L_k1_nocode")
        a("s_cmp_lt_u32 s%d, 4" % sWave)
        a("s_cbranch_scc1 L_k1_nocode")
        a("s_getpc_b64 s[40:41]")
        a.label("L_k1_anchor")
        a("s_mov_b32 s42, L_code_end-L_k1_anchor")
        a("s_mov_b32 s43, 0x20000")
        a("s_sub_u32 s44, s%d, 4" % sWave)
        a("s_lshl_b32 s44, s44, 13")
        a("v_lshlrev_b32 v3, 7, v1")
        a("v_add_u32 v3, s44, v3")
        a("buffer_load_dword v250, v3, s[40:43], 0 offen") if PROF else a("buffer_load_dword v191, v3, s[40:43], 0 offen")
        a.label("L_k1_nocode")
    a("s_cmp_lt_u32 s2, 64")
    a("s_cbranch_scc1 L_k1_aux")
    a("s_waitcnt lgkmcnt(0)")
    ws_adjust(a, sWSP)
    gen_gemm(a)
    a.label("L_k1_aux")
    a("s_waitcnt lgkmcnt(0)")
    ws_adjust(a, sWSP)
    a("s_or_b32 s24, s2, s%d" % sWave)
    a("s_cmp_lg_u32 s24, 0")
    a("s_cbranch_scc1 L_k1_non")
    a("s_memrealtime s[60:61]")
    srd(a, 24, sDBG, 256)
    a("v_mov_b32 v3, 0")
    a("s_waitcnt lgkmcnt(0)")
    a("s_or_b32 s60, s60, 1")
    a("v_mov_b32 v4, s60")
    a("s_mov_b32 exec_lo, 1")
    a("s_mov_b32 exec_hi, 0")
    a("buffer_store_dword v4, v3, s[24:27], 0 offen sc1")
    a("s_mov_b64 exec, -1")
    a.label("L_k1_non")
    a("s_cmp_gt_u32 s2, 32")
    a("s_cbranch_scc1 %s" % ("L_k1_touch" if opt("PF_IN", 1) else "L_k1_end"))
    a("s_cmp_eq_u32 s2, 32")
    a("s_cbranch_scc1 L_k1_topk")
    gen_e(a)
    a.label("L_k1_topk")
    gen_topk(a)
    if opt("PF_IN", 1):
        a.label("L_k1_touch")
        gen_touch(a)
    a.label("L_k1_end")
    a("s_endpgm")
    return a.text(), (256 if PROF else 192)
```

```python
from dsl import *

WS_QF = 0x000000
WS_KF = 0x200000
WS_VF = 0x400000
WS_OF = WS_QF
WS_REC = 0x800000
WS_CSR = 0x808000
WS_SEL = 0x80e000
WS_PART = 0x810000
WS_SIZE = 0xD00000 if PROF else 0x900000
NSLICE = 28
K1_GRID = 256

QSCALE = 0.25 * 1.4426950408889634
LOG2E = 1.4426950408889634

def fhex(x):
    import struct
    return "0x%08x" % struct.unpack("<I", struct.pack("<f", x))[0]

G_ST = 131072
G_LDS = G_ST + 1024
K1_LDS = G_LDS

sXP, sWP, sWRP, sWGP, sWUP, sWDP, sDBG, sWSP = 4, 6, 12, 14, 16, 18, 20, 22
sWave = 3

def wave_max_u32(a, t):
    for dp in ["quad_perm:[1,0,3,2] row_mask:0xf", "quad_perm:[2,3,0,1] row_mask:0xf", "row_half_mirror row_mask:0xf", "row_mirror row_mask:0xf",
               "row_bcast:15 row_mask:0xa", "row_bcast:31 row_mask:0xc"]:
        a("s_nop 1")
        a("v_max_u32_dpp v%d, v%d, v%d %s bank_mask:0xf" % (t, t, t, dp))

def poll_flags(a, tag, vaddr, srdreg, lanes_mask_lo, tmp):
    a("s_mov_b32 s98, 0")
    a.label("L_poll_%s" % tag)
    a("buffer_load_dword v%d, v%d, s[%d:%d], 0 offen sc1" % (tmp, vaddr, srdreg, srdreg + 3))
    a("s_add_u32 s98, s98, 1")
    a("s_waitcnt vmcnt(0)")
    a("v_cmp_eq_u32 vcc, 0, v%d" % tmp)
    a("s_cmp_gt_u32 s98, 0x40000")
    a("s_cbranch_scc1 L_polld_%s" % tag)
    a("s_and_b32 s99, vcc_lo, 0x%x" % lanes_mask_lo)
    a("s_cbranch_scc0 L_polld_%s" % tag)
    a("s_sleep 8")
    a("s_branch L_poll_%s" % tag)
    a.label("L_polld_%s" % tag)

def get_nonce(a, tag, sdb, vtmp, vzero, sdst):
    a("v_mov_b32 v%d, 0" % vzero)
    a("s_mov_b32 s98, 0")
    a.label("L_nonce_%s" % tag)
    a("buffer_load_dword v%d, v%d, s[%d:%d], 0 offen sc1" % (vtmp, vzero, sdb, sdb + 3))
    a("s_add_u32 s98, s98, 1")
    a("s_waitcnt vmcnt(0)")
    a("v_readfirstlane_b32 s%d, v%d" % (sdst, vtmp))
    a("s_cmp_gt_u32 s98, 0x40000")
    a("s_cbranch_scc1 L_nonced_%s" % tag)
    a("s_cmp_lg_u32 s%d, 0" % sdst)
    a("s_cbranch_scc1 L_nonced_%s" % tag)
    a("s_sleep 4")
    a("s_branch L_nonce_%s" % tag)
    a.label("L_nonced_%s" % tag)

def gen_e(a):
    vLane = 1
    sX, sW, sWS, sDb, sWR = 24, 28, 32, 36, 40
    sT0, sT1, sEb, sStrip, sTag = 44, 45, 49, 50, 51
    L_CS = 0
    srd(a, sX, sXP, 2048 * 1024)
    srd(a, sWR, sWRP, 1024)
    a("s_and_b32 s%d, s2, 1" % sT0)
    a("s_bfe_u32 s%d, s2, 0x20001" % sT1)
    a("s_lshr_b32 s46, s2, 3")
    a("s_lshl_b32 s%d, s%d, 3" % (sEb, sT1))
    a("s_lshl_b32 s47, s%d, 2" % sT0)
    a("s_add_u32 s%d, s%d, s47" % (sEb, sEb))
    a("s_add_u32 s%d, s%d, s46" % (sEb, sEb))
    a("v_lshrrev_b32 v2, 4, v%d" % vLane)
    a("v_and_b32 v3, 15, v%d" % vLane)
    a("v_lshlrev_b32 v3, 4, v3")
    a("v_lshl_add_u32 v4, v2, 10, v3")
    WP = 16
    a("s_lshl_b32 s%d, s%d, 6" % (sT0, sEb))
    a("s_lshl_b32 s%d, s%d, 3" % (sT1, sWave))
    a("s_add_u32 s46, s%d, s%d" % (sT0, sT1))
    a("s_lshl_b32 s47, s46, 10")
    XP = 32
    for g in range(2):
        for q in range(4):
            a("buffer_load_dwordx4 %s, v4, s[%d:%d], s47 offen offset:%d" % (v(XP + 16 * g + 4 * q, 4), sX, sX + 3, q * 256))
        if g == 0:
            for q in range(4):
                a("buffer_load_dwordx4 %s, v3, s[%d:%d], 0 offen offset:%d" % (v(WP + 4 * q, 4), sWR, sWR + 3, q * 256))
            a("s_add_u32 s47, s47, 4096")
    srd(a, sDb, sDBG, 256)
    a("v_mov_b32 v13, 0")
    a("buffer_load_dword v12, v13, s[%d:%d], 0 offen sc1" % (sDb, sDb + 3))
    stamp(a, 1)
    srd(a, sWS, sWSP, WS_SIZE)
    a("v_mov_b32 v5, 0x3f803f80")
    a("v_mov_b32 v8, 0")
    a("v_add_u32 v15, s46, v2")
    dps = ["quad_perm:[1,0,3,2]", "quad_perm:[2,3,0,1]", "row_half_mirror", "row_mirror"]
    a("s_waitcnt vmcnt(5)")
    for i in range(16):
        a("v_dot2_f32_bf16 v8, v%d, v5, v8" % (WP + i))
    A0, A1, A2 = 9, 10, 11
    OUT = [100, 104]
    for g in range(2):
        if g == 1:
            a("s_waitcnt vmcnt(1)")
        if g == 0:
            stamp(a, 2)
        a("v_mov_b32 v%d, 0" % A0); a("v_mov_b32 v%d, 0" % A1); a("v_mov_b32 v%d, 0" % A2)
        for i in range(16):
            x = XP + 16 * g + i
            a("v_dot2_f32_bf16 v%d, v%d, v5, v%d" % (A0, x, A0))
            a("v_dot2_f32_bf16 v%d, v%d, v%d, v%d" % (A1, x, x, A1))
            a("v_dot2_f32_bf16 v%d, v%d, v%d, v%d" % (A2, x, WP + i, A2))
        a("s_nop 2")
        for dp in dps:
            for r in ((A0, A1, A2, 8) if g == 0 else (A0, A1, A2)):
                a("v_add_f32_dpp v%d, v%d, v%d %s row_mask:0xf bank_mask:0xf" % (r, r, r, dp))
        M, RS, KEY = OUT[g], OUT[g] + 1, OUT[g] + 2
        a("v_mul_f32 v%d, %s, v%d" % (M, fhex(1.0 / 512), A0))
        a("v_mul_f32 v14, %s, v%d" % (fhex(1.0 / 512), A1))
        a("v_fma_f32 v14, -v%d, v%d, v14" % (M, M))
        a("v_max_f32 v14, 0, v14")
        bf16r(a, "v%d" % M, "v%d" % M)
        bf16r(a, "v14", "v14")
        a("v_add_f32 v14, %s, v14" % fhex(1e-5))
        bf16r(a, "v14", "v14")
        a("v_sqrt_f32 v14, v14")
        a("s_nop 0")
        bf16r(a, "v14", "v14")
        a("v_rcp_f32 v%d, v14" % RS)
        a("v_fma_f32 v14, -v%d, v8, v%d" % (M, A2))
        a("v_mul_f32 v14, v14, v%d" % RS)
        a("v_cvt_pk_bf16_f32 v14, v14, v14")
        a("v_and_b32 v14, 0xffff, v14")
        a("v_cmp_gt_u32 vcc, 0x8000, v14")
        a("v_xor_b32 v96, 0x8000, v14")
        a("v_xor_b32 v97, 0xffff, v14")
        a("v_sub_u32 v98, 0xffff, v15")
        a("v_cndmask_b32 v14, v97, v96, vcc")
        a("v_lshl_or_b32 v%d, v14, 16, v98" % KEY)
        a("v_add_u32 v15, 4, v15")
    a("s_waitcnt vmcnt(0)")
    a("v_readfirstlane_b32 s%d, v12" % sTag)
    a("v_and_b32 v9, 15, v%d" % vLane)
    a("v_cmp_eq_u32 vcc, 1, v9")
    a("s_nop 1")
    a("s_cmp_lg_u32 s%d, 0" % sTag)
    a("s_cbranch_scc1 L_e_tag")
    get_nonce(a, "e", sDb, 12, 13, sTag)
    a.label("L_e_tag")
    for q in range(3):
        a("v_cndmask_b32 v%d, v%d, v%d, vcc" % (OUT[0] + q, OUT[0] + q, OUT[1] + q))
    a("v_mov_b32 v%d, s%d" % (OUT[0] + 3, sTag))
    a("v_lshl_add_u32 v10, v9, 2, v2")
    a("v_add_u32 v10, s46, v10")
    a("v_lshlrev_b32 v10, 4, v10")
    a("s_mov_b32 s47, 0x%x" % WS_REC)
    a("s_mov_b32 exec_lo, 0x00030003")
    a("s_mov_b32 exec_hi, 0x00030003")
    a("buffer_store_dwordx4 %s, v10, s[%d:%d], s47 offen sc1" % (v(OUT[0], 4), sWS, sWS + 3))
    a("s_mov_b64 exec, -1")
    stamp(a, 3)
    a.label("L_e_done")
    stamp_flush(a, 0, sWS, sWave)
    a("s_endpgm")

class Net:
    def __init__(self, a, free):
        self.a = a; self.free = list(free)
    def get(self): return self.free.pop(0)
    def put(self, r): self.free.append(r)
    def ce(self, L, i, j):
        hi, lo = self.get(), self.get()
        self.a("v_max_u32 v%d, v%d, v%d" % (hi, L[i], L[j]))
        self.a("v_min_u32 v%d, v%d, v%d" % (lo, L[i], L[j]))
        self.put(L[i]); self.put(L[j])
        L[i], L[j] = hi, lo
    def sort_bitonic8(self, L):
        for st in ([(0, 4), (1, 5), (2, 6), (3, 7)], [(0, 2), (1, 3), (4, 6), (5, 7)], [(0, 1), (2, 3), (4, 5), (6, 7)]):
            for (i, j) in st: self.ce(L, i, j)
    def top8(self, L, dpp, sort=True):
        T = [None] * 8
        for i in range(7, -1, -1):
            T[i] = self.get()
            self.a("v_max_u32_dpp v%d, v%d, v%d %s bank_mask:0xf" % (T[i], L[7 - i], L[i], dpp))
        for r in L: self.put(r)
        if sort: self.sort_bitonic8(T)
        return T

def top8_wave(a, keys, free, wave_sgpr, lds_cand):
    n = Net(a, free)
    L = list(keys)
    for (i, j) in ((0,1),(2,3),(4,5),(6,7),(0,2),(1,3),(4,6),(5,7),(1,2),(5,6),(0,4),(3,7),(1,5),(2,6),(1,4),(3,6),(2,4),(3,5),(3,4)):
        n.ce(L, i, j)
    a("s_nop 0")
    for dp in ("quad_perm:[1,0,3,2] row_mask:0xf", "quad_perm:[2,3,0,1] row_mask:0xf", "row_half_mirror row_mask:0xf", "row_mirror row_mask:0xf",
               "row_bcast:15 row_mask:0xa", "row_bcast:31 row_mask:0xc"):
        L = n.top8(L, dp)
    base = (max(free) + 4) // 4 * 4
    for i in range(8):
        a("v_mov_b32 v%d, v%d" % (base + i, L[i]))
    adr = n.get()
    a("s_lshl_b32 s98, s%d, 5" % wave_sgpr)
    a("s_add_u32 s98, s98, %d" % lds_cand)
    a("v_mov_b32 v%d, s98" % adr)
    a("s_mov_b32 exec_lo, 0")
    a("s_mov_b32 exec_hi, 0x80000000")
    a("ds_write_b128 v%d, %s" % (adr, v(base, 4)))
    a("ds_write_b128 v%d, %s offset:16" % (adr, v(base + 4, 4)))
    a("s_mov_b64 exec, -1")

def top8_final(a, free, lds_cand):
    n = Net(a, free)
    base = (max(free) + 4) // 4 * 4
    adr = n.get()
    a("v_mbcnt_lo_u32_b32 v%d, -1, 0" % adr)
    a("v_mbcnt_hi_u32_b32 v%d, -1, v%d" % (adr, adr))
    a("v_and_b32 v%d, 3, v%d" % (adr, adr))
    a("v_lshlrev_b32 v%d, 5, v%d" % (adr, adr))
    a("v_add_u32 v%d, %d, v%d" % (adr, lds_cand, adr))
    a("ds_read_b128 %s, v%d" % (v(base, 4), adr))
    a("ds_read_b128 %s, v%d offset:16" % (v(base + 4, 4), adr))
    L = [base + i for i in range(8)]
    a("s_waitcnt lgkmcnt(0)")
    L = n.top8(L, "quad_perm:[1,0,3,2] row_mask:0xf")
    L = n.top8(L, "quad_perm:[2,3,0,1] row_mask:0xf")
    return L

def gen_topk(a):
    vLane = 1
    sWS, sDb = 24, 40
    sT0, sT1, sTag = 45, 46, 48
    T_CAND = 0
    srd(a, sWS, sWSP, WS_SIZE)
    srd(a, sDb, sDBG, 256)
    a("s_cmp_ge_u32 s%d, 4" % sWave)
    a("s_cbranch_scc1 L_tk_sync")
    get_nonce(a, "tk", sDb, 12, 13, sTag)
    stamp(a, 1)
    a("v_lshlrev_b32 v3, 4, v0")
    a("s_mov_b32 s98, 0")
    a.label("L_tk_poll")
    a("s_mov_b32 s%d, 0x%x" % (sT0, WS_REC))
    for q in range(8):
        a("buffer_load_dwordx2 %s, v3, s[%d:%d], s%d offen offset:8 sc1" % (v(96 + 2 * q, 2), sWS, sWS + 3, sT0))
        if q < 7:
            a("s_add_u32 s%d, s%d, 4096" % (sT0, sT0))
    a("s_add_u32 s98, s98, 1")
    a("s_waitcnt vmcnt(0)")
    for q in range(8):
        a("v_xor_b32 v%d, s%d, v%d" % (97 + 2 * q, sTag, 97 + 2 * q))
    a("v_or3_b32 v4, v97, v99, v101")
    a("v_or3_b32 v5, v103, v105, v107")
    a("v_or3_b32 v4, v4, v109, v111")
    a("v_or_b32 v4, v4, v5")
    a("v_cmp_ne_u32 vcc, 0, v4")
    a("s_cmp_gt_u32 s98, 0x40000")
    a("s_cbranch_scc1 L_tk_go")
    a("s_cmp_eq_u64 vcc, 0")
    a("s_cbranch_scc1 L_tk_go")
    a("s_sleep 2")
    a("s_branch L_tk_poll")
    a.label("L_tk_go")
    stamp(a, 3)
    top8_wave(a, [96 + 2 * q for q in range(8)], [97 + 2 * q for q in range(8)] + list(range(14, 24)) + [112, 113], sWave, T_CAND)
    a("s_waitcnt lgkmcnt(0)")
    a.label("L_tk_sync")
    a("s_barrier")
    stamp(a, 4)
    a("s_cmp_lg_u32 s%d, 0" % sWave)
    a("s_cbranch_scc1 L_tk_done")
    R = top8_final(a, list(range(96, 114)), T_CAND)
    vRes = 20
    a("v_mov_b32 v%d, v%d" % (vRes, R[0]))
    for jx in range(1, 8):
        a("v_cmp_eq_u32 vcc, %d, v%d" % (jx, vLane))
        a("s_nop 1")
        a("v_cndmask_b32 v%d, v%d, v%d, vcc" % (vRes, vRes, R[jx]))
    stamp(a, 5)
    a("v_and_b32 v8, 0xffff, v%d" % vRes)
    a("v_sub_u32 v8, 0xffff, v8")
    a("v_lshrrev_b32 v9, 16, v%d" % vRes)
    a("v_cmp_le_u32 vcc, 0x8000, v9")
    a("v_xor_b32 v10, 0x8000, v9")
    a("v_xor_b32 v11, 0xffff, v9")
    a("v_cndmask_b32 v9, v11, v10, vcc")
    a("v_lshlrev_b32 v9, 16, v9")
    a("v_mul_f32 v9, %s, v9" % fhex(-LOG2E))
    a("v_exp_f32 v9, v9")
    a("s_nop 0")
    a("v_add_f32 v9, 1.0, v9")
    a("v_rcp_f32 v9, v9")
    a("s_nop 0")
    bf16r(a, "v9", "v9")
    a("v_lshlrev_b32 v10, 2, v%d" % vLane)
    a("s_mov_b32 s%d, 0x%x" % (sT0, WS_SEL))
    a("s_mov_b32 exec_lo, 0xff")
    a("s_mov_b32 exec_hi, 0")
    a("buffer_store_dword v8, v10, s[%d:%d], s%d offen" % (sWS, sWS + 3, sT0))
    a("buffer_store_dword v9, v10, s[%d:%d], s%d offen offset:32" % (sWS, sWS + 3, sT0))
    a("s_mov_b64 exec, -1")
    a.label("L_tk_done")
    stamp_flush(a, 0, sWS, sWave)
    a("s_endpgm")

def gen_codepf(a):
    a("s_cmp_ge_u32 s%d, 4" % sWave)
    a("s_cbranch_scc1 L_k1_end")
    a("s_getpc_b64 s[40:41]")
    a.label("L_k1_anchor")
    a("s_mov_b32 s42, L_code_end-L_k1_anchor")
    a("s_mov_b32 s43, 0x20000")
    a("s_lshl_b32 s44, s%d, 13" % sWave)
    a("v_lshlrev_b32 v3, 7, v1")
    a("v_add_u32 v3, s44, v3")
    a("buffer_load_dword v4, v3, s[40:43], 0 offen")
    a("s_endpgm")

def gen_tlb(a):
    step = opt("PF_TLB")
    a("s_load_dwordx2 s[40:41], s[0:1], 16")
    a("s_load_dwordx2 s[42:43], s[0:1], 64")
    a("v_mul_u32_u24 v3, %d, v1" % 1)
    a("v_lshlrev_b32 v3, %d, v1" % (step.bit_length() - 1))
    a("s_waitcnt lgkmcnt(0)")
    r = 16
    for (ptr, nbytes) in ((sWGP, 512 * 3584), (sWUP, 512 * 3584), (sWDP, 1792 * 1024), (40, 512 * 1024), (42, 2048 * 1024), (sWSP, WS_SIZE)):
        srd(a, 32, ptr, nbytes)
        a("s_mul_i32 s44, s%d, %d" % (sWave, 64 * step))
        a("v_add_u32 v4, s44, v3")
        a("buffer_load_dword v%d, v4, s[32:35], 0 offen" % r); r += 1
    a("s_endpgm")

def gen_touch(a):
    sB = 32
    c0 = opt("PF_C0", 1)
    n = 24 * (8 - c0)
    srd(a, sB, sWP, 512 * 3072)
    a("s_sub_u32 s46, s2, 33")
    a("s_lshl_b32 s46, s46, 3")
    a("s_add_u32 s46, s46, s%d" % sWave)
    a("s_cmp_ge_u32 s46, %d" % n)
    a("s_cbranch_scc1 L_pf_end")
    a("v_lshlrev_b32 v11, 7, v1")
    a("s_lshl_b32 s49, s46, 13")
    a("s_add_u32 s49, s49, %d" % (c0 * 196608))
    a("buffer_load_dword v40, v11, s[%d:%d], s49 offen" % (sB, sB + 3))
    a.label("L_pf_end")
    a("s_endpgm")

def gen_gemm(a):
    QST = " sc1" if opt("ST_QKV_SC1", 1) else ""
    vLane = 1
    sX, sW, sWS, sDb = 24, 28, 32, 36
    sRb, sCb, sT0, sT1, sC, sSlot = 40, 41, 42, 43, 44, 45
    a("s_sub_u32 s%d, s2, 64" % sT0)
    a("s_and_b32 s%d, s%d, 7" % (sT1, sT0))
    a("s_lshr_b32 s%d, s%d, 3" % (sT0, sT0))
    a("s_lshr_b32 s%d, s%d, 1" % (sRb, sT1))
    a("s_lshl_b32 s%d, s%d, 2" % (sRb, sRb))
    a("s_and_b32 s46, s%d, 3" % sT0)
    a("s_add_u32 s%d, s%d, s46" % (sRb, sRb))
    a("s_and_b32 s%d, s%d, 1" % (sCb, sT1))
    a("s_mul_i32 s%d, s%d, 6" % (sCb, sCb))
    a("s_lshr_b32 s%d, s%d, 2" % (sT0, sT0))
    a("s_add_u32 s%d, s%d, s%d" % (sCb, sCb, sT0))
    srd(a, sWS, sWSP, WS_SIZE)
    a("s_cmp_ge_u32 s%d, 4" % sWave)
    a("s_cbranch_scc0 L_g_cons")
    vXa, vXb, vW = 10, 11, 12
    sLw, sXg, sXg2, sWg, sL4 = 46, 47, 48, 49, 50
    srd(a, sX, sXP, 2048 * 1024)
    srd(a, sW, sWP, 512 * 3072)
    a("s_sub_u32 s%d, s%d, 4" % (sLw, sWave))
    a("v_lshrrev_b32 v2, 3, v%d" % vLane)
    a("v_and_b32 v3, 7, v%d" % vLane)
    a("v_lshrrev_b32 v4, 1, v2")
    a("v_xor_b32 v3, v3, v4")
    a("v_xor_b32 v4, 4, v3")
    a("v_lshlrev_b32 v2, 10, v2")
    a("v_lshl_add_u32 v%d, v3, 4, v2" % vXa)
    a("v_lshl_add_u32 v%d, v4, 4, v2" % vXb)
    a("v_add_u32 v%d, 0x2000, v%d" % (vXb, vXb))
    a("v_lshrrev_b32 v2, 4, v%d" % vLane)
    a("v_bfe_u32 v3, v%d, 2, 2" % vLane)
    a("v_xor_b32 v3, v3, v2")
    a("v_and_b32 v4, 3, v%d" % vLane)
    a("v_lshl_add_u32 v3, v3, 2, v4")
    a("v_mul_u32_u24 v2, 0xc00, v2")
    a("v_lshl_add_u32 v%d, v3, 4, v2" % vW)
    for i in range(1, 4):
        a("v_add_u32 v%d, %d, v%d" % (vW + i, i * 12288, vW))
    a("s_lshl_b32 s%d, s%d, 17" % (sXg, sRb))
    a("s_lshl_b32 s%d, s%d, 15" % (sT0, sLw))
    a("s_add_u32 s%d, s%d, s%d" % (sXg, sXg, sT0))
    a("s_mul_i32 s%d, s%d, %d" % (sWg, sLw, 16 * 3072))
    a("s_lshl_b32 s%d, s%d, 8" % (sT0, sCb))
    a("s_add_u32 s%d, s%d, s%d" % (sWg, sWg, sT0))
    a("s_lshl_b32 s%d, s%d, 12" % (sL4, sLw))
    a("s_mov_b32 s%d, 0" % sSlot)
    def issue():
        a("s_add_u32 s%d, s%d, 0x4000" % (sXg2, sXg))
        a("s_add_u32 m0, s%d, s%d" % (sSlot, sL4))
        a("s_nop 0")
        for i in range(4):
            a("buffer_load_dwordx4 v%d, s[%d:%d], s%d offen%s lds" % (vXa if i % 2 == 0 else vXb, sX, sX + 3, sXg if i < 2 else sXg2, " nt" if opt("NT_X") else ""))
            a("s_add_u32 m0, m0, %d" % (1024 if i < 3 else 13312))
            a("s_nop 0")
        for i in range(4):
            a("buffer_load_dwordx4 v%d, s[%d:%d], s%d offen%s lds" % (vW + i, sW, sW + 3, sWg, " nt" if opt("NT_W") else ""))
            if i < 3:
                a("s_add_u32 m0, m0, 1024")
                a("s_nop 0")
        a("s_add_u32 s%d, s%d, 128" % (sXg, sXg))
        a("s_add_u32 s%d, s%d, %d" % (sWg, sWg, 64 * 3072))
        a("s_add_u32 s%d, s%d, 0x8000" % (sSlot, sSlot))
        a("s_and_b32 s%d, s%d, 0x1ffff" % (sSlot, sSlot))
    a("s_mov_b32 s%d, 0" % sC)
    a.label("L_g_lpro")
    issue()
    a("s_add_u32 s%d, s%d, 1" % (sC, sC))
    a("s_cmp_lt_u32 s%d, 2" % sC)
    a("s_cbranch_scc1 L_g_lpro")
    stamp(a, 1)
    a("s_mov_b32 s%d, 0" % sC)
    a.label("L_g_lloop")
    a("s_waitcnt vmcnt(8)")
    stamp(a, "s%d+10" % sC)
    a("s_barrier")
    issue()
    a("s_add_u32 s%d, s%d, 1" % (sC, sC))
    a("s_cmp_lt_u32 s%d, 4" % sC)
    a("s_cbranch_scc1 L_g_lloop")
    if opt("PF_MOE", 1):
        a("s_load_dwordx2 s[58:59], s[0:1], 16")
        a("s_sub_u32 s60, s2, 64")
        a("s_and_b32 s62, s60, 7")
        a("s_lshr_b32 s60, s60, 3")
        a("s_lshl_b32 s60, s60, 2")
        a("s_add_u32 s60, s60, s%d" % sLw)
        a("s_mul_i32 s61, s60, 2731")
        a("s_lshr_b32 s61, s61, 16")
        a("s_mul_i32 s63, s61, 24")
        a("s_sub_u32 s63, s60, s63")
        a("s_lshl_b32 s61, s61, 3")
        a("s_add_u32 s61, s61, s62")
        a("s_waitcnt lgkmcnt(0)")
        a("v_mul_u32_u24 v20, 0xe00, v%d" % vLane)
        a("v_lshlrev_b32 v22, 7, v%d" % vLane)
        a("s_mov_b32 s64, s%d" % sWGP); a("s_mov_b32 s65, s%d" % (sWGP + 1))
        a("s_mov_b32 s66, %d" % (512 * 3584)); a("s_mov_b32 s67, 0x20000")
        a("s_cmp_ge_u32 s63, 8")
        a("s_cselect_b32 s64, s%d, s64" % sWUP); a("s_cselect_b32 s65, s%d, s65" % (sWUP + 1))
        a("s_and_b32 s68, s63, 7")
        a("s_mul_i32 s69, s68, %d" % (64 * 3584))
        a("s_lshl_b32 s70, s61, 7")
        a("s_add_u32 s69, s69, s70")
        a("s_cmp_ge_u32 s63, 16")
        a("s_cbranch_scc0 L_g_pfa")
        a("s_mov_b32 s64, s%d" % sWDP); a("s_mov_b32 s65, s%d" % (sWDP + 1))
        a("s_lshl_b32 s69, s61, 16")
        a("s_lshl_b32 s70, s68, 13")
        a("s_add_u32 s69, s69, s70")
        a("v_mov_b32 v20, v22")
        a.label("L_g_pfa")
        a("s_cmp_ge_u32 s61, 28")
        a("s_cbranch_scc0 L_g_pfb")
        a("s_mov_b32 s64, s58"); a("s_mov_b32 s65, s59"); a("s_mov_b32 s66, %d" % (512 * 1024))
        a("s_sub_u32 s69, s62, 4")
        a("s_lshl_b32 s69, s69, 4")
        a("s_and_b32 s70, s63, 15")
        a("s_add_u32 s69, s69, s70")
        a("s_lshl_b32 s69, s69, 13")
        a("v_mov_b32 v20, v22")
        a.label("L_g_pfb")
        a("s_mov_b32 s61, s69")
    srd(a, sDb, sDBG, 256)
    a("v_mov_b32 v4, 0")
    a("s_waitcnt vmcnt(8)")
    a("s_barrier")
    a("buffer_load_dword v5, v4, s[%d:%d], 0 offen sc1" % (sDb, sDb + 3))
    issue()
    a("s_lshl_b32 s%d, s%d, 11" % (sT0, sRb))
    a("s_add_u32 s51, s%d, 0x%x" % (sT0, WS_REC))
    a("v_and_b32 v7, 31, v%d" % vLane)
    a("s_lshl_b32 s%d, s%d, 9" % (sT0, sLw))
    a("v_lshl_add_u32 v6, v7, 4, s%d" % sT0)
    a("s_lshl_b32 s%d, s%d, 7" % (sT0, sLw))
    a("s_add_u32 s%d, s%d, %d" % (sT0, sT0, G_ST))
    a("v_lshl_add_u32 v7, v7, 2, s%d" % sT0)
    a("s_waitcnt vmcnt(8)")
    a("v_readfirstlane_b32 s52, v5")
    a("s_nop 3")
    a("s_cmp_lg_u32 s52, 0")
    a("s_cbranch_scc1 L_g_nonok")
    get_nonce(a, "g", sDb, 5, 4, 52)
    a.label("L_g_nonok")
    a("s_barrier")
    a("buffer_load_dwordx4 v[16:19], v6, s[%d:%d], s51 offen sc1" % (sWS, sWS + 3))
    issue()
    PFN = 1 if opt("PF_MOE", 1) else 0
    if PFN:
        a("buffer_load_dword v21, v20, s[64:67], s61 offen")
    a("s_waitcnt vmcnt(%d)" % (8 + PFN))
    a("s_mov_b32 s98, 0")
    a.label("L_g_rec")
    a("v_cmp_ne_u32 vcc, s52, v19")
    a("s_cmp_gt_u32 s98, 0x40000")
    a("s_cbranch_scc1 L_g_recok")
    a("s_cmp_eq_u64 vcc, 0")
    a("s_cbranch_scc1 L_g_recok")
    a("s_sleep 4")
    a("buffer_load_dwordx4 v[16:19], v6, s[%d:%d], s51 offen sc1" % (sWS, sWS + 3))
    a("s_add_u32 s98, s98, 1")
    a("s_waitcnt vmcnt(0)")
    a("s_branch L_g_rec")
    a.label("L_g_recok")
    a("ds_write_b32 v7, v16")
    a("ds_write_b32 v7, v17 offset:512")
    a("s_barrier")
    a("s_waitcnt vmcnt(%d) lgkmcnt(0)" % PFN)
    a("s_barrier")
    stamp_flush(a, 0, sWS, sWave)
    a("s_endpgm")
    a.label("L_g_cons")
    vXr = [4, 5, 6, 7]
    vWr = [8, 9]
    acc = [[64, 80], [96, 112]]
    XB = [[128, 132], [136, 140]]
    WB = [[144, 148], [152, 156]]
    NM, CSF = [160, 164], [168, 172]
    SEL, CSA = 176, [180, 184]
    sMt, sNt, sHi = 46, 47, 48
    a("s_and_b32 s%d, s%d, 1" % (sMt, sWave))
    a("s_lshr_b32 s%d, s%d, 1" % (sNt, sWave))
    a("v_and_b32 v2, 31, v%d" % vLane)
    a("v_lshrrev_b32 v3, 5, v%d" % vLane)
    a("v_cmp_eq_u32 s[%d:%d], 1, v3" % (sHi, sHi + 1))
    a("v_lshrrev_b32 v10, 1, v2")
    a("v_and_b32 v10, 7, v10")
    a("s_lshl_b32 s%d, s%d, 13" % (sT0, sMt))
    a("v_lshl_add_u32 v11, v2, 7, s%d" % sT0)
    for p in range(4):
        a("v_add_u32 v12, %d, v3" % (2 * p))
        a("v_xor_b32 v12, v12, v10")
        a("v_lshl_add_u32 v%d, v12, 4, v11" % vXr[p])
    a("v_bfe_u32 v12, v%d, 2, 2" % vLane)
    a("v_lshl_add_u32 v13, v3, 3, v12")
    a("v_lshlrev_b32 v13, 8, v13")
    a("v_bfe_u32 v14, v%d, 4, 1" % vLane)
    a("v_lshl_add_u32 v13, v14, 5, v13")
    a("v_and_b32 v14, 3, v%d" % vLane)
    a("v_lshl_add_u32 v13, v14, 3, v13")
    a("v_add_u32 v13, 0x4000, v13")
    a("s_lshl_b32 s%d, s%d, 1" % (sT0, sNt))
    a("v_xor_b32 v14, s%d, v12" % sT0)
    a("v_lshl_add_u32 v%d, v14, 6, v13" % vWr[0])
    a("v_xor_b32 v%d, 64, v%d" % (vWr[1], vWr[0]))
    for r in range(64, 128):
        a("v_mov_b32 v%d, 0" % r)
    for r in list(range(136, 144)) + list(range(152, 176)) + list(range(180, 188)):
        a("v_mov_b32 v%d, 0" % r)
    a("v_bfe_u32 v12, v%d, 4, 1" % vLane)
    a("v_and_b32 v13, 1, v%d" % vLane)
    a("v_cmp_eq_u32 vcc, v12, v13")
    a("v_cmp_eq_u32 s[56:57], 1, v12")
    a("v_mov_b32 v14, 0x3f803f80")
    a("v_cndmask_b32 v%d, 0, v14, vcc" % SEL)
    for i in range(1, 4):
        a("v_mov_b32 v%d, v%d" % (SEL + i, SEL))
    def csum(buf, n):
        a("v_mfma_f32_16x16x32_bf16 %s, %s, %s, %s" % (v(CSA[n], 4), v(SEL, 4), v(WB[buf][n], 4), v(CSA[n], 4)))
    def xread(p, buf, m):
        a("ds_read_b128 %s, v%d offset:%d" % (v(XB[buf][m], 4), vXr[p], m * 4096))
    def wread(p, buf, n, t):
        a("ds_read_b64_tr_b16 %s, v%d offset:%d" % (v(WB[buf][n] + 2 * t, 2), vWr[n], p * 4096 + t * 1024))
    def mm(kind, buf, m, n):
        if kind == 0:
            a("v_mfma_f32_32x32x16_bf16 %s, %s, %s, %s" % (v(acc[m][n], 16), v(WB[buf][n], 4), v(XB[buf][m], 4), v(acc[m][n], 16)))
        else:
            a("v_mfma_f32_32x32x16_bf16 %s, %s, %s, %s" % (v(acc[m][n], 16), v(XB[buf][m], 4), v(WB[buf][n], 4), v(acc[m][n], 16)))
    def step(kind, cur, p, filler=None):
        nxt = cur ^ 1
        a("s_waitcnt lgkmcnt(3)")
        mm(kind, cur, 0, 0)
        xread(p, nxt, 0); wread(p, nxt, 0, 0); wread(p, nxt, 0, 1)
        csum(cur, 0)
        a("s_waitcnt lgkmcnt(4)")
        mm(kind, cur, 0, 1)
        wread(p, nxt, 1, 0); wread(p, nxt, 1, 1); xread(p, nxt, 1)
        csum(cur, 1)
        a("s_waitcnt lgkmcnt(6)")
        mm(kind, cur, 1, 0)
        if filler: filler(0)
        mm(kind, cur, 1, 1)
        if filler: filler(1)
    def adv(h):
        regs = (vXr + vWr)[3 * h:3 * h + 3]
        for r in regs:
            a("v_add_u32 v%d, 0x8000, v%d" % (r, r))
        for r in regs:
            a("v_and_b32 v%d, 0x1ffff, v%d" % (r, r))
    def main_loop(kind, tag):
        a("s_mov_b32 s%d, 0" % sC)
        a.label("L_g_loop%s" % tag)
        a("s_waitcnt lgkmcnt(0)")
        a("s_barrier")
        stamp(a, "s%d+10" % sC)
        step(kind, 1, 0)
        step(kind, 0, 1)
        step(kind, 1, 2)
        step(kind, 0, 3, adv)
        a("s_add_u32 s%d, s%d, 1" % (sC, sC))
        a("s_cmp_lt_u32 s%d, 8" % sC)
        a("s_cbranch_scc1 L_g_loop%s" % tag)
        stamp(a, 20)
    vM, vRs, vCs = [10, 11], [12, 14], [16, 17]
    def stat_reads(kind):
        a("v_lshlrev_b32 v18, 2, v2")
        a("s_lshl_b32 s%d, s%d, 8" % (sT0, sMt))
        a("s_add_u32 s%d, s%d, %d" % (sT0, sT0, G_ST))
        a("v_add_u32 v19, s%d, v18" % sT0)
        for m in range(2):
            a("ds_read_b32 v%d, v19 offset:%d" % (vM[m], m * 128))
        if kind == 0:
            for m in range(2):
                a("ds_read_b32 v%d, v19 offset:%d" % (vRs[m], 512 + m * 128))
        else:
            a("v_lshl_add_u32 v19, v3, 4, s%d" % sT0)
            for m in range(2):
                for j in range(4):
                    a("ds_read_b128 %s, v19 offset:%d" % (v(24 + 16 * m + 4 * j, 4), 512 + m * 128 + j * 32))
    def last_step(kind):
        a("s_waitcnt lgkmcnt(%d)" % (4 if kind == 0 else 10))
        csum(1, 0)
        csum(1, 1)
        for m in range(2):
            for n in range(2):
                mm(kind, 1, m, n)
    def correction(kind, nwait):
        a("s_waitcnt lgkmcnt(%d)" % nwait)
        for m in range(2):
            a("v_sub_f32 v20, 0, v%d" % vM[m])
            a("v_cvt_pk_bf16_f32 v%d, v20, 0" % NM[m])
        for n in range(2):
            a("v_cndmask_b32 v%d, v%d, v%d, s[56:57]" % (vCs[n], CSA[n], CSA[n] + 1))
        for n in range(2):
            a("v_cvt_pk_bf16_f32 v20, v%d, v%d" % (vCs[n], vCs[n]))
            a("v_and_b32 v20, 0xffff0000, v20")
            a("v_sub_f32 v20, v%d, v20" % vCs[n])
            a("v_cndmask_b32 v20, v%d, v20, s[%d:%d]" % (vCs[n], sHi, sHi + 1))
            a("v_cvt_pk_bf16_f32 v%d, v20, 0" % CSF[n])
        a("s_nop 1")
        for m in range(2):
            for n in range(2):
                if kind == 0:
                    a("v_mfma_f32_32x32x16_bf16 %s, %s, %s, %s" % (v(acc[m][n], 16), v(CSF[n], 4), v(NM[m], 4), v(acc[m][n], 16)))
                else:
                    a("v_mfma_f32_32x32x16_bf16 %s, %s, %s, %s" % (v(acc[m][n], 16), v(NM[m], 4), v(CSF[n], 4), v(acc[m][n], 16)))
    def store_bases():
        a("s_and_b32 s%d, s%d, 3" % (sT0, sCb))
        a("s_lshl_b32 s%d, s%d, 3" % (sT0, sT0))
        a("s_lshl_b32 s%d, s%d, 2" % (sT1, sNt))
        a("s_add_u32 s%d, s%d, s%d" % (sT0, sT0, sT1))
        a("s_lshl_b32 s%d, s%d, 16" % (sT0, sT0))
        a("s_lshl_b32 s%d, s%d, 2" % (sT1, sRb))
        a("s_lshl_b32 s50, s%d, 1" % sMt)
        a("s_add_u32 s%d, s%d, s50" % (sT1, sT1))
        a("s_lshl_b32 s%d, s%d, 10" % (sT1, sT1))
        a("s_add_u32 s50, s%d, s%d" % (sT0, sT1))
        a("s_lshr_b32 s%d, s%d, 2" % (sT0, sCb))
        a("s_lshl_b32 s%d, s%d, 21" % (sT0, sT0))
        a("s_add_u32 s50, s50, s%d" % sT0)
    a("s_cmp_ge_u32 s%d, 8" % sCb)
    a("s_cbranch_scc1 L_g_v")
    main_loop(0, "q")
    stat_reads(0)
    last_step(0)
    store_bases()
    correction(0, 2)
    a("s_cmp_lt_u32 s%d, 4" % sCb)
    a("s_cselect_b32 s51, %s, 1.0" % fhex(QSCALE))
    a("v_lshlrev_b32 v21, 4, v%d" % vLane)
    a("s_waitcnt lgkmcnt(0)")
    for m in range(2):
        a("v_mul_f32 v%d, s51, v%d" % (vRs[m], vRs[m]))
    a("s_nop 4")
    for m in range(2):
        for n in range(2):
            A = acc[m][n]
            P = XB[0][0] + 8 * ((2 * m + n) % 2)
            for i in range(8):
                a("v_pk_mul_f32 %s, %s, %s op_sel_hi:[1,0]" % (v(A + 2 * i, 2), v(A + 2 * i, 2), v(vRs[m], 2)))
            for i in range(8):
                a("v_cvt_pk_bf16_f32 v%d, v%d, v%d" % (A + i, A + 2 * i, A + 2 * i + 1))
            a("s_add_u32 s52, s50, %d" % (m * 1024 + n * 0x20000))
            a("s_add_u32 s53, s52, 0x10000")
            a("buffer_store_dwordx4 %s, v21, s[%d:%d], s52 offen%s" % (v(A, 4), sWS, sWS + 3, QST))
            a("buffer_store_dwordx4 %s, v21, s[%d:%d], s53 offen%s" % (v(A + 4, 4), sWS, sWS + 3, QST))
    a("s_branch L_g_fin")
    a.label("L_g_v")
    main_loop(1, "v")
    stat_reads(1)
    last_step(1)
    store_bases()
    correction(1, 8)
    a("v_bfe_u32 v21, v%d, 4, 1" % vLane)
    a("v_lshlrev_b32 v21, 16, v21")
    a("v_lshl_add_u32 v21, v3, 8, v21")
    a("v_and_b32 v22, 15, v%d" % vLane)
    a("v_lshl_add_u32 v21, v22, 4, v21")
    a("s_waitcnt lgkmcnt(0)")
    a("s_nop 4")
    for m in range(2):
        for n in range(2):
            A = acc[m][n]
            for i in range(8):
                a("v_pk_mul_f32 %s, %s, %s" % (v(A + 2 * i, 2), v(A + 2 * i, 2), v(24 + 16 * m + 2 * i, 2)))
            for i in range(8):
                a("v_cvt_pk_bf16_f32 v%d, v%d, v%d" % (A + i, A + 2 * i, A + 2 * i + 1))
            a("s_add_u32 s52, s50, %d" % (m * 1024 + n * 0x20000))
            a("buffer_store_dwordx4 %s, v21, s[%d:%d], s52 offen%s" % (v(A, 4), sWS, sWS + 3, QST))
            a("buffer_store_dwordx4 %s, v21, s[%d:%d], s52 offen offset:512%s" % (v(A + 4, 4), sWS, sWS + 3, QST))
    a.label("L_g_fin")
    stamp(a, 21)
    stamp_flush(a, 0, sWS, sWave)
    a("s_endpgm")

def gen_k1():
    a = Asm()
    N = "k1_kernel"
    a(kernel_head(N))
    a("s_cmp_ge_u32 s2, %d" % K1_GRID)
    a("s_cbranch_scc1 L_k1_end")
    stamp_begin(a, 255)
    a("s_load_dwordx4 s[4:7], s[0:1], 0")
    a("s_load_dwordx8 s[12:19], s[0:1], 32")
    a("s_load_dwordx4 s[20:23], s[0:1], 72")
    a("v_lshrrev_b32 v2, 6, v0")
    a("v_and_b32 v1, 63, v0")
    a("v_readfirstlane_b32 s%d, v2" % sWave)
    if opt("PF_CODE", 1):
        a("s_cmp_ge_u32 s2, 8")
        a("s_cbranch_scc1 L_k1_nocode")
        a("s_cmp_lt_u32 s%d, 4" % sWave)
        a("s_cbranch_scc1 L_k1_nocode")
        a("s_getpc_b64 s[40:41]")
        a.label("L_k1_anchor")
        a("s_mov_b32 s42, L_code_end-L_k1_anchor")
        a("s_mov_b32 s43, 0x20000")
        a("s_sub_u32 s44, s%d, 4" % sWave)
        a("s_lshl_b32 s44, s44, 13")
        a("v_lshlrev_b32 v3, 7, v1")
        a("v_add_u32 v3, s44, v3")
        a("buffer_load_dword v250, v3, s[40:43], 0 offen") if PROF else a("buffer_load_dword v191, v3, s[40:43], 0 offen")
        a.label("L_k1_nocode")
    a("s_cmp_lt_u32 s2, 64")
    a("s_cbranch_scc1 L_k1_aux")
    a("s_waitcnt lgkmcnt(0)")
    ws_adjust(a, sWSP)
    gen_gemm(a)
    a.label("L_k1_aux")
    a("s_waitcnt lgkmcnt(0)")
    ws_adjust(a, sWSP)
    a("s_or_b32 s24, s2, s%d" % sWave)
    a("s_cmp_lg_u32 s24, 0")
    a("s_cbranch_scc1 L_k1_non")
    a("s_memrealtime s[60:61]")
    srd(a, 24, sDBG, 256)
    a("v_mov_b32 v3, 0")
    a("s_waitcnt lgkmcnt(0)")
    a("s_or_b32 s60, s60, 1")
    a("v_mov_b32 v4, s60")
    a("s_mov_b32 exec_lo, 1")
    a("s_mov_b32 exec_hi, 0")
    a("buffer_store_dword v4, v3, s[24:27], 0 offen sc1")
    a("s_mov_b64 exec, -1")
    a.label("L_k1_non")
    a("s_cmp_gt_u32 s2, 32")
    a("s_cbranch_scc1 %s" % ("L_k1_touch" if opt("PF_IN", 1) else "L_k1_end"))
    a("s_cmp_eq_u32 s2, 32")
    a("s_cbranch_scc1 L_k1_topk")
    gen_e(a)
    a.label("L_k1_topk")
    gen_topk(a)
    if opt("PF_IN", 1):
        a.label("L_k1_touch")
        gen_touch(a)
    a.label("L_k1_end")
    a("s_endpgm")
    return a.text(), (256 if PROF else 192)
```

```python
from dsl import *
from k1 import *

K2_GRID = 256
M_W = 32768
M_CNT = 8160
M_HS = 4224
M_GU = 5248
M_GUD = 20736 - 5248

K2_LDS = 163840
NEGBIG = 0xf149f2ca
LOG2E = 1.4426950408889634

def gen_attn(a):
    vLane = 1
    vK, vV, mx0, mx1, vT0, vT1, vZ, vOff = 2, 3, 4, 5, 6, 7, 8, 9
    SA, SB, CB, O, P, mA = 16, 32, 48, 64, 80, 88
    KF, VF, V0F, QF = 96, 100, 108, 116
    sWS = 8
    sH, sQb, sWid, sT, sBase, sTs, sN = 20, 21, 22, 23, 24, 25, 26
    sW = 19
    sT0, sT1 = 27, 28
    sVM = 30
    sCond = 40
    a("s_sub_u32 s%d, 11, s%d" % (sW, sWid))
    a("s_cmp_lt_u32 s%d, 4" % sWid)
    a("s_cselect_b32 s%d, s%d, s%d" % (sW, sWid, sW))
    a("s_and_b32 s%d, s2, 7" % sH)
    a("s_bfe_u32 s%d, s2, 0x20003" % sT0)
    a("s_lshl_b32 s%d, s%d, 3" % (sT0, sT0))
    a("s_add_u32 s%d, s%d, s%d" % (sH, sH, sT0))
    a("s_lshr_b32 s%d, s2, 5" % sQb)
    a("v_lshlrev_b32 v%d, 4, v%d" % (vOff, vLane))
    a("s_lshl_b32 s%d, s%d, 3" % (sT, sQb))
    a("s_add_u32 s%d, s%d, s%d" % (sT, sT, sW))
    a("s_lshl_b32 s%d, s%d, 6" % (sBase, sH))
    a("s_add_u32 s%d, s%d, s%d" % (sBase, sBase, sT))
    a("s_lshl_b32 s%d, s%d, 10" % (sBase, sBase))
    a("s_lshl_b32 s%d, s%d, 10" % (sT1, sW))
    a("s_waitcnt lgkmcnt(0)")
    stamp(a, 1)
    ws_adjust(a, 6)
    srd(a, sWS, 6, WS_SIZE)
    a("s_add_u32 s%d, s%d, 0x%x" % (sT0, sBase, WS_KF))
    a("s_add_u32 m0, s%d, 8192" % sT1)
    a("s_nop 0")
    a("buffer_load_dwordx4 v%d, s[%d:%d], s%d offen lds" % (vOff, sWS, sWS + 3, sT0))
    a("s_add_u32 s%d, s%d, 0x%x" % (sT0, sBase, WS_QF))
    a("buffer_load_dwordx4 %s, v%d, s[%d:%d], s%d offen" % (v(QF, 4), vOff, sWS, sWS + 3, sT0))
    a("s_cmp_eq_u32 s%d, 0" % sQb)
    a("s_cbranch_scc1 L_at_noprev")
    a("s_add_u32 s%d, s%d, 0x%x" % (sT0, sBase, WS_KF - 8192))
    a("s_mov_b32 m0, s%d" % sT1)
    a("s_nop 0")
    a("buffer_load_dwordx4 v%d, s[%d:%d], s%d offen lds" % (vOff, sWS, sWS + 3, sT0))
    a("s_add_u32 s%d, s%d, 0x%x" % (sT0, sBase, WS_VF - 8192))
    a("s_add_u32 m0, s%d, 16384" % sT1)
    a("s_nop 0")
    a("buffer_load_dwordx4 v%d, s[%d:%d], s%d offen lds" % (vOff, sWS, sWS + 3, sT0))
    a.label("L_at_noprev")
    a("s_add_u32 s%d, s%d, 0x%x" % (sT0, sBase, WS_VF))
    a("s_add_u32 m0, s%d, %d" % (sT1, 16384 + 8192))
    a("s_nop 0")
    a("buffer_load_dwordx4 v%d, s[%d:%d], s%d offen lds" % (vOff, sWS, sWS + 3, sT0))
    a("s_cmp_ge_u32 s2, %d" % NSLICE)
    a("s_cbranch_scc1 L_at_iss")
    lds_arrive(a, M_CNT + 12, 10, 11)
    a.label("L_at_iss")
    a("v_and_b32 v%d, 31, v%d" % (vT0, vLane))
    a("v_lshrrev_b32 v%d, 5, v%d" % (vT1, vLane))
    a("v_lshlrev_b32 v%d, 2, v%d" % (vZ, vT1))
    a("v_sub_u32 v%d, v%d, v%d" % (vZ, vT0, vZ))
    for r in range(16):
        a("v_cmp_gt_i32 s[%d:%d], %d, v%d" % (sCond + 2 * r, sCond + 2 * r + 1, 8 * (r >> 2) + (r & 3), vZ))
    a("v_mov_b32 v10, 0xffff")
    a("v_mov_b32 v11, 0xffff0000")
    for j in range(8):
        a("v_cndmask_b32 v%d, 0, v10, s[%d:%d]" % (mA + j, sCond + 4 * j, sCond + 4 * j + 1))
        a("v_cndmask_b32 v12, 0, v11, s[%d:%d]" % (sCond + 4 * j + 2, sCond + 4 * j + 3))
        a("v_or_b32 v%d, v%d, v12" % (mA + j, mA + j))
    a("v_mov_b32 v10, 0x3f803f80")
    for r in range(16):
        a("v_mov_b32 v%d, v10" % (VF + r))
    for r in range(16):
        a("v_mov_b32 v%d, 0" % (O + r))
    a("s_mov_b32 s%d, 0xffff" % sVM)
    a("s_mov_b32 s%d, 0xffff" % (sVM + 1))
    a("s_sub_u32 s%d, 8, s%d" % (sTs, sW))
    a("s_cmp_eq_u32 s%d, 0" % sQb)
    a("s_cselect_b32 s%d, s%d, 1" % (sTs, sTs))
    a("v_add_u32 v%d, s%d, v%d" % (vK, sT1, vOff))
    a("v_and_b32 v%d, 15, v%d" % (vV, vLane))
    a("v_lshlrev_b32 v%d, 4, v%d" % (vV, vV))
    a("v_lshl_add_u32 v%d, v%d, 8, v%d" % (vV, vT1, vV))
    a("s_add_u32 s%d, s%d, 16384" % (sT0, sT1))
    a("v_add_u32 v%d, s%d, v%d" % (vV, sT0, vV))
    a("s_lshl_b32 s%d, s%d, 10" % (sT0, sTs))
    a("v_add_u32 v13, s%d, v%d" % (sT0, vK))
    a("v_add_u32 v14, s%d, v%d" % (sT0, vV))
    a("s_mov_b32 s29, s%d" % sT0)
    a("s_mov_b32 s37, 0")
    for r in range(16):
        a("v_mov_b32 v%d, 0" % (CB + r))
    a("s_cmp_eq_u32 s%d, 0" % sQb)
    a("s_cbranch_scc0 L_at_sa")
    for r in range(16):
        a("v_mov_b32 v%d, 0x%x" % (SA + r, NEGBIG))
    a.label("L_at_sa")
    stamp(a, 2)
    a("s_waitcnt vmcnt(0)")
    stamp(a, 3)
    a("s_cmp_ge_u32 s2, %d" % NSLICE)
    a("s_cbranch_scc1 L_at_plain")
    lds_sync(a, "at", M_CNT, 8, 10, 11)
    a("s_branch L_at_go")
    a.label("L_at_plain")
    a("s_barrier")
    a.label("L_at_go")
    stamp(a, 4)

    def mfma_s(dst, c):
        a("v_mfma_f32_32x32x16_bf16 %s, %s, %s, %s" % (v(dst, 16), v(KF, 4), v(QF, 4), c))
    def vread(dst, addr):
        a("s_mov_b64 exec, s[%d:%d]" % (sVM, sVM + 1))
        a("ds_read_b128 %s, v%d" % (v(dst, 4), addr))
        a("ds_read_b128 %s, v%d offset:512" % (v(dst + 4, 4), addr))
        a("s_mov_b64 exec, -1")
    def maxes():
        for i in range(8):
            m = mx0 if i % 2 == 0 else mx1
            a("v_max3_f32 v%d, v%d, v%d, v%d" % (m, m, SB + 2 * i, SB + 2 * i + 1))
    def sel():
        for r in range(16):
            a("v_cndmask_b32 v%d, v%d, v%d, s[%d:%d]" % (SB + r, SB + r, SA + r, sCond + 2 * r, sCond + 2 * r + 1))
    def exps():
        for r in range(16):
            a("v_exp_f32 v%d, v%d" % (SB + r, SB + r))
        for j in range(8):
            a("v_cvt_pk_bf16_f32 v%d, v%d, v%d" % (P + j, SB + 2 * j, SB + 2 * j + 1))
    def pv(vf, p):
        a("v_mfma_f32_32x32x16_bf16 %s, %s, %s, %s" % (v(O, 16), v(vf, 4), v(p, 4), v(O, 16)))
        a("v_mfma_f32_32x32x16_bf16 %s, %s, %s, %s" % (v(O, 16), v(vf + 4, 4), v(p + 4, 4), v(O, 16)))

    a("s_cmp_eq_u32 s%d, 0" % sQb)
    a("s_cbranch_scc1 L_at_f_no0")
    a("ds_read_b128 %s, v%d" % (v(KF, 4), vK))
    vread(V0F, vV)
    a("s_branch L_at_p2")
    a.label("L_at_f_no0")
    a("ds_read_b128 %s, v13" % v(KF, 4))
    a.label("L_at_p2")
    a("s_cmp_eq_u32 s%d, 0" % sQb)
    a("s_cbranch_scc1 L_at_p2_go")
    a("s_waitcnt lgkmcnt(0)")
    mfma_s(SA, v(CB, 16))
    a("ds_read_b128 %s, v13" % v(KF, 4))
    a.label("L_at_p2_go")
    a("s_sub_u32 s%d, 8, s%d" % (sN, sTs))
    a("s_cmp_eq_u32 s%d, 0" % sN)
    a("s_cbranch_scc1 L_at_p2_fin")
    a.label("L_at_p2_loop")
    vread(VF, 14)
    a("s_waitcnt lgkmcnt(2)")
    mfma_s(SB, v(CB, 16))
    a("v_add_u32 v13, 0x400, v13")
    a("v_add_u32 v14, 0x400, v14")
    a("ds_read_b128 %s, v13" % v(KF, 4))
    a("s_sub_u32 s%d, s%d, 1" % (sN, sN))
    a("s_nop 7")
    exps()
    a("s_waitcnt lgkmcnt(1)")
    pv(VF, P)
    a("s_cmp_lg_u32 s%d, 0" % sN)
    a("s_cbranch_scc1 L_at_p2_loop")
    a.label("L_at_p2_fin")
    vread(VF, 14)
    a("s_waitcnt lgkmcnt(2)")
    mfma_s(SB, v(CB, 16))
    a("s_nop 11")
    sel()
    exps()
    for j in range(8):
        a("v_and_b32 v%d, v%d, v%d" % (SA + j, P + j, mA + j))
    for j in range(8):
        a("v_xor_b32 v%d, v%d, v%d" % (P + j, P + j, SA + j))
    a("s_waitcnt lgkmcnt(0)")
    a("s_nop 0")
    pv(VF, P)
    a("s_cmp_eq_u32 s%d, 0" % sQb)
    a("s_cbranch_scc1 L_at_fin")
    pv(V0F, SA)
    a.label("L_at_fin")
    stamp(a, 6)
    a("s_add_u32 s%d, s%d, 0x%x" % (sT0, sBase, WS_OF))
    a("s_mov_b32 s38, 0x21800000")
    a("s_mov_b32 s39, 0x5d800000")
    a("s_nop 8")
    a("v_cmp_le_f32 vcc, s38, v%d" % (O + 8))
    a("v_cmp_ge_f32 s[72:73], s39, v%d" % (O + 8))
    a("v_rcp_f32 v10, v%d" % (O + 8))
    a("s_and_b64 vcc, vcc, s[72:73]")
    a("s_cmp_eq_u64 vcc, -1")
    a("s_cselect_b32 s38, 1, s37")
    a("s_cmp_eq_u32 s38, 0")
    a("s_cbranch_scc1 L_at_redo")
    a("s_nop 0")
    for r in range(8):
        a("v_mul_f32 v%d, v%d, v10" % (O + r, O + r))
    for j in range(4):
        a("v_cvt_pk_bf16_f32 v%d, v%d, v%d" % (P + j, O + 2 * j, O + 2 * j + 1))
    a("buffer_store_dwordx4 %s, v%d, s[%d:%d], s%d offen%s" % (v(P, 4), vOff, sWS, sWS + 3, sT0, " sc1" if opt("ST_O_SC1") else ""))
    stamp_flush(a, 1, sWS, sWid)
    a("s_endpgm")
    a.label("L_at_redo")
    a("s_mov_b32 s37, 1")
    for r in range(16):
        a("v_mov_b32 v%d, 0" % (O + r))
    a("v_add_u32 v13, s29, v%d" % vK)
    a("v_add_u32 v14, s29, v%d" % vV)
    a("v_mov_b32 v%d, 0x%x" % (mx0, NEGBIG))
    a("v_mov_b32 v%d, 0x%x" % (mx1, NEGBIG))
    a("s_cmp_eq_u32 s%d, 0" % sQb)
    a("s_cbranch_scc1 L_at_p1_no0")
    a("ds_read_b128 %s, v%d" % (v(KF, 4), vK))
    vread(V0F, vV)
    a("s_waitcnt lgkmcnt(2)")
    mfma_s(SA, "0")
    a("s_branch L_at_p1_go")
    a.label("L_at_p1_no0")
    for r in range(16):
        a("v_mov_b32 v%d, 0x%x" % (SA + r, NEGBIG))
    a.label("L_at_p1_go")
    a("v_mov_b32 v15, v13")
    a("ds_read_b128 %s, v15" % v(KF, 4))
    a("s_sub_u32 s%d, 8, s%d" % (sN, sTs))
    a("s_cmp_eq_u32 s%d, 0" % sN)
    a("s_cbranch_scc1 L_at_p1_fin")
    a.label("L_at_p1_loop")
    a("s_waitcnt lgkmcnt(0)")
    mfma_s(SB, "0")
    a("v_add_u32 v15, 0x400, v15")
    a("ds_read_b128 %s, v15" % v(KF, 4))
    a("s_sub_u32 s%d, s%d, 1" % (sN, sN))
    a("s_nop 8")
    maxes()
    a("s_cmp_lg_u32 s%d, 0" % sN)
    a("s_cbranch_scc1 L_at_p1_loop")
    a.label("L_at_p1_fin")
    a("s_waitcnt lgkmcnt(0)")
    mfma_s(SB, "0")
    a("s_cmp_eq_u32 s%d, 0" % sQb)
    a("s_cselect_b32 s%d, s29, 0" % sT1)
    a("v_add_u32 v15, s%d, v%d" % (sT1, vK))
    a("ds_read_b128 %s, v15" % v(KF, 4))
    a("s_nop 7")
    sel()
    maxes()
    a("v_max_f32 v%d, v%d, v%d" % (mx0, mx0, mx1))
    a("v_mov_b32 v%d, v%d" % (mx1, mx0))
    a("s_nop 1")
    a("v_permlane32_swap_b32 v%d, v%d" % (mx0, mx1))
    a("s_nop 0")
    a("v_max_f32 v%d, v%d, v%d" % (mx0, mx0, mx1))
    for r in range(16):
        a("v_sub_f32 v%d, 0, v%d" % (CB + r, mx0))
    a("s_branch L_at_p2")

def lds_arrive(a, addr, vt, vo):
    a("v_mov_b32 v%d, %d" % (vt, addr))
    a("v_mov_b32 v%d, 1" % vo)
    a("s_mov_b64 s[34:35], exec")
    a("s_mov_b32 exec_lo, 1")
    a("s_mov_b32 exec_hi, 0")
    a("s_waitcnt lgkmcnt(0)")
    a("ds_add_u32 v%d, v%d" % (vt, vo))
    a("s_mov_b64 exec, s[34:35]")

def lds_wait(a, tag, addr, n, vt, vo):
    a("v_mov_b32 v%d, %d" % (vt, addr))
    a("s_mov_b32 s33, 0")
    a.label("L_sync_%s" % tag)
    a("ds_read_b32 v%d, v%d" % (vo, vt))
    a("s_add_u32 s33, s33, 1")
    a("s_waitcnt lgkmcnt(0)")
    a("v_readfirstlane_b32 s36, v%d" % vo)
    a("s_cmp_gt_u32 s33, 0x100000")
    a("s_cbranch_scc1 L_syncd_%s" % tag)
    a("s_cmp_ge_u32 s36, %d" % n)
    a("s_cbranch_scc1 L_syncd_%s" % tag)
    a("s_sleep 1")
    a("s_branch L_sync_%s" % tag)
    a.label("L_syncd_%s" % tag)

def lds_sync(a, tag, addr, n, vt, vo):
    lds_arrive(a, addr, vt, vo)
    lds_wait(a, tag, addr, n, vt, vo)

def moe_dma_units(a, tag, n, vLane):
    a("v_lshrrev_b32 v4, 3, v%d" % vLane)
    a("v_and_b32 v5, 7, v%d" % vLane)
    a("v_bfe_u32 v6, v4, 1, 1")
    a("v_lshlrev_b32 v6, 1, v6")
    a("v_xor_b32 v5, v5, v6")
    a("v_mul_u32_u24 v4, 0xe00, v4")
    a("v_xor_b32 v6, 4, v5")
    a("v_lshl_add_u32 v7, v6, 4, v4")
    a("v_lshl_add_u32 v4, v5, 4, v4")
    a("v_add_u32 v7, %d, v7" % (8 * 3584))
    a("s_mov_b32 s18, 0x%x" % (512 * 3584))
    a("s_mov_b32 s19, 0x20000")
    a("s_add_u32 s29, s28, %d" % n)
    a.label("L_moe_dma_%s" % tag)
    a("s_cmp_lt_u32 s28, 32")
    a("s_cselect_b32 s16, s88, s90")
    a("s_cselect_b32 s17, s89, s91")
    a("s_and_b32 s82, s28, 31")
    a("s_mul_i32 s82, s82, %d" % (16 * 3584))
    a("s_lshl_b32 s83, s2, 7")
    a("s_add_u32 s82, s82, s83")
    a("s_lshl_b32 s83, s28, 11")
    a("s_add_u32 m0, s83, %d" % M_W)
    a("s_add_u32 s28, s28, 1")
    a("buffer_load_dwordx4 v4, s[16:19], s82 offen lds")
    a("s_add_u32 m0, m0, 1024")
    a("s_cmp_lt_u32 s28, s29")
    a("buffer_load_dwordx4 v7, s[16:19], s82 offen lds")
    a("s_cbranch_scc1 L_moe_dma_%s" % tag)

def gen_moe(a):
    vLane = 1
    sWS, sX, sWm, sWd = 8, 12, 16, 72
    sW, sT0, sT1, sI = 22, 26, 27, 28
    a("s_sub_u32 s%d, s%d, 8" % (sW, sW))
    if opt("MOE_PRIO", 1):
        a("s_setprio %d" % opt("MOE_PRIO", 1))
    a("s_cmp_ge_u32 s%d, 4" % sW)
    a("s_cbranch_scc1 L_moe_d")
    a("s_waitcnt lgkmcnt(0)")
    ws_adjust(a, 6)
    srd(a, sWS, 6, WS_SIZE)
    lds_wait(a, "go", M_CNT + 12, 12, 12, 13)
    a("s_mul_i32 s28, s%d, 10" % sW)
    moe_dma_units(a, "g", 10, vLane)
    stamp(a, 1)
    a("v_lshrrev_b32 v8, 4, v%d" % vLane)
    a("v_bfe_u32 v9, v%d, 2, 2" % vLane)
    a("v_and_b32 v10, 3, v%d" % vLane)
    a("v_and_b32 v11, 1, v8")
    a("v_lshlrev_b32 v11, 1, v11")
    a("v_lshrrev_b32 v12, 1, v9")
    a("v_or_b32 v11, v11, v12")
    a("v_xor_b32 v11, s%d, v11" % sW)
    a("v_lshl_add_u32 v9, v8, 3, v9")
    a("v_lshlrev_b32 v9, 7, v9")
    a("v_lshl_add_u32 v9, v11, 5, v9")
    a("v_lshl_add_u32 v9, v10, 3, v9")
    a("v_add_u32 v9, %d, v9" % M_W)
    a("v_add_u32 v14, 0x10000, v9")
    a("v_and_b32 v10, 3, v%d" % vLane)
    a("v_mul_u32_u24 v10, 1056, v10")
    a("v_bfe_u32 v11, v%d, 2, 1" % vLane)
    a("v_mul_u32_u24 v11, 16512, v11")
    a("v_add_u32 v10, v10, v11")
    a("v_lshl_add_u32 v10, v8, 4, v10")
    a("v_and_b32 v11, 15, v%d" % vLane)
    a("v_lshlrev_b32 v11, 7, v11")
    a("v_lshl_add_u32 v11, v8, 3, v11")
    a("s_lshl_b32 s82, s%d, 5" % sW)
    a("s_add_u32 s82, s82, %d" % M_HS)
    a("v_add_u32 v11, s82, v11")
    a("s_waitcnt vmcnt(0)")
    stamp(a, 2)
    lds_sync(a, "m0", M_CNT + 4, 8, 12, 13)
    stamp(a, 3)
    FG, FU, FB, DG, DU, NB = 16, 32, 48, 64, 68, 4
    def gu_reads(ks):
        b = ks % NB
        a("ds_read_b64_tr_b16 %s, v9 offset:%d" % (v(FG + 4 * b, 2), ks * 4096))
        a("ds_read_b64_tr_b16 %s, v9 offset:%d" % (v(FG + 4 * b + 2, 2), ks * 4096 + 512))
        a("ds_read_b128 %s, v10 offset:%d" % (v(FB + 4 * b, 4), ks * 64))
        a("ds_read_b64_tr_b16 %s, v14 offset:%d" % (v(FU + 4 * b, 2), ks * 4096))
        a("ds_read_b64_tr_b16 %s, v14 offset:%d" % (v(FU + 4 * b + 2, 2), ks * 4096 + 512))
    for ks in range(3):
        gu_reads(ks)
    for ks in range(16):
        b = ks % NB
        a("s_waitcnt lgkmcnt(%d)" % (5 * min(2, 15 - ks)))
        a("v_mfma_f32_16x16x32_bf16 %s, %s, %s, %s" % (v(DG, 4), v(FG + 4 * b, 4), v(FB + 4 * b, 4), "0" if ks == 0 else v(DG, 4)))
        a("v_mfma_f32_16x16x32_bf16 %s, %s, %s, %s" % (v(DU, 4), v(FU + 4 * b, 4), v(FB + 4 * b, 4), "0" if ks == 0 else v(DU, 4)))
        if ks + 3 < 16:
            gu_reads(ks + 3)
    a("s_nop 7")
    for e in range(4):
        bf16r(a, "v%d" % (DG + e), "v%d" % (DG + e))
        bf16r(a, "v%d" % (DU + e), "v%d" % (DU + e))
    for e in range(4):
        a("v_mul_f32 v%d, %s, v%d" % (72 + e, fhex(-LOG2E), DG + e))
    for e in range(4):
        a("v_exp_f32 v%d, v%d" % (72 + e, 72 + e))
    for e in range(4):
        a("v_add_f32 v%d, 1.0, v%d" % (72 + e, 72 + e))
    for e in range(4):
        a("v_rcp_f32 v%d, v%d" % (72 + e, 72 + e))
    a("s_nop 0")
    for e in range(4):
        a("v_mul_f32 v%d, v%d, v%d" % (DG + e, DG + e, 72 + e))
    for e in range(4):
        bf16r(a, "v%d" % (DG + e), "v%d" % (DG + e))
    for e in range(4):
        a("v_mul_f32 v%d, v%d, v%d" % (DG + e, DG + e, DU + e))
    a("v_cvt_pk_bf16_f32 v72, v%d, v%d" % (DG, DG + 1))
    a("v_cvt_pk_bf16_f32 v73, v%d, v%d" % (DG + 2, DG + 3))
    a("s_mov_b32 exec_lo, 0x00ff00ff")
    a("s_mov_b32 exec_hi, 0x00ff00ff")
    a("ds_write_b64 v11, v[72:73]")
    a("s_mov_b64 exec, -1")
    lds_arrive(a, M_CNT + 8, 12, 13)
    stamp(a, 4)
    a("s_add_u32 s%d, s%d, 8" % (sW, sW))
    stamp_flush(a, 1, sWS, sW)
    a("s_endpgm")
    a.label("L_moe_d")
    XROW, XST = 16, 24
    R0, R1, F0, F1, D, HF = 28, 60, 92, 28, 60, 16
    a("s_sub_u32 s%d, s%d, 4" % (sW, sW))
    a("s_waitcnt lgkmcnt(0)")
    ws_adjust(a, 6)
    srd(a, sWS, 6, WS_SIZE)
    a("s_lshl_b32 s%d, s%d, 3" % (sT0, sW))
    a("s_add_u32 s%d, s%d, 0x%x" % (sT0, sT0, WS_SEL))
    a("s_buffer_load_dwordx2 s[82:83], s[%d:%d], s%d" % (sWS, sWS + 3, sT0))
    srd(a, sX, 84, 2048 * 1024)
    srd(a, sWd, 92, 1792 * 1024)
    a("v_lshlrev_b32 v8, 4, v%d" % vLane)
    a("v_mov_b32 v9, 0")
    a("s_waitcnt lgkmcnt(0)")
    for k in range(2):
        a("s_lshl_b32 s%d, s%d, 10" % (sT0, 82 + k))
        a("buffer_load_dwordx4 %s, v8, s[%d:%d], s%d offen" % (v(XROW + 4 * k, 4), sX, sX + 3, sT0))
        a("s_lshl_b32 s%d, s%d, 4" % (sT1, 82 + k))
        a("s_add_u32 s%d, s%d, 0x%x" % (sT1, sT1, WS_REC))
        a("buffer_load_dwordx2 %s, v9, s[%d:%d], s%d offen" % (v(XST + 2 * k, 2), sWS, sWS + 3, sT1))
    lds_arrive(a, M_CNT + 12, 12, 13)
    a("s_mul_i32 s28, s%d, 6" % sW)
    a("s_add_u32 s28, s28, 40")
    moe_dma_units(a, "d", 6, vLane)
    a("s_waitcnt vmcnt(12)")
    stamp(a, 1)
    T = 92
    for k in range(2):
        X, ST = XROW + 4 * k, XST + 2 * k
        for i in range(4):
            a("v_lshlrev_b32 v%d, 16, v%d" % (T + 2 * i, X + i))
            a("v_and_b32 v%d, 0xffff0000, v%d" % (T + 1 + 2 * i, X + i))
        for i in range(8):
            a("v_sub_f32 v%d, v%d, v%d" % (T + i, T + i, ST))
        for i in range(4):
            a("v_cvt_pk_bf16_f32 v%d, v%d, v%d" % (X + i, T + 2 * i, T + 1 + 2 * i))
        for i in range(4):
            a("v_lshlrev_b32 v%d, 16, v%d" % (T + 2 * i, X + i))
            a("v_and_b32 v%d, 0xffff0000, v%d" % (T + 1 + 2 * i, X + i))
        for i in range(8):
            a("v_mul_f32 v%d, v%d, v%d" % (T + i, T + i, ST + 1))
        for i in range(4):
            a("v_cvt_pk_bf16_f32 v%d, v%d, v%d" % (X + i, T + 2 * i, T + 1 + 2 * i))
    a("s_lshr_b32 s82, s%d, 1" % sW)
    a("s_mul_i32 s82, s82, 16512")
    a("s_and_b32 s83, s%d, 1" % sW)
    a("s_mul_i32 s83, s83, 2112")
    a("s_add_u32 s82, s82, s83")
    a("v_add_u32 v10, s82, v8")
    a("ds_write_b128 v10, %s" % v(XROW, 4))
    a("ds_write_b128 v10, %s offset:1056" % v(XROW + 4, 4))
    a("s_waitcnt vmcnt(0)")
    lds_arrive(a, M_CNT + 4, 12, 13)
    stamp(a, 2)
    a("v_lshrrev_b32 v5, 4, v%d" % vLane)
    a("v_and_b32 v6, 15, v%d" % vLane)
    a("v_lshlrev_b32 v5, 13, v5")
    a("v_lshl_add_u32 v5, v6, 4, v5")
    a("s_lshl_b32 s94, s2, 16")
    a("s_lshl_b32 s95, s%d, 8" % sW)
    a("s_add_u32 s32, s94, s95")
    for kk in range(2):
        for e in range(8):
            a("s_add_u32 s83, s32, %d" % (kk * 32768 + (e // 4) * 4096))
            a("buffer_load_dwordx4 %s, v5, s[%d:%d], s83 offen offset:%d" % (v((R0 if kk == 0 else R1) + 4 * e, 4), sWd, sWd + 3, (e % 4) * 1024))
    a("s_mov_b32 s94, 0x05040100")
    a("s_mov_b32 s95, 0x07060302")
    a("v_and_b32 v10, 7, v%d" % vLane)
    a("v_lshrrev_b32 v9, 4, v%d" % vLane)
    a("v_lshlrev_b32 v10, 7, v10")
    a("v_lshl_add_u32 v10, v9, 4, v10")
    a("v_add_u32 v10, %d, v10" % M_HS)
    a("v_and_b32 v11, 15, v%d" % vLane)
    a("v_lshlrev_b32 v11, 11, v11")
    a("v_lshl_add_u32 v11, v9, 4, v11")
    a("s_lshl_b32 s82, s2, 14")
    a("s_lshl_b32 s83, s%d, 9" % sW)
    a("s_add_u32 s82, s82, s83")
    a("s_add_u32 s82, s82, 0x%x" % WS_PART)
    a("s_waitcnt vmcnt(8)")
    for jj in range(8):
        for p in range(4):
            a("v_perm_b32 v%d, v%d, v%d, s%d" % (F0 + 4 * jj + p, R0 + 4 * (2 * p + 1) + (jj >> 1), R0 + 4 * (2 * p) + (jj >> 1), 94 + (jj & 1)))
    a("s_waitcnt vmcnt(0)")
    for jj in range(8):
        for p in range(4):
            a("v_perm_b32 v%d, v%d, v%d, s%d" % (F1 + 4 * jj + p, R1 + 4 * (2 * p + 1) + (jj >> 1), R1 + 4 * (2 * p) + (jj >> 1), 94 + (jj & 1)))
    stamp(a, 3)
    lds_wait(a, "m2", M_CNT + 8, 4, 12, 13)
    stamp(a, 4)
    a("ds_read_b128 %s, v10" % v(HF, 4))
    a("ds_read_b128 %s, v10 offset:64" % v(HF + 4, 4))
    a("s_waitcnt lgkmcnt(1)")
    for jj in range(8):
        a("v_mfma_f32_16x16x32_bf16 %s, %s, %s, 0" % (v(D + 4 * jj, 4), v(F0 + 4 * jj, 4), v(HF, 4)))
    a("s_waitcnt lgkmcnt(0)")
    for jj in range(8):
        a("v_mfma_f32_16x16x32_bf16 %s, %s, %s, %s" % (v(D + 4 * jj, 4), v(F1 + 4 * jj, 4), v(HF + 4, 4), v(D + 4 * jj, 4)))
    a("s_mov_b32 exec_lo, 0x00ff00ff")
    a("s_mov_b32 exec_hi, 0x00ff00ff")
    a("s_nop 0")
    for jj in range(8):
        if jj == 7:
            a("s_nop 4")
        a("buffer_store_dwordx4 %s, v11, s[%d:%d], s82 offen offset:%d" % (v(D + 4 * jj, 4), sWS, sWS + 3, jj * 64))
    a("s_add_u32 s%d, s%d, 12" % (sW, sW))
    stamp_flush(a, 1, sWS, sW)
    a("s_endpgm")

def gen_k2():
    a = Asm()
    N = "k2_kernel"
    a(kernel_head(N))
    a("s_cmp_ge_u32 s2, %d" % K2_GRID)
    a("s_cbranch_scc1 L_k2_end")
    stamp_begin(a, 127)
    a("s_load_dwordx2 s[6:7], s[0:1], 80")
    a("v_lshrrev_b32 v2, 6, v0")
    a("v_and_b32 v1, 63, v0")
    a("v_readfirstlane_b32 s22, v2")
    a("s_cmp_lt_u32 s2, %d" % NSLICE)
    a("s_cbranch_scc1 L_k2_mixed")
    a("s_cmp_ge_u32 s22, 8")
    a("s_cbranch_scc1 L_k2_end")
    a("s_branch L_k2_attn")
    a.label("L_k2_mixed")
    a("s_load_dwordx2 s[84:85], s[0:1], 0")
    a("s_load_dwordx4 s[88:91], s[0:1], 40")
    a("s_load_dwordx2 s[92:93], s[0:1], 56")
    a("s_cmp_lg_u32 s22, 0")
    a("s_cbranch_scc1 L_k2_z")
    a("v_mov_b32 v3, %d" % M_CNT)
    a("v_mov_b32 v4, 0"); a("v_mov_b32 v5, 0"); a("v_mov_b32 v6, 0"); a("v_mov_b32 v7, 0")
    a("ds_write_b128 v3, v[4:7]")
    a("s_waitcnt lgkmcnt(0)")
    a.label("L_k2_z")
    a("s_barrier")
    a("s_cmp_ge_u32 s22, 8")
    a("s_cbranch_scc1 L_k2_moe")
    a.label("L_k2_attn")
    gen_attn(a)
    a.label("L_k2_moe")
    gen_moe(a)
    a.label("L_k2_end")
    a("s_endpgm")
    return a.text(), 128
```

```python
from dsl import *
from k1 import *

K3_Y = 131072
K3_LDS = K3_Y + 2048

def gen_k3():
    a = Asm()
    N = "k3_kernel"
    a(kernel_head(N))
    vLane = 1
    sWS, sX, sWo, sOut = 8, 12, 16, 20
    sRb, sCb, sW, sMt, sNt, sT0, sT1, sPh, sTile = 28, 29, 30, 31, 32, 33, 34, 35, 36
    sIdx, sSig = 40, 48
    a("s_cmp_ge_u32 s2, 256")
    a("s_cbranch_scc1 L_k3_end")
    stamp_begin(a, 62)
    a("s_load_dwordx2 s[4:5], s[0:1], 0")
    a("s_load_dwordx2 s[6:7], s[0:1], 16")
    a("s_load_dwordx4 s[24:27], s[0:1], 64")
    a("s_load_dwordx2 s[38:39], s[0:1], 80")
    a("s_and_b32 s%d, s2, 7" % sT0)
    a("s_lshr_b32 s%d, s2, 3" % sT1)
    a("s_lshl_b32 s%d, s%d, 2" % (sRb, sT0))
    a("s_and_b32 s%d, s%d, 3" % (sCb, sT1))
    a("s_add_u32 s%d, s%d, s%d" % (sRb, sRb, sCb))
    a("s_lshr_b32 s%d, s%d, 2" % (sCb, sT1))
    a("v_lshrrev_b32 v2, 6, v0")
    a("v_and_b32 v%d, 63, v0" % vLane)
    a("v_readfirstlane_b32 s%d, v2" % sW)
    a("s_cmp_ge_u32 s%d, 4" % sW)
    a("s_cbranch_scc0 L_k3_cons")
    vOa, vWa = 4, 5
    a("v_lshlrev_b32 v%d, 4, v%d" % (vOa, vLane))
    a("v_lshrrev_b32 v2, 3, v%d" % vLane)
    a("v_and_b32 v3, 7, v%d" % vLane)
    a("v_bfe_u32 v9, v%d, 4, 1" % vLane)
    a("v_lshlrev_b32 v9, 2, v9")
    a("v_xor_b32 v3, v3, v9")
    a("v_lshlrev_b32 v3, 4, v3")
    a("v_lshl_add_u32 v%d, v2, 10, v3" % vWa)
    a("s_sub_u32 s%d, s%d, 4" % (sW, sW))
    a("s_and_b32 s%d, s%d, 1" % (sMt, sW))
    a("s_lshr_b32 s%d, s%d, 1" % (sNt, sW))
    a("s_lshl_b32 s68, s%d, 1" % sRb)
    a("s_add_u32 s68, s68, s%d" % sMt)
    a("s_lshl_b32 s68, s68, 10")
    a("s_lshl_b32 s69, s%d, 17" % sNt)
    a("s_add_u32 s68, s68, s69")
    a("s_add_u32 s68, s68, 0x%x" % WS_OF)
    a("s_lshl_b32 s70, s%d, 15" % sMt)
    a("s_lshl_b32 s69, s%d, 11" % sNt)
    a("s_add_u32 s70, s70, s69")
    a("s_lshl_b32 s71, s%d, 14" % sW)
    a("s_lshl_b32 s69, s%d, 7" % sCb)
    a("s_add_u32 s71, s71, s69")
    a("s_lshl_b32 s72, s%d, 11" % sW)
    a("s_add_u32 s72, s72, 65536")
    a("s_waitcnt lgkmcnt(0)")
    ws_adjust(a, 38)
    srd(a, sWS, 38, WS_SIZE)
    srd(a, sWo, 6, 512 * 1024)
    a("s_add_u32 s62, s38, 0x%x" % WS_SEL)
    a("s_addc_u32 s63, s39, 0")
    a("s_load_dwordx16 s[%d:%d], s[62:63], 0" % (sIdx, sIdx + 15))
    stamp(a, 1)
    def issue():
        a("s_mov_b32 m0, s72")
        a("s_add_u32 s69, s71, 8192")
        a("buffer_load_dwordx4 v%d, s[%d:%d], s71 offen lds" % (vWa, sWo, sWo + 3))
        a("s_add_u32 m0, m0, 1024")
        a("s_add_u32 s71, s71, 131072")
        a("buffer_load_dwordx4 v%d, s[%d:%d], s69 offen lds" % (vWa, sWo, sWo + 3))
        a("s_mov_b32 m0, s70")
        a("s_add_u32 s69, s68, 0x10000")
        a("buffer_load_dwordx4 v%d, s[%d:%d], s68 offen lds" % (vOa, sWS, sWS + 3))
        a("s_add_u32 m0, m0, 1024")
        a("s_add_u32 s68, s68, 0x80000")
        a("buffer_load_dwordx4 v%d, s[%d:%d], s69 offen lds" % (vOa, sWS, sWS + 3))
        a("s_add_u32 s70, s70, 8192")
        a("s_add_u32 s72, s72, 16384")
    issue()
    issue()
    Y = 64
    a("v_lshrrev_b32 v12, 4, v%d" % vLane)
    a("v_and_b32 v13, 15, v%d" % vLane)
    a("v_lshlrev_b32 v12, 14, v12")
    a("v_lshrrev_b32 v14, 1, v13")
    a("v_lshl_add_u32 v12, v14, 6, v12")
    a("v_and_b32 v15, 1, v13")
    a("v_lshl_add_u32 v12, v15, 4, v12")
    a("s_lshr_b32 s%d, s%d, 1" % (sT0, sCb))
    a("s_lshl_b32 s%d, s%d, 9" % (sT0, sT0))
    a("s_and_b32 s%d, s%d, 1" % (sT1, sCb))
    a("s_lshl_b32 s%d, s%d, 5" % (sT1, sT1))
    a("s_add_u32 s%d, s%d, s%d" % (sT0, sT0, sT1))
    a("s_lshl_b32 s%d, s%d, 11" % (sT1, sW))
    a("s_add_u32 s73, s%d, s%d" % (sT0, sT1))
    a("s_add_u32 s73, s73, 0x%x" % WS_PART)
    a("v_lshl_add_u32 v14, v15, 5, v14")
    a("s_lshl_b32 s%d, s%d, 8" % (sT1, sW))
    a("s_add_u32 s%d, s%d, %d" % (sT1, sT1, K3_Y))
    a("v_lshl_add_u32 v14, v14, 2, s%d" % sT1)
    a("s_mov_b32 m0, s%d" % sW)
    a("s_waitcnt lgkmcnt(0)")
    a("s_movrels_b32 s59, s%d" % sIdx)
    a("s_movrels_b32 s60, s%d" % sSig)
    a("s_lshr_b32 s%d, s59, 6" % sT1)
    a("s_waitcnt vmcnt(4)")
    a("s_barrier")
    a("s_cmp_eq_u32 s%d, s%d" % (sT1, sRb))
    a("s_cbranch_scc1 L_k3_tok")
    issue()
    a("s_waitcnt vmcnt(4)")
    a("s_barrier")
    issue()
    a("s_waitcnt vmcnt(4)")
    a("s_barrier")
    a("s_branch L_k3_ldfin")
    a.label("L_k3_tok")
    for q in range(7):
        a("buffer_load_dwordx4 %s, v12, s[%d:%d], s73 offen" % (v(Y + 4 * q, 4), sWS, sWS + 3))
        a("s_add_u32 s73, s73, 0x10000")
    issue()
    a("s_waitcnt vmcnt(11)")
    a("s_barrier")
    issue()
    a("s_waitcnt vmcnt(4)")
    a("s_barrier")
    for (x, y) in ((0, 1), (2, 3), (4, 5), (0, 2), (4, 6), (0, 4)):
        a("v_pk_add_f32 %s, %s, %s" % (v(Y + 4 * x, 2), v(Y + 4 * x, 2), v(Y + 4 * y, 2)))
        a("v_pk_add_f32 %s, %s, %s" % (v(Y + 4 * x + 2, 2), v(Y + 4 * x + 2, 2), v(Y + 4 * y + 2, 2)))
    for sw in ("v_permlane16_swap_b32", "v_permlane32_swap_b32"):
        for e in range(4):
            a("v_mov_b32 v%d, v%d" % (Y + 4 + e, Y + e))
        a("s_nop 1")
        for e in range(4):
            a("%s v%d, v%d" % (sw, Y + e, Y + 4 + e))
        a("s_nop 0")
        for e in range(4):
            a("v_add_f32 v%d, v%d, v%d" % (Y + e, Y + e, Y + 4 + e))
    for e in range(4):
        bf16r(a, "v%d" % (Y + e), "v%d" % (Y + e))
        a("v_mul_f32 v%d, s60, v%d" % (Y + e, Y + e))
        bf16r(a, "v%d" % (Y + e), "v%d" % (Y + e))
    for e in range(4):
        a("ds_write_b32 v14, v%d offset:%d" % (Y + e, e * 32))
    a.label("L_k3_ldfin")
    stamp(a, 2)
    a("s_waitcnt vmcnt(0) lgkmcnt(0)")
    a("s_barrier")
    a("s_add_u32 s%d, s%d, 4" % (sW, sW))
    stamp_flush(a, 2, sWS, sW)
    a("s_endpgm")
    a.label("L_k3_cons")
    vOr, vWr, vXo = 6, 7, 8
    acc = 16
    XR = 32
    base = 40
    FB, FA = 64, 96
    XN = 128
    a("s_and_b32 s%d, s%d, 1" % (sMt, sW))
    a("s_lshr_b32 s%d, s%d, 1" % (sNt, sW))
    a("s_lshl_b32 s%d, s%d, 1" % (sTile, sRb))
    a("s_add_u32 s%d, s%d, s%d" % (sTile, sTile, sMt))
    a("v_and_b32 v2, 31, v%d" % vLane)
    a("v_lshrrev_b32 v3, 5, v%d" % vLane)
    a("s_lshl_b32 s%d, s%d, 5" % (sT0, sTile))
    a("v_add_u32 v9, s%d, v2" % sT0)
    a("v_lshlrev_b32 v%d, 10, v9" % vXo)
    a("v_lshl_add_u32 v%d, v3, 4, v%d" % (vXo, vXo))
    a("s_lshl_b32 s%d, s%d, 7" % (sT0, sCb))
    a("s_lshl_b32 s%d, s%d, 6" % (sT1, sNt))
    a("s_add_u32 s%d, s%d, s%d" % (sT0, sT0, sT1))
    a("v_add_u32 v%d, s%d, v%d" % (vXo, sT0, vXo))
    a("v_lshlrev_b32 v9, 4, v9")
    a("s_waitcnt lgkmcnt(0)")
    ws_adjust(a, 38)
    srd(a, sWS, 38, WS_SIZE)
    srd(a, sX, 4, 2048 * 1024)
    a("s_add_u32 s62, s38, 0x%x" % WS_SEL)
    a("s_addc_u32 s63, s39, 0")
    a("s_load_dwordx16 s[%d:%d], s[62:63], 0" % (sIdx, sIdx + 15))
    a("buffer_load_dwordx4 %s, v%d, s[%d:%d], 0 offen" % (v(XR, 4), vXo, sX, sX + 3))
    a("buffer_load_dwordx4 %s, v%d, s[%d:%d], 0 offen offset:32" % (v(XR + 4, 4), vXo, sX, sX + 3))
    a("s_mov_b32 s%d, 0x%x" % (sT0, WS_REC))
    a("buffer_load_dwordx2 v[10:11], v9, s[%d:%d], s%d offen" % (sWS, sWS + 3, sT0))
    srd(a, sOut, 24, 2048 * 1024)
    a("s_lshl_b32 s%d, s%d, 15" % (sT0, sMt))
    a("v_lshl_add_u32 v%d, v%d, 4, s%d" % (vOr, vLane, sT0))
    a("v_bfe_u32 v12, v%d, 2, 2" % vLane)
    a("v_lshl_add_u32 v13, v3, 2, v12")
    a("v_lshlrev_b32 v13, 7, v13")
    a("v_lshrrev_b32 v12, 1, v12")
    a("v_xor_b32 v12, s%d, v12" % sNt)
    a("v_lshl_add_u32 v13, v12, 6, v13")
    a("v_bfe_u32 v12, v%d, 4, 1" % vLane)
    a("v_lshl_add_u32 v13, v12, 5, v13")
    a("v_and_b32 v12, 3, v%d" % vLane)
    a("v_lshl_add_u32 v13, v12, 3, v13")
    a("v_add_u32 v%d, 0x10000, v13" % vWr)
    for r in range(16):
        a("v_mov_b32 v%d, 0" % (acc + r))
    stamp(a, 1)
    a("s_waitcnt vmcnt(0) lgkmcnt(0)")
    stamp(a, 3)
    for i in range(8):
        a("v_lshlrev_b32 v%d, 16, v%d" % (base + 2 * i, XR + i))
        a("v_and_b32 v%d, 0xffff0000, v%d" % (base + 2 * i + 1, XR + i))
    for i in range(16):
        a("v_sub_f32 v%d, v%d, v10" % (XN + i, base + i))
    for i in range(8):
        a("v_cvt_pk_bf16_f32 v%d, v%d, v%d" % (XR + i, XN + 2 * i, XN + 2 * i + 1))
    for i in range(8):
        a("v_lshlrev_b32 v%d, 16, v%d" % (XN + 2 * i, XR + i))
        a("v_and_b32 v%d, 0xffff0000, v%d" % (XN + 2 * i + 1, XR + i))
    for i in range(16):
        a("v_mul_f32 v%d, v%d, v11" % (XN + i, XN + i))
    for i in range(8):
        a("v_cvt_pk_bf16_f32 v%d, v%d, v%d" % (XR + i, XN + 2 * i, XN + 2 * i + 1))
    for i in range(8):
        a("v_lshlrev_b32 v%d, 16, v%d" % (XN + 2 * i, XR + i))
        a("v_and_b32 v%d, 0xffff0000, v%d" % (XN + 2 * i + 1, XR + i))
    for i in range(16):
        a("v_add_f32 v%d, v%d, v%d" % (base + i, base + i, XN + i))
    a("s_mov_b32 s67, 0")
    for jx in range(8):
        a("s_lshr_b32 s%d, s%d, 5" % (sT1, sIdx + jx))
        a("s_cmp_eq_u32 s%d, s%d" % (sT1, sTile))
        a("s_cselect_b32 s%d, %d, 0" % (sT1, 1 << jx))
        a("s_or_b32 s67, s67, s%d" % sT1)
    stamp(a, 4)
    def step_reads(ks, buf):
        a("ds_read_b128 %s, v%d offset:%d" % (v(FB + 4 * buf, 4), vOr, ks * 1024))
        a("ds_read_b64_tr_b16 %s, v%d offset:%d" % (v(FA + 4 * buf, 2), vWr, ks * 2048))
        a("ds_read_b64_tr_b16 %s, v%d offset:%d" % (v(FA + 4 * buf + 2, 2), vWr, ks * 2048 + 1024))
    a("s_mov_b32 s%d, 0" % sPh)
    a.label("L_k3_loop")
    a("s_barrier")
    stamp(a, "s%d+10" % sPh)
    for ks in range(4):
        step_reads(ks, ks)
    for ks in range(8):
        a("s_waitcnt lgkmcnt(%d)" % (9 if ks < 5 else 3 * (7 - ks)))
        a("v_mfma_f32_32x32x16_bf16 %s, %s, %s, %s" % (v(acc, 16), v(FA + 4 * ks, 4), v(FB + 4 * ks, 4), v(acc, 16)))
        if ks + 4 < 8:
            step_reads(ks + 4, ks + 4)
    a("v_add_u32 v%d, 0x2000, v%d" % (vOr, vOr))
    a("v_add_u32 v%d, 0x4000, v%d" % (vWr, vWr))
    a("s_add_u32 s%d, s%d, 1" % (sPh, sPh))
    a("s_cmp_lt_u32 s%d, 4" % sPh)
    a("s_cbranch_scc1 L_k3_loop")
    stamp(a, 5)
    a("s_cmp_eq_u32 s67, 0")
    a("s_cbranch_scc1 L_k3_fin")
    a("s_lshl_b32 s%d, s%d, 7" % (sT0, sNt))
    a("s_add_u32 s%d, s%d, %d" % (sT0, sT0, K3_Y))
    a("v_lshl_add_u32 v14, v3, 5, s%d" % sT0)
    a.label("L_k3_ap")
    a("s_ff1_i32_b32 s58, s67")
    a("s_bitset0_b32 s67, s58")
    a("s_mov_b32 m0, s58")
    a("s_lshl_b32 s%d, s58, 8" % sT1)
    a("s_movrels_b32 s59, s%d" % sIdx)
    a("v_add_u32 v15, s%d, v14" % sT1)
    a("ds_read_b128 v[64:67], v15")
    a("ds_read_b128 v[68:71], v15 offset:16")
    a("ds_read_b128 v[72:75], v15 offset:64")
    a("ds_read_b128 v[76:79], v15 offset:80")
    a("s_and_b32 s59, s59, 31")
    a("v_cmp_eq_u32 vcc, s59, v2")
    a("s_waitcnt lgkmcnt(0)")
    a("s_and_saveexec_b64 s[64:65], vcc")
    for r in range(16):
        a("v_add_f32 v%d, v%d, v%d" % (base + r, base + r, 64 + r))
    a("s_mov_b64 exec, s[64:65]")
    a("s_cmp_lg_u32 s67, 0")
    a("s_cbranch_scc1 L_k3_ap")
    a.label("L_k3_fin")
    a("s_nop 7")
    for r in range(4):
        a("v_permlane32_swap_b32 v%d, v%d" % (acc + r, acc + 4 + r))
        a("v_permlane32_swap_b32 v%d, v%d" % (acc + 8 + r, acc + 12 + r))
    for i in range(8):
        a("v_pk_add_f32 %s, %s, %s" % (v(base + 2 * i, 2), v(base + 2 * i, 2), v(acc + 2 * i, 2)))
    for i in range(8):
        a("v_cvt_pk_bf16_f32 v%d, v%d, v%d" % (XR + i, base + 2 * i, base + 2 * i + 1))
    OST = " sc1" if opt("ST_OUT_SC1") else (" nt" if opt("ST_OUT_NT") else "")
    a("buffer_store_dwordx4 %s, v%d, s[%d:%d], 0 offen%s" % (v(XR, 4), vXo, sOut, sOut + 3, OST))
    a("buffer_store_dwordx4 %s, v%d, s[%d:%d], 0 offen offset:32%s" % (v(XR + 4, 4), vXo, sOut, sOut + 3, OST))
    stamp_flush(a, 2, sWS, sW)
    a.label("L_k3_end")
    a("s_endpgm")
    return a.text(), 144
```

```python
from dsl import *

WS_QF = 0x000000
WS_KF = 0x200000
WS_VF = 0x400000
WS_OF = WS_QF
WS_REC = 0x800000
WS_CSR = 0x808000
WS_SEL = 0x80e000
WS_PART = 0x810000
WS_SIZE = 0xD00000 if PROF else 0x900000
NSLICE = 28
K1_GRID = 256

QSCALE = 0.25 * 1.4426950408889634
LOG2E = 1.4426950408889634

def fhex(x):
    import struct
    return "0x%08x" % struct.unpack("<I", struct.pack("<f", x))[0]

G_ST = 131072
G_LDS = G_ST + 1024
K1_LDS = G_LDS

sXP, sWP, sWRP, sWGP, sWUP, sWDP, sDBG, sWSP = 4, 6, 12, 14, 16, 18, 20, 22
sWave = 3

def wave_max_u32(a, t):
    for dp in ["quad_perm:[1,0,3,2] row_mask:0xf", "quad_perm:[2,3,0,1] row_mask:0xf", "row_half_mirror row_mask:0xf", "row_mirror row_mask:0xf",
               "row_bcast:15 row_mask:0xa", "row_bcast:31 row_mask:0xc"]:
        a("s_nop 1")
        a("v_max_u32_dpp v%d, v%d, v%d %s bank_mask:0xf" % (t, t, t, dp))

def poll_flags(a, tag, vaddr, srdreg, lanes_mask_lo, tmp):
    a("s_mov_b32 s98, 0")
    a.label("L_poll_%s" % tag)
    a("buffer_load_dword v%d, v%d, s[%d:%d], 0 offen sc1" % (tmp, vaddr, srdreg, srdreg + 3))
    a("s_add_u32 s98, s98, 1")
    a("s_waitcnt vmcnt(0)")
    a("v_cmp_eq_u32 vcc, 0, v%d" % tmp)
    a("s_cmp_gt_u32 s98, 0x40000")
    a("s_cbranch_scc1 L_polld_%s" % tag)
    a("s_and_b32 s99, vcc_lo, 0x%x" % lanes_mask_lo)
    a("s_cbranch_scc0 L_polld_%s" % tag)
    a("s_sleep 8")
    a("s_branch L_poll_%s" % tag)
    a.label("L_polld_%s" % tag)

def get_nonce(a, tag, sdb, vtmp, vzero, sdst):
    a("v_mov_b32 v%d, 0" % vzero)
    a("s_mov_b32 s98, 0")
    a.label("L_nonce_%s" % tag)
    a("buffer_load_dword v%d, v%d, s[%d:%d], 0 offen sc1" % (vtmp, vzero, sdb, sdb + 3))
    a("s_add_u32 s98, s98, 1")
    a("s_waitcnt vmcnt(0)")
    a("v_readfirstlane_b32 s%d, v%d" % (sdst, vtmp))
    a("s_cmp_gt_u32 s98, 0x40000")
    a("s_cbranch_scc1 L_nonced_%s" % tag)
    a("s_cmp_lg_u32 s%d, 0" % sdst)
    a("s_cbranch_scc1 L_nonced_%s" % tag)
    a("s_sleep 4")
    a("s_branch L_nonce_%s" % tag)
    a.label("L_nonced_%s" % tag)

def gen_e(a):
    vLane = 1
    sX, sW, sWS, sDb, sWR = 24, 28, 32, 36, 40
    sT0, sT1, sEb, sStrip, sTag = 44, 45, 49, 50, 51
    L_CS = 0
    srd(a, sX, sXP, 2048 * 1024)
    srd(a, sWR, sWRP, 1024)
    a("s_and_b32 s%d, s2, 1" % sT0)
    a("s_bfe_u32 s%d, s2, 0x20001" % sT1)
    a("s_lshr_b32 s46, s2, 3")
    a("s_lshl_b32 s%d, s%d, 3" % (sEb, sT1))
    a("s_lshl_b32 s47, s%d, 2" % sT0)
    a("s_add_u32 s%d, s%d, s47" % (sEb, sEb))
    a("s_add_u32 s%d, s%d, s46" % (sEb, sEb))
    a("v_lshrrev_b32 v2, 4, v%d" % vLane)
    a("v_and_b32 v3, 15, v%d" % vLane)
    a("v_lshlrev_b32 v3, 4, v3")
    a("v_lshl_add_u32 v4, v2, 10, v3")
    WP = 16
    a("s_lshl_b32 s%d, s%d, 6" % (sT0, sEb))
    a("s_lshl_b32 s%d, s%d, 3" % (sT1, sWave))
    a("s_add_u32 s46, s%d, s%d" % (sT0, sT1))
    a("s_lshl_b32 s47, s46, 10")
    XP = 32
    for g in range(2):
        for q in range(4):
            a("buffer_load_dwordx4 %s, v4, s[%d:%d], s47 offen offset:%d" % (v(XP + 16 * g + 4 * q, 4), sX, sX + 3, q * 256))
        if g == 0:
            for q in range(4):
                a("buffer_load_dwordx4 %s, v3, s[%d:%d], 0 offen offset:%d" % (v(WP + 4 * q, 4), sWR, sWR + 3, q * 256))
            a("s_add_u32 s47, s47, 4096")
    srd(a, sDb, sDBG, 256)
    a("v_mov_b32 v13, 0")
    a("buffer_load_dword v12, v13, s[%d:%d], 0 offen sc1" % (sDb, sDb + 3))
    stamp(a, 1)
    srd(a, sWS, sWSP, WS_SIZE)
    a("v_mov_b32 v5, 0x3f803f80")
    a("v_mov_b32 v8, 0")
    a("v_add_u32 v15, s46, v2")
    dps = ["quad_perm:[1,0,3,2]", "quad_perm:[2,3,0,1]", "row_half_mirror", "row_mirror"]
    a("s_waitcnt vmcnt(5)")
    for i in range(16):
        a("v_dot2_f32_bf16 v8, v%d, v5, v8" % (WP + i))
    A0, A1, A2 = 9, 10, 11
    OUT = [100, 104]
    for g in range(2):
        if g == 1:
            a("s_waitcnt vmcnt(1)")
        if g == 0:
            stamp(a, 2)
        a("v_mov_b32 v%d, 0" % A0); a("v_mov_b32 v%d, 0" % A1); a("v_mov_b32 v%d, 0" % A2)
        for i in range(16):
            x = XP + 16 * g + i
            a("v_dot2_f32_bf16 v%d, v%d, v5, v%d" % (A0, x, A0))
            a("v_dot2_f32_bf16 v%d, v%d, v%d, v%d" % (A1, x, x, A1))
            a("v_dot2_f32_bf16 v%d, v%d, v%d, v%d" % (A2, x, WP + i, A2))
        a("s_nop 2")
        for dp in dps:
            for r in ((A0, A1, A2, 8) if g == 0 else (A0, A1, A2)):
                a("v_add_f32_dpp v%d, v%d, v%d %s row_mask:0xf bank_mask:0xf" % (r, r, r, dp))
        M, RS, KEY = OUT[g], OUT[g] + 1, OUT[g] + 2
        a("v_mul_f32 v%d, %s, v%d" % (M, fhex(1.0 / 512), A0))
        a("v_mul_f32 v14, %s, v%d" % (fhex(1.0 / 512), A1))
        a("v_fma_f32 v14, -v%d, v%d, v14" % (M, M))
        a("v_max_f32 v14, 0, v14")
        bf16r(a, "v%d" % M, "v%d" % M)
        bf16r(a, "v14", "v14")
        a("v_add_f32 v14, %s, v14" % fhex(1e-5))
        bf16r(a, "v14", "v14")
        a("v_sqrt_f32 v14, v14")
        a("s_nop 0")
        bf16r(a, "v14", "v14")
        a("v_rcp_f32 v%d, v14" % RS)
        a("v_fma_f32 v14, -v%d, v8, v%d" % (M, A2))
        a("v_mul_f32 v14, v14, v%d" % RS)
        a("v_cvt_pk_bf16_f32 v14, v14, v14")
        a("v_and_b32 v14, 0xffff, v14")
        a("v_cmp_gt_u32 vcc, 0x8000, v14")
        a("v_xor_b32 v96, 0x8000, v14")
        a("v_xor_b32 v97, 0xffff, v14")
        a("v_sub_u32 v98, 0xffff, v15")
        a("v_cndmask_b32 v14, v97, v96, vcc")
        a("v_lshl_or_b32 v%d, v14, 16, v98" % KEY)
        a("v_add_u32 v15, 4, v15")
    a("s_waitcnt vmcnt(0)")
    a("v_readfirstlane_b32 s%d, v12" % sTag)
    a("v_and_b32 v9, 15, v%d" % vLane)
    a("v_cmp_eq_u32 vcc, 1, v9")
    a("s_nop 1")
    a("s_cmp_lg_u32 s%d, 0" % sTag)
    a("s_cbranch_scc1 L_e_tag")
    get_nonce(a, "e", sDb, 12, 13, sTag)
    a.label("L_e_tag")
    for q in range(3):
        a("v_cndmask_b32 v%d, v%d, v%d, vcc" % (OUT[0] + q, OUT[0] + q, OUT[1] + q))
    a("v_mov_b32 v%d, s%d" % (OUT[0] + 3, sTag))
    a("v_lshl_add_u32 v10, v9, 2, v2")
    a("v_add_u32 v10, s46, v10")
    a("v_lshlrev_b32 v10, 4, v10")
    a("s_mov_b32 s47, 0x%x" % WS_REC)
    a("s_mov_b32 exec_lo, 0x00030003")
    a("s_mov_b32 exec_hi, 0x00030003")
    a("buffer_store_dwordx4 %s, v10, s[%d:%d], s47 offen sc1" % (v(OUT[0], 4), sWS, sWS + 3))
    a("s_mov_b64 exec, -1")
    stamp(a, 3)
    a.label("L_e_done")
    stamp_flush(a, 0, sWS, sWave)
    a("s_endpgm")

class Net:
    def __init__(self, a, free):
        self.a = a; self.free = list(free)
    def get(self): return self.free.pop(0)
    def put(self, r): self.free.append(r)
    def ce(self, L, i, j):
        hi, lo = self.get(), self.get()
        self.a("v_max_u32 v%d, v%d, v%d" % (hi, L[i], L[j]))
        self.a("v_min_u32 v%d, v%d, v%d" % (lo, L[i], L[j]))
        self.put(L[i]); self.put(L[j])
        L[i], L[j] = hi, lo
    def sort_bitonic8(self, L):
        for st in ([(0, 4), (1, 5), (2, 6), (3, 7)], [(0, 2), (1, 3), (4, 6), (5, 7)], [(0, 1), (2, 3), (4, 5), (6, 7)]):
            for (i, j) in st: self.ce(L, i, j)
    def top8(self, L, dpp, sort=True):
        T = [None] * 8
        for i in range(7, -1, -1):
            T[i] = self.get()
            self.a("v_max_u32_dpp v%d, v%d, v%d %s bank_mask:0xf" % (T[i], L[7 - i], L[i], dpp))
        for r in L: self.put(r)
        if sort: self.sort_bitonic8(T)
        return T

def top8_wave(a, keys, free, wave_sgpr, lds_cand):
    n = Net(a, free)
    L = list(keys)
    for (i, j) in ((0,1),(2,3),(4,5),(6,7),(0,2),(1,3),(4,6),(5,7),(1,2),(5,6),(0,4),(3,7),(1,5),(2,6),(1,4),(3,6),(2,4),(3,5),(3,4)):
        n.ce(L, i, j)
    a("s_nop 0")
    for dp in ("quad_perm:[1,0,3,2] row_mask:0xf", "quad_perm:[2,3,0,1] row_mask:0xf", "row_half_mirror row_mask:0xf", "row_mirror row_mask:0xf",
               "row_bcast:15 row_mask:0xa", "row_bcast:31 row_mask:0xc"):
        L = n.top8(L, dp)
    base = (max(free) + 4) // 4 * 4
    for i in range(8):
        a("v_mov_b32 v%d, v%d" % (base + i, L[i]))
    adr = n.get()
    a("s_lshl_b32 s98, s%d, 5" % wave_sgpr)
    a("s_add_u32 s98, s98, %d" % lds_cand)
    a("v_mov_b32 v%d, s98" % adr)
    a("s_mov_b32 exec_lo, 0")
    a("s_mov_b32 exec_hi, 0x80000000")
    a("ds_write_b128 v%d, %s" % (adr, v(base, 4)))
    a("ds_write_b128 v%d, %s offset:16" % (adr, v(base + 4, 4)))
    a("s_mov_b64 exec, -1")

def top8_final(a, free, lds_cand):
    n = Net(a, free)
    base = (max(free) + 4) // 4 * 4
    adr = n.get()
    a("v_mbcnt_lo_u32_b32 v%d, -1, 0" % adr)
    a("v_mbcnt_hi_u32_b32 v%d, -1, v%d" % (adr, adr))
    a("v_and_b32 v%d, 3, v%d" % (adr, adr))
    a("v_lshlrev_b32 v%d, 5, v%d" % (adr, adr))
    a("v_add_u32 v%d, %d, v%d" % (adr, lds_cand, adr))
    a("ds_read_b128 %s, v%d" % (v(base, 4), adr))
    a("ds_read_b128 %s, v%d offset:16" % (v(base + 4, 4), adr))
    L = [base + i for i in range(8)]
    a("s_waitcnt lgkmcnt(0)")
    L = n.top8(L, "quad_perm:[1,0,3,2] row_mask:0xf")
    L = n.top8(L, "quad_perm:[2,3,0,1] row_mask:0xf")
    return L

def gen_topk(a):
    vLane = 1
    sWS, sDb = 24, 40
    sT0, sT1, sTag = 45, 46, 48
    T_CAND = 0
    srd(a, sWS, sWSP, WS_SIZE)
    srd(a, sDb, sDBG, 256)
    a("s_cmp_ge_u32 s%d, 4" % sWave)
    a("s_cbranch_scc1 L_tk_sync")
    get_nonce(a, "tk", sDb, 12, 13, sTag)
    stamp(a, 1)
    a("v_lshlrev_b32 v3, 4, v0")
    a("s_mov_b32 s98, 0")
    a.label("L_tk_poll")
    a("s_mov_b32 s%d, 0x%x" % (sT0, WS_REC))
    for q in range(8):
        a("buffer_load_dwordx2 %s, v3, s[%d:%d], s%d offen offset:8 sc1" % (v(96 + 2 * q, 2), sWS, sWS + 3, sT0))
        if q < 7:
            a("s_add_u32 s%d, s%d, 4096" % (sT0, sT0))
    a("s_add_u32 s98, s98, 1")
    a("s_waitcnt vmcnt(0)")
    for q in range(8):
        a("v_xor_b32 v%d, s%d, v%d" % (97 + 2 * q, sTag, 97 + 2 * q))
    a("v_or3_b32 v4, v97, v99, v101")
    a("v_or3_b32 v5, v103, v105, v107")
    a("v_or3_b32 v4, v4, v109, v111")
    a("v_or_b32 v4, v4, v5")
    a("v_cmp_ne_u32 vcc, 0, v4")
    a("s_cmp_gt_u32 s98, 0x40000")
    a("s_cbranch_scc1 L_tk_go")
    a("s_cmp_eq_u64 vcc, 0")
    a("s_cbranch_scc1 L_tk_go")
    a("s_sleep 2")
    a("s_branch L_tk_poll")
    a.label("L_tk_go")
    stamp(a, 3)
    top8_wave(a, [96 + 2 * q for q in range(8)], [97 + 2 * q for q in range(8)] + list(range(14, 24)) + [112, 113], sWave, T_CAND)
    a("s_waitcnt lgkmcnt(0)")
    a.label("L_tk_sync")
    a("s_barrier")
    stamp(a, 4)
    a("s_cmp_lg_u32 s%d, 0" % sWave)
    a("s_cbranch_scc1 L_tk_done")
    R = top8_final(a, list(range(96, 114)), T_CAND)
    vRes = 20
    a("v_mov_b32 v%d, v%d" % (vRes, R[0]))
    for jx in range(1, 8):
        a("v_cmp_eq_u32 vcc, %d, v%d" % (jx, vLane))
        a("s_nop 1")
        a("v_cndmask_b32 v%d, v%d, v%d, vcc" % (vRes, vRes, R[jx]))
    stamp(a, 5)
    a("v_and_b32 v8, 0xffff, v%d" % vRes)
    a("v_sub_u32 v8, 0xffff, v8")
    a("v_lshrrev_b32 v9, 16, v%d" % vRes)
    a("v_cmp_le_u32 vcc, 0x8000, v9")
    a("v_xor_b32 v10, 0x8000, v9")
    a("v_xor_b32 v11, 0xffff, v9")
    a("v_cndmask_b32 v9, v11, v10, vcc")
    a("v_lshlrev_b32 v9, 16, v9")
    a("v_mul_f32 v9, %s, v9" % fhex(-LOG2E))
    a("v_exp_f32 v9, v9")
    a("s_nop 0")
    a("v_add_f32 v9, 1.0, v9")
    a("v_rcp_f32 v9, v9")
    a("s_nop 0")
    bf16r(a, "v9", "v9")
    a("v_lshlrev_b32 v10, 2, v%d" % vLane)
    a("s_mov_b32 s%d, 0x%x" % (sT0, WS_SEL))
    a("s_mov_b32 exec_lo, 0xff")
    a("s_mov_b32 exec_hi, 0")
    a("buffer_store_dword v8, v10, s[%d:%d], s%d offen" % (sWS, sWS + 3, sT0))
    a("buffer_store_dword v9, v10, s[%d:%d], s%d offen offset:32" % (sWS, sWS + 3, sT0))
    a("s_mov_b64 exec, -1")
    a.label("L_tk_done")
    stamp_flush(a, 0, sWS, sWave)
    a("s_endpgm")

def gen_codepf(a):
    a("s_cmp_ge_u32 s%d, 4" % sWave)
    a("s_cbranch_scc1 L_k1_end")
    a("s_getpc_b64 s[40:41]")
    a.label("L_k1_anchor")
    a("s_mov_b32 s42, L_code_end-L_k1_anchor")
    a("s_mov_b32 s43, 0x20000")
    a("s_lshl_b32 s44, s%d, 13" % sWave)
    a("v_lshlrev_b32 v3, 7, v1")
    a("v_add_u32 v3, s44, v3")
    a("buffer_load_dword v4, v3, s[40:43], 0 offen")
    a("s_endpgm")

def gen_tlb(a):
    step = opt("PF_TLB")
    a("s_load_dwordx2 s[40:41], s[0:1], 16")
    a("s_load_dwordx2 s[42:43], s[0:1], 64")
    a("v_mul_u32_u24 v3, %d, v1" % 1)
    a("v_lshlrev_b32 v3, %d, v1" % (step.bit_length() - 1))
    a("s_waitcnt lgkmcnt(0)")
    r = 16
    for (ptr, nbytes) in ((sWGP, 512 * 3584), (sWUP, 512 * 3584), (sWDP, 1792 * 1024), (40, 512 * 1024), (42, 2048 * 1024), (sWSP, WS_SIZE)):
        srd(a, 32, ptr, nbytes)
        a("s_mul_i32 s44, s%d, %d" % (sWave, 64 * step))
        a("v_add_u32 v4, s44, v3")
        a("buffer_load_dword v%d, v4, s[32:35], 0 offen" % r); r += 1
    a("s_endpgm")

def gen_touch(a):
    sB = 32
    c0 = opt("PF_C0", 1)
    n = 24 * (8 - c0)
    srd(a, sB, sWP, 512 * 3072)
    a("s_sub_u32 s46, s2, 33")
    a("s_lshl_b32 s46, s46, 3")
    a("s_add_u32 s46, s46, s%d" % sWave)
    a("s_cmp_ge_u32 s46, %d" % n)
    a("s_cbranch_scc1 L_pf_part")
    a("v_lshlrev_b32 v11, 7, v1")
    a("s_lshl_b32 s49, s46, 13")
    a("s_add_u32 s49, s49, %d" % (c0 * 196608))
    a("buffer_load_dword v40, v11, s[%d:%d], s49 offen" % (sB, sB + 3))
    a.label("L_pf_part")
    if opt("PF_PART", 0):
        a("s_sub_u32 s46, 247, s46")
        a("s_cmp_ge_u32 s46, 112")
        a("s_cbranch_scc1 L_pf_end")
        srd(a, sB, sWSP, WS_SIZE)
        a("v_lshlrev_b32 v11, 6, v1")
        a("s_lshl_b32 s49, s46, 12")
        a("s_add_u32 s49, s49, 0x%x" % WS_PART)
        a("buffer_load_dword v41, v11, s[%d:%d], s49 offen" % (sB, sB + 3))
    a.label("L_pf_end")
    a("s_endpgm")

def gen_gemm(a):
    QST = " sc1" if opt("ST_QKV_SC1", 1) else ""
    vLane = 1
    sX, sW, sWS, sDb = 24, 28, 32, 36
    sRb, sCb, sT0, sT1, sC, sSlot = 40, 41, 42, 43, 44, 45
    a("s_sub_u32 s%d, s2, 64" % sT0)
    a("s_and_b32 s%d, s%d, 7" % (sT1, sT0))
    a("s_lshr_b32 s%d, s%d, 3" % (sT0, sT0))
    a("s_lshr_b32 s%d, s%d, 1" % (sRb, sT1))
    a("s_lshl_b32 s%d, s%d, 2" % (sRb, sRb))
    a("s_and_b32 s46, s%d, 3" % sT0)
    a("s_add_u32 s%d, s%d, s46" % (sRb, sRb))
    a("s_and_b32 s%d, s%d, 1" % (sCb, sT1))
    a("s_mul_i32 s%d, s%d, 6" % (sCb, sCb))
    a("s_lshr_b32 s%d, s%d, 2" % (sT0, sT0))
    a("s_add_u32 s%d, s%d, s%d" % (sCb, sCb, sT0))
    srd(a, sWS, sWSP, WS_SIZE)
    a("s_cmp_ge_u32 s%d, 4" % sWave)
    a("s_cbranch_scc0 L_g_cons")
    vXa, vXb, vW = 10, 11, 12
    sLw, sXg, sXg2, sWg, sL4 = 46, 47, 48, 49, 50
    srd(a, sX, sXP, 2048 * 1024)
    srd(a, sW, sWP, 512 * 3072)
    a("s_sub_u32 s%d, s%d, 4" % (sLw, sWave))
    a("v_lshrrev_b32 v2, 3, v%d" % vLane)
    a("v_and_b32 v3, 7, v%d" % vLane)
    a("v_lshrrev_b32 v4, 1, v2")
    a("v_xor_b32 v3, v3, v4")
    a("v_xor_b32 v4, 4, v3")
    a("v_lshlrev_b32 v2, 10, v2")
    a("v_lshl_add_u32 v%d, v3, 4, v2" % vXa)
    a("v_lshl_add_u32 v%d, v4, 4, v2" % vXb)
    a("v_add_u32 v%d, 0x2000, v%d" % (vXb, vXb))
    a("v_lshrrev_b32 v2, 4, v%d" % vLane)
    a("v_bfe_u32 v3, v%d, 2, 2" % vLane)
    a("v_xor_b32 v3, v3, v2")
    a("v_and_b32 v4, 3, v%d" % vLane)
    a("v_lshl_add_u32 v3, v3, 2, v4")
    a("v_mul_u32_u24 v2, 0xc00, v2")
    a("v_lshl_add_u32 v%d, v3, 4, v2" % vW)
    for i in range(1, 4):
        a("v_add_u32 v%d, %d, v%d" % (vW + i, i * 12288, vW))
    a("s_lshl_b32 s%d, s%d, 17" % (sXg, sRb))
    a("s_lshl_b32 s%d, s%d, 15" % (sT0, sLw))
    a("s_add_u32 s%d, s%d, s%d" % (sXg, sXg, sT0))
    a("s_mul_i32 s%d, s%d, %d" % (sWg, sLw, 16 * 3072))
    a("s_lshl_b32 s%d, s%d, 8" % (sT0, sCb))
    a("s_add_u32 s%d, s%d, s%d" % (sWg, sWg, sT0))
    a("s_lshl_b32 s%d, s%d, 12" % (sL4, sLw))
    a("s_mov_b32 s%d, 0" % sSlot)
    def issue():
        a("s_add_u32 s%d, s%d, 0x4000" % (sXg2, sXg))
        a("s_add_u32 m0, s%d, s%d" % (sSlot, sL4))
        a("s_nop 0")
        for i in range(4):
            a("buffer_load_dwordx4 v%d, s[%d:%d], s%d offen%s lds" % (vXa if i % 2 == 0 else vXb, sX, sX + 3, sXg if i < 2 else sXg2, " nt" if opt("NT_X") else ""))
            a("s_add_u32 m0, m0, %d" % (1024 if i < 3 else 13312))
            a("s_nop 0")
        for i in range(4):
            a("buffer_load_dwordx4 v%d, s[%d:%d], s%d offen%s lds" % (vW + i, sW, sW + 3, sWg, " nt" if opt("NT_W") else ""))
            if i < 3:
                a("s_add_u32 m0, m0, 1024")
                a("s_nop 0")
        a("s_add_u32 s%d, s%d, 128" % (sXg, sXg))
        a("s_add_u32 s%d, s%d, %d" % (sWg, sWg, 64 * 3072))
        a("s_add_u32 s%d, s%d, 0x8000" % (sSlot, sSlot))
        a("s_and_b32 s%d, s%d, 0x1ffff" % (sSlot, sSlot))
    a("s_mov_b32 s%d, 0" % sC)
    a.label("L_g_lpro")
    issue()
    a("s_add_u32 s%d, s%d, 1" % (sC, sC))
    a("s_cmp_lt_u32 s%d, 2" % sC)
    a("s_cbranch_scc1 L_g_lpro")
    stamp(a, 1)
    a("s_mov_b32 s%d, 0" % sC)
    a.label("L_g_lloop")
    a("s_waitcnt vmcnt(8)")
    stamp(a, "s%d+10" % sC)
    a("s_barrier")
    issue()
    a("s_add_u32 s%d, s%d, 1" % (sC, sC))
    a("s_cmp_lt_u32 s%d, 4" % sC)
    a("s_cbranch_scc1 L_g_lloop")
    if opt("PF_MOE", 1):
        a("s_load_dwordx2 s[58:59], s[0:1], 16")
        a("s_sub_u32 s60, s2, 64")
        a("s_and_b32 s62, s60, 7")
        a("s_lshr_b32 s60, s60, 3")
        a("s_lshl_b32 s60, s60, 2")
        a("s_add_u32 s60, s60, s%d" % sLw)
        a("s_mul_i32 s61, s60, 2731")
        a("s_lshr_b32 s61, s61, 16")
        a("s_mul_i32 s63, s61, 24")
        a("s_sub_u32 s63, s60, s63")
        a("s_lshl_b32 s61, s61, 3")
        a("s_add_u32 s61, s61, s62")
        a("s_waitcnt lgkmcnt(0)")
        a("v_mul_u32_u24 v20, 0xe00, v%d" % vLane)
        a("v_lshlrev_b32 v22, 7, v%d" % vLane)
        a("s_mov_b32 s64, s%d" % sWGP); a("s_mov_b32 s65, s%d" % (sWGP + 1))
        a("s_mov_b32 s66, %d" % (512 * 3584)); a("s_mov_b32 s67, 0x20000")
        a("s_cmp_ge_u32 s63, 8")
        a("s_cselect_b32 s64, s%d, s64" % sWUP); a("s_cselect_b32 s65, s%d, s65" % (sWUP + 1))
        a("s_and_b32 s68, s63, 7")
        a("s_mul_i32 s69, s68, %d" % (64 * 3584))
        a("s_lshl_b32 s70, s61, 7")
        a("s_add_u32 s69, s69, s70")
        a("s_cmp_ge_u32 s63, 16")
        a("s_cbranch_scc0 L_g_pfa")
        a("s_mov_b32 s64, s%d" % sWDP); a("s_mov_b32 s65, s%d" % (sWDP + 1))
        a("s_lshl_b32 s69, s61, 16")
        a("s_lshl_b32 s70, s68, 13")
        a("s_add_u32 s69, s69, s70")
        a("v_mov_b32 v20, v22")
        a.label("L_g_pfa")
        a("s_cmp_ge_u32 s61, 28")
        a("s_cbranch_scc0 L_g_pfb")
        a("s_mov_b32 s64, s58"); a("s_mov_b32 s65, s59"); a("s_mov_b32 s66, %d" % (512 * 1024))
        a("s_sub_u32 s69, s62, 4")
        a("s_lshl_b32 s69, s69, 4")
        a("s_and_b32 s70, s63, 15")
        a("s_add_u32 s69, s69, s70")
        a("s_lshl_b32 s69, s69, 13")
        a("v_mov_b32 v20, v22")
        a.label("L_g_pfb")
        a("s_mov_b32 s61, s69")
    srd(a, sDb, sDBG, 256)
    a("v_mov_b32 v4, 0")
    a("s_waitcnt vmcnt(8)")
    a("s_barrier")
    a("buffer_load_dword v5, v4, s[%d:%d], 0 offen sc1" % (sDb, sDb + 3))
    issue()
    a("s_lshl_b32 s%d, s%d, 11" % (sT0, sRb))
    a("s_add_u32 s51, s%d, 0x%x" % (sT0, WS_REC))
    a("v_and_b32 v7, 31, v%d" % vLane)
    a("s_lshl_b32 s%d, s%d, 9" % (sT0, sLw))
    a("v_lshl_add_u32 v6, v7, 4, s%d" % sT0)
    a("s_lshl_b32 s%d, s%d, 7" % (sT0, sLw))
    a("s_add_u32 s%d, s%d, %d" % (sT0, sT0, G_ST))
    a("v_lshl_add_u32 v7, v7, 2, s%d" % sT0)
    a("s_waitcnt vmcnt(8)")
    a("v_readfirstlane_b32 s52, v5")
    a("s_nop 3")
    a("s_cmp_lg_u32 s52, 0")
    a("s_cbranch_scc1 L_g_nonok")
    get_nonce(a, "g", sDb, 5, 4, 52)
    a.label("L_g_nonok")
    a("s_barrier")
    a("buffer_load_dwordx4 v[16:19], v6, s[%d:%d], s51 offen sc1" % (sWS, sWS + 3))
    issue()
    PFN = 1 if opt("PF_MOE", 1) else 0
    if PFN:
        a("buffer_load_dword v21, v20, s[64:67], s61 offen")
    a("s_waitcnt vmcnt(%d)" % (8 + PFN))
    a("s_mov_b32 s98, 0")
    a.label("L_g_rec")
    a("v_cmp_ne_u32 vcc, s52, v19")
    a("s_cmp_gt_u32 s98, 0x40000")
    a("s_cbranch_scc1 L_g_recok")
    a("s_cmp_eq_u64 vcc, 0")
    a("s_cbranch_scc1 L_g_recok")
    a("s_sleep 4")
    a("buffer_load_dwordx4 v[16:19], v6, s[%d:%d], s51 offen sc1" % (sWS, sWS + 3))
    a("s_add_u32 s98, s98, 1")
    a("s_waitcnt vmcnt(0)")
    a("s_branch L_g_rec")
    a.label("L_g_recok")
    a("ds_write_b32 v7, v16")
    a("ds_write_b32 v7, v17 offset:512")
    a("s_barrier")
    a("s_waitcnt vmcnt(%d) lgkmcnt(0)" % PFN)
    a("s_barrier")
    stamp_flush(a, 0, sWS, sWave)
    a("s_endpgm")
    a.label("L_g_cons")
    vXr = [4, 5, 6, 7]
    vWr = [8, 9]
    acc = [[64, 80], [96, 112]]
    XB = [[128, 132], [136, 140]]
    WB = [[144, 148], [152, 156]]
    NM, CSF = [160, 164], [168, 172]
    SEL, CSA = 176, [180, 184]
    sMt, sNt, sHi = 46, 47, 48
    a("s_and_b32 s%d, s%d, 1" % (sMt, sWave))
    a("s_lshr_b32 s%d, s%d, 1" % (sNt, sWave))
    a("v_and_b32 v2, 31, v%d" % vLane)
    a("v_lshrrev_b32 v3, 5, v%d" % vLane)
    a("v_cmp_eq_u32 s[%d:%d], 1, v3" % (sHi, sHi + 1))
    a("v_lshrrev_b32 v10, 1, v2")
    a("v_and_b32 v10, 7, v10")
    a("s_lshl_b32 s%d, s%d, 13" % (sT0, sMt))
    a("v_lshl_add_u32 v11, v2, 7, s%d" % sT0)
    for p in range(4):
        a("v_add_u32 v12, %d, v3" % (2 * p))
        a("v_xor_b32 v12, v12, v10")
        a("v_lshl_add_u32 v%d, v12, 4, v11" % vXr[p])
    a("v_bfe_u32 v12, v%d, 2, 2" % vLane)
    a("v_lshl_add_u32 v13, v3, 3, v12")
    a("v_lshlrev_b32 v13, 8, v13")
    a("v_bfe_u32 v14, v%d, 4, 1" % vLane)
    a("v_lshl_add_u32 v13, v14, 5, v13")
    a("v_and_b32 v14, 3, v%d" % vLane)
    a("v_lshl_add_u32 v13, v14, 3, v13")
    a("v_add_u32 v13, 0x4000, v13")
    a("s_lshl_b32 s%d, s%d, 1" % (sT0, sNt))
    a("v_xor_b32 v14, s%d, v12" % sT0)
    a("v_lshl_add_u32 v%d, v14, 6, v13" % vWr[0])
    a("v_xor_b32 v%d, 64, v%d" % (vWr[1], vWr[0]))
    for r in range(64, 128):
        a("v_mov_b32 v%d, 0" % r)
    for r in list(range(136, 144)) + list(range(152, 176)) + list(range(180, 188)):
        a("v_mov_b32 v%d, 0" % r)
    a("v_bfe_u32 v12, v%d, 4, 1" % vLane)
    a("v_and_b32 v13, 1, v%d" % vLane)
    a("v_cmp_eq_u32 vcc, v12, v13")
    a("v_cmp_eq_u32 s[56:57], 1, v12")
    a("v_mov_b32 v14, 0x3f803f80")
    a("v_cndmask_b32 v%d, 0, v14, vcc" % SEL)
    for i in range(1, 4):
        a("v_mov_b32 v%d, v%d" % (SEL + i, SEL))
    def csum(buf, n):
        a("v_mfma_f32_16x16x32_bf16 %s, %s, %s, %s" % (v(CSA[n], 4), v(SEL, 4), v(WB[buf][n], 4), v(CSA[n], 4)))
    def xread(p, buf, m):
        a("ds_read_b128 %s, v%d offset:%d" % (v(XB[buf][m], 4), vXr[p], m * 4096))
    def wread(p, buf, n, t):
        a("ds_read_b64_tr_b16 %s, v%d offset:%d" % (v(WB[buf][n] + 2 * t, 2), vWr[n], p * 4096 + t * 1024))
    def mm(kind, buf, m, n):
        if kind == 0:
            a("v_mfma_f32_32x32x16_bf16 %s, %s, %s, %s" % (v(acc[m][n], 16), v(WB[buf][n], 4), v(XB[buf][m], 4), v(acc[m][n], 16)))
        else:
            a("v_mfma_f32_32x32x16_bf16 %s, %s, %s, %s" % (v(acc[m][n], 16), v(XB[buf][m], 4), v(WB[buf][n], 4), v(acc[m][n], 16)))
    def step(kind, cur, p, filler=None):
        nxt = cur ^ 1
        a("s_waitcnt lgkmcnt(3)")
        mm(kind, cur, 0, 0)
        xread(p, nxt, 0); wread(p, nxt, 0, 0); wread(p, nxt, 0, 1)
        csum(cur, 0)
        a("s_waitcnt lgkmcnt(4)")
        mm(kind, cur, 0, 1)
        wread(p, nxt, 1, 0); wread(p, nxt, 1, 1); xread(p, nxt, 1)
        csum(cur, 1)
        a("s_waitcnt lgkmcnt(6)")
        mm(kind, cur, 1, 0)
        if filler: filler(0)
        mm(kind, cur, 1, 1)
        if filler: filler(1)
    def adv(h):
        regs = (vXr + vWr)[3 * h:3 * h + 3]
        for r in regs:
            a("v_add_u32 v%d, 0x8000, v%d" % (r, r))
        for r in regs:
            a("v_and_b32 v%d, 0x1ffff, v%d" % (r, r))
    def main_loop(kind, tag):
        a("s_mov_b32 s%d, 0" % sC)
        a.label("L_g_loop%s" % tag)
        a("s_waitcnt lgkmcnt(0)")
        a("s_barrier")
        stamp(a, "s%d+10" % sC)
        step(kind, 1, 0)
        step(kind, 0, 1)
        step(kind, 1, 2)
        step(kind, 0, 3, adv)
        a("s_add_u32 s%d, s%d, 1" % (sC, sC))
        a("s_cmp_lt_u32 s%d, 8" % sC)
        a("s_cbranch_scc1 L_g_loop%s" % tag)
        stamp(a, 20)
    vM, vRs, vCs = [10, 11], [12, 14], [16, 17]
    def stat_reads(kind):
        a("v_lshlrev_b32 v18, 2, v2")
        a("s_lshl_b32 s%d, s%d, 8" % (sT0, sMt))
        a("s_add_u32 s%d, s%d, %d" % (sT0, sT0, G_ST))
        a("v_add_u32 v19, s%d, v18" % sT0)
        for m in range(2):
            a("ds_read_b32 v%d, v19 offset:%d" % (vM[m], m * 128))
        if kind == 0:
            for m in range(2):
                a("ds_read_b32 v%d, v19 offset:%d" % (vRs[m], 512 + m * 128))
        else:
            a("v_lshl_add_u32 v19, v3, 4, s%d" % sT0)
            for m in range(2):
                for j in range(4):
                    a("ds_read_b128 %s, v19 offset:%d" % (v(24 + 16 * m + 4 * j, 4), 512 + m * 128 + j * 32))
    def last_step(kind):
        a("s_waitcnt lgkmcnt(%d)" % (4 if kind == 0 else 10))
        csum(1, 0)
        csum(1, 1)
        for m in range(2):
            for n in range(2):
                mm(kind, 1, m, n)
    def correction(kind, nwait):
        a("s_waitcnt lgkmcnt(%d)" % nwait)
        for m in range(2):
            a("v_sub_f32 v20, 0, v%d" % vM[m])
            a("v_cvt_pk_bf16_f32 v%d, v20, 0" % NM[m])
        for n in range(2):
            a("v_cndmask_b32 v%d, v%d, v%d, s[56:57]" % (vCs[n], CSA[n], CSA[n] + 1))
        for n in range(2):
            a("v_cvt_pk_bf16_f32 v20, v%d, v%d" % (vCs[n], vCs[n]))
            a("v_and_b32 v20, 0xffff0000, v20")
            a("v_sub_f32 v20, v%d, v20" % vCs[n])
            a("v_cndmask_b32 v20, v%d, v20, s[%d:%d]" % (vCs[n], sHi, sHi + 1))
            a("v_cvt_pk_bf16_f32 v%d, v20, 0" % CSF[n])
        a("s_nop 1")
        for m in range(2):
            for n in range(2):
                if kind == 0:
                    a("v_mfma_f32_32x32x16_bf16 %s, %s, %s, %s" % (v(acc[m][n], 16), v(CSF[n], 4), v(NM[m], 4), v(acc[m][n], 16)))
                else:
                    a("v_mfma_f32_32x32x16_bf16 %s, %s, %s, %s" % (v(acc[m][n], 16), v(NM[m], 4), v(CSF[n], 4), v(acc[m][n], 16)))
    def store_bases():
        a("s_and_b32 s%d, s%d, 3" % (sT0, sCb))
        a("s_lshl_b32 s%d, s%d, 3" % (sT0, sT0))
        a("s_lshl_b32 s%d, s%d, 2" % (sT1, sNt))
        a("s_add_u32 s%d, s%d, s%d" % (sT0, sT0, sT1))
        a("s_lshl_b32 s%d, s%d, 16" % (sT0, sT0))
        a("s_lshl_b32 s%d, s%d, 2" % (sT1, sRb))
        a("s_lshl_b32 s50, s%d, 1" % sMt)
        a("s_add_u32 s%d, s%d, s50" % (sT1, sT1))
        a("s_lshl_b32 s%d, s%d, 10" % (sT1, sT1))
        a("s_add_u32 s50, s%d, s%d" % (sT0, sT1))
        a("s_lshr_b32 s%d, s%d, 2" % (sT0, sCb))
        a("s_lshl_b32 s%d, s%d, 21" % (sT0, sT0))
        a("s_add_u32 s50, s50, s%d" % sT0)
    a("s_cmp_ge_u32 s%d, 8" % sCb)
    a("s_cbranch_scc1 L_g_v")
    main_loop(0, "q")
    stat_reads(0)
    last_step(0)
    store_bases()
    correction(0, 2)
    a("s_cmp_lt_u32 s%d, 4" % sCb)
    a("s_cselect_b32 s51, %s, 1.0" % fhex(QSCALE))
    a("v_lshlrev_b32 v21, 4, v%d" % vLane)
    a("s_waitcnt lgkmcnt(0)")
    for m in range(2):
        a("v_mul_f32 v%d, s51, v%d" % (vRs[m], vRs[m]))
    a("s_nop 4")
    for m in range(2):
        for n in range(2):
            A = acc[m][n]
            P = XB[0][0] + 8 * ((2 * m + n) % 2)
            for i in range(8):
                a("v_pk_mul_f32 %s, %s, %s op_sel_hi:[1,0]" % (v(A + 2 * i, 2), v(A + 2 * i, 2), v(vRs[m], 2)))
            for i in range(8):
                a("v_cvt_pk_bf16_f32 v%d, v%d, v%d" % (A + i, A + 2 * i, A + 2 * i + 1))
            a("s_add_u32 s52, s50, %d" % (m * 1024 + n * 0x20000))
            a("s_add_u32 s53, s52, 0x10000")
            a("buffer_store_dwordx4 %s, v21, s[%d:%d], s52 offen%s" % (v(A, 4), sWS, sWS + 3, QST))
            a("buffer_store_dwordx4 %s, v21, s[%d:%d], s53 offen%s" % (v(A + 4, 4), sWS, sWS + 3, QST))
    a("s_branch L_g_fin")
    a.label("L_g_v")
    main_loop(1, "v")
    stat_reads(1)
    last_step(1)
    store_bases()
    correction(1, 8)
    a("v_bfe_u32 v21, v%d, 4, 1" % vLane)
    a("v_lshlrev_b32 v21, 16, v21")
    a("v_lshl_add_u32 v21, v3, 8, v21")
    a("v_and_b32 v22, 15, v%d" % vLane)
    a("v_lshl_add_u32 v21, v22, 4, v21")
    a("s_waitcnt lgkmcnt(0)")
    a("s_nop 4")
    for m in range(2):
        for n in range(2):
            A = acc[m][n]
            for i in range(8):
                a("v_pk_mul_f32 %s, %s, %s" % (v(A + 2 * i, 2), v(A + 2 * i, 2), v(24 + 16 * m + 2 * i, 2)))
            for i in range(8):
                a("v_cvt_pk_bf16_f32 v%d, v%d, v%d" % (A + i, A + 2 * i, A + 2 * i + 1))
            a("s_add_u32 s52, s50, %d" % (m * 1024 + n * 0x20000))
            a("buffer_store_dwordx4 %s, v21, s[%d:%d], s52 offen%s" % (v(A, 4), sWS, sWS + 3, QST))
            a("buffer_store_dwordx4 %s, v21, s[%d:%d], s52 offen offset:512%s" % (v(A + 4, 4), sWS, sWS + 3, QST))
    a.label("L_g_fin")
    stamp(a, 21)
    stamp_flush(a, 0, sWS, sWave)
    a("s_endpgm")

def gen_k1():
    a = Asm()
    N = "k1_kernel"
    a(kernel_head(N))
    a("s_cmp_ge_u32 s2, %d" % K1_GRID)
    a("s_cbranch_scc1 L_k1_end")
    stamp_begin(a, 255)
    a("s_load_dwordx4 s[4:7], s[0:1], 0")
    a("s_load_dwordx8 s[12:19], s[0:1], 32")
    a("s_load_dwordx4 s[20:23], s[0:1], 72")
    a("v_lshrrev_b32 v2, 6, v0")
    a("v_and_b32 v1, 63, v0")
    a("v_readfirstlane_b32 s%d, v2" % sWave)
    if opt("PF_CODE", 1):
        a("s_cmp_ge_u32 s2, 8")
        a("s_cbranch_scc1 L_k1_nocode")
        a("s_cmp_lt_u32 s%d, 4" % sWave)
        a("s_cbranch_scc1 L_k1_nocode")
        a("s_getpc_b64 s[40:41]")
        a.label("L_k1_anchor")
        a("s_mov_b32 s42, L_code_end-L_k1_anchor")
        a("s_mov_b32 s43, 0x20000")
        a("s_sub_u32 s44, s%d, 4" % sWave)
        a("s_lshl_b32 s44, s44, 13")
        a("v_lshlrev_b32 v3, 7, v1")
        a("v_add_u32 v3, s44, v3")
        a("buffer_load_dword v250, v3, s[40:43], 0 offen") if PROF else a("buffer_load_dword v191, v3, s[40:43], 0 offen")
        a.label("L_k1_nocode")
    a("s_cmp_lt_u32 s2, 64")
    a("s_cbranch_scc1 L_k1_aux")
    a("s_waitcnt lgkmcnt(0)")
    ws_adjust(a, sWSP)
    gen_gemm(a)
    a.label("L_k1_aux")
    a("s_waitcnt lgkmcnt(0)")
    ws_adjust(a, sWSP)
    a("s_or_b32 s24, s2, s%d" % sWave)
    a("s_cmp_lg_u32 s24, 0")
    a("s_cbranch_scc1 L_k1_non")
    a("s_memrealtime s[60:61]")
    srd(a, 24, sDBG, 256)
    a("v_mov_b32 v3, 0")
    a("s_waitcnt lgkmcnt(0)")
    a("s_or_b32 s60, s60, 1")
    a("v_mov_b32 v4, s60")
    a("s_mov_b32 exec_lo, 1")
    a("s_mov_b32 exec_hi, 0")
    a("buffer_store_dword v4, v3, s[24:27], 0 offen sc1")
    a("s_mov_b64 exec, -1")
    a.label("L_k1_non")
    a("s_cmp_gt_u32 s2, 32")
    a("s_cbranch_scc1 %s" % ("L_k1_touch" if opt("PF_IN", 1) else "L_k1_end"))
    a("s_cmp_eq_u32 s2, 32")
    a("s_cbranch_scc1 L_k1_topk")
    gen_e(a)
    a.label("L_k1_topk")
    gen_topk(a)
    if opt("PF_IN", 1):
        a.label("L_k1_touch")
        gen_touch(a)
    a.label("L_k1_end")
    a("s_endpgm")
    return a.text(), (256 if PROF else 192)
```

```python
from dsl import *
from k1 import *

K2_GRID = 256
M_W = 32768
M_CNT = 8160
M_HS = 4224
M_GU = 5248
M_GUD = 20736 - 5248

K2_LDS = 163840
NEGBIG = 0xf149f2ca
LOG2E = 1.4426950408889634

def gen_attn(a):
    vLane = 1
    vK, vV, mx0, mx1, vT0, vT1, vZ, vOff = 2, 3, 4, 5, 6, 7, 8, 9
    SA, SB, CB, O, P, mA = 16, 32, 48, 64, 80, 88
    KF, VF, V0F, QF = 96, 100, 108, 116
    sWS = 8
    sH, sQb, sWid, sT, sBase, sTs, sN = 20, 21, 22, 23, 24, 25, 26
    sW = 19
    sT0, sT1 = 27, 28
    sVM = 30
    sCond = 40
    a("s_sub_u32 s%d, 11, s%d" % (sW, sWid))
    a("s_cmp_lt_u32 s%d, 4" % sWid)
    a("s_cselect_b32 s%d, s%d, s%d" % (sW, sWid, sW))
    a("s_and_b32 s%d, s2, 7" % sH)
    a("s_bfe_u32 s%d, s2, 0x20003" % sT0)
    a("s_lshl_b32 s%d, s%d, 3" % (sT0, sT0))
    a("s_add_u32 s%d, s%d, s%d" % (sH, sH, sT0))
    a("s_lshr_b32 s%d, s2, 5" % sQb)
    a("v_lshlrev_b32 v%d, 4, v%d" % (vOff, vLane))
    a("s_lshl_b32 s%d, s%d, 3" % (sT, sQb))
    a("s_add_u32 s%d, s%d, s%d" % (sT, sT, sW))
    a("s_lshl_b32 s%d, s%d, 6" % (sBase, sH))
    a("s_add_u32 s%d, s%d, s%d" % (sBase, sBase, sT))
    a("s_lshl_b32 s%d, s%d, 10" % (sBase, sBase))
    a("s_lshl_b32 s%d, s%d, 10" % (sT1, sW))
    a("s_waitcnt lgkmcnt(0)")
    stamp(a, 1)
    ws_adjust(a, 6)
    srd(a, sWS, 6, WS_SIZE)
    a("s_add_u32 s%d, s%d, 0x%x" % (sT0, sBase, WS_KF))
    a("s_add_u32 m0, s%d, 8192" % sT1)
    a("s_nop 0")
    a("buffer_load_dwordx4 v%d, s[%d:%d], s%d offen lds" % (vOff, sWS, sWS + 3, sT0))
    a("s_add_u32 s%d, s%d, 0x%x" % (sT0, sBase, WS_QF))
    a("buffer_load_dwordx4 %s, v%d, s[%d:%d], s%d offen" % (v(QF, 4), vOff, sWS, sWS + 3, sT0))
    a("s_cmp_eq_u32 s%d, 0" % sQb)
    a("s_cbranch_scc1 L_at_noprev")
    a("s_add_u32 s%d, s%d, 0x%x" % (sT0, sBase, WS_KF - 8192))
    a("s_mov_b32 m0, s%d" % sT1)
    a("s_nop 0")
    a("buffer_load_dwordx4 v%d, s[%d:%d], s%d offen lds" % (vOff, sWS, sWS + 3, sT0))
    a("s_add_u32 s%d, s%d, 0x%x" % (sT0, sBase, WS_VF - 8192))
    a("s_add_u32 m0, s%d, 16384" % sT1)
    a("s_nop 0")
    a("buffer_load_dwordx4 v%d, s[%d:%d], s%d offen lds" % (vOff, sWS, sWS + 3, sT0))
    a.label("L_at_noprev")
    a("s_add_u32 s%d, s%d, 0x%x" % (sT0, sBase, WS_VF))
    a("s_add_u32 m0, s%d, %d" % (sT1, 16384 + 8192))
    a("s_nop 0")
    a("buffer_load_dwordx4 v%d, s[%d:%d], s%d offen lds" % (vOff, sWS, sWS + 3, sT0))
    a("s_cmp_ge_u32 s2, %d" % NSLICE)
    a("s_cbranch_scc1 L_at_iss")
    lds_arrive(a, M_CNT + 12, 10, 11)
    a.label("L_at_iss")
    a("v_and_b32 v%d, 31, v%d" % (vT0, vLane))
    a("v_lshrrev_b32 v%d, 5, v%d" % (vT1, vLane))
    a("v_lshlrev_b32 v%d, 2, v%d" % (vZ, vT1))
    a("v_sub_u32 v%d, v%d, v%d" % (vZ, vT0, vZ))
    for r in range(16):
        a("v_cmp_gt_i32 s[%d:%d], %d, v%d" % (sCond + 2 * r, sCond + 2 * r + 1, 8 * (r >> 2) + (r & 3), vZ))
    a("v_mov_b32 v10, 0xffff")
    a("v_mov_b32 v11, 0xffff0000")
    for j in range(8):
        a("v_cndmask_b32 v%d, 0, v10, s[%d:%d]" % (mA + j, sCond + 4 * j, sCond + 4 * j + 1))
        a("v_cndmask_b32 v12, 0, v11, s[%d:%d]" % (sCond + 4 * j + 2, sCond + 4 * j + 3))
        a("v_or_b32 v%d, v%d, v12" % (mA + j, mA + j))
    a("v_mov_b32 v10, 0x3f803f80")
    for r in range(16):
        a("v_mov_b32 v%d, v10" % (VF + r))
    for r in range(16):
        a("v_mov_b32 v%d, 0" % (O + r))
    a("s_mov_b32 s%d, 0xffff" % sVM)
    a("s_mov_b32 s%d, 0xffff" % (sVM + 1))
    a("s_sub_u32 s%d, 8, s%d" % (sTs, sW))
    a("s_cmp_eq_u32 s%d, 0" % sQb)
    a("s_cselect_b32 s%d, s%d, 1" % (sTs, sTs))
    a("v_add_u32 v%d, s%d, v%d" % (vK, sT1, vOff))
    a("v_and_b32 v%d, 15, v%d" % (vV, vLane))
    a("v_lshlrev_b32 v%d, 4, v%d" % (vV, vV))
    a("v_lshl_add_u32 v%d, v%d, 8, v%d" % (vV, vT1, vV))
    a("s_add_u32 s%d, s%d, 16384" % (sT0, sT1))
    a("v_add_u32 v%d, s%d, v%d" % (vV, sT0, vV))
    a("s_lshl_b32 s%d, s%d, 10" % (sT0, sTs))
    a("v_add_u32 v13, s%d, v%d" % (sT0, vK))
    a("v_add_u32 v14, s%d, v%d" % (sT0, vV))
    a("s_mov_b32 s29, s%d" % sT0)
    a("s_mov_b32 s37, 0")
    for r in range(16):
        a("v_mov_b32 v%d, 0" % (CB + r))
    a("s_cmp_eq_u32 s%d, 0" % sQb)
    a("s_cbranch_scc0 L_at_sa")
    for r in range(16):
        a("v_mov_b32 v%d, 0x%x" % (SA + r, NEGBIG))
    a.label("L_at_sa")
    stamp(a, 2)
    a("s_waitcnt vmcnt(0)")
    stamp(a, 3)
    a("s_cmp_ge_u32 s2, %d" % NSLICE)
    a("s_cbranch_scc1 L_at_plain")
    lds_sync(a, "at", M_CNT, 8, 10, 11)
    a("s_branch L_at_go")
    a.label("L_at_plain")
    a("s_barrier")
    a.label("L_at_go")
    stamp(a, 4)

    def mfma_s(dst, c):
        a("v_mfma_f32_32x32x16_bf16 %s, %s, %s, %s" % (v(dst, 16), v(KF, 4), v(QF, 4), c))
    def vread(dst, addr):
        a("s_mov_b64 exec, s[%d:%d]" % (sVM, sVM + 1))
        a("ds_read_b128 %s, v%d" % (v(dst, 4), addr))
        a("ds_read_b128 %s, v%d offset:512" % (v(dst + 4, 4), addr))
        a("s_mov_b64 exec, -1")
    def maxes():
        for i in range(8):
            m = mx0 if i % 2 == 0 else mx1
            a("v_max3_f32 v%d, v%d, v%d, v%d" % (m, m, SB + 2 * i, SB + 2 * i + 1))
    def sel():
        for r in range(16):
            a("v_cndmask_b32 v%d, v%d, v%d, s[%d:%d]" % (SB + r, SB + r, SA + r, sCond + 2 * r, sCond + 2 * r + 1))
    def exps():
        for r in range(16):
            a("v_exp_f32 v%d, v%d" % (SB + r, SB + r))
        for j in range(8):
            a("v_cvt_pk_bf16_f32 v%d, v%d, v%d" % (P + j, SB + 2 * j, SB + 2 * j + 1))
    def pv(vf, p):
        a("v_mfma_f32_32x32x16_bf16 %s, %s, %s, %s" % (v(O, 16), v(vf, 4), v(p, 4), v(O, 16)))
        a("v_mfma_f32_32x32x16_bf16 %s, %s, %s, %s" % (v(O, 16), v(vf + 4, 4), v(p + 4, 4), v(O, 16)))

    a("s_cmp_eq_u32 s%d, 0" % sQb)
    a("s_cbranch_scc1 L_at_f_no0")
    a("ds_read_b128 %s, v%d" % (v(KF, 4), vK))
    vread(V0F, vV)
    a("s_branch L_at_p2")
    a.label("L_at_f_no0")
    a("ds_read_b128 %s, v13" % v(KF, 4))
    a.label("L_at_p2")
    a("s_cmp_eq_u32 s%d, 0" % sQb)
    a("s_cbranch_scc1 L_at_p2_go")
    a("s_waitcnt lgkmcnt(0)")
    mfma_s(SA, v(CB, 16))
    a("ds_read_b128 %s, v13" % v(KF, 4))
    a.label("L_at_p2_go")
    a("s_sub_u32 s%d, 8, s%d" % (sN, sTs))
    a("s_cmp_eq_u32 s%d, 0" % sN)
    a("s_cbranch_scc1 L_at_p2_fin")
    a.label("L_at_p2_loop")
    vread(VF, 14)
    a("s_waitcnt lgkmcnt(2)")
    mfma_s(SB, v(CB, 16))
    a("v_add_u32 v13, 0x400, v13")
    a("v_add_u32 v14, 0x400, v14")
    a("ds_read_b128 %s, v13" % v(KF, 4))
    a("s_sub_u32 s%d, s%d, 1" % (sN, sN))
    a("s_nop 7")
    exps()
    a("s_waitcnt lgkmcnt(1)")
    pv(VF, P)
    a("s_cmp_lg_u32 s%d, 0" % sN)
    a("s_cbranch_scc1 L_at_p2_loop")
    a.label("L_at_p2_fin")
    vread(VF, 14)
    a("s_waitcnt lgkmcnt(2)")
    mfma_s(SB, v(CB, 16))
    a("s_nop 11")
    sel()
    exps()
    for j in range(8):
        a("v_and_b32 v%d, v%d, v%d" % (SA + j, P + j, mA + j))
    for j in range(8):
        a("v_xor_b32 v%d, v%d, v%d" % (P + j, P + j, SA + j))
    a("s_waitcnt lgkmcnt(0)")
    a("s_nop 0")
    pv(VF, P)
    a("s_cmp_eq_u32 s%d, 0" % sQb)
    a("s_cbranch_scc1 L_at_fin")
    pv(V0F, SA)
    a.label("L_at_fin")
    stamp(a, 6)
    a("s_add_u32 s%d, s%d, 0x%x" % (sT0, sBase, WS_OF))
    a("s_mov_b32 s38, 0x21800000")
    a("s_mov_b32 s39, 0x5d800000")
    a("s_nop 8")
    a("v_cmp_le_f32 vcc, s38, v%d" % (O + 8))
    a("v_cmp_ge_f32 s[72:73], s39, v%d" % (O + 8))
    a("v_rcp_f32 v10, v%d" % (O + 8))
    a("s_and_b64 vcc, vcc, s[72:73]")
    a("s_cmp_eq_u64 vcc, -1")
    a("s_cselect_b32 s38, 1, s37")
    a("s_cmp_eq_u32 s38, 0")
    a("s_cbranch_scc1 L_at_redo")
    a("s_nop 0")
    for r in range(8):
        a("v_mul_f32 v%d, v%d, v10" % (O + r, O + r))
    for j in range(4):
        a("v_cvt_pk_bf16_f32 v%d, v%d, v%d" % (P + j, O + 2 * j, O + 2 * j + 1))
    a("buffer_store_dwordx4 %s, v%d, s[%d:%d], s%d offen%s" % (v(P, 4), vOff, sWS, sWS + 3, sT0, " sc1" if opt("ST_O_SC1", 1) else ""))
    stamp_flush(a, 1, sWS, sWid)
    a("s_endpgm")
    a.label("L_at_redo")
    a("s_mov_b32 s37, 1")
    for r in range(16):
        a("v_mov_b32 v%d, 0" % (O + r))
    a("v_add_u32 v13, s29, v%d" % vK)
    a("v_add_u32 v14, s29, v%d" % vV)
    a("v_mov_b32 v%d, 0x%x" % (mx0, NEGBIG))
    a("v_mov_b32 v%d, 0x%x" % (mx1, NEGBIG))
    a("s_cmp_eq_u32 s%d, 0" % sQb)
    a("s_cbranch_scc1 L_at_p1_no0")
    a("ds_read_b128 %s, v%d" % (v(KF, 4), vK))
    vread(V0F, vV)
    a("s_waitcnt lgkmcnt(2)")
    mfma_s(SA, "0")
    a("s_branch L_at_p1_go")
    a.label("L_at_p1_no0")
    for r in range(16):
        a("v_mov_b32 v%d, 0x%x" % (SA + r, NEGBIG))
    a.label("L_at_p1_go")
    a("v_mov_b32 v15, v13")
    a("ds_read_b128 %s, v15" % v(KF, 4))
    a("s_sub_u32 s%d, 8, s%d" % (sN, sTs))
    a("s_cmp_eq_u32 s%d, 0" % sN)
    a("s_cbranch_scc1 L_at_p1_fin")
    a.label("L_at_p1_loop")
    a("s_waitcnt lgkmcnt(0)")
    mfma_s(SB, "0")
    a("v_add_u32 v15, 0x400, v15")
    a("ds_read_b128 %s, v15" % v(KF, 4))
    a("s_sub_u32 s%d, s%d, 1" % (sN, sN))
    a("s_nop 8")
    maxes()
    a("s_cmp_lg_u32 s%d, 0" % sN)
    a("s_cbranch_scc1 L_at_p1_loop")
    a.label("L_at_p1_fin")
    a("s_waitcnt lgkmcnt(0)")
    mfma_s(SB, "0")
    a("s_cmp_eq_u32 s%d, 0" % sQb)
    a("s_cselect_b32 s%d, s29, 0" % sT1)
    a("v_add_u32 v15, s%d, v%d" % (sT1, vK))
    a("ds_read_b128 %s, v15" % v(KF, 4))
    a("s_nop 7")
    sel()
    maxes()
    a("v_max_f32 v%d, v%d, v%d" % (mx0, mx0, mx1))
    a("v_mov_b32 v%d, v%d" % (mx1, mx0))
    a("s_nop 1")
    a("v_permlane32_swap_b32 v%d, v%d" % (mx0, mx1))
    a("s_nop 0")
    a("v_max_f32 v%d, v%d, v%d" % (mx0, mx0, mx1))
    for r in range(16):
        a("v_sub_f32 v%d, 0, v%d" % (CB + r, mx0))
    a("s_branch L_at_p2")

def lds_arrive(a, addr, vt, vo):
    a("v_mov_b32 v%d, %d" % (vt, addr))
    a("v_mov_b32 v%d, 1" % vo)
    a("s_mov_b64 s[34:35], exec")
    a("s_mov_b32 exec_lo, 1")
    a("s_mov_b32 exec_hi, 0")
    a("s_waitcnt lgkmcnt(0)")
    a("ds_add_u32 v%d, v%d" % (vt, vo))
    a("s_mov_b64 exec, s[34:35]")

def lds_wait(a, tag, addr, n, vt, vo):
    a("v_mov_b32 v%d, %d" % (vt, addr))
    a("s_mov_b32 s33, 0")
    a.label("L_sync_%s" % tag)
    a("ds_read_b32 v%d, v%d" % (vo, vt))
    a("s_add_u32 s33, s33, 1")
    a("s_waitcnt lgkmcnt(0)")
    a("v_readfirstlane_b32 s36, v%d" % vo)
    a("s_cmp_gt_u32 s33, 0x100000")
    a("s_cbranch_scc1 L_syncd_%s" % tag)
    a("s_cmp_ge_u32 s36, %d" % n)
    a("s_cbranch_scc1 L_syncd_%s" % tag)
    a("s_sleep 1")
    a("s_branch L_sync_%s" % tag)
    a.label("L_syncd_%s" % tag)

def lds_sync(a, tag, addr, n, vt, vo):
    lds_arrive(a, addr, vt, vo)
    lds_wait(a, tag, addr, n, vt, vo)

def moe_dma_units(a, tag, n, vLane):
    a("v_lshrrev_b32 v4, 3, v%d" % vLane)
    a("v_and_b32 v5, 7, v%d" % vLane)
    a("v_bfe_u32 v6, v4, 1, 1")
    a("v_lshlrev_b32 v6, 1, v6")
    a("v_xor_b32 v5, v5, v6")
    a("v_mul_u32_u24 v4, 0xe00, v4")
    a("v_xor_b32 v6, 4, v5")
    a("v_lshl_add_u32 v7, v6, 4, v4")
    a("v_lshl_add_u32 v4, v5, 4, v4")
    a("v_add_u32 v7, %d, v7" % (8 * 3584))
    a("s_mov_b32 s18, 0x%x" % (512 * 3584))
    a("s_mov_b32 s19, 0x20000")
    a("s_add_u32 s29, s28, %d" % n)
    a.label("L_moe_dma_%s" % tag)
    a("s_cmp_lt_u32 s28, 32")
    a("s_cselect_b32 s16, s88, s90")
    a("s_cselect_b32 s17, s89, s91")
    a("s_and_b32 s82, s28, 31")
    a("s_mul_i32 s82, s82, %d" % (16 * 3584))
    a("s_lshl_b32 s83, s2, 7")
    a("s_add_u32 s82, s82, s83")
    a("s_lshl_b32 s83, s28, 11")
    a("s_add_u32 m0, s83, %d" % M_W)
    a("s_add_u32 s28, s28, 1")
    a("buffer_load_dwordx4 v4, s[16:19], s82 offen lds")
    a("s_add_u32 m0, m0, 1024")
    a("s_cmp_lt_u32 s28, s29")
    a("buffer_load_dwordx4 v7, s[16:19], s82 offen lds")
    a("s_cbranch_scc1 L_moe_dma_%s" % tag)

def gen_moe(a):
    vLane = 1
    sWS, sX, sWm, sWd = 8, 12, 16, 72
    sW, sT0, sT1, sI = 22, 26, 27, 28
    a("s_sub_u32 s%d, s%d, 8" % (sW, sW))
    if opt("MOE_PRIO", 0):
        a("s_setprio %d" % opt("MOE_PRIO", 0))
    a("s_cmp_ge_u32 s%d, 4" % sW)
    a("s_cbranch_scc1 L_moe_d")
    a("s_waitcnt lgkmcnt(0)")
    ws_adjust(a, 6)
    srd(a, sWS, 6, WS_SIZE)
    lds_wait(a, "go", M_CNT + 12, 12, 12, 13)
    a("s_mul_i32 s28, s%d, 10" % sW)
    moe_dma_units(a, "g", 10, vLane)
    stamp(a, 1)
    a("v_lshrrev_b32 v8, 4, v%d" % vLane)
    a("v_bfe_u32 v9, v%d, 2, 2" % vLane)
    a("v_and_b32 v10, 3, v%d" % vLane)
    a("v_and_b32 v11, 1, v8")
    a("v_lshlrev_b32 v11, 1, v11")
    a("v_lshrrev_b32 v12, 1, v9")
    a("v_or_b32 v11, v11, v12")
    a("v_xor_b32 v11, s%d, v11" % sW)
    a("v_lshl_add_u32 v9, v8, 3, v9")
    a("v_lshlrev_b32 v9, 7, v9")
    a("v_lshl_add_u32 v9, v11, 5, v9")
    a("v_lshl_add_u32 v9, v10, 3, v9")
    a("v_add_u32 v9, %d, v9" % M_W)
    a("v_add_u32 v14, 0x10000, v9")
    a("v_and_b32 v10, 3, v%d" % vLane)
    a("v_mul_u32_u24 v10, 1056, v10")
    a("v_bfe_u32 v11, v%d, 2, 1" % vLane)
    a("v_mul_u32_u24 v11, 16512, v11")
    a("v_add_u32 v10, v10, v11")
    a("v_lshl_add_u32 v10, v8, 4, v10")
    a("v_and_b32 v11, 15, v%d" % vLane)
    a("v_lshlrev_b32 v11, 7, v11")
    a("v_lshl_add_u32 v11, v8, 3, v11")
    a("s_lshl_b32 s82, s%d, 5" % sW)
    a("s_add_u32 s82, s82, %d" % M_HS)
    a("v_add_u32 v11, s82, v11")
    a("s_waitcnt vmcnt(0)")
    stamp(a, 2)
    lds_sync(a, "m0", M_CNT + 4, 8, 12, 13)
    stamp(a, 3)
    FG, FU, FB, DG, DU, NB = 16, 32, 48, 64, 68, 4
    def gu_reads(ks):
        b = ks % NB
        a("ds_read_b64_tr_b16 %s, v9 offset:%d" % (v(FG + 4 * b, 2), ks * 4096))
        a("ds_read_b64_tr_b16 %s, v9 offset:%d" % (v(FG + 4 * b + 2, 2), ks * 4096 + 512))
        a("ds_read_b128 %s, v10 offset:%d" % (v(FB + 4 * b, 4), ks * 64))
        a("ds_read_b64_tr_b16 %s, v14 offset:%d" % (v(FU + 4 * b, 2), ks * 4096))
        a("ds_read_b64_tr_b16 %s, v14 offset:%d" % (v(FU + 4 * b + 2, 2), ks * 4096 + 512))
    for ks in range(3):
        gu_reads(ks)
    for ks in range(16):
        b = ks % NB
        a("s_waitcnt lgkmcnt(%d)" % (5 * min(2, 15 - ks)))
        a("v_mfma_f32_16x16x32_bf16 %s, %s, %s, %s" % (v(DG, 4), v(FG + 4 * b, 4), v(FB + 4 * b, 4), "0" if ks == 0 else v(DG, 4)))
        a("v_mfma_f32_16x16x32_bf16 %s, %s, %s, %s" % (v(DU, 4), v(FU + 4 * b, 4), v(FB + 4 * b, 4), "0" if ks == 0 else v(DU, 4)))
        if ks + 3 < 16:
            gu_reads(ks + 3)
    a("s_nop 7")
    for e in range(4):
        bf16r(a, "v%d" % (DG + e), "v%d" % (DG + e))
        bf16r(a, "v%d" % (DU + e), "v%d" % (DU + e))
    for e in range(4):
        a("v_mul_f32 v%d, %s, v%d" % (72 + e, fhex(-LOG2E), DG + e))
    for e in range(4):
        a("v_exp_f32 v%d, v%d" % (72 + e, 72 + e))
    for e in range(4):
        a("v_add_f32 v%d, 1.0, v%d" % (72 + e, 72 + e))
    for e in range(4):
        a("v_rcp_f32 v%d, v%d" % (72 + e, 72 + e))
    a("s_nop 0")
    for e in range(4):
        a("v_mul_f32 v%d, v%d, v%d" % (DG + e, DG + e, 72 + e))
    for e in range(4):
        bf16r(a, "v%d" % (DG + e), "v%d" % (DG + e))
    for e in range(4):
        a("v_mul_f32 v%d, v%d, v%d" % (DG + e, DG + e, DU + e))
    a("v_cvt_pk_bf16_f32 v72, v%d, v%d" % (DG, DG + 1))
    a("v_cvt_pk_bf16_f32 v73, v%d, v%d" % (DG + 2, DG + 3))
    a("s_mov_b32 exec_lo, 0x00ff00ff")
    a("s_mov_b32 exec_hi, 0x00ff00ff")
    a("ds_write_b64 v11, v[72:73]")
    a("s_mov_b64 exec, -1")
    lds_arrive(a, M_CNT + 8, 12, 13)
    stamp(a, 4)
    a("s_add_u32 s%d, s%d, 8" % (sW, sW))
    stamp_flush(a, 1, sWS, sW)
    a("s_endpgm")
    a.label("L_moe_d")
    XROW, XST = 16, 24
    R0, R1, F0, F1, D, HF = 28, 60, 92, 28, 60, 16
    a("s_sub_u32 s%d, s%d, 4" % (sW, sW))
    a("s_waitcnt lgkmcnt(0)")
    ws_adjust(a, 6)
    srd(a, sWS, 6, WS_SIZE)
    a("s_lshl_b32 s%d, s%d, 3" % (sT0, sW))
    a("s_add_u32 s%d, s%d, 0x%x" % (sT0, sT0, WS_SEL))
    a("s_buffer_load_dwordx2 s[82:83], s[%d:%d], s%d" % (sWS, sWS + 3, sT0))
    srd(a, sX, 84, 2048 * 1024)
    srd(a, sWd, 92, 1792 * 1024)
    a("v_lshlrev_b32 v8, 4, v%d" % vLane)
    a("v_mov_b32 v9, 0")
    a("s_waitcnt lgkmcnt(0)")
    for k in range(2):
        a("s_lshl_b32 s%d, s%d, 10" % (sT0, 82 + k))
        a("buffer_load_dwordx4 %s, v8, s[%d:%d], s%d offen" % (v(XROW + 4 * k, 4), sX, sX + 3, sT0))
        a("s_lshl_b32 s%d, s%d, 4" % (sT1, 82 + k))
        a("s_add_u32 s%d, s%d, 0x%x" % (sT1, sT1, WS_REC))
        a("buffer_load_dwordx2 %s, v9, s[%d:%d], s%d offen" % (v(XST + 2 * k, 2), sWS, sWS + 3, sT1))
    lds_arrive(a, M_CNT + 12, 12, 13)
    a("s_mul_i32 s28, s%d, 6" % sW)
    a("s_add_u32 s28, s28, 40")
    moe_dma_units(a, "d", 6, vLane)
    a("s_waitcnt vmcnt(12)")
    stamp(a, 1)
    T = 92
    for k in range(2):
        X, ST = XROW + 4 * k, XST + 2 * k
        for i in range(4):
            a("v_lshlrev_b32 v%d, 16, v%d" % (T + 2 * i, X + i))
            a("v_and_b32 v%d, 0xffff0000, v%d" % (T + 1 + 2 * i, X + i))
        for i in range(8):
            a("v_sub_f32 v%d, v%d, v%d" % (T + i, T + i, ST))
        for i in range(4):
            a("v_cvt_pk_bf16_f32 v%d, v%d, v%d" % (X + i, T + 2 * i, T + 1 + 2 * i))
        for i in range(4):
            a("v_lshlrev_b32 v%d, 16, v%d" % (T + 2 * i, X + i))
            a("v_and_b32 v%d, 0xffff0000, v%d" % (T + 1 + 2 * i, X + i))
        for i in range(8):
            a("v_mul_f32 v%d, v%d, v%d" % (T + i, T + i, ST + 1))
        for i in range(4):
            a("v_cvt_pk_bf16_f32 v%d, v%d, v%d" % (X + i, T + 2 * i, T + 1 + 2 * i))
    a("s_lshr_b32 s82, s%d, 1" % sW)
    a("s_mul_i32 s82, s82, 16512")
    a("s_and_b32 s83, s%d, 1" % sW)
    a("s_mul_i32 s83, s83, 2112")
    a("s_add_u32 s82, s82, s83")
    a("v_add_u32 v10, s82, v8")
    a("ds_write_b128 v10, %s" % v(XROW, 4))
    a("ds_write_b128 v10, %s offset:1056" % v(XROW + 4, 4))
    a("s_waitcnt vmcnt(0)")
    lds_arrive(a, M_CNT + 4, 12, 13)
    stamp(a, 2)
    a("v_lshrrev_b32 v5, 4, v%d" % vLane)
    a("v_and_b32 v6, 15, v%d" % vLane)
    a("v_lshlrev_b32 v5, 13, v5")
    a("v_lshl_add_u32 v5, v6, 4, v5")
    a("s_lshl_b32 s94, s2, 16")
    a("s_lshl_b32 s95, s%d, 8" % sW)
    a("s_add_u32 s32, s94, s95")
    for kk in range(2):
        for e in range(8):
            a("s_add_u32 s83, s32, %d" % (kk * 32768 + (e // 4) * 4096))
            a("buffer_load_dwordx4 %s, v5, s[%d:%d], s83 offen offset:%d" % (v((R0 if kk == 0 else R1) + 4 * e, 4), sWd, sWd + 3, (e % 4) * 1024))
    a("s_mov_b32 s94, 0x05040100")
    a("s_mov_b32 s95, 0x07060302")
    a("v_and_b32 v10, 7, v%d" % vLane)
    a("v_lshrrev_b32 v9, 4, v%d" % vLane)
    a("v_lshlrev_b32 v10, 7, v10")
    a("v_lshl_add_u32 v10, v9, 4, v10")
    a("v_add_u32 v10, %d, v10" % M_HS)
    a("v_and_b32 v11, 15, v%d" % vLane)
    a("v_lshlrev_b32 v11, 11, v11")
    a("v_lshl_add_u32 v11, v9, 4, v11")
    a("s_lshl_b32 s82, s2, 14")
    a("s_lshl_b32 s83, s%d, 9" % sW)
    a("s_add_u32 s82, s82, s83")
    a("s_add_u32 s82, s82, 0x%x" % WS_PART)
    a("s_waitcnt vmcnt(8)")
    for jj in range(8):
        for p in range(4):
            a("v_perm_b32 v%d, v%d, v%d, s%d" % (F0 + 4 * jj + p, R0 + 4 * (2 * p + 1) + (jj >> 1), R0 + 4 * (2 * p) + (jj >> 1), 94 + (jj & 1)))
    a("s_waitcnt vmcnt(0)")
    for jj in range(8):
        for p in range(4):
            a("v_perm_b32 v%d, v%d, v%d, s%d" % (F1 + 4 * jj + p, R1 + 4 * (2 * p + 1) + (jj >> 1), R1 + 4 * (2 * p) + (jj >> 1), 94 + (jj & 1)))
    stamp(a, 3)
    lds_wait(a, "m2", M_CNT + 8, 4, 12, 13)
    stamp(a, 4)
    a("ds_read_b128 %s, v10" % v(HF, 4))
    a("ds_read_b128 %s, v10 offset:64" % v(HF + 4, 4))
    a("s_waitcnt lgkmcnt(1)")
    for jj in range(8):
        a("v_mfma_f32_16x16x32_bf16 %s, %s, %s, 0" % (v(D + 4 * jj, 4), v(F0 + 4 * jj, 4), v(HF, 4)))
    a("s_waitcnt lgkmcnt(0)")
    for jj in range(8):
        a("v_mfma_f32_16x16x32_bf16 %s, %s, %s, %s" % (v(D + 4 * jj, 4), v(F1 + 4 * jj, 4), v(HF + 4, 4), v(D + 4 * jj, 4)))
    a("s_mov_b32 exec_lo, 0x00ff00ff")
    a("s_mov_b32 exec_hi, 0x00ff00ff")
    a("s_nop 0")
    for jj in range(8):
        if jj == 7:
            a("s_nop 4")
        a("buffer_store_dwordx4 %s, v11, s[%d:%d], s82 offen offset:%d" % (v(D + 4 * jj, 4), sWS, sWS + 3, jj * 64))
    a("s_add_u32 s%d, s%d, 12" % (sW, sW))
    stamp_flush(a, 1, sWS, sW)
    a("s_endpgm")

def gen_k2():
    a = Asm()
    N = "k2_kernel"
    a(kernel_head(N))
    a("s_cmp_ge_u32 s2, %d" % K2_GRID)
    a("s_cbranch_scc1 L_k2_end")
    stamp_begin(a, 127)
    a("s_load_dwordx2 s[6:7], s[0:1], 80")
    a("v_lshrrev_b32 v2, 6, v0")
    a("v_and_b32 v1, 63, v0")
    a("v_readfirstlane_b32 s22, v2")
    a("s_cmp_lt_u32 s2, %d" % NSLICE)
    a("s_cbranch_scc1 L_k2_mixed")
    a("s_cmp_ge_u32 s22, 8")
    a("s_cbranch_scc1 %s" % ("L_k2_pf" if opt("PF_K3", 0) else "L_k2_end"))
    a("s_branch L_k2_attn")
    a.label("L_k2_mixed")
    a("s_load_dwordx2 s[84:85], s[0:1], 0")
    a("s_load_dwordx4 s[88:91], s[0:1], 40")
    a("s_load_dwordx2 s[92:93], s[0:1], 56")
    a("s_cmp_lg_u32 s22, 0")
    a("s_cbranch_scc1 L_k2_z")
    a("v_mov_b32 v3, %d" % M_CNT)
    a("v_mov_b32 v4, 0"); a("v_mov_b32 v5, 0"); a("v_mov_b32 v6, 0"); a("v_mov_b32 v7, 0")
    a("ds_write_b128 v3, v[4:7]")
    a("s_waitcnt lgkmcnt(0)")
    a.label("L_k2_z")
    a("s_barrier")
    a("s_cmp_ge_u32 s22, 8")
    a("s_cbranch_scc1 L_k2_moe")
    a.label("L_k2_attn")
    gen_attn(a)
    a.label("L_k2_moe")
    gen_moe(a)
    if opt("PF_K3", 0):
        a.label("L_k2_pf")
        a("s_lshr_b32 s26, s2, 3")
        a("s_sub_u32 s26, s26, 4")
        a("s_cmp_ge_u32 s26, 12")
        a("s_cbranch_scc1 L_k2_end")
        a("s_lshl_b32 s26, s26, 3")
        a("s_add_u32 s26, s26, s22")
        a("s_sub_u32 s26, s26, 8")
        a("s_load_dwordx2 s[12:13], s[0:1], 16")
        a("s_load_dwordx2 s[14:15], s[0:1], 0")
        a("v_lshlrev_b32 v3, 7, v1")
        a("s_and_b32 s27, s2, 7")
        a("s_lshl_b32 s27, s27, 18")
        a("s_sub_u32 s28, s26, 64")
        a("s_lshl_b32 s28, s28, 13")
        a("s_add_u32 s27, s27, s28")
        a("s_lshl_b32 s28, s26, 13")
        a("s_cmp_lt_u32 s26, 64")
        a("s_waitcnt lgkmcnt(0)")
        a("s_cselect_b32 s16, s12, s14")
        a("s_cselect_b32 s17, s13, s15")
        a("s_cselect_b32 s28, s28, s27")
        a("s_mov_b32 s18, %d" % (512 * 1024))
        a("s_cselect_b32 s18, s18, %d" % (2048 * 1024))
        a("s_mov_b32 s19, 0x20000")
        if opt("PF_K3_SLEEP", 48):
            a("s_sleep %d" % opt("PF_K3_SLEEP", 48))
        a("buffer_load_dword v4, v3, s[16:19], s28 offen")
    a.label("L_k2_end")
    a("s_endpgm")
    return a.text(), 128
```

```python
from dsl import *
from k1 import *

K3_Y = 131072
K3_LDS = K3_Y + 2048

def gen_k3():
    a = Asm()
    N = "k3_kernel"
    a(kernel_head(N))
    vLane = 1
    sWS, sX, sWo, sOut = 8, 12, 16, 20
    sRb, sCb, sW, sMt, sNt, sT0, sT1, sPh, sTile = 28, 29, 30, 31, 32, 33, 34, 35, 36
    sIdx, sSig = 40, 48
    a("s_cmp_ge_u32 s2, 256")
    a("s_cbranch_scc1 L_k3_end")
    stamp_begin(a, 62)
    a("s_load_dwordx2 s[4:5], s[0:1], 0")
    a("s_load_dwordx2 s[6:7], s[0:1], 16")
    a("s_load_dwordx4 s[24:27], s[0:1], 64")
    a("s_load_dwordx2 s[38:39], s[0:1], 80")
    a("s_and_b32 s%d, s2, 7" % sT0)
    a("s_lshr_b32 s%d, s2, 3" % sT1)
    a("s_lshl_b32 s%d, s%d, 2" % (sRb, sT0))
    a("s_and_b32 s%d, s%d, 3" % (sCb, sT1))
    a("s_add_u32 s%d, s%d, s%d" % (sRb, sRb, sCb))
    a("s_lshr_b32 s%d, s%d, 2" % (sCb, sT1))
    a("v_lshrrev_b32 v2, 6, v0")
    a("v_and_b32 v%d, 63, v0" % vLane)
    a("v_readfirstlane_b32 s%d, v2" % sW)
    a("s_cmp_ge_u32 s%d, 4" % sW)
    a("s_cbranch_scc0 L_k3_cons")
    if opt("LD3_PRIO"):
        a("s_setprio %d" % opt("LD3_PRIO"))
    vOa, vWa = 4, 5
    a("v_lshlrev_b32 v%d, 4, v%d" % (vOa, vLane))
    a("v_lshrrev_b32 v2, 3, v%d" % vLane)
    a("v_and_b32 v3, 7, v%d" % vLane)
    a("v_bfe_u32 v9, v%d, 4, 1" % vLane)
    a("v_lshlrev_b32 v9, 2, v9")
    a("v_xor_b32 v3, v3, v9")
    a("v_lshlrev_b32 v3, 4, v3")
    a("v_lshl_add_u32 v%d, v2, 10, v3" % vWa)
    a("s_sub_u32 s%d, s%d, 4" % (sW, sW))
    a("s_and_b32 s%d, s%d, 1" % (sMt, sW))
    a("s_lshr_b32 s%d, s%d, 1" % (sNt, sW))
    a("s_lshl_b32 s68, s%d, 1" % sRb)
    a("s_add_u32 s68, s68, s%d" % sMt)
    a("s_lshl_b32 s68, s68, 10")
    a("s_lshl_b32 s69, s%d, 17" % sNt)
    a("s_add_u32 s68, s68, s69")
    a("s_add_u32 s68, s68, 0x%x" % WS_OF)
    a("s_lshl_b32 s70, s%d, 15" % sMt)
    a("s_lshl_b32 s69, s%d, 11" % sNt)
    a("s_add_u32 s70, s70, s69")
    a("s_lshl_b32 s71, s%d, 14" % sW)
    a("s_lshl_b32 s69, s%d, 7" % sCb)
    a("s_add_u32 s71, s71, s69")
    a("s_lshl_b32 s72, s%d, 11" % sW)
    a("s_add_u32 s72, s72, 65536")
    a("s_waitcnt lgkmcnt(0)")
    ws_adjust(a, 38)
    srd(a, sWS, 38, WS_SIZE)
    srd(a, sWo, 6, 512 * 1024)
    a("s_add_u32 s62, s38, 0x%x" % WS_SEL)
    a("s_addc_u32 s63, s39, 0")
    a("s_load_dwordx16 s[%d:%d], s[62:63], 0" % (sIdx, sIdx + 15))
    stamp(a, 1)
    def issue():
        a("s_mov_b32 m0, s72")
        a("s_add_u32 s69, s71, 8192")
        a("buffer_load_dwordx4 v%d, s[%d:%d], s71 offen lds" % (vWa, sWo, sWo + 3))
        a("s_add_u32 m0, m0, 1024")
        a("s_add_u32 s71, s71, 131072")
        a("buffer_load_dwordx4 v%d, s[%d:%d], s69 offen lds" % (vWa, sWo, sWo + 3))
        a("s_mov_b32 m0, s70")
        a("s_add_u32 s69, s68, 0x10000")
        a("buffer_load_dwordx4 v%d, s[%d:%d], s68 offen lds" % (vOa, sWS, sWS + 3))
        a("s_add_u32 m0, m0, 1024")
        a("s_add_u32 s68, s68, 0x80000")
        a("buffer_load_dwordx4 v%d, s[%d:%d], s69 offen lds" % (vOa, sWS, sWS + 3))
        a("s_add_u32 s70, s70, 8192")
        a("s_add_u32 s72, s72, 16384")
    issue()
    issue()
    if opt("K3_ALL", 0):
        issue()
        issue()
    Y = 64
    a("v_lshrrev_b32 v12, 4, v%d" % vLane)
    a("v_and_b32 v13, 15, v%d" % vLane)
    a("v_lshlrev_b32 v12, 14, v12")
    a("v_lshrrev_b32 v14, 1, v13")
    a("v_lshl_add_u32 v12, v14, 6, v12")
    a("v_and_b32 v15, 1, v13")
    a("v_lshl_add_u32 v12, v15, 4, v12")
    a("s_lshr_b32 s%d, s%d, 1" % (sT0, sCb))
    a("s_lshl_b32 s%d, s%d, 9" % (sT0, sT0))
    a("s_and_b32 s%d, s%d, 1" % (sT1, sCb))
    a("s_lshl_b32 s%d, s%d, 5" % (sT1, sT1))
    a("s_add_u32 s%d, s%d, s%d" % (sT0, sT0, sT1))
    a("s_lshl_b32 s%d, s%d, 11" % (sT1, sW))
    a("s_add_u32 s73, s%d, s%d" % (sT0, sT1))
    a("s_add_u32 s73, s73, 0x%x" % WS_PART)
    a("v_lshl_add_u32 v14, v15, 5, v14")
    a("s_lshl_b32 s%d, s%d, 8" % (sT1, sW))
    a("s_add_u32 s%d, s%d, %d" % (sT1, sT1, K3_Y))
    a("v_lshl_add_u32 v14, v14, 2, s%d" % sT1)
    a("s_mov_b32 m0, s%d" % sW)
    a("s_waitcnt lgkmcnt(0)")
    a("s_movrels_b32 s59, s%d" % sIdx)
    a("s_movrels_b32 s60, s%d" % sSig)
    a("s_lshr_b32 s%d, s59, 6" % sT1)
    if opt("K3_ALL", 0):
        a("s_cmp_eq_u32 s%d, s%d" % (sT1, sRb))
        a("s_cbranch_scc1 L_k3_tok")
        for n in (12, 8, 4):
            a("s_waitcnt vmcnt(%d)" % n)
            a("s_barrier")
        a("s_branch L_k3_ldfin")
        a.label("L_k3_tok")
        for q in range(7):
            a("buffer_load_dwordx4 %s, v12, s[%d:%d], s73 offen" % (v(Y + 4 * q, 4), sWS, sWS + 3))
            a("s_add_u32 s73, s73, 0x10000")
        for n in (19, 15, 11):
            a("s_waitcnt vmcnt(%d)" % n)
            a("s_barrier")
        a("s_waitcnt vmcnt(0)")
    else:
        a("s_waitcnt vmcnt(4)")
        a("s_barrier")
        a("s_cmp_eq_u32 s%d, s%d" % (sT1, sRb))
        a("s_cbranch_scc1 L_k3_tok")
        issue()
        a("s_waitcnt vmcnt(4)")
        a("s_barrier")
        issue()
        a("s_waitcnt vmcnt(4)")
        a("s_barrier")
        a("s_branch L_k3_ldfin")
        a.label("L_k3_tok")
        for q in range(7):
            a("buffer_load_dwordx4 %s, v12, s[%d:%d], s73 offen" % (v(Y + 4 * q, 4), sWS, sWS + 3))
            a("s_add_u32 s73, s73, 0x10000")
        issue()
        a("s_waitcnt vmcnt(11)")
        a("s_barrier")
        issue()
        a("s_waitcnt vmcnt(4)")
        a("s_barrier")
    for (x, y) in ((0, 1), (2, 3), (4, 5), (0, 2), (4, 6), (0, 4)):
        a("v_pk_add_f32 %s, %s, %s" % (v(Y + 4 * x, 2), v(Y + 4 * x, 2), v(Y + 4 * y, 2)))
        a("v_pk_add_f32 %s, %s, %s" % (v(Y + 4 * x + 2, 2), v(Y + 4 * x + 2, 2), v(Y + 4 * y + 2, 2)))
    for sw in ("v_permlane16_swap_b32", "v_permlane32_swap_b32"):
        for e in range(4):
            a("v_mov_b32 v%d, v%d" % (Y + 4 + e, Y + e))
        a("s_nop 1")
        for e in range(4):
            a("%s v%d, v%d" % (sw, Y + e, Y + 4 + e))
        a("s_nop 0")
        for e in range(4):
            a("v_add_f32 v%d, v%d, v%d" % (Y + e, Y + e, Y + 4 + e))
    for e in range(4):
        bf16r(a, "v%d" % (Y + e), "v%d" % (Y + e))
        a("v_mul_f32 v%d, s60, v%d" % (Y + e, Y + e))
        bf16r(a, "v%d" % (Y + e), "v%d" % (Y + e))
    for e in range(4):
        a("ds_write_b32 v14, v%d offset:%d" % (Y + e, e * 32))
    a.label("L_k3_ldfin")
    stamp(a, 2)
    a("s_waitcnt vmcnt(0) lgkmcnt(0)")
    a("s_barrier")
    a("s_add_u32 s%d, s%d, 4" % (sW, sW))
    stamp_flush(a, 2, sWS, sW)
    a("s_endpgm")
    a.label("L_k3_cons")
    vOr, vWr, vXo = 6, 7, 8
    acc = 16
    XR = 32
    base = 40
    FB, FA = 64, 96
    XN = 128
    a("s_and_b32 s%d, s%d, 1" % (sMt, sW))
    a("s_lshr_b32 s%d, s%d, 1" % (sNt, sW))
    a("s_lshl_b32 s%d, s%d, 1" % (sTile, sRb))
    a("s_add_u32 s%d, s%d, s%d" % (sTile, sTile, sMt))
    a("v_and_b32 v2, 31, v%d" % vLane)
    a("v_lshrrev_b32 v3, 5, v%d" % vLane)
    a("s_lshl_b32 s%d, s%d, 5" % (sT0, sTile))
    a("v_add_u32 v9, s%d, v2" % sT0)
    a("v_lshlrev_b32 v%d, 10, v9" % vXo)
    a("v_lshl_add_u32 v%d, v3, 4, v%d" % (vXo, vXo))
    a("s_lshl_b32 s%d, s%d, 7" % (sT0, sCb))
    a("s_lshl_b32 s%d, s%d, 6" % (sT1, sNt))
    a("s_add_u32 s%d, s%d, s%d" % (sT0, sT0, sT1))
    a("v_add_u32 v%d, s%d, v%d" % (vXo, sT0, vXo))
    a("v_lshlrev_b32 v9, 4, v9")
    a("s_waitcnt lgkmcnt(0)")
    ws_adjust(a, 38)
    srd(a, sWS, 38, WS_SIZE)
    srd(a, sX, 4, 2048 * 1024)
    a("s_add_u32 s62, s38, 0x%x" % WS_SEL)
    a("s_addc_u32 s63, s39, 0")
    a("s_load_dwordx16 s[%d:%d], s[62:63], 0" % (sIdx, sIdx + 15))
    a("buffer_load_dwordx4 %s, v%d, s[%d:%d], 0 offen" % (v(XR, 4), vXo, sX, sX + 3))
    a("buffer_load_dwordx4 %s, v%d, s[%d:%d], 0 offen offset:32" % (v(XR + 4, 4), vXo, sX, sX + 3))
    a("s_mov_b32 s%d, 0x%x" % (sT0, WS_REC))
    a("buffer_load_dwordx2 v[10:11], v9, s[%d:%d], s%d offen" % (sWS, sWS + 3, sT0))
    srd(a, sOut, 24, 2048 * 1024)
    a("s_lshl_b32 s%d, s%d, 15" % (sT0, sMt))
    a("v_lshl_add_u32 v%d, v%d, 4, s%d" % (vOr, vLane, sT0))
    a("v_bfe_u32 v12, v%d, 2, 2" % vLane)
    a("v_lshl_add_u32 v13, v3, 2, v12")
    a("v_lshlrev_b32 v13, 7, v13")
    a("v_lshrrev_b32 v12, 1, v12")
    a("v_xor_b32 v12, s%d, v12" % sNt)
    a("v_lshl_add_u32 v13, v12, 6, v13")
    a("v_bfe_u32 v12, v%d, 4, 1" % vLane)
    a("v_lshl_add_u32 v13, v12, 5, v13")
    a("v_and_b32 v12, 3, v%d" % vLane)
    a("v_lshl_add_u32 v13, v12, 3, v13")
    a("v_add_u32 v%d, 0x10000, v13" % vWr)
    for r in range(16):
        a("v_mov_b32 v%d, 0" % (acc + r))
    stamp(a, 1)
    a("s_waitcnt vmcnt(0) lgkmcnt(0)")
    stamp(a, 3)
    for i in range(8):
        a("v_lshlrev_b32 v%d, 16, v%d" % (base + 2 * i, XR + i))
        a("v_and_b32 v%d, 0xffff0000, v%d" % (base + 2 * i + 1, XR + i))
    for i in range(16):
        a("v_sub_f32 v%d, v%d, v10" % (XN + i, base + i))
    for i in range(8):
        a("v_cvt_pk_bf16_f32 v%d, v%d, v%d" % (XR + i, XN + 2 * i, XN + 2 * i + 1))
    for i in range(8):
        a("v_lshlrev_b32 v%d, 16, v%d" % (XN + 2 * i, XR + i))
        a("v_and_b32 v%d, 0xffff0000, v%d" % (XN + 2 * i + 1, XR + i))
    for i in range(16):
        a("v_mul_f32 v%d, v%d, v11" % (XN + i, XN + i))
    for i in range(8):
        a("v_cvt_pk_bf16_f32 v%d, v%d, v%d" % (XR + i, XN + 2 * i, XN + 2 * i + 1))
    for i in range(8):
        a("v_lshlrev_b32 v%d, 16, v%d" % (XN + 2 * i, XR + i))
        a("v_and_b32 v%d, 0xffff0000, v%d" % (XN + 2 * i + 1, XR + i))
    for i in range(16):
        a("v_add_f32 v%d, v%d, v%d" % (base + i, base + i, XN + i))
    a("s_mov_b32 s67, 0")
    for jx in range(8):
        a("s_lshr_b32 s%d, s%d, 5" % (sT1, sIdx + jx))
        a("s_cmp_eq_u32 s%d, s%d" % (sT1, sTile))
        a("s_cselect_b32 s%d, %d, 0" % (sT1, 1 << jx))
        a("s_or_b32 s67, s67, s%d" % sT1)
    stamp(a, 4)
    def step_reads(ks, buf):
        a("ds_read_b128 %s, v%d offset:%d" % (v(FB + 4 * buf, 4), vOr, ks * 1024))
        a("ds_read_b64_tr_b16 %s, v%d offset:%d" % (v(FA + 4 * buf, 2), vWr, ks * 2048))
        a("ds_read_b64_tr_b16 %s, v%d offset:%d" % (v(FA + 4 * buf + 2, 2), vWr, ks * 2048 + 1024))
    a("s_mov_b32 s%d, 0" % sPh)
    a.label("L_k3_loop")
    a("s_barrier")
    stamp(a, "s%d+10" % sPh)
    for ks in range(4):
        step_reads(ks, ks)
    for ks in range(8):
        a("s_waitcnt lgkmcnt(%d)" % (9 if ks < 5 else 3 * (7 - ks)))
        a("v_mfma_f32_32x32x16_bf16 %s, %s, %s, %s" % (v(acc, 16), v(FA + 4 * ks, 4), v(FB + 4 * ks, 4), v(acc, 16)))
        if ks + 4 < 8:
            step_reads(ks + 4, ks + 4)
    a("v_add_u32 v%d, 0x2000, v%d" % (vOr, vOr))
    a("v_add_u32 v%d, 0x4000, v%d" % (vWr, vWr))
    a("s_add_u32 s%d, s%d, 1" % (sPh, sPh))
    a("s_cmp_lt_u32 s%d, 4" % sPh)
    a("s_cbranch_scc1 L_k3_loop")
    stamp(a, 5)
    a("s_cmp_eq_u32 s67, 0")
    a("s_cbranch_scc1 L_k3_fin")
    a("s_lshl_b32 s%d, s%d, 7" % (sT0, sNt))
    a("s_add_u32 s%d, s%d, %d" % (sT0, sT0, K3_Y))
    a("v_lshl_add_u32 v14, v3, 5, s%d" % sT0)
    a.label("L_k3_ap")
    a("s_ff1_i32_b32 s58, s67")
    a("s_bitset0_b32 s67, s58")
    a("s_mov_b32 m0, s58")
    a("s_lshl_b32 s%d, s58, 8" % sT1)
    a("s_movrels_b32 s59, s%d" % sIdx)
    a("v_add_u32 v15, s%d, v14" % sT1)
    a("ds_read_b128 v[64:67], v15")
    a("ds_read_b128 v[68:71], v15 offset:16")
    a("ds_read_b128 v[72:75], v15 offset:64")
    a("ds_read_b128 v[76:79], v15 offset:80")
    a("s_and_b32 s59, s59, 31")
    a("v_cmp_eq_u32 vcc, s59, v2")
    a("s_waitcnt lgkmcnt(0)")
    a("s_and_saveexec_b64 s[64:65], vcc")
    for r in range(16):
        a("v_add_f32 v%d, v%d, v%d" % (base + r, base + r, 64 + r))
    a("s_mov_b64 exec, s[64:65]")
    a("s_cmp_lg_u32 s67, 0")
    a("s_cbranch_scc1 L_k3_ap")
    a.label("L_k3_fin")
    a("s_nop 7")
    for r in range(4):
        a("v_permlane32_swap_b32 v%d, v%d" % (acc + r, acc + 4 + r))
        a("v_permlane32_swap_b32 v%d, v%d" % (acc + 8 + r, acc + 12 + r))
    for i in range(8):
        a("v_pk_add_f32 %s, %s, %s" % (v(base + 2 * i, 2), v(base + 2 * i, 2), v(acc + 2 * i, 2)))
    for i in range(8):
        a("v_cvt_pk_bf16_f32 v%d, v%d, v%d" % (XR + i, base + 2 * i, base + 2 * i + 1))
    OST = " sc1" if opt("ST_OUT_SC1") else (" nt" if opt("ST_OUT_NT") else "")
    a("buffer_store_dwordx4 %s, v%d, s[%d:%d], 0 offen%s" % (v(XR, 4), vXo, sOut, sOut + 3, OST))
    a("buffer_store_dwordx4 %s, v%d, s[%d:%d], 0 offen offset:32%s" % (v(XR + 4, 4), vXo, sOut, sOut + 3, OST))
    stamp_flush(a, 2, sWS, sW)
    a.label("L_k3_end")
    a("s_endpgm")
    return a.text(), 144
```

```python
from dsl import *

WS_QF = 0x000000
WS_KF = 0x200000
WS_VF = 0x400000
WS_OF = WS_QF
WS_REC = 0x800000
WS_CSR = 0x808000
WS_SEL = 0x80e000
WS_PART = 0x810000
WS_SIZE = 0xD00000 if PROF else 0x900000
NSLICE = 28
K1_GRID = 256

QSCALE = 0.25 * 1.4426950408889634
LOG2E = 1.4426950408889634

def fhex(x):
    import struct
    return "0x%08x" % struct.unpack("<I", struct.pack("<f", x))[0]

G_ST = 131072
G_LDS = G_ST + 1024
K1_LDS = G_LDS

sXP, sWP, sWRP, sWGP, sWUP, sWDP, sDBG, sWSP = 4, 6, 12, 14, 16, 18, 20, 22
sWave = 3

def wave_max_u32(a, t):
    for dp in ["quad_perm:[1,0,3,2] row_mask:0xf", "quad_perm:[2,3,0,1] row_mask:0xf", "row_half_mirror row_mask:0xf", "row_mirror row_mask:0xf",
               "row_bcast:15 row_mask:0xa", "row_bcast:31 row_mask:0xc"]:
        a("s_nop 1")
        a("v_max_u32_dpp v%d, v%d, v%d %s bank_mask:0xf" % (t, t, t, dp))

def poll_flags(a, tag, vaddr, srdreg, lanes_mask_lo, tmp):
    a("s_mov_b32 s98, 0")
    a.label("L_poll_%s" % tag)
    a("buffer_load_dword v%d, v%d, s[%d:%d], 0 offen sc1" % (tmp, vaddr, srdreg, srdreg + 3))
    a("s_add_u32 s98, s98, 1")
    a("s_waitcnt vmcnt(0)")
    a("v_cmp_eq_u32 vcc, 0, v%d" % tmp)
    a("s_cmp_gt_u32 s98, 0x40000")
    a("s_cbranch_scc1 L_polld_%s" % tag)
    a("s_and_b32 s99, vcc_lo, 0x%x" % lanes_mask_lo)
    a("s_cbranch_scc0 L_polld_%s" % tag)
    a("s_sleep 8")
    a("s_branch L_poll_%s" % tag)
    a.label("L_polld_%s" % tag)

def get_nonce(a, tag, sdb, vtmp, vzero, sdst):
    a("v_mov_b32 v%d, 0" % vzero)
    a("s_mov_b32 s98, 0")
    a.label("L_nonce_%s" % tag)
    a("buffer_load_dword v%d, v%d, s[%d:%d], 0 offen sc1" % (vtmp, vzero, sdb, sdb + 3))
    a("s_add_u32 s98, s98, 1")
    a("s_waitcnt vmcnt(0)")
    a("v_readfirstlane_b32 s%d, v%d" % (sdst, vtmp))
    a("s_cmp_gt_u32 s98, 0x40000")
    a("s_cbranch_scc1 L_nonced_%s" % tag)
    a("s_cmp_lg_u32 s%d, 0" % sdst)
    a("s_cbranch_scc1 L_nonced_%s" % tag)
    a("s_sleep 4")
    a("s_branch L_nonce_%s" % tag)
    a.label("L_nonced_%s" % tag)

def gen_e(a):
    vLane = 1
    sX, sW, sWS, sDb, sWR = 24, 28, 32, 36, 40
    sT0, sT1, sEb, sStrip, sTag = 44, 45, 49, 50, 51
    L_CS = 0
    srd(a, sX, sXP, 2048 * 1024)
    srd(a, sWR, sWRP, 1024)
    a("s_and_b32 s%d, s2, 1" % sT0)
    a("s_bfe_u32 s%d, s2, 0x20001" % sT1)
    a("s_lshr_b32 s46, s2, 3")
    a("s_lshl_b32 s%d, s%d, 3" % (sEb, sT1))
    a("s_lshl_b32 s47, s%d, 2" % sT0)
    a("s_add_u32 s%d, s%d, s47" % (sEb, sEb))
    a("s_add_u32 s%d, s%d, s46" % (sEb, sEb))
    a("v_lshrrev_b32 v2, 4, v%d" % vLane)
    a("v_and_b32 v3, 15, v%d" % vLane)
    a("v_lshlrev_b32 v3, 4, v3")
    a("v_lshl_add_u32 v4, v2, 10, v3")
    WP = 16
    a("s_lshl_b32 s%d, s%d, 6" % (sT0, sEb))
    a("s_lshl_b32 s%d, s%d, 3" % (sT1, sWave))
    a("s_add_u32 s46, s%d, s%d" % (sT0, sT1))
    a("s_lshl_b32 s47, s46, 10")
    XP = 32
    for g in range(2):
        for q in range(4):
            a("buffer_load_dwordx4 %s, v4, s[%d:%d], s47 offen offset:%d" % (v(XP + 16 * g + 4 * q, 4), sX, sX + 3, q * 256))
        if g == 0:
            for q in range(4):
                a("buffer_load_dwordx4 %s, v3, s[%d:%d], 0 offen offset:%d" % (v(WP + 4 * q, 4), sWR, sWR + 3, q * 256))
            a("s_add_u32 s47, s47, 4096")
    srd(a, sDb, sDBG, 256)
    a("v_mov_b32 v13, 0")
    a("buffer_load_dword v12, v13, s[%d:%d], 0 offen sc1" % (sDb, sDb + 3))
    stamp(a, 1)
    srd(a, sWS, sWSP, WS_SIZE)
    a("v_mov_b32 v5, 0x3f803f80")
    a("v_mov_b32 v8, 0")
    a("v_add_u32 v15, s46, v2")
    dps = ["quad_perm:[1,0,3,2]", "quad_perm:[2,3,0,1]", "row_half_mirror", "row_mirror"]
    a("s_waitcnt vmcnt(5)")
    for i in range(16):
        a("v_dot2_f32_bf16 v8, v%d, v5, v8" % (WP + i))
    A0, A1, A2 = 9, 10, 11
    OUT = [100, 104]
    for g in range(2):
        if g == 1:
            a("s_waitcnt vmcnt(1)")
        if g == 0:
            stamp(a, 2)
        a("v_mov_b32 v%d, 0" % A0); a("v_mov_b32 v%d, 0" % A1); a("v_mov_b32 v%d, 0" % A2)
        for i in range(16):
            x = XP + 16 * g + i
            a("v_dot2_f32_bf16 v%d, v%d, v5, v%d" % (A0, x, A0))
            a("v_dot2_f32_bf16 v%d, v%d, v%d, v%d" % (A1, x, x, A1))
            a("v_dot2_f32_bf16 v%d, v%d, v%d, v%d" % (A2, x, WP + i, A2))
        a("s_nop 2")
        for dp in dps:
            for r in ((A0, A1, A2, 8) if g == 0 else (A0, A1, A2)):
                a("v_add_f32_dpp v%d, v%d, v%d %s row_mask:0xf bank_mask:0xf" % (r, r, r, dp))
        M, RS, KEY = OUT[g], OUT[g] + 1, OUT[g] + 2
        a("v_mul_f32 v%d, %s, v%d" % (M, fhex(1.0 / 512), A0))
        a("v_mul_f32 v14, %s, v%d" % (fhex(1.0 / 512), A1))
        a("v_fma_f32 v14, -v%d, v%d, v14" % (M, M))
        a("v_max_f32 v14, 0, v14")
        bf16r(a, "v%d" % M, "v%d" % M)
        bf16r(a, "v14", "v14")
        a("v_add_f32 v14, %s, v14" % fhex(1e-5))
        bf16r(a, "v14", "v14")
        a("v_sqrt_f32 v14, v14")
        a("s_nop 0")
        bf16r(a, "v14", "v14")
        a("v_rcp_f32 v%d, v14" % RS)
        a("v_fma_f32 v14, -v%d, v8, v%d" % (M, A2))
        a("v_mul_f32 v14, v14, v%d" % RS)
        a("v_cvt_pk_bf16_f32 v14, v14, v14")
        a("v_and_b32 v14, 0xffff, v14")
        a("v_cmp_gt_u32 vcc, 0x8000, v14")
        a("v_xor_b32 v96, 0x8000, v14")
        a("v_xor_b32 v97, 0xffff, v14")
        a("v_sub_u32 v98, 0xffff, v15")
        a("v_cndmask_b32 v14, v97, v96, vcc")
        a("v_lshl_or_b32 v%d, v14, 16, v98" % KEY)
        a("v_add_u32 v15, 4, v15")
    a("s_waitcnt vmcnt(0)")
    a("v_readfirstlane_b32 s%d, v12" % sTag)
    a("v_and_b32 v9, 15, v%d" % vLane)
    a("v_cmp_eq_u32 vcc, 1, v9")
    a("s_nop 1")
    a("s_cmp_lg_u32 s%d, 0" % sTag)
    a("s_cbranch_scc1 L_e_tag")
    get_nonce(a, "e", sDb, 12, 13, sTag)
    a.label("L_e_tag")
    for q in range(3):
        a("v_cndmask_b32 v%d, v%d, v%d, vcc" % (OUT[0] + q, OUT[0] + q, OUT[1] + q))
    a("v_mov_b32 v%d, s%d" % (OUT[0] + 3, sTag))
    a("v_lshl_add_u32 v10, v9, 2, v2")
    a("v_add_u32 v10, s46, v10")
    a("v_lshlrev_b32 v10, 4, v10")
    a("s_mov_b32 s47, 0x%x" % WS_REC)
    a("s_mov_b32 exec_lo, 0x00030003")
    a("s_mov_b32 exec_hi, 0x00030003")
    a("buffer_store_dwordx4 %s, v10, s[%d:%d], s47 offen sc1" % (v(OUT[0], 4), sWS, sWS + 3))
    a("s_mov_b64 exec, -1")
    stamp(a, 3)
    a.label("L_e_done")
    stamp_flush(a, 0, sWS, sWave)
    a("s_endpgm")

class Net:
    def __init__(self, a, free):
        self.a = a; self.free = list(free)
    def get(self): return self.free.pop(0)
    def put(self, r): self.free.append(r)
    def ce(self, L, i, j):
        hi, lo = self.get(), self.get()
        self.a("v_max_u32 v%d, v%d, v%d" % (hi, L[i], L[j]))
        self.a("v_min_u32 v%d, v%d, v%d" % (lo, L[i], L[j]))
        self.put(L[i]); self.put(L[j])
        L[i], L[j] = hi, lo
    def sort_bitonic8(self, L):
        for st in ([(0, 4), (1, 5), (2, 6), (3, 7)], [(0, 2), (1, 3), (4, 6), (5, 7)], [(0, 1), (2, 3), (4, 5), (6, 7)]):
            for (i, j) in st: self.ce(L, i, j)
    def top8(self, L, dpp, sort=True):
        T = [None] * 8
        for i in range(7, -1, -1):
            T[i] = self.get()
            self.a("v_max_u32_dpp v%d, v%d, v%d %s bank_mask:0xf" % (T[i], L[7 - i], L[i], dpp))
        for r in L: self.put(r)
        if sort: self.sort_bitonic8(T)
        return T

def top8_wave(a, keys, free, wave_sgpr, lds_cand):
    n = Net(a, free)
    L = list(keys)
    for (i, j) in ((0,1),(2,3),(4,5),(6,7),(0,2),(1,3),(4,6),(5,7),(1,2),(5,6),(0,4),(3,7),(1,5),(2,6),(1,4),(3,6),(2,4),(3,5),(3,4)):
        n.ce(L, i, j)
    a("s_nop 0")
    for dp in ("quad_perm:[1,0,3,2] row_mask:0xf", "quad_perm:[2,3,0,1] row_mask:0xf", "row_half_mirror row_mask:0xf", "row_mirror row_mask:0xf",
               "row_bcast:15 row_mask:0xa", "row_bcast:31 row_mask:0xc"):
        L = n.top8(L, dp)
    base = (max(free) + 4) // 4 * 4
    for i in range(8):
        a("v_mov_b32 v%d, v%d" % (base + i, L[i]))
    adr = n.get()
    a("s_lshl_b32 s98, s%d, 5" % wave_sgpr)
    a("s_add_u32 s98, s98, %d" % lds_cand)
    a("v_mov_b32 v%d, s98" % adr)
    a("s_mov_b32 exec_lo, 0")
    a("s_mov_b32 exec_hi, 0x80000000")
    a("ds_write_b128 v%d, %s" % (adr, v(base, 4)))
    a("ds_write_b128 v%d, %s offset:16" % (adr, v(base + 4, 4)))
    a("s_mov_b64 exec, -1")

def top8_final(a, free, lds_cand):
    n = Net(a, free)
    base = (max(free) + 4) // 4 * 4
    adr = n.get()
    a("v_mbcnt_lo_u32_b32 v%d, -1, 0" % adr)
    a("v_mbcnt_hi_u32_b32 v%d, -1, v%d" % (adr, adr))
    a("v_and_b32 v%d, 3, v%d" % (adr, adr))
    a("v_lshlrev_b32 v%d, 5, v%d" % (adr, adr))
    a("v_add_u32 v%d, %d, v%d" % (adr, lds_cand, adr))
    a("ds_read_b128 %s, v%d" % (v(base, 4), adr))
    a("ds_read_b128 %s, v%d offset:16" % (v(base + 4, 4), adr))
    L = [base + i for i in range(8)]
    a("s_waitcnt lgkmcnt(0)")
    L = n.top8(L, "quad_perm:[1,0,3,2] row_mask:0xf")
    L = n.top8(L, "quad_perm:[2,3,0,1] row_mask:0xf")
    return L

def gen_topk(a):
    vLane = 1
    sWS, sDb = 24, 40
    sT0, sT1, sTag = 45, 46, 48
    T_CAND = 0
    srd(a, sWS, sWSP, WS_SIZE)
    srd(a, sDb, sDBG, 256)
    a("s_cmp_ge_u32 s%d, 4" % sWave)
    a("s_cbranch_scc1 L_tk_sync")
    get_nonce(a, "tk", sDb, 12, 13, sTag)
    stamp(a, 1)
    a("v_lshlrev_b32 v3, 4, v0")
    a("s_mov_b32 s98, 0")
    a.label("L_tk_poll")
    a("s_mov_b32 s%d, 0x%x" % (sT0, WS_REC))
    for q in range(8):
        a("buffer_load_dwordx2 %s, v3, s[%d:%d], s%d offen offset:8 sc1" % (v(96 + 2 * q, 2), sWS, sWS + 3, sT0))
        if q < 7:
            a("s_add_u32 s%d, s%d, 4096" % (sT0, sT0))
    a("s_add_u32 s98, s98, 1")
    a("s_waitcnt vmcnt(0)")
    for q in range(8):
        a("v_xor_b32 v%d, s%d, v%d" % (97 + 2 * q, sTag, 97 + 2 * q))
    a("v_or3_b32 v4, v97, v99, v101")
    a("v_or3_b32 v5, v103, v105, v107")
    a("v_or3_b32 v4, v4, v109, v111")
    a("v_or_b32 v4, v4, v5")
    a("v_cmp_ne_u32 vcc, 0, v4")
    a("s_cmp_gt_u32 s98, 0x40000")
    a("s_cbranch_scc1 L_tk_go")
    a("s_cmp_eq_u64 vcc, 0")
    a("s_cbranch_scc1 L_tk_go")
    a("s_sleep 2")
    a("s_branch L_tk_poll")
    a.label("L_tk_go")
    stamp(a, 3)
    top8_wave(a, [96 + 2 * q for q in range(8)], [97 + 2 * q for q in range(8)] + list(range(14, 24)) + [112, 113], sWave, T_CAND)
    a("s_waitcnt lgkmcnt(0)")
    a.label("L_tk_sync")
    a("s_barrier")
    stamp(a, 4)
    a("s_cmp_lg_u32 s%d, 0" % sWave)
    a("s_cbranch_scc1 L_tk_done")
    R = top8_final(a, list(range(96, 114)), T_CAND)
    vRes = 20
    a("v_mov_b32 v%d, v%d" % (vRes, R[0]))
    for jx in range(1, 8):
        a("v_cmp_eq_u32 vcc, %d, v%d" % (jx, vLane))
        a("s_nop 1")
        a("v_cndmask_b32 v%d, v%d, v%d, vcc" % (vRes, vRes, R[jx]))
    stamp(a, 5)
    a("v_and_b32 v8, 0xffff, v%d" % vRes)
    a("v_sub_u32 v8, 0xffff, v8")
    a("v_lshrrev_b32 v9, 16, v%d" % vRes)
    a("v_cmp_le_u32 vcc, 0x8000, v9")
    a("v_xor_b32 v10, 0x8000, v9")
    a("v_xor_b32 v11, 0xffff, v9")
    a("v_cndmask_b32 v9, v11, v10, vcc")
    a("v_lshlrev_b32 v9, 16, v9")
    a("v_mul_f32 v9, %s, v9" % fhex(-LOG2E))
    a("v_exp_f32 v9, v9")
    a("s_nop 0")
    a("v_add_f32 v9, 1.0, v9")
    a("v_rcp_f32 v9, v9")
    a("s_nop 0")
    bf16r(a, "v9", "v9")
    a("v_lshlrev_b32 v10, 2, v%d" % vLane)
    a("s_mov_b32 s%d, 0x%x" % (sT0, WS_SEL))
    a("s_mov_b32 exec_lo, 0xff")
    a("s_mov_b32 exec_hi, 0")
    a("buffer_store_dword v8, v10, s[%d:%d], s%d offen" % (sWS, sWS + 3, sT0))
    a("buffer_store_dword v9, v10, s[%d:%d], s%d offen offset:32" % (sWS, sWS + 3, sT0))
    a("s_mov_b64 exec, -1")
    a.label("L_tk_done")
    stamp_flush(a, 0, sWS, sWave)
    a("s_endpgm")

def gen_codepf(a):
    a("s_cmp_ge_u32 s%d, 4" % sWave)
    a("s_cbranch_scc1 L_k1_end")
    a("s_getpc_b64 s[40:41]")
    a.label("L_k1_anchor")
    a("s_mov_b32 s42, L_code_end-L_k1_anchor")
    a("s_mov_b32 s43, 0x20000")
    a("s_lshl_b32 s44, s%d, 13" % sWave)
    a("v_lshlrev_b32 v3, 7, v1")
    a("v_add_u32 v3, s44, v3")
    a("buffer_load_dword v4, v3, s[40:43], 0 offen")
    a("s_endpgm")

def gen_tlb(a):
    step = opt("PF_TLB")
    a("s_load_dwordx2 s[40:41], s[0:1], 16")
    a("s_load_dwordx2 s[42:43], s[0:1], 64")
    a("v_mul_u32_u24 v3, %d, v1" % 1)
    a("v_lshlrev_b32 v3, %d, v1" % (step.bit_length() - 1))
    a("s_waitcnt lgkmcnt(0)")
    r = 16
    for (ptr, nbytes) in ((sWGP, 512 * 3584), (sWUP, 512 * 3584), (sWDP, 1792 * 1024), (40, 512 * 1024), (42, 2048 * 1024), (sWSP, WS_SIZE)):
        srd(a, 32, ptr, nbytes)
        a("s_mul_i32 s44, s%d, %d" % (sWave, 64 * step))
        a("v_add_u32 v4, s44, v3")
        a("buffer_load_dword v%d, v4, s[32:35], 0 offen" % r); r += 1
    a("s_endpgm")

def gen_touch(a):
    sB = 32
    c0 = opt("PF_C0", 1)
    n = 24 * (8 - c0)
    srd(a, sB, sWP, 512 * 3072)
    a("s_sub_u32 s46, s2, 33")
    a("s_lshl_b32 s46, s46, 3")
    a("s_add_u32 s46, s46, s%d" % sWave)
    a("s_cmp_ge_u32 s46, %d" % n)
    a("s_cbranch_scc1 L_pf_part")
    a("v_lshlrev_b32 v11, 7, v1")
    a("s_lshl_b32 s49, s46, 13")
    a("s_add_u32 s49, s49, %d" % (c0 * 196608))
    a("buffer_load_dword v40, v11, s[%d:%d], s49 offen" % (sB, sB + 3))
    a.label("L_pf_part")
    if opt("PF_PART", 0):
        a("s_sub_u32 s46, 247, s46")
        a("s_cmp_ge_u32 s46, 112")
        a("s_cbranch_scc1 L_pf_end")
        srd(a, sB, sWSP, WS_SIZE)
        a("v_lshlrev_b32 v11, 6, v1")
        a("s_lshl_b32 s49, s46, 12")
        a("s_add_u32 s49, s49, 0x%x" % WS_PART)
        a("buffer_load_dword v41, v11, s[%d:%d], s49 offen" % (sB, sB + 3))
    a.label("L_pf_end")
    a("s_endpgm")

def gen_gemm(a):
    QST = " sc1" if opt("ST_QKV_SC1", 1) else ""
    vLane = 1
    sX, sW, sWS, sDb = 24, 28, 32, 36
    sRb, sCb, sT0, sT1, sC, sSlot = 40, 41, 42, 43, 44, 45
    a("s_sub_u32 s%d, s2, 64" % sT0)
    a("s_and_b32 s%d, s%d, 7" % (sT1, sT0))
    a("s_lshr_b32 s%d, s%d, 3" % (sT0, sT0))
    a("s_lshr_b32 s%d, s%d, 1" % (sRb, sT1))
    a("s_lshl_b32 s%d, s%d, 2" % (sRb, sRb))
    a("s_and_b32 s46, s%d, 3" % sT0)
    a("s_add_u32 s%d, s%d, s46" % (sRb, sRb))
    a("s_and_b32 s%d, s%d, 1" % (sCb, sT1))
    a("s_mul_i32 s%d, s%d, 6" % (sCb, sCb))
    a("s_lshr_b32 s%d, s%d, 2" % (sT0, sT0))
    a("s_add_u32 s%d, s%d, s%d" % (sCb, sCb, sT0))
    srd(a, sWS, sWSP, WS_SIZE)
    a("s_cmp_ge_u32 s%d, 4" % sWave)
    a("s_cbranch_scc0 L_g_cons")
    vXa, vXb, vW = 10, 11, 12
    sLw, sXg, sXg2, sWg, sL4 = 46, 47, 48, 49, 50
    srd(a, sX, sXP, 2048 * 1024)
    srd(a, sW, sWP, 512 * 3072)
    a("s_sub_u32 s%d, s%d, 4" % (sLw, sWave))
    a("v_lshrrev_b32 v2, 3, v%d" % vLane)
    a("v_and_b32 v3, 7, v%d" % vLane)
    a("v_lshrrev_b32 v4, 1, v2")
    a("v_xor_b32 v3, v3, v4")
    a("v_xor_b32 v4, 4, v3")
    a("v_lshlrev_b32 v2, 10, v2")
    a("v_lshl_add_u32 v%d, v3, 4, v2" % vXa)
    a("v_lshl_add_u32 v%d, v4, 4, v2" % vXb)
    a("v_add_u32 v%d, 0x2000, v%d" % (vXb, vXb))
    a("v_lshrrev_b32 v2, 4, v%d" % vLane)
    a("v_bfe_u32 v3, v%d, 2, 2" % vLane)
    a("v_xor_b32 v3, v3, v2")
    a("v_and_b32 v4, 3, v%d" % vLane)
    a("v_lshl_add_u32 v3, v3, 2, v4")
    a("v_mul_u32_u24 v2, 0xc00, v2")
    a("v_lshl_add_u32 v%d, v3, 4, v2" % vW)
    for i in range(1, 4):
        a("v_add_u32 v%d, %d, v%d" % (vW + i, i * 12288, vW))
    a("s_lshl_b32 s%d, s%d, 17" % (sXg, sRb))
    a("s_lshl_b32 s%d, s%d, 15" % (sT0, sLw))
    a("s_add_u32 s%d, s%d, s%d" % (sXg, sXg, sT0))
    a("s_mul_i32 s%d, s%d, %d" % (sWg, sLw, 16 * 3072))
    a("s_lshl_b32 s%d, s%d, 8" % (sT0, sCb))
    a("s_add_u32 s%d, s%d, s%d" % (sWg, sWg, sT0))
    a("s_lshl_b32 s%d, s%d, 12" % (sL4, sLw))
    a("s_mov_b32 s%d, 0" % sSlot)
    def issue():
        a("s_add_u32 s%d, s%d, 0x4000" % (sXg2, sXg))
        a("s_add_u32 m0, s%d, s%d" % (sSlot, sL4))
        a("s_nop 0")
        for i in range(4):
            a("buffer_load_dwordx4 v%d, s[%d:%d], s%d offen%s lds" % (vXa if i % 2 == 0 else vXb, sX, sX + 3, sXg if i < 2 else sXg2, " nt" if opt("NT_X") else ""))
            a("s_add_u32 m0, m0, %d" % (1024 if i < 3 else 13312))
            a("s_nop 0")
        for i in range(4):
            a("buffer_load_dwordx4 v%d, s[%d:%d], s%d offen%s lds" % (vW + i, sW, sW + 3, sWg, " nt" if opt("NT_W") else ""))
            if i < 3:
                a("s_add_u32 m0, m0, 1024")
                a("s_nop 0")
        a("s_add_u32 s%d, s%d, 128" % (sXg, sXg))
        a("s_add_u32 s%d, s%d, %d" % (sWg, sWg, 64 * 3072))
        a("s_add_u32 s%d, s%d, 0x8000" % (sSlot, sSlot))
        a("s_and_b32 s%d, s%d, 0x1ffff" % (sSlot, sSlot))
    a("s_mov_b32 s%d, 0" % sC)
    a.label("L_g_lpro")
    issue()
    a("s_add_u32 s%d, s%d, 1" % (sC, sC))
    a("s_cmp_lt_u32 s%d, 2" % sC)
    a("s_cbranch_scc1 L_g_lpro")
    stamp(a, 1)
    DEEP = opt("DEEP", 0)
    if DEEP:
        a("s_waitcnt vmcnt(8)")
        stamp(a, 10)
        a("s_barrier")
        issue()
        issue()
        a("s_mov_b32 s%d, 1" % sC)
        a.label("L_g_lloop")
        a("s_waitcnt vmcnt(16)")
        stamp(a, "s%d+10" % sC)
        a("s_barrier")
        issue()
        a("s_add_u32 s%d, s%d, 1" % (sC, sC))
        a("s_cmp_lt_u32 s%d, 3" % sC)
        a("s_cbranch_scc1 L_g_lloop")
    else:
        a("s_mov_b32 s%d, 0" % sC)
        a.label("L_g_lloop")
        a("s_waitcnt vmcnt(8)")
        stamp(a, "s%d+10" % sC)
        a("s_barrier")
        issue()
        a("s_add_u32 s%d, s%d, 1" % (sC, sC))
        a("s_cmp_lt_u32 s%d, 4" % sC)
        a("s_cbranch_scc1 L_g_lloop")
    if opt("PF_MOE", 1):
        a("s_load_dwordx2 s[58:59], s[0:1], 16")
        a("s_sub_u32 s60, s2, 64")
        a("s_and_b32 s62, s60, 7")
        a("s_lshr_b32 s60, s60, 3")
        a("s_lshl_b32 s60, s60, 2")
        a("s_add_u32 s60, s60, s%d" % sLw)
        a("s_mul_i32 s61, s60, 2731")
        a("s_lshr_b32 s61, s61, 16")
        a("s_mul_i32 s63, s61, 24")
        a("s_sub_u32 s63, s60, s63")
        a("s_lshl_b32 s61, s61, 3")
        a("s_add_u32 s61, s61, s62")
        a("s_waitcnt lgkmcnt(0)")
        a("v_mul_u32_u24 v20, 0xe00, v%d" % vLane)
        a("v_lshlrev_b32 v22, 7, v%d" % vLane)
        a("s_mov_b32 s64, s%d" % sWGP); a("s_mov_b32 s65, s%d" % (sWGP + 1))
        a("s_mov_b32 s66, %d" % (512 * 3584)); a("s_mov_b32 s67, 0x20000")
        a("s_cmp_ge_u32 s63, 8")
        a("s_cselect_b32 s64, s%d, s64" % sWUP); a("s_cselect_b32 s65, s%d, s65" % (sWUP + 1))
        a("s_and_b32 s68, s63, 7")
        a("s_mul_i32 s69, s68, %d" % (64 * 3584))
        a("s_lshl_b32 s70, s61, 7")
        a("s_add_u32 s69, s69, s70")
        a("s_cmp_ge_u32 s63, 16")
        a("s_cbranch_scc0 L_g_pfa")
        a("s_mov_b32 s64, s%d" % sWDP); a("s_mov_b32 s65, s%d" % (sWDP + 1))
        a("s_lshl_b32 s69, s61, 16")
        a("s_lshl_b32 s70, s68, 13")
        a("s_add_u32 s69, s69, s70")
        a("v_mov_b32 v20, v22")
        a.label("L_g_pfa")
        a("s_cmp_ge_u32 s61, 28")
        a("s_cbranch_scc0 L_g_pfb")
        a("s_mov_b32 s64, s58"); a("s_mov_b32 s65, s59"); a("s_mov_b32 s66, %d" % (512 * 1024))
        a("s_sub_u32 s69, s62, 4")
        a("s_lshl_b32 s69, s69, 4")
        a("s_and_b32 s70, s63, 15")
        a("s_add_u32 s69, s69, s70")
        a("s_lshl_b32 s69, s69, 13")
        a("v_mov_b32 v20, v22")
        a.label("L_g_pfb")
        a("s_mov_b32 s61, s69")
    PFN = 1 if opt("PF_MOE", 1) else 0
    srd(a, sDb, sDBG, 256)
    a("v_mov_b32 v4, 0")
    a("s_lshl_b32 s%d, s%d, 11" % (sT0, sRb))
    a("s_add_u32 s51, s%d, 0x%x" % (sT0, WS_REC))
    a("v_and_b32 v7, 31, v%d" % vLane)
    a("s_lshl_b32 s%d, s%d, 9" % (sT0, sLw))
    a("v_lshl_add_u32 v6, v7, 4, s%d" % sT0)
    a("s_lshl_b32 s%d, s%d, 7" % (sT0, sLw))
    a("s_add_u32 s%d, s%d, %d" % (sT0, sT0, G_ST))
    a("v_lshl_add_u32 v7, v7, 2, s%d" % sT0)
    def check_records():
        a("v_readfirstlane_b32 s52, v5")
        a("s_nop 3")
        a("s_cmp_lg_u32 s52, 0")
        a("s_cbranch_scc1 L_g_nonok")
        get_nonce(a, "g", sDb, 5, 4, 52)
        a.label("L_g_nonok")
        a("s_mov_b32 s98, 0")
        a.label("L_g_rec")
        a("v_cmp_ne_u32 vcc, s52, v19")
        a("s_cmp_gt_u32 s98, 0x40000")
        a("s_cbranch_scc1 L_g_recok")
        a("s_cmp_eq_u64 vcc, 0")
        a("s_cbranch_scc1 L_g_recok")
        a("s_sleep 4")
        a("buffer_load_dwordx4 v[16:19], v6, s[%d:%d], s51 offen sc1" % (sWS, sWS + 3))
        a("s_add_u32 s98, s98, 1")
        a("s_waitcnt vmcnt(0)")
        a("s_branch L_g_rec")
        a.label("L_g_recok")
        a("ds_write_b32 v7, v16")
        a("ds_write_b32 v7, v17 offset:512")
    if DEEP:
        a("s_waitcnt vmcnt(16)")
        a("s_barrier")
        a("buffer_load_dword v5, v4, s[%d:%d], 0 offen sc1" % (sDb, sDb + 3))
        issue()
        a("s_waitcnt vmcnt(17)")
        a("s_barrier")
        issue()
        a("s_waitcnt vmcnt(17)")
        a("s_barrier")
        a("buffer_load_dwordx4 v[16:19], v6, s[%d:%d], s51 offen sc1" % (sWS, sWS + 3))
        if PFN:
            a("buffer_load_dword v21, v20, s[64:67], s61 offen")
        a("s_waitcnt vmcnt(%d)" % (9 + PFN))
        a("s_barrier")
        a("s_waitcnt vmcnt(%d)" % PFN)
        check_records()
        a("s_waitcnt lgkmcnt(0)")
        a("s_barrier")
    else:
        a("s_waitcnt vmcnt(8)")
        a("s_barrier")
        a("buffer_load_dword v5, v4, s[%d:%d], 0 offen sc1" % (sDb, sDb + 3))
        issue()
        a("s_waitcnt vmcnt(8)")
        a("s_barrier")
        a("buffer_load_dwordx4 v[16:19], v6, s[%d:%d], s51 offen sc1" % (sWS, sWS + 3))
        issue()
        if PFN:
            a("buffer_load_dword v21, v20, s[64:67], s61 offen")
        a("s_waitcnt vmcnt(%d)" % (8 + PFN))
        check_records()
        a("s_barrier")
        a("s_waitcnt vmcnt(%d) lgkmcnt(0)" % PFN)
        a("s_barrier")
    stamp_flush(a, 0, sWS, sWave)
    a("s_endpgm")
    a.label("L_g_cons")
    vXr = [4, 5, 6, 7]
    vWr = [8, 9]
    acc = [[64, 80], [96, 112]]
    XB = [[128, 132], [136, 140]]
    WB = [[144, 148], [152, 156]]
    NM, CSF = [160, 164], [168, 172]
    SEL, CSA = 176, [180, 184]
    sMt, sNt, sHi = 46, 47, 48
    a("s_and_b32 s%d, s%d, 1" % (sMt, sWave))
    a("s_lshr_b32 s%d, s%d, 1" % (sNt, sWave))
    a("v_and_b32 v2, 31, v%d" % vLane)
    a("v_lshrrev_b32 v3, 5, v%d" % vLane)
    a("v_cmp_eq_u32 s[%d:%d], 1, v3" % (sHi, sHi + 1))
    a("v_lshrrev_b32 v10, 1, v2")
    a("v_and_b32 v10, 7, v10")
    a("s_lshl_b32 s%d, s%d, 13" % (sT0, sMt))
    a("v_lshl_add_u32 v11, v2, 7, s%d" % sT0)
    for p in range(4):
        a("v_add_u32 v12, %d, v3" % (2 * p))
        a("v_xor_b32 v12, v12, v10")
        a("v_lshl_add_u32 v%d, v12, 4, v11" % vXr[p])
    a("v_bfe_u32 v12, v%d, 2, 2" % vLane)
    a("v_lshl_add_u32 v13, v3, 3, v12")
    a("v_lshlrev_b32 v13, 8, v13")
    a("v_bfe_u32 v14, v%d, 4, 1" % vLane)
    a("v_lshl_add_u32 v13, v14, 5, v13")
    a("v_and_b32 v14, 3, v%d" % vLane)
    a("v_lshl_add_u32 v13, v14, 3, v13")
    a("v_add_u32 v13, 0x4000, v13")
    a("s_lshl_b32 s%d, s%d, 1" % (sT0, sNt))
    a("v_xor_b32 v14, s%d, v12" % sT0)
    a("v_lshl_add_u32 v%d, v14, 6, v13" % vWr[0])
    a("v_xor_b32 v%d, 64, v%d" % (vWr[1], vWr[0]))
    for r in range(64, 128):
        a("v_mov_b32 v%d, 0" % r)
    for r in list(range(136, 144)) + list(range(152, 176)) + list(range(180, 188)):
        a("v_mov_b32 v%d, 0" % r)
    a("v_bfe_u32 v12, v%d, 4, 1" % vLane)
    a("v_and_b32 v13, 1, v%d" % vLane)
    a("v_cmp_eq_u32 vcc, v12, v13")
    a("v_cmp_eq_u32 s[56:57], 1, v12")
    a("v_mov_b32 v14, 0x3f803f80")
    a("v_cndmask_b32 v%d, 0, v14, vcc" % SEL)
    for i in range(1, 4):
        a("v_mov_b32 v%d, v%d" % (SEL + i, SEL))
    def csum(buf, n):
        a("v_mfma_f32_16x16x32_bf16 %s, %s, %s, %s" % (v(CSA[n], 4), v(SEL, 4), v(WB[buf][n], 4), v(CSA[n], 4)))
    def xread(p, buf, m):
        a("ds_read_b128 %s, v%d offset:%d" % (v(XB[buf][m], 4), vXr[p], m * 4096))
    def wread(p, buf, n, t):
        a("ds_read_b64_tr_b16 %s, v%d offset:%d" % (v(WB[buf][n] + 2 * t, 2), vWr[n], p * 4096 + t * 1024))
    def mm(kind, buf, m, n):
        if kind == 0:
            a("v_mfma_f32_32x32x16_bf16 %s, %s, %s, %s" % (v(acc[m][n], 16), v(WB[buf][n], 4), v(XB[buf][m], 4), v(acc[m][n], 16)))
        else:
            a("v_mfma_f32_32x32x16_bf16 %s, %s, %s, %s" % (v(acc[m][n], 16), v(XB[buf][m], 4), v(WB[buf][n], 4), v(acc[m][n], 16)))
    def step(kind, cur, p, filler=None):
        nxt = cur ^ 1
        a("s_waitcnt lgkmcnt(3)")
        mm(kind, cur, 0, 0)
        xread(p, nxt, 0); wread(p, nxt, 0, 0); wread(p, nxt, 0, 1)
        csum(cur, 0)
        a("s_waitcnt lgkmcnt(4)")
        mm(kind, cur, 0, 1)
        wread(p, nxt, 1, 0); wread(p, nxt, 1, 1); xread(p, nxt, 1)
        csum(cur, 1)
        a("s_waitcnt lgkmcnt(6)")
        mm(kind, cur, 1, 0)
        if filler: filler(0)
        mm(kind, cur, 1, 1)
        if filler: filler(1)
    def adv(h):
        regs = (vXr + vWr)[3 * h:3 * h + 3]
        for r in regs:
            a("v_add_u32 v%d, 0x8000, v%d" % (r, r))
        for r in regs:
            a("v_and_b32 v%d, 0x1ffff, v%d" % (r, r))
    def main_loop(kind, tag):
        a("s_mov_b32 s%d, 0" % sC)
        a.label("L_g_loop%s" % tag)
        a("s_waitcnt lgkmcnt(0)")
        a("s_barrier")
        stamp(a, "s%d+10" % sC)
        step(kind, 1, 0)
        step(kind, 0, 1)
        step(kind, 1, 2)
        step(kind, 0, 3, adv)
        a("s_add_u32 s%d, s%d, 1" % (sC, sC))
        a("s_cmp_lt_u32 s%d, 8" % sC)
        a("s_cbranch_scc1 L_g_loop%s" % tag)
        stamp(a, 20)
    vM, vRs, vCs = [10, 11], [12, 14], [16, 17]
    def stat_reads(kind):
        a("v_lshlrev_b32 v18, 2, v2")
        a("s_lshl_b32 s%d, s%d, 8" % (sT0, sMt))
        a("s_add_u32 s%d, s%d, %d" % (sT0, sT0, G_ST))
        a("v_add_u32 v19, s%d, v18" % sT0)
        for m in range(2):
            a("ds_read_b32 v%d, v19 offset:%d" % (vM[m], m * 128))
        if kind == 0:
            for m in range(2):
                a("ds_read_b32 v%d, v19 offset:%d" % (vRs[m], 512 + m * 128))
        else:
            a("v_lshl_add_u32 v19, v3, 4, s%d" % sT0)
            for m in range(2):
                for j in range(4):
                    a("ds_read_b128 %s, v19 offset:%d" % (v(24 + 16 * m + 4 * j, 4), 512 + m * 128 + j * 32))
    def last_step(kind):
        a("s_waitcnt lgkmcnt(%d)" % (4 if kind == 0 else 10))
        csum(1, 0)
        csum(1, 1)
        for m in range(2):
            for n in range(2):
                mm(kind, 1, m, n)
    def correction(kind, nwait):
        a("s_waitcnt lgkmcnt(%d)" % nwait)
        for m in range(2):
            a("v_sub_f32 v20, 0, v%d" % vM[m])
            a("v_cvt_pk_bf16_f32 v%d, v20, 0" % NM[m])
        for n in range(2):
            a("v_cndmask_b32 v%d, v%d, v%d, s[56:57]" % (vCs[n], CSA[n], CSA[n] + 1))
        for n in range(2):
            a("v_cvt_pk_bf16_f32 v20, v%d, v%d" % (vCs[n], vCs[n]))
            a("v_and_b32 v20, 0xffff0000, v20")
            a("v_sub_f32 v20, v%d, v20" % vCs[n])
            a("v_cndmask_b32 v20, v%d, v20, s[%d:%d]" % (vCs[n], sHi, sHi + 1))
            a("v_cvt_pk_bf16_f32 v%d, v20, 0" % CSF[n])
        a("s_nop 1")
        for m in range(2):
            for n in range(2):
                if kind == 0:
                    a("v_mfma_f32_32x32x16_bf16 %s, %s, %s, %s" % (v(acc[m][n], 16), v(CSF[n], 4), v(NM[m], 4), v(acc[m][n], 16)))
                else:
                    a("v_mfma_f32_32x32x16_bf16 %s, %s, %s, %s" % (v(acc[m][n], 16), v(NM[m], 4), v(CSF[n], 4), v(acc[m][n], 16)))
    def store_bases():
        a("s_and_b32 s%d, s%d, 3" % (sT0, sCb))
        a("s_lshl_b32 s%d, s%d, 3" % (sT0, sT0))
        a("s_lshl_b32 s%d, s%d, 2" % (sT1, sNt))
        a("s_add_u32 s%d, s%d, s%d" % (sT0, sT0, sT1))
        a("s_lshl_b32 s%d, s%d, 16" % (sT0, sT0))
        a("s_lshl_b32 s%d, s%d, 2" % (sT1, sRb))
        a("s_lshl_b32 s50, s%d, 1" % sMt)
        a("s_add_u32 s%d, s%d, s50" % (sT1, sT1))
        a("s_lshl_b32 s%d, s%d, 10" % (sT1, sT1))
        a("s_add_u32 s50, s%d, s%d" % (sT0, sT1))
        a("s_lshr_b32 s%d, s%d, 2" % (sT0, sCb))
        a("s_lshl_b32 s%d, s%d, 21" % (sT0, sT0))
        a("s_add_u32 s50, s50, s%d" % sT0)
    a("s_cmp_ge_u32 s%d, 8" % sCb)
    a("s_cbranch_scc1 L_g_v")
    main_loop(0, "q")
    stat_reads(0)
    last_step(0)
    store_bases()
    correction(0, 2)
    a("s_cmp_lt_u32 s%d, 4" % sCb)
    a("s_cselect_b32 s51, %s, 1.0" % fhex(QSCALE))
    a("v_lshlrev_b32 v21, 4, v%d" % vLane)
    a("s_waitcnt lgkmcnt(0)")
    for m in range(2):
        a("v_mul_f32 v%d, s51, v%d" % (vRs[m], vRs[m]))
    a("s_nop 4")
    for m in range(2):
        for n in range(2):
            A = acc[m][n]
            P = XB[0][0] + 8 * ((2 * m + n) % 2)
            for i in range(8):
                a("v_pk_mul_f32 %s, %s, %s op_sel_hi:[1,0]" % (v(A + 2 * i, 2), v(A + 2 * i, 2), v(vRs[m], 2)))
            for i in range(8):
                a("v_cvt_pk_bf16_f32 v%d, v%d, v%d" % (A + i, A + 2 * i, A + 2 * i + 1))
            a("s_add_u32 s52, s50, %d" % (m * 1024 + n * 0x20000))
            a("s_add_u32 s53, s52, 0x10000")
            a("buffer_store_dwordx4 %s, v21, s[%d:%d], s52 offen%s" % (v(A, 4), sWS, sWS + 3, QST))
            a("buffer_store_dwordx4 %s, v21, s[%d:%d], s53 offen%s" % (v(A + 4, 4), sWS, sWS + 3, QST))
    a("s_branch L_g_fin")
    a.label("L_g_v")
    main_loop(1, "v")
    stat_reads(1)
    last_step(1)
    store_bases()
    correction(1, 8)
    a("v_bfe_u32 v21, v%d, 4, 1" % vLane)
    a("v_lshlrev_b32 v21, 16, v21")
    a("v_lshl_add_u32 v21, v3, 8, v21")
    a("v_and_b32 v22, 15, v%d" % vLane)
    a("v_lshl_add_u32 v21, v22, 4, v21")
    a("s_waitcnt lgkmcnt(0)")
    a("s_nop 4")
    for m in range(2):
        for n in range(2):
            A = acc[m][n]
            for i in range(8):
                a("v_pk_mul_f32 %s, %s, %s" % (v(A + 2 * i, 2), v(A + 2 * i, 2), v(24 + 16 * m + 2 * i, 2)))
            for i in range(8):
                a("v_cvt_pk_bf16_f32 v%d, v%d, v%d" % (A + i, A + 2 * i, A + 2 * i + 1))
            a("s_add_u32 s52, s50, %d" % (m * 1024 + n * 0x20000))
            a("buffer_store_dwordx4 %s, v21, s[%d:%d], s52 offen%s" % (v(A, 4), sWS, sWS + 3, QST))
            a("buffer_store_dwordx4 %s, v21, s[%d:%d], s52 offen offset:512%s" % (v(A + 4, 4), sWS, sWS + 3, QST))
    a.label("L_g_fin")
    stamp(a, 21)
    stamp_flush(a, 0, sWS, sWave)
    a("s_endpgm")

def gen_k1():
    a = Asm()
    N = "k1_kernel"
    a(kernel_head(N))
    a("s_cmp_ge_u32 s2, %d" % K1_GRID)
    a("s_cbranch_scc1 L_k1_end")
    stamp_begin(a, 255)
    a("s_load_dwordx4 s[4:7], s[0:1], 0")
    a("s_load_dwordx8 s[12:19], s[0:1], 32")
    a("s_load_dwordx4 s[20:23], s[0:1], 72")
    a("v_lshrrev_b32 v2, 6, v0")
    a("v_and_b32 v1, 63, v0")
    a("v_readfirstlane_b32 s%d, v2" % sWave)
    if opt("PF_CODE", 1):
        a("s_cmp_ge_u32 s2, 8")
        a("s_cbranch_scc1 L_k1_nocode")
        a("s_cmp_lt_u32 s%d, 4" % sWave)
        a("s_cbranch_scc1 L_k1_nocode")
        a("s_getpc_b64 s[40:41]")
        a.label("L_k1_anchor")
        a("s_mov_b32 s42, L_code_end-L_k1_anchor")
        a("s_mov_b32 s43, 0x20000")
        a("s_sub_u32 s44, s%d, 4" % sWave)
        a("s_lshl_b32 s44, s44, 13")
        a("v_lshlrev_b32 v3, 7, v1")
        a("v_add_u32 v3, s44, v3")
        a("buffer_load_dword v250, v3, s[40:43], 0 offen") if PROF else a("buffer_load_dword v191, v3, s[40:43], 0 offen")
        a.label("L_k1_nocode")
    a("s_cmp_lt_u32 s2, 64")
    a("s_cbranch_scc1 L_k1_aux")
    a("s_waitcnt lgkmcnt(0)")
    ws_adjust(a, sWSP)
    gen_gemm(a)
    a.label("L_k1_aux")
    a("s_waitcnt lgkmcnt(0)")
    ws_adjust(a, sWSP)
    a("s_or_b32 s24, s2, s%d" % sWave)
    a("s_cmp_lg_u32 s24, 0")
    a("s_cbranch_scc1 L_k1_non")
    a("s_memrealtime s[60:61]")
    srd(a, 24, sDBG, 256)
    a("v_mov_b32 v3, 0")
    a("s_waitcnt lgkmcnt(0)")
    a("s_or_b32 s60, s60, 1")
    a("v_mov_b32 v4, s60")
    a("s_mov_b32 exec_lo, 1")
    a("s_mov_b32 exec_hi, 0")
    a("buffer_store_dword v4, v3, s[24:27], 0 offen sc1")
    a("s_mov_b64 exec, -1")
    a.label("L_k1_non")
    a("s_cmp_gt_u32 s2, 32")
    a("s_cbranch_scc1 %s" % ("L_k1_touch" if opt("PF_IN", 1) else "L_k1_end"))
    a("s_cmp_eq_u32 s2, 32")
    a("s_cbranch_scc1 L_k1_topk")
    gen_e(a)
    a.label("L_k1_topk")
    gen_topk(a)
    if opt("PF_IN", 1):
        a.label("L_k1_touch")
        gen_touch(a)
    a.label("L_k1_end")
    a("s_endpgm")
    return a.text(), (256 if PROF else 192)
```

```python
from dsl import *
from k1 import *

K2_GRID = 256
M_W = 32768
M_CNT = 8160
M_HS = 4224
M_GU = 5248
M_GUD = 20736 - 5248

K2_LDS = 163840
NEGBIG = 0xf149f2ca
LOG2E = 1.4426950408889634

def gen_attn(a):
    vLane = 1
    vK, vV, mx0, mx1, vT0, vT1, vZ, vOff = 2, 3, 4, 5, 6, 7, 8, 9
    SA, SB, CB, O, P, mA = 16, 32, 48, 64, 80, 88
    KF, VF, V0F, QF = 96, 100, 108, 116
    sWS = 8
    sH, sQb, sWid, sT, sBase, sTs, sN = 20, 21, 22, 23, 24, 25, 26
    sW = 19
    sT0, sT1 = 27, 28
    sVM = 30
    sCond = 40
    a("s_sub_u32 s%d, 11, s%d" % (sW, sWid))
    a("s_cmp_lt_u32 s%d, 4" % sWid)
    a("s_cselect_b32 s%d, s%d, s%d" % (sW, sWid, sW))
    a("s_and_b32 s%d, s2, 7" % sH)
    a("s_bfe_u32 s%d, s2, 0x20003" % sT0)
    a("s_lshl_b32 s%d, s%d, 3" % (sT0, sT0))
    a("s_add_u32 s%d, s%d, s%d" % (sH, sH, sT0))
    a("s_lshr_b32 s%d, s2, 5" % sQb)
    a("v_lshlrev_b32 v%d, 4, v%d" % (vOff, vLane))
    a("s_lshl_b32 s%d, s%d, 3" % (sT, sQb))
    a("s_add_u32 s%d, s%d, s%d" % (sT, sT, sW))
    a("s_lshl_b32 s%d, s%d, 6" % (sBase, sH))
    a("s_add_u32 s%d, s%d, s%d" % (sBase, sBase, sT))
    a("s_lshl_b32 s%d, s%d, 10" % (sBase, sBase))
    a("s_lshl_b32 s%d, s%d, 10" % (sT1, sW))
    a("s_waitcnt lgkmcnt(0)")
    stamp(a, 1)
    ws_adjust(a, 6)
    srd(a, sWS, 6, WS_SIZE)
    a("s_add_u32 s%d, s%d, 0x%x" % (sT0, sBase, WS_KF))
    a("s_add_u32 m0, s%d, 8192" % sT1)
    a("s_nop 0")
    a("buffer_load_dwordx4 v%d, s[%d:%d], s%d offen lds" % (vOff, sWS, sWS + 3, sT0))
    a("s_add_u32 s%d, s%d, 0x%x" % (sT0, sBase, WS_QF))
    a("buffer_load_dwordx4 %s, v%d, s[%d:%d], s%d offen" % (v(QF, 4), vOff, sWS, sWS + 3, sT0))
    a("s_cmp_eq_u32 s%d, 0" % sQb)
    a("s_cbranch_scc1 L_at_noprev")
    a("s_add_u32 s%d, s%d, 0x%x" % (sT0, sBase, WS_KF - 8192))
    a("s_mov_b32 m0, s%d" % sT1)
    a("s_nop 0")
    a("buffer_load_dwordx4 v%d, s[%d:%d], s%d offen lds" % (vOff, sWS, sWS + 3, sT0))
    a("s_add_u32 s%d, s%d, 0x%x" % (sT0, sBase, WS_VF - 8192))
    a("s_add_u32 m0, s%d, 16384" % sT1)
    a("s_nop 0")
    a("buffer_load_dwordx4 v%d, s[%d:%d], s%d offen lds" % (vOff, sWS, sWS + 3, sT0))
    a.label("L_at_noprev")
    a("s_add_u32 s%d, s%d, 0x%x" % (sT0, sBase, WS_VF))
    a("s_add_u32 m0, s%d, %d" % (sT1, 16384 + 8192))
    a("s_nop 0")
    a("buffer_load_dwordx4 v%d, s[%d:%d], s%d offen lds" % (vOff, sWS, sWS + 3, sT0))
    a("s_cmp_ge_u32 s2, %d" % NSLICE)
    a("s_cbranch_scc1 L_at_iss")
    lds_arrive(a, M_CNT + 12, 10, 11)
    a.label("L_at_iss")
    a("v_and_b32 v%d, 31, v%d" % (vT0, vLane))
    a("v_lshrrev_b32 v%d, 5, v%d" % (vT1, vLane))
    a("v_lshlrev_b32 v%d, 2, v%d" % (vZ, vT1))
    a("v_sub_u32 v%d, v%d, v%d" % (vZ, vT0, vZ))
    for r in range(16):
        a("v_cmp_gt_i32 s[%d:%d], %d, v%d" % (sCond + 2 * r, sCond + 2 * r + 1, 8 * (r >> 2) + (r & 3), vZ))
    a("v_mov_b32 v10, 0xffff")
    a("v_mov_b32 v11, 0xffff0000")
    for j in range(8):
        a("v_cndmask_b32 v%d, 0, v10, s[%d:%d]" % (mA + j, sCond + 4 * j, sCond + 4 * j + 1))
        a("v_cndmask_b32 v12, 0, v11, s[%d:%d]" % (sCond + 4 * j + 2, sCond + 4 * j + 3))
        a("v_or_b32 v%d, v%d, v12" % (mA + j, mA + j))
    a("v_mov_b32 v10, 0x3f803f80")
    for r in range(16):
        a("v_mov_b32 v%d, v10" % (VF + r))
    for r in range(16):
        a("v_mov_b32 v%d, 0" % (O + r))
    a("s_mov_b32 s%d, 0xffff" % sVM)
    a("s_mov_b32 s%d, 0xffff" % (sVM + 1))
    a("s_sub_u32 s%d, 8, s%d" % (sTs, sW))
    a("s_cmp_eq_u32 s%d, 0" % sQb)
    a("s_cselect_b32 s%d, s%d, 1" % (sTs, sTs))
    a("v_add_u32 v%d, s%d, v%d" % (vK, sT1, vOff))
    a("v_and_b32 v%d, 15, v%d" % (vV, vLane))
    a("v_lshlrev_b32 v%d, 4, v%d" % (vV, vV))
    a("v_lshl_add_u32 v%d, v%d, 8, v%d" % (vV, vT1, vV))
    a("s_add_u32 s%d, s%d, 16384" % (sT0, sT1))
    a("v_add_u32 v%d, s%d, v%d" % (vV, sT0, vV))
    a("s_lshl_b32 s%d, s%d, 10" % (sT0, sTs))
    a("v_add_u32 v13, s%d, v%d" % (sT0, vK))
    a("v_add_u32 v14, s%d, v%d" % (sT0, vV))
    a("s_mov_b32 s29, s%d" % sT0)
    a("s_mov_b32 s37, 0")
    for r in range(16):
        a("v_mov_b32 v%d, 0" % (CB + r))
    a("s_cmp_eq_u32 s%d, 0" % sQb)
    a("s_cbranch_scc0 L_at_sa")
    for r in range(16):
        a("v_mov_b32 v%d, 0x%x" % (SA + r, NEGBIG))
    a.label("L_at_sa")
    stamp(a, 2)
    a("s_waitcnt vmcnt(0)")
    stamp(a, 3)
    a("s_cmp_ge_u32 s2, %d" % NSLICE)
    a("s_cbranch_scc1 L_at_plain")
    lds_sync(a, "at", M_CNT, 8, 10, 11)
    a("s_branch L_at_go")
    a.label("L_at_plain")
    a("s_barrier")
    a.label("L_at_go")
    stamp(a, 4)

    def mfma_s(dst, c):
        a("v_mfma_f32_32x32x16_bf16 %s, %s, %s, %s" % (v(dst, 16), v(KF, 4), v(QF, 4), c))
    def vread(dst, addr):
        a("s_mov_b64 exec, s[%d:%d]" % (sVM, sVM + 1))
        a("ds_read_b128 %s, v%d" % (v(dst, 4), addr))
        a("ds_read_b128 %s, v%d offset:512" % (v(dst + 4, 4), addr))
        a("s_mov_b64 exec, -1")
    def maxes():
        for i in range(8):
            m = mx0 if i % 2 == 0 else mx1
            a("v_max3_f32 v%d, v%d, v%d, v%d" % (m, m, SB + 2 * i, SB + 2 * i + 1))
    def sel():
        for r in range(16):
            a("v_cndmask_b32 v%d, v%d, v%d, s[%d:%d]" % (SB + r, SB + r, SA + r, sCond + 2 * r, sCond + 2 * r + 1))
    def exps():
        for r in range(16):
            a("v_exp_f32 v%d, v%d" % (SB + r, SB + r))
        for j in range(8):
            a("v_cvt_pk_bf16_f32 v%d, v%d, v%d" % (P + j, SB + 2 * j, SB + 2 * j + 1))
    def pv(vf, p):
        a("v_mfma_f32_32x32x16_bf16 %s, %s, %s, %s" % (v(O, 16), v(vf, 4), v(p, 4), v(O, 16)))
        a("v_mfma_f32_32x32x16_bf16 %s, %s, %s, %s" % (v(O, 16), v(vf + 4, 4), v(p + 4, 4), v(O, 16)))

    a("s_cmp_eq_u32 s%d, 0" % sQb)
    a("s_cbranch_scc1 L_at_f_no0")
    a("ds_read_b128 %s, v%d" % (v(KF, 4), vK))
    vread(V0F, vV)
    a("s_branch L_at_p2")
    a.label("L_at_f_no0")
    a("ds_read_b128 %s, v13" % v(KF, 4))
    a.label("L_at_p2")
    a("s_cmp_eq_u32 s%d, 0" % sQb)
    a("s_cbranch_scc1 L_at_p2_go")
    a("s_waitcnt lgkmcnt(0)")
    mfma_s(SA, v(CB, 16))
    a("ds_read_b128 %s, v13" % v(KF, 4))
    a.label("L_at_p2_go")
    a("s_sub_u32 s%d, 8, s%d" % (sN, sTs))
    a("s_cmp_eq_u32 s%d, 0" % sN)
    a("s_cbranch_scc1 L_at_p2_fin")
    a.label("L_at_p2_loop")
    vread(VF, 14)
    a("s_waitcnt lgkmcnt(2)")
    mfma_s(SB, v(CB, 16))
    a("v_add_u32 v13, 0x400, v13")
    a("v_add_u32 v14, 0x400, v14")
    a("ds_read_b128 %s, v13" % v(KF, 4))
    a("s_sub_u32 s%d, s%d, 1" % (sN, sN))
    a("s_nop 7")
    exps()
    a("s_waitcnt lgkmcnt(1)")
    pv(VF, P)
    a("s_cmp_lg_u32 s%d, 0" % sN)
    a("s_cbranch_scc1 L_at_p2_loop")
    a.label("L_at_p2_fin")
    vread(VF, 14)
    a("s_waitcnt lgkmcnt(2)")
    mfma_s(SB, v(CB, 16))
    a("s_nop 11")
    sel()
    exps()
    for j in range(8):
        a("v_and_b32 v%d, v%d, v%d" % (SA + j, P + j, mA + j))
    for j in range(8):
        a("v_xor_b32 v%d, v%d, v%d" % (P + j, P + j, SA + j))
    a("s_waitcnt lgkmcnt(0)")
    a("s_nop 0")
    pv(VF, P)
    a("s_cmp_eq_u32 s%d, 0" % sQb)
    a("s_cbranch_scc1 L_at_fin")
    pv(V0F, SA)
    a.label("L_at_fin")
    stamp(a, 6)
    a("s_add_u32 s%d, s%d, 0x%x" % (sT0, sBase, WS_OF))
    a("s_mov_b32 s38, 0x21800000")
    a("s_mov_b32 s39, 0x5d800000")
    a("s_nop 8")
    a("v_cmp_le_f32 vcc, s38, v%d" % (O + 8))
    a("v_cmp_ge_f32 s[72:73], s39, v%d" % (O + 8))
    a("v_rcp_f32 v10, v%d" % (O + 8))
    a("s_and_b64 vcc, vcc, s[72:73]")
    a("s_cmp_eq_u64 vcc, -1")
    a("s_cselect_b32 s38, 1, s37")
    a("s_cmp_eq_u32 s38, 0")
    a("s_cbranch_scc1 L_at_redo")
    a("s_nop 0")
    for r in range(8):
        a("v_mul_f32 v%d, v%d, v10" % (O + r, O + r))
    for j in range(4):
        a("v_cvt_pk_bf16_f32 v%d, v%d, v%d" % (P + j, O + 2 * j, O + 2 * j + 1))
    a("buffer_store_dwordx4 %s, v%d, s[%d:%d], s%d offen%s" % (v(P, 4), vOff, sWS, sWS + 3, sT0, " sc1" if opt("ST_O_SC1", 1) else ""))
    stamp_flush(a, 1, sWS, sWid)
    a("s_endpgm")
    a.label("L_at_redo")
    a("s_mov_b32 s37, 1")
    for r in range(16):
        a("v_mov_b32 v%d, 0" % (O + r))
    a("v_add_u32 v13, s29, v%d" % vK)
    a("v_add_u32 v14, s29, v%d" % vV)
    a("v_mov_b32 v%d, 0x%x" % (mx0, NEGBIG))
    a("v_mov_b32 v%d, 0x%x" % (mx1, NEGBIG))
    a("s_cmp_eq_u32 s%d, 0" % sQb)
    a("s_cbranch_scc1 L_at_p1_no0")
    a("ds_read_b128 %s, v%d" % (v(KF, 4), vK))
    vread(V0F, vV)
    a("s_waitcnt lgkmcnt(2)")
    mfma_s(SA, "0")
    a("s_branch L_at_p1_go")
    a.label("L_at_p1_no0")
    for r in range(16):
        a("v_mov_b32 v%d, 0x%x" % (SA + r, NEGBIG))
    a.label("L_at_p1_go")
    a("v_mov_b32 v15, v13")
    a("ds_read_b128 %s, v15" % v(KF, 4))
    a("s_sub_u32 s%d, 8, s%d" % (sN, sTs))
    a("s_cmp_eq_u32 s%d, 0" % sN)
    a("s_cbranch_scc1 L_at_p1_fin")
    a.label("L_at_p1_loop")
    a("s_waitcnt lgkmcnt(0)")
    mfma_s(SB, "0")
    a("v_add_u32 v15, 0x400, v15")
    a("ds_read_b128 %s, v15" % v(KF, 4))
    a("s_sub_u32 s%d, s%d, 1" % (sN, sN))
    a("s_nop 8")
    maxes()
    a("s_cmp_lg_u32 s%d, 0" % sN)
    a("s_cbranch_scc1 L_at_p1_loop")
    a.label("L_at_p1_fin")
    a("s_waitcnt lgkmcnt(0)")
    mfma_s(SB, "0")
    a("s_cmp_eq_u32 s%d, 0" % sQb)
    a("s_cselect_b32 s%d, s29, 0" % sT1)
    a("v_add_u32 v15, s%d, v%d" % (sT1, vK))
    a("ds_read_b128 %s, v15" % v(KF, 4))
    a("s_nop 7")
    sel()
    maxes()
    a("v_max_f32 v%d, v%d, v%d" % (mx0, mx0, mx1))
    a("v_mov_b32 v%d, v%d" % (mx1, mx0))
    a("s_nop 1")
    a("v_permlane32_swap_b32 v%d, v%d" % (mx0, mx1))
    a("s_nop 0")
    a("v_max_f32 v%d, v%d, v%d" % (mx0, mx0, mx1))
    for r in range(16):
        a("v_sub_f32 v%d, 0, v%d" % (CB + r, mx0))
    a("s_branch L_at_p2")

def lds_arrive(a, addr, vt, vo):
    a("v_mov_b32 v%d, %d" % (vt, addr))
    a("v_mov_b32 v%d, 1" % vo)
    a("s_mov_b64 s[34:35], exec")
    a("s_mov_b32 exec_lo, 1")
    a("s_mov_b32 exec_hi, 0")
    a("s_waitcnt lgkmcnt(0)")
    a("ds_add_u32 v%d, v%d" % (vt, vo))
    a("s_mov_b64 exec, s[34:35]")

def lds_wait(a, tag, addr, n, vt, vo):
    a("v_mov_b32 v%d, %d" % (vt, addr))
    a("s_mov_b32 s33, 0")
    a.label("L_sync_%s" % tag)
    a("ds_read_b32 v%d, v%d" % (vo, vt))
    a("s_add_u32 s33, s33, 1")
    a("s_waitcnt lgkmcnt(0)")
    a("v_readfirstlane_b32 s36, v%d" % vo)
    a("s_cmp_gt_u32 s33, 0x100000")
    a("s_cbranch_scc1 L_syncd_%s" % tag)
    a("s_cmp_ge_u32 s36, %d" % n)
    a("s_cbranch_scc1 L_syncd_%s" % tag)
    a("s_sleep 1")
    a("s_branch L_sync_%s" % tag)
    a.label("L_syncd_%s" % tag)

def lds_sync(a, tag, addr, n, vt, vo):
    lds_arrive(a, addr, vt, vo)
    lds_wait(a, tag, addr, n, vt, vo)

def moe_dma_units(a, tag, n, vLane):
    a("v_lshrrev_b32 v4, 3, v%d" % vLane)
    a("v_and_b32 v5, 7, v%d" % vLane)
    a("v_bfe_u32 v6, v4, 1, 1")
    a("v_lshlrev_b32 v6, 1, v6")
    a("v_xor_b32 v5, v5, v6")
    a("v_mul_u32_u24 v4, 0xe00, v4")
    a("v_xor_b32 v6, 4, v5")
    a("v_lshl_add_u32 v7, v6, 4, v4")
    a("v_lshl_add_u32 v4, v5, 4, v4")
    a("v_add_u32 v7, %d, v7" % (8 * 3584))
    a("s_mov_b32 s18, 0x%x" % (512 * 3584))
    a("s_mov_b32 s19, 0x20000")
    a("s_add_u32 s29, s28, %d" % n)
    a.label("L_moe_dma_%s" % tag)
    a("s_cmp_lt_u32 s28, 32")
    a("s_cselect_b32 s16, s88, s90")
    a("s_cselect_b32 s17, s89, s91")
    a("s_and_b32 s82, s28, 31")
    a("s_mul_i32 s82, s82, %d" % (16 * 3584))
    a("s_lshl_b32 s83, s2, 7")
    a("s_add_u32 s82, s82, s83")
    a("s_lshl_b32 s83, s28, 11")
    a("s_add_u32 m0, s83, %d" % M_W)
    a("s_add_u32 s28, s28, 1")
    a("buffer_load_dwordx4 v4, s[16:19], s82 offen lds")
    a("s_add_u32 m0, m0, 1024")
    a("s_cmp_lt_u32 s28, s29")
    a("buffer_load_dwordx4 v7, s[16:19], s82 offen lds")
    a("s_cbranch_scc1 L_moe_dma_%s" % tag)

def gen_moe(a):
    vLane = 1
    sWS, sX, sWm, sWd = 8, 12, 16, 72
    sW, sT0, sT1, sI = 22, 26, 27, 28
    a("s_sub_u32 s%d, s%d, 8" % (sW, sW))
    if opt("MOE_PRIO", 0):
        a("s_setprio %d" % opt("MOE_PRIO", 0))
    a("s_cmp_ge_u32 s%d, 4" % sW)
    a("s_cbranch_scc1 L_moe_d")
    a("s_waitcnt lgkmcnt(0)")
    ws_adjust(a, 6)
    srd(a, sWS, 6, WS_SIZE)
    lds_wait(a, "go", M_CNT + 12, 12, 12, 13)
    a("s_mul_i32 s28, s%d, 10" % sW)
    moe_dma_units(a, "g", 10, vLane)
    stamp(a, 1)
    a("v_lshrrev_b32 v8, 4, v%d" % vLane)
    a("v_bfe_u32 v9, v%d, 2, 2" % vLane)
    a("v_and_b32 v10, 3, v%d" % vLane)
    a("v_and_b32 v11, 1, v8")
    a("v_lshlrev_b32 v11, 1, v11")
    a("v_lshrrev_b32 v12, 1, v9")
    a("v_or_b32 v11, v11, v12")
    a("v_xor_b32 v11, s%d, v11" % sW)
    a("v_lshl_add_u32 v9, v8, 3, v9")
    a("v_lshlrev_b32 v9, 7, v9")
    a("v_lshl_add_u32 v9, v11, 5, v9")
    a("v_lshl_add_u32 v9, v10, 3, v9")
    a("v_add_u32 v9, %d, v9" % M_W)
    a("v_add_u32 v14, 0x10000, v9")
    a("v_and_b32 v10, 3, v%d" % vLane)
    a("v_mul_u32_u24 v10, 1056, v10")
    a("v_bfe_u32 v11, v%d, 2, 1" % vLane)
    a("v_mul_u32_u24 v11, 16512, v11")
    a("v_add_u32 v10, v10, v11")
    a("v_lshl_add_u32 v10, v8, 4, v10")
    a("v_and_b32 v11, 15, v%d" % vLane)
    a("v_lshlrev_b32 v11, 7, v11")
    a("v_lshl_add_u32 v11, v8, 3, v11")
    a("s_lshl_b32 s82, s%d, 5" % sW)
    a("s_add_u32 s82, s82, %d" % M_HS)
    a("v_add_u32 v11, s82, v11")
    a("s_waitcnt vmcnt(0)")
    stamp(a, 2)
    lds_sync(a, "m0", M_CNT + 4, 8, 12, 13)
    stamp(a, 3)
    FG, FU, FB, DG, DU, NB = 16, 32, 48, 64, 68, 4
    def gu_reads(ks):
        b = ks % NB
        a("ds_read_b64_tr_b16 %s, v9 offset:%d" % (v(FG + 4 * b, 2), ks * 4096))
        a("ds_read_b64_tr_b16 %s, v9 offset:%d" % (v(FG + 4 * b + 2, 2), ks * 4096 + 512))
        a("ds_read_b128 %s, v10 offset:%d" % (v(FB + 4 * b, 4), ks * 64))
        a("ds_read_b64_tr_b16 %s, v14 offset:%d" % (v(FU + 4 * b, 2), ks * 4096))
        a("ds_read_b64_tr_b16 %s, v14 offset:%d" % (v(FU + 4 * b + 2, 2), ks * 4096 + 512))
    for ks in range(3):
        gu_reads(ks)
    for ks in range(16):
        b = ks % NB
        a("s_waitcnt lgkmcnt(%d)" % (5 * min(2, 15 - ks)))
        a("v_mfma_f32_16x16x32_bf16 %s, %s, %s, %s" % (v(DG, 4), v(FG + 4 * b, 4), v(FB + 4 * b, 4), "0" if ks == 0 else v(DG, 4)))
        a("v_mfma_f32_16x16x32_bf16 %s, %s, %s, %s" % (v(DU, 4), v(FU + 4 * b, 4), v(FB + 4 * b, 4), "0" if ks == 0 else v(DU, 4)))
        if ks + 3 < 16:
            gu_reads(ks + 3)
    a("s_nop 7")
    for e in range(4):
        bf16r(a, "v%d" % (DG + e), "v%d" % (DG + e))
        bf16r(a, "v%d" % (DU + e), "v%d" % (DU + e))
    for e in range(4):
        a("v_mul_f32 v%d, %s, v%d" % (72 + e, fhex(-LOG2E), DG + e))
    for e in range(4):
        a("v_exp_f32 v%d, v%d" % (72 + e, 72 + e))
    for e in range(4):
        a("v_add_f32 v%d, 1.0, v%d" % (72 + e, 72 + e))
    for e in range(4):
        a("v_rcp_f32 v%d, v%d" % (72 + e, 72 + e))
    a("s_nop 0")
    for e in range(4):
        a("v_mul_f32 v%d, v%d, v%d" % (DG + e, DG + e, 72 + e))
    for e in range(4):
        bf16r(a, "v%d" % (DG + e), "v%d" % (DG + e))
    for e in range(4):
        a("v_mul_f32 v%d, v%d, v%d" % (DG + e, DG + e, DU + e))
    a("v_cvt_pk_bf16_f32 v72, v%d, v%d" % (DG, DG + 1))
    a("v_cvt_pk_bf16_f32 v73, v%d, v%d" % (DG + 2, DG + 3))
    a("s_mov_b32 exec_lo, 0x00ff00ff")
    a("s_mov_b32 exec_hi, 0x00ff00ff")
    a("ds_write_b64 v11, v[72:73]")
    a("s_mov_b64 exec, -1")
    lds_arrive(a, M_CNT + 8, 12, 13)
    stamp(a, 4)
    a("s_add_u32 s%d, s%d, 8" % (sW, sW))
    stamp_flush(a, 1, sWS, sW)
    a("s_endpgm")
    a.label("L_moe_d")
    XROW, XST = 16, 24
    R0, R1, F0, F1, D, HF = 28, 60, 92, 28, 60, 16
    a("s_sub_u32 s%d, s%d, 4" % (sW, sW))
    a("s_waitcnt lgkmcnt(0)")
    ws_adjust(a, 6)
    srd(a, sWS, 6, WS_SIZE)
    a("s_lshl_b32 s%d, s%d, 3" % (sT0, sW))
    a("s_add_u32 s%d, s%d, 0x%x" % (sT0, sT0, WS_SEL))
    a("s_buffer_load_dwordx2 s[82:83], s[%d:%d], s%d" % (sWS, sWS + 3, sT0))
    srd(a, sX, 84, 2048 * 1024)
    srd(a, sWd, 92, 1792 * 1024)
    a("v_lshlrev_b32 v8, 4, v%d" % vLane)
    a("v_mov_b32 v9, 0")
    a("s_waitcnt lgkmcnt(0)")
    for k in range(2):
        a("s_lshl_b32 s%d, s%d, 10" % (sT0, 82 + k))
        a("buffer_load_dwordx4 %s, v8, s[%d:%d], s%d offen" % (v(XROW + 4 * k, 4), sX, sX + 3, sT0))
        a("s_lshl_b32 s%d, s%d, 4" % (sT1, 82 + k))
        a("s_add_u32 s%d, s%d, 0x%x" % (sT1, sT1, WS_REC))
        a("buffer_load_dwordx2 %s, v9, s[%d:%d], s%d offen" % (v(XST + 2 * k, 2), sWS, sWS + 3, sT1))
    lds_arrive(a, M_CNT + 12, 12, 13)
    a("s_mul_i32 s28, s%d, 6" % sW)
    a("s_add_u32 s28, s28, 40")
    moe_dma_units(a, "d", 6, vLane)
    a("s_waitcnt vmcnt(12)")
    stamp(a, 1)
    T = 92
    for k in range(2):
        X, ST = XROW + 4 * k, XST + 2 * k
        for i in range(4):
            a("v_lshlrev_b32 v%d, 16, v%d" % (T + 2 * i, X + i))
            a("v_and_b32 v%d, 0xffff0000, v%d" % (T + 1 + 2 * i, X + i))
        for i in range(8):
            a("v_sub_f32 v%d, v%d, v%d" % (T + i, T + i, ST))
        for i in range(4):
            a("v_cvt_pk_bf16_f32 v%d, v%d, v%d" % (X + i, T + 2 * i, T + 1 + 2 * i))
        for i in range(4):
            a("v_lshlrev_b32 v%d, 16, v%d" % (T + 2 * i, X + i))
            a("v_and_b32 v%d, 0xffff0000, v%d" % (T + 1 + 2 * i, X + i))
        for i in range(8):
            a("v_mul_f32 v%d, v%d, v%d" % (T + i, T + i, ST + 1))
        for i in range(4):
            a("v_cvt_pk_bf16_f32 v%d, v%d, v%d" % (X + i, T + 2 * i, T + 1 + 2 * i))
    a("s_lshr_b32 s82, s%d, 1" % sW)
    a("s_mul_i32 s82, s82, 16512")
    a("s_and_b32 s83, s%d, 1" % sW)
    a("s_mul_i32 s83, s83, 2112")
    a("s_add_u32 s82, s82, s83")
    a("v_add_u32 v10, s82, v8")
    a("ds_write_b128 v10, %s" % v(XROW, 4))
    a("ds_write_b128 v10, %s offset:1056" % v(XROW + 4, 4))
    a("s_waitcnt vmcnt(0)")
    lds_arrive(a, M_CNT + 4, 12, 13)
    stamp(a, 2)
    a("v_lshrrev_b32 v5, 4, v%d" % vLane)
    a("v_and_b32 v6, 15, v%d" % vLane)
    a("v_lshlrev_b32 v5, 13, v5")
    a("v_lshl_add_u32 v5, v6, 4, v5")
    a("s_lshl_b32 s94, s2, 16")
    a("s_lshl_b32 s95, s%d, 8" % sW)
    a("s_add_u32 s32, s94, s95")
    for kk in range(2):
        for e in range(8):
            a("s_add_u32 s83, s32, %d" % (kk * 32768 + (e // 4) * 4096))
            a("buffer_load_dwordx4 %s, v5, s[%d:%d], s83 offen offset:%d" % (v((R0 if kk == 0 else R1) + 4 * e, 4), sWd, sWd + 3, (e % 4) * 1024))
    a("s_mov_b32 s94, 0x05040100")
    a("s_mov_b32 s95, 0x07060302")
    a("v_and_b32 v10, 7, v%d" % vLane)
    a("v_lshrrev_b32 v9, 4, v%d" % vLane)
    a("v_lshlrev_b32 v10, 7, v10")
    a("v_lshl_add_u32 v10, v9, 4, v10")
    a("v_add_u32 v10, %d, v10" % M_HS)
    a("v_and_b32 v11, 15, v%d" % vLane)
    a("v_lshlrev_b32 v11, 11, v11")
    a("v_lshl_add_u32 v11, v9, 4, v11")
    a("s_lshl_b32 s82, s2, 14")
    a("s_lshl_b32 s83, s%d, 9" % sW)
    a("s_add_u32 s82, s82, s83")
    a("s_add_u32 s82, s82, 0x%x" % WS_PART)
    a("s_waitcnt vmcnt(8)")
    for jj in range(8):
        for p in range(4):
            a("v_perm_b32 v%d, v%d, v%d, s%d" % (F0 + 4 * jj + p, R0 + 4 * (2 * p + 1) + (jj >> 1), R0 + 4 * (2 * p) + (jj >> 1), 94 + (jj & 1)))
    a("s_waitcnt vmcnt(0)")
    for jj in range(8):
        for p in range(4):
            a("v_perm_b32 v%d, v%d, v%d, s%d" % (F1 + 4 * jj + p, R1 + 4 * (2 * p + 1) + (jj >> 1), R1 + 4 * (2 * p) + (jj >> 1), 94 + (jj & 1)))
    stamp(a, 3)
    lds_wait(a, "m2", M_CNT + 8, 4, 12, 13)
    stamp(a, 4)
    a("ds_read_b128 %s, v10" % v(HF, 4))
    a("ds_read_b128 %s, v10 offset:64" % v(HF + 4, 4))
    a("s_waitcnt lgkmcnt(1)")
    for jj in range(8):
        a("v_mfma_f32_16x16x32_bf16 %s, %s, %s, 0" % (v(D + 4 * jj, 4), v(F0 + 4 * jj, 4), v(HF, 4)))
    a("s_waitcnt lgkmcnt(0)")
    for jj in range(8):
        a("v_mfma_f32_16x16x32_bf16 %s, %s, %s, %s" % (v(D + 4 * jj, 4), v(F1 + 4 * jj, 4), v(HF + 4, 4), v(D + 4 * jj, 4)))
    a("s_mov_b32 exec_lo, 0x00ff00ff")
    a("s_mov_b32 exec_hi, 0x00ff00ff")
    a("s_nop 0")
    for jj in range(8):
        if jj == 7:
            a("s_nop 4")
        a("buffer_store_dwordx4 %s, v11, s[%d:%d], s82 offen offset:%d" % (v(D + 4 * jj, 4), sWS, sWS + 3, jj * 64))
    a("s_add_u32 s%d, s%d, 12" % (sW, sW))
    stamp_flush(a, 1, sWS, sW)
    a("s_endpgm")

def gen_k2():
    a = Asm()
    N = "k2_kernel"
    a(kernel_head(N))
    a("s_cmp_ge_u32 s2, %d" % K2_GRID)
    a("s_cbranch_scc1 L_k2_end")
    stamp_begin(a, 127)
    a("s_load_dwordx2 s[6:7], s[0:1], 80")
    a("v_lshrrev_b32 v2, 6, v0")
    a("v_and_b32 v1, 63, v0")
    a("v_readfirstlane_b32 s22, v2")
    a("s_cmp_lt_u32 s2, %d" % NSLICE)
    a("s_cbranch_scc1 L_k2_mixed")
    a("s_cmp_ge_u32 s22, 8")
    a("s_cbranch_scc1 %s" % ("L_k2_pf" if opt("PF_K3", 0) else "L_k2_end"))
    a("s_branch L_k2_attn")
    a.label("L_k2_mixed")
    a("s_load_dwordx2 s[84:85], s[0:1], 0")
    a("s_load_dwordx4 s[88:91], s[0:1], 40")
    a("s_load_dwordx2 s[92:93], s[0:1], 56")
    a("s_cmp_lg_u32 s22, 0")
    a("s_cbranch_scc1 L_k2_z")
    a("v_mov_b32 v3, %d" % M_CNT)
    a("v_mov_b32 v4, 0"); a("v_mov_b32 v5, 0"); a("v_mov_b32 v6, 0"); a("v_mov_b32 v7, 0")
    a("ds_write_b128 v3, v[4:7]")
    a("s_waitcnt lgkmcnt(0)")
    a.label("L_k2_z")
    a("s_barrier")
    a("s_cmp_ge_u32 s22, 8")
    a("s_cbranch_scc1 L_k2_moe")
    a.label("L_k2_attn")
    gen_attn(a)
    a.label("L_k2_moe")
    gen_moe(a)
    if opt("PF_K3", 0):
        a.label("L_k2_pf")
        mode = opt("PF_K3", 0)
        lo, hi = {1: (0, 96), 2: (0, 128), 3: (96, 128), 4: (0, 64)}[mode]
        a("s_lshr_b32 s26, s2, 3")
        a("s_sub_u32 s26, s26, 4")
        a("s_lshl_b32 s26, s26, 3")
        a("s_add_u32 s26, s26, s22")
        a("s_sub_u32 s26, s26, %d" % (8 + lo))
        a("s_cmp_ge_u32 s26, %d" % (hi - lo))
        a("s_cbranch_scc1 L_k2_end")
        a("s_add_u32 s26, s26, %d" % lo)
        a("s_load_dwordx2 s[12:13], s[0:1], 16")
        a("s_load_dwordx2 s[14:15], s[0:1], 0")
        a("s_load_dwordx2 s[20:21], s[0:1], 64")
        a("v_lshlrev_b32 v3, 7, v1")
        a("s_and_b32 s27, s2, 7")
        a("s_lshl_b32 s27, s27, 18")
        a("s_and_b32 s28, s26, 31")
        a("s_lshl_b32 s28, s28, 13")
        a("s_add_u32 s27, s27, s28")
        a("s_lshl_b32 s28, s26, 13")
        a("s_waitcnt lgkmcnt(0)")
        a("s_cmp_ge_u32 s26, 96")
        a("s_cselect_b32 s14, s20, s14")
        a("s_cselect_b32 s15, s21, s15")
        a("s_cmp_lt_u32 s26, 64")
        a("s_cselect_b32 s16, s12, s14")
        a("s_cselect_b32 s17, s13, s15")
        a("s_cselect_b32 s28, s28, s27")
        a("s_mov_b32 s18, %d" % (512 * 1024))
        a("s_cselect_b32 s18, s18, %d" % (2048 * 1024))
        a("s_mov_b32 s19, 0x20000")
        a("s_barrier")
        a("buffer_load_dword v4, v3, s[16:19], s28 offen")
    a.label("L_k2_end")
    a("s_endpgm")
    return a.text(), 128
```

```python
from dsl import *

WS_QF = 0x000000
WS_KF = 0x200000
WS_VF = 0x400000
WS_OF = WS_QF
WS_REC = 0x800000
WS_CSR = 0x808000
WS_SEL = 0x80e000
WS_PART = 0x810000
WS_SIZE = 0xD00000 if PROF else 0x900000
NSLICE = 28
K1_GRID = 256

QSCALE = 0.25 * 1.4426950408889634
LOG2E = 1.4426950408889634

def fhex(x):
    import struct
    return "0x%08x" % struct.unpack("<I", struct.pack("<f", x))[0]

G_ST = 131072
G_LDS = G_ST + 1024
K1_LDS = G_LDS

sXP, sWP, sWRP, sWGP, sWUP, sWDP, sDBG, sWSP = 4, 6, 12, 14, 16, 18, 20, 22
sWave = 3

def wave_max_u32(a, t):
    for dp in ["quad_perm:[1,0,3,2] row_mask:0xf", "quad_perm:[2,3,0,1] row_mask:0xf", "row_half_mirror row_mask:0xf", "row_mirror row_mask:0xf",
               "row_bcast:15 row_mask:0xa", "row_bcast:31 row_mask:0xc"]:
        a("s_nop 1")
        a("v_max_u32_dpp v%d, v%d, v%d %s bank_mask:0xf" % (t, t, t, dp))

def poll_flags(a, tag, vaddr, srdreg, lanes_mask_lo, tmp):
    a("s_mov_b32 s98, 0")
    a.label("L_poll_%s" % tag)
    a("buffer_load_dword v%d, v%d, s[%d:%d], 0 offen sc1" % (tmp, vaddr, srdreg, srdreg + 3))
    a("s_add_u32 s98, s98, 1")
    a("s_waitcnt vmcnt(0)")
    a("v_cmp_eq_u32 vcc, 0, v%d" % tmp)
    a("s_cmp_gt_u32 s98, 0x40000")
    a("s_cbranch_scc1 L_polld_%s" % tag)
    a("s_and_b32 s99, vcc_lo, 0x%x" % lanes_mask_lo)
    a("s_cbranch_scc0 L_polld_%s" % tag)
    a("s_sleep 8")
    a("s_branch L_poll_%s" % tag)
    a.label("L_polld_%s" % tag)

def get_nonce(a, tag, sdb, vtmp, vzero, sdst):
    a("v_mov_b32 v%d, 0" % vzero)
    a("s_mov_b32 s98, 0")
    a.label("L_nonce_%s" % tag)
    a("buffer_load_dword v%d, v%d, s[%d:%d], 0 offen sc1" % (vtmp, vzero, sdb, sdb + 3))
    a("s_add_u32 s98, s98, 1")
    a("s_waitcnt vmcnt(0)")
    a("v_readfirstlane_b32 s%d, v%d" % (sdst, vtmp))
    a("s_cmp_gt_u32 s98, 0x40000")
    a("s_cbranch_scc1 L_nonced_%s" % tag)
    a("s_cmp_lg_u32 s%d, 0" % sdst)
    a("s_cbranch_scc1 L_nonced_%s" % tag)
    a("s_sleep 4")
    a("s_branch L_nonce_%s" % tag)
    a.label("L_nonced_%s" % tag)

def gen_e(a):
    vLane = 1
    sX, sW, sWS, sDb, sWR = 24, 28, 32, 36, 40
    sT0, sT1, sEb, sStrip, sTag = 44, 45, 49, 50, 51
    L_CS = 0
    srd(a, sX, sXP, 2048 * 1024)
    srd(a, sWR, sWRP, 1024)
    a("s_and_b32 s%d, s2, 1" % sT0)
    a("s_bfe_u32 s%d, s2, 0x20001" % sT1)
    a("s_lshr_b32 s46, s2, 3")
    a("s_lshl_b32 s%d, s%d, 3" % (sEb, sT1))
    a("s_lshl_b32 s47, s%d, 2" % sT0)
    a("s_add_u32 s%d, s%d, s47" % (sEb, sEb))
    a("s_add_u32 s%d, s%d, s46" % (sEb, sEb))
    a("v_lshrrev_b32 v2, 4, v%d" % vLane)
    a("v_and_b32 v3, 15, v%d" % vLane)
    a("v_lshlrev_b32 v3, 4, v3")
    a("v_lshl_add_u32 v4, v2, 10, v3")
    WP = 16
    a("s_lshl_b32 s%d, s%d, 6" % (sT0, sEb))
    a("s_lshl_b32 s%d, s%d, 3" % (sT1, sWave))
    a("s_add_u32 s46, s%d, s%d" % (sT0, sT1))
    a("s_lshl_b32 s47, s46, 10")
    XP = 32
    for g in range(2):
        for q in range(4):
            a("buffer_load_dwordx4 %s, v4, s[%d:%d], s47 offen offset:%d" % (v(XP + 16 * g + 4 * q, 4), sX, sX + 3, q * 256))
        if g == 0:
            for q in range(4):
                a("buffer_load_dwordx4 %s, v3, s[%d:%d], 0 offen offset:%d" % (v(WP + 4 * q, 4), sWR, sWR + 3, q * 256))
            a("s_add_u32 s47, s47, 4096")
    srd(a, sDb, sDBG, 256)
    a("v_mov_b32 v13, 0")
    a("buffer_load_dword v12, v13, s[%d:%d], 0 offen sc1" % (sDb, sDb + 3))
    stamp(a, 1)
    srd(a, sWS, sWSP, WS_SIZE)
    a("v_mov_b32 v5, 0x3f803f80")
    a("v_mov_b32 v8, 0")
    a("v_add_u32 v15, s46, v2")
    dps = ["quad_perm:[1,0,3,2]", "quad_perm:[2,3,0,1]", "row_half_mirror", "row_mirror"]
    a("s_waitcnt vmcnt(5)")
    for i in range(16):
        a("v_dot2_f32_bf16 v8, v%d, v5, v8" % (WP + i))
    A0, A1, A2 = 9, 10, 11
    OUT = [100, 104]
    for g in range(2):
        if g == 1:
            a("s_waitcnt vmcnt(1)")
        if g == 0:
            stamp(a, 2)
        a("v_mov_b32 v%d, 0" % A0); a("v_mov_b32 v%d, 0" % A1); a("v_mov_b32 v%d, 0" % A2)
        for i in range(16):
            x = XP + 16 * g + i
            a("v_dot2_f32_bf16 v%d, v%d, v5, v%d" % (A0, x, A0))
            a("v_dot2_f32_bf16 v%d, v%d, v%d, v%d" % (A1, x, x, A1))
            a("v_dot2_f32_bf16 v%d, v%d, v%d, v%d" % (A2, x, WP + i, A2))
        a("s_nop 2")
        for dp in dps:
            for r in ((A0, A1, A2, 8) if g == 0 else (A0, A1, A2)):
                a("v_add_f32_dpp v%d, v%d, v%d %s row_mask:0xf bank_mask:0xf" % (r, r, r, dp))
        M, RS, KEY = OUT[g], OUT[g] + 1, OUT[g] + 2
        a("v_mul_f32 v%d, %s, v%d" % (M, fhex(1.0 / 512), A0))
        a("v_mul_f32 v14, %s, v%d" % (fhex(1.0 / 512), A1))
        a("v_fma_f32 v14, -v%d, v%d, v14" % (M, M))
        a("v_max_f32 v14, 0, v14")
        bf16r(a, "v%d" % M, "v%d" % M)
        bf16r(a, "v14", "v14")
        a("v_add_f32 v14, %s, v14" % fhex(1e-5))
        bf16r(a, "v14", "v14")
        a("v_sqrt_f32 v14, v14")
        a("s_nop 0")
        bf16r(a, "v14", "v14")
        a("v_rcp_f32 v%d, v14" % RS)
        a("v_fma_f32 v14, -v%d, v8, v%d" % (M, A2))
        a("v_mul_f32 v14, v14, v%d" % RS)
        a("v_cvt_pk_bf16_f32 v14, v14, v14")
        a("v_and_b32 v14, 0xffff, v14")
        a("v_cmp_gt_u32 vcc, 0x8000, v14")
        a("v_xor_b32 v96, 0x8000, v14")
        a("v_xor_b32 v97, 0xffff, v14")
        a("v_sub_u32 v98, 0xffff, v15")
        a("v_cndmask_b32 v14, v97, v96, vcc")
        a("v_lshl_or_b32 v%d, v14, 16, v98" % KEY)
        a("v_add_u32 v15, 4, v15")
    a("s_waitcnt vmcnt(0)")
    a("v_readfirstlane_b32 s%d, v12" % sTag)
    a("v_and_b32 v9, 15, v%d" % vLane)
    a("v_cmp_eq_u32 vcc, 1, v9")
    a("s_nop 1")
    a("s_cmp_lg_u32 s%d, 0" % sTag)
    a("s_cbranch_scc1 L_e_tag")
    get_nonce(a, "e", sDb, 12, 13, sTag)
    a.label("L_e_tag")
    for q in range(3):
        a("v_cndmask_b32 v%d, v%d, v%d, vcc" % (OUT[0] + q, OUT[0] + q, OUT[1] + q))
    a("v_mov_b32 v%d, s%d" % (OUT[0] + 3, sTag))
    a("v_lshl_add_u32 v10, v9, 2, v2")
    a("v_add_u32 v10, s46, v10")
    a("v_lshlrev_b32 v10, 4, v10")
    a("s_mov_b32 s47, 0x%x" % WS_REC)
    a("s_mov_b32 exec_lo, 0x00030003")
    a("s_mov_b32 exec_hi, 0x00030003")
    a("buffer_store_dwordx4 %s, v10, s[%d:%d], s47 offen sc1" % (v(OUT[0], 4), sWS, sWS + 3))
    a("s_mov_b64 exec, -1")
    stamp(a, 3)
    a.label("L_e_done")
    stamp_flush(a, 0, sWS, sWave)
    a("s_endpgm")

class Net:
    def __init__(self, a, free):
        self.a = a; self.free = list(free)
    def get(self): return self.free.pop(0)
    def put(self, r): self.free.append(r)
    def ce(self, L, i, j):
        hi, lo = self.get(), self.get()
        self.a("v_max_u32 v%d, v%d, v%d" % (hi, L[i], L[j]))
        self.a("v_min_u32 v%d, v%d, v%d" % (lo, L[i], L[j]))
        self.put(L[i]); self.put(L[j])
        L[i], L[j] = hi, lo
    def sort_bitonic8(self, L):
        for st in ([(0, 4), (1, 5), (2, 6), (3, 7)], [(0, 2), (1, 3), (4, 6), (5, 7)], [(0, 1), (2, 3), (4, 5), (6, 7)]):
            for (i, j) in st: self.ce(L, i, j)
    def top8(self, L, dpp, sort=True):
        T = [None] * 8
        for i in range(7, -1, -1):
            T[i] = self.get()
            self.a("v_max_u32_dpp v%d, v%d, v%d %s bank_mask:0xf" % (T[i], L[7 - i], L[i], dpp))
        for r in L: self.put(r)
        if sort: self.sort_bitonic8(T)
        return T

def top8_wave(a, keys, free, wave_sgpr, lds_cand):
    n = Net(a, free)
    L = list(keys)
    for (i, j) in ((0,1),(2,3),(4,5),(6,7),(0,2),(1,3),(4,6),(5,7),(1,2),(5,6),(0,4),(3,7),(1,5),(2,6),(1,4),(3,6),(2,4),(3,5),(3,4)):
        n.ce(L, i, j)
    a("s_nop 0")
    for dp in ("quad_perm:[1,0,3,2] row_mask:0xf", "quad_perm:[2,3,0,1] row_mask:0xf", "row_half_mirror row_mask:0xf", "row_mirror row_mask:0xf",
               "row_bcast:15 row_mask:0xa", "row_bcast:31 row_mask:0xc"):
        L = n.top8(L, dp)
    base = (max(free) + 4) // 4 * 4
    for i in range(8):
        a("v_mov_b32 v%d, v%d" % (base + i, L[i]))
    adr = n.get()
    a("s_lshl_b32 s98, s%d, 5" % wave_sgpr)
    a("s_add_u32 s98, s98, %d" % lds_cand)
    a("v_mov_b32 v%d, s98" % adr)
    a("s_mov_b32 exec_lo, 0")
    a("s_mov_b32 exec_hi, 0x80000000")
    a("ds_write_b128 v%d, %s" % (adr, v(base, 4)))
    a("ds_write_b128 v%d, %s offset:16" % (adr, v(base + 4, 4)))
    a("s_mov_b64 exec, -1")

def top8_final(a, free, lds_cand):
    n = Net(a, free)
    base = (max(free) + 4) // 4 * 4
    adr = n.get()
    a("v_mbcnt_lo_u32_b32 v%d, -1, 0" % adr)
    a("v_mbcnt_hi_u32_b32 v%d, -1, v%d" % (adr, adr))
    a("v_and_b32 v%d, 3, v%d" % (adr, adr))
    a("v_lshlrev_b32 v%d, 5, v%d" % (adr, adr))
    a("v_add_u32 v%d, %d, v%d" % (adr, lds_cand, adr))
    a("ds_read_b128 %s, v%d" % (v(base, 4), adr))
    a("ds_read_b128 %s, v%d offset:16" % (v(base + 4, 4), adr))
    L = [base + i for i in range(8)]
    a("s_waitcnt lgkmcnt(0)")
    L = n.top8(L, "quad_perm:[1,0,3,2] row_mask:0xf")
    L = n.top8(L, "quad_perm:[2,3,0,1] row_mask:0xf")
    return L

def gen_topk(a):
    vLane = 1
    sWS, sDb = 24, 40
    sT0, sT1, sTag = 45, 46, 48
    T_CAND = 0
    srd(a, sWS, sWSP, WS_SIZE)
    srd(a, sDb, sDBG, 256)
    a("s_cmp_ge_u32 s%d, 4" % sWave)
    a("s_cbranch_scc1 L_tk_sync")
    get_nonce(a, "tk", sDb, 12, 13, sTag)
    stamp(a, 1)
    a("v_lshlrev_b32 v3, 4, v0")
    a("s_mov_b32 s98, 0")
    a.label("L_tk_poll")
    a("s_mov_b32 s%d, 0x%x" % (sT0, WS_REC))
    for q in range(8):
        a("buffer_load_dwordx2 %s, v3, s[%d:%d], s%d offen offset:8 sc1" % (v(96 + 2 * q, 2), sWS, sWS + 3, sT0))
        if q < 7:
            a("s_add_u32 s%d, s%d, 4096" % (sT0, sT0))
    a("s_add_u32 s98, s98, 1")
    a("s_waitcnt vmcnt(0)")
    for q in range(8):
        a("v_xor_b32 v%d, s%d, v%d" % (97 + 2 * q, sTag, 97 + 2 * q))
    a("v_or3_b32 v4, v97, v99, v101")
    a("v_or3_b32 v5, v103, v105, v107")
    a("v_or3_b32 v4, v4, v109, v111")
    a("v_or_b32 v4, v4, v5")
    a("v_cmp_ne_u32 vcc, 0, v4")
    a("s_cmp_gt_u32 s98, 0x40000")
    a("s_cbranch_scc1 L_tk_go")
    a("s_cmp_eq_u64 vcc, 0")
    a("s_cbranch_scc1 L_tk_go")
    a("s_sleep 2")
    a("s_branch L_tk_poll")
    a.label("L_tk_go")
    stamp(a, 3)
    top8_wave(a, [96 + 2 * q for q in range(8)], [97 + 2 * q for q in range(8)] + list(range(14, 24)) + [112, 113], sWave, T_CAND)
    a("s_waitcnt lgkmcnt(0)")
    a.label("L_tk_sync")
    a("s_barrier")
    stamp(a, 4)
    a("s_cmp_lg_u32 s%d, 0" % sWave)
    a("s_cbranch_scc1 L_tk_done")
    R = top8_final(a, list(range(96, 114)), T_CAND)
    vRes = 20
    a("v_mov_b32 v%d, v%d" % (vRes, R[0]))
    for jx in range(1, 8):
        a("v_cmp_eq_u32 vcc, %d, v%d" % (jx, vLane))
        a("s_nop 1")
        a("v_cndmask_b32 v%d, v%d, v%d, vcc" % (vRes, vRes, R[jx]))
    stamp(a, 5)
    a("v_and_b32 v8, 0xffff, v%d" % vRes)
    a("v_sub_u32 v8, 0xffff, v8")
    a("v_lshrrev_b32 v9, 16, v%d" % vRes)
    a("v_cmp_le_u32 vcc, 0x8000, v9")
    a("v_xor_b32 v10, 0x8000, v9")
    a("v_xor_b32 v11, 0xffff, v9")
    a("v_cndmask_b32 v9, v11, v10, vcc")
    a("v_lshlrev_b32 v9, 16, v9")
    a("v_mul_f32 v9, %s, v9" % fhex(-LOG2E))
    a("v_exp_f32 v9, v9")
    a("s_nop 0")
    a("v_add_f32 v9, 1.0, v9")
    a("v_rcp_f32 v9, v9")
    a("s_nop 0")
    bf16r(a, "v9", "v9")
    a("v_lshlrev_b32 v10, 2, v%d" % vLane)
    a("s_mov_b32 s%d, 0x%x" % (sT0, WS_SEL))
    a("s_mov_b32 exec_lo, 0xff")
    a("s_mov_b32 exec_hi, 0")
    a("buffer_store_dword v8, v10, s[%d:%d], s%d offen" % (sWS, sWS + 3, sT0))
    a("buffer_store_dword v9, v10, s[%d:%d], s%d offen offset:32" % (sWS, sWS + 3, sT0))
    a("s_mov_b64 exec, -1")
    a.label("L_tk_done")
    stamp_flush(a, 0, sWS, sWave)
    a("s_endpgm")

def gen_codepf(a):
    a("s_cmp_ge_u32 s%d, 4" % sWave)
    a("s_cbranch_scc1 L_k1_end")
    a("s_getpc_b64 s[40:41]")
    a.label("L_k1_anchor")
    a("s_mov_b32 s42, L_code_end-L_k1_anchor")
    a("s_mov_b32 s43, 0x20000")
    a("s_lshl_b32 s44, s%d, 13" % sWave)
    a("v_lshlrev_b32 v3, 7, v1")
    a("v_add_u32 v3, s44, v3")
    a("buffer_load_dword v4, v3, s[40:43], 0 offen")
    a("s_endpgm")

def gen_tlb(a):
    step = opt("PF_TLB")
    a("s_load_dwordx2 s[40:41], s[0:1], 16")
    a("s_load_dwordx2 s[42:43], s[0:1], 64")
    a("v_mul_u32_u24 v3, %d, v1" % 1)
    a("v_lshlrev_b32 v3, %d, v1" % (step.bit_length() - 1))
    a("s_waitcnt lgkmcnt(0)")
    r = 16
    for (ptr, nbytes) in ((sWGP, 512 * 3584), (sWUP, 512 * 3584), (sWDP, 1792 * 1024), (40, 512 * 1024), (42, 2048 * 1024), (sWSP, WS_SIZE)):
        srd(a, 32, ptr, nbytes)
        a("s_mul_i32 s44, s%d, %d" % (sWave, 64 * step))
        a("v_add_u32 v4, s44, v3")
        a("buffer_load_dword v%d, v4, s[32:35], 0 offen" % r); r += 1
    a("s_endpgm")

def gen_touch(a):
    sB = 32
    c0 = opt("PF_C0", 1)
    n = 24 * (8 - c0)
    srd(a, sB, sWP, 512 * 3072)
    a("s_sub_u32 s46, s2, 33")
    a("s_lshl_b32 s46, s46, 3")
    a("s_add_u32 s46, s46, s%d" % sWave)
    a("s_cmp_ge_u32 s46, %d" % n)
    a("s_cbranch_scc1 L_pf_part")
    a("v_lshlrev_b32 v11, 7, v1")
    a("s_lshl_b32 s49, s46, 13")
    a("s_add_u32 s49, s49, %d" % (c0 * 196608))
    a("buffer_load_dword v40, v11, s[%d:%d], s49 offen" % (sB, sB + 3))
    a.label("L_pf_part")
    if opt("PF_PART", 0):
        a("s_sub_u32 s46, 247, s46")
        a("s_cmp_ge_u32 s46, 112")
        a("s_cbranch_scc1 L_pf_end")
        srd(a, sB, sWSP, WS_SIZE)
        a("v_lshlrev_b32 v11, 6, v1")
        a("s_lshl_b32 s49, s46, 12")
        a("s_add_u32 s49, s49, 0x%x" % WS_PART)
        a("buffer_load_dword v41, v11, s[%d:%d], s49 offen" % (sB, sB + 3))
    a.label("L_pf_end")
    a("s_endpgm")

def gen_gemm(a):
    QST = " sc1" if opt("ST_QKV_SC1", 1) else ""
    vLane = 1
    sX, sW, sWS, sDb = 24, 28, 32, 36
    sRb, sCb, sT0, sT1, sC, sSlot = 40, 41, 42, 43, 44, 45
    a("s_sub_u32 s%d, s2, 64" % sT0)
    a("s_and_b32 s%d, s%d, 7" % (sT1, sT0))
    a("s_lshr_b32 s%d, s%d, 3" % (sT0, sT0))
    a("s_lshr_b32 s%d, s%d, 1" % (sRb, sT1))
    a("s_lshl_b32 s%d, s%d, 2" % (sRb, sRb))
    a("s_and_b32 s46, s%d, 3" % sT0)
    a("s_add_u32 s%d, s%d, s46" % (sRb, sRb))
    a("s_and_b32 s%d, s%d, 1" % (sCb, sT1))
    a("s_mul_i32 s%d, s%d, 6" % (sCb, sCb))
    a("s_lshr_b32 s%d, s%d, 2" % (sT0, sT0))
    a("s_add_u32 s%d, s%d, s%d" % (sCb, sCb, sT0))
    a("s_cmp_ge_u32 s%d, 4" % sWave)
    a("s_cbranch_scc0 L_g_cons")
    if opt("LD_PRIO"):
        a("s_setprio %d" % opt("LD_PRIO"))
    vXa, vXb, vW = 10, 11, 12
    sLw, sXg, sXg2, sWg, sL4 = 46, 47, 48, 49, 50
    a("s_sub_u32 s%d, s%d, 4" % (sLw, sWave))
    a("v_lshrrev_b32 v2, 3, v%d" % vLane)
    a("v_and_b32 v3, 7, v%d" % vLane)
    a("v_lshrrev_b32 v4, 1, v2")
    a("v_xor_b32 v3, v3, v4")
    a("v_xor_b32 v4, 4, v3")
    a("v_lshlrev_b32 v2, 10, v2")
    a("v_lshl_add_u32 v%d, v3, 4, v2" % vXa)
    a("v_lshl_add_u32 v%d, v4, 4, v2" % vXb)
    a("v_add_u32 v%d, 0x2000, v%d" % (vXb, vXb))
    a("v_lshrrev_b32 v2, 4, v%d" % vLane)
    a("v_bfe_u32 v3, v%d, 2, 2" % vLane)
    a("v_xor_b32 v3, v3, v2")
    a("v_and_b32 v4, 3, v%d" % vLane)
    a("v_lshl_add_u32 v3, v3, 2, v4")
    a("v_mul_u32_u24 v2, 0xc00, v2")
    a("v_lshl_add_u32 v%d, v3, 4, v2" % vW)
    for i in range(1, 4):
        a("v_add_u32 v%d, %d, v%d" % (vW + i, i * 12288, vW))
    a("s_lshl_b32 s%d, s%d, 17" % (sXg, sRb))
    a("s_lshl_b32 s%d, s%d, 15" % (sT0, sLw))
    a("s_add_u32 s%d, s%d, s%d" % (sXg, sXg, sT0))
    a("s_mul_i32 s%d, s%d, %d" % (sWg, sLw, 16 * 3072))
    a("s_lshl_b32 s%d, s%d, 8" % (sT0, sCb))
    a("s_add_u32 s%d, s%d, s%d" % (sWg, sWg, sT0))
    a("s_lshl_b32 s%d, s%d, 12" % (sL4, sLw))
    a("s_mov_b32 s%d, 0" % sSlot)
    a("s_waitcnt lgkmcnt(0)")
    srd(a, sX, sXP, 2048 * 1024)
    srd(a, sW, sWP, 512 * 3072)
    ws_adjust(a, sWSP)
    srd(a, sWS, sWSP, WS_SIZE)
    def issue():
        a("s_add_u32 s%d, s%d, 0x4000" % (sXg2, sXg))
        a("s_add_u32 m0, s%d, s%d" % (sSlot, sL4))
        a("s_nop 0")
        for i in range(4):
            a("buffer_load_dwordx4 v%d, s[%d:%d], s%d offen%s lds" % (vXa if i % 2 == 0 else vXb, sX, sX + 3, sXg if i < 2 else sXg2, " nt" if opt("NT_X") else ""))
            a("s_add_u32 m0, m0, %d" % (1024 if i < 3 else 13312))
            a("s_nop 0")
        for i in range(4):
            a("buffer_load_dwordx4 v%d, s[%d:%d], s%d offen%s lds" % (vW + i, sW, sW + 3, sWg, " nt" if opt("NT_W") else ""))
            if i < 3:
                a("s_add_u32 m0, m0, 1024")
                a("s_nop 0")
        a("s_add_u32 s%d, s%d, 128" % (sXg, sXg))
        a("s_add_u32 s%d, s%d, %d" % (sWg, sWg, 64 * 3072))
        a("s_add_u32 s%d, s%d, 0x8000" % (sSlot, sSlot))
        a("s_and_b32 s%d, s%d, 0x1ffff" % (sSlot, sSlot))
    a("s_mov_b32 s%d, 0" % sC)
    a.label("L_g_lpro")
    issue()
    a("s_add_u32 s%d, s%d, 1" % (sC, sC))
    a("s_cmp_lt_u32 s%d, 2" % sC)
    a("s_cbranch_scc1 L_g_lpro")
    stamp(a, 1)
    DEEP = opt("DEEP", 0)
    if DEEP:
        a("s_waitcnt vmcnt(8)")
        stamp(a, 10)
        a("s_barrier")
        issue()
        issue()
        a("s_mov_b32 s%d, 1" % sC)
        a.label("L_g_lloop")
        a("s_waitcnt vmcnt(16)")
        stamp(a, "s%d+10" % sC)
        a("s_barrier")
        issue()
        a("s_add_u32 s%d, s%d, 1" % (sC, sC))
        a("s_cmp_lt_u32 s%d, 3" % sC)
        a("s_cbranch_scc1 L_g_lloop")
    else:
        a("s_mov_b32 s%d, 0" % sC)
        a.label("L_g_lloop")
        a("s_waitcnt vmcnt(8)")
        stamp(a, "s%d+10" % sC)
        a("s_barrier")
        issue()
        a("s_add_u32 s%d, s%d, 1" % (sC, sC))
        a("s_cmp_lt_u32 s%d, 4" % sC)
        a("s_cbranch_scc1 L_g_lloop")
    if opt("PF_MOE", 1):
        a("s_load_dwordx2 s[58:59], s[0:1], 16")
        a("s_sub_u32 s60, s2, 64")
        a("s_and_b32 s62, s60, 7")
        a("s_lshr_b32 s60, s60, 3")
        a("s_lshl_b32 s60, s60, 2")
        a("s_add_u32 s60, s60, s%d" % sLw)
        a("s_mul_i32 s61, s60, 2731")
        a("s_lshr_b32 s61, s61, 16")
        a("s_mul_i32 s63, s61, 24")
        a("s_sub_u32 s63, s60, s63")
        a("s_lshl_b32 s61, s61, 3")
        a("s_add_u32 s61, s61, s62")
        a("s_waitcnt lgkmcnt(0)")
        a("v_mul_u32_u24 v20, 0xe00, v%d" % vLane)
        a("v_lshlrev_b32 v22, 7, v%d" % vLane)
        a("s_mov_b32 s64, s%d" % sWGP); a("s_mov_b32 s65, s%d" % (sWGP + 1))
        a("s_mov_b32 s66, %d" % (512 * 3584)); a("s_mov_b32 s67, 0x20000")
        a("s_cmp_ge_u32 s63, 8")
        a("s_cselect_b32 s64, s%d, s64" % sWUP); a("s_cselect_b32 s65, s%d, s65" % (sWUP + 1))
        a("s_and_b32 s68, s63, 7")
        a("s_mul_i32 s69, s68, %d" % (64 * 3584))
        a("s_lshl_b32 s70, s61, 7")
        a("s_add_u32 s69, s69, s70")
        a("s_cmp_ge_u32 s63, 16")
        a("s_cbranch_scc0 L_g_pfa")
        a("s_mov_b32 s64, s%d" % sWDP); a("s_mov_b32 s65, s%d" % (sWDP + 1))
        a("s_lshl_b32 s69, s61, 16")
        a("s_lshl_b32 s70, s68, 13")
        a("s_add_u32 s69, s69, s70")
        a("v_mov_b32 v20, v22")
        a.label("L_g_pfa")
        a("s_cmp_ge_u32 s61, 28")
        a("s_cbranch_scc0 L_g_pfb")
        a("s_mov_b32 s64, s58"); a("s_mov_b32 s65, s59"); a("s_mov_b32 s66, %d" % (512 * 1024))
        a("s_sub_u32 s69, s62, 4")
        a("s_lshl_b32 s69, s69, 4")
        a("s_and_b32 s70, s63, 15")
        a("s_add_u32 s69, s69, s70")
        a("s_lshl_b32 s69, s69, 13")
        a("v_mov_b32 v20, v22")
        a.label("L_g_pfb")
        a("s_mov_b32 s61, s69")
    PFN = 1 if opt("PF_MOE", 1) else 0
    srd(a, sDb, sDBG, 256)
    a("v_mov_b32 v4, 0")
    a("s_lshl_b32 s%d, s%d, 11" % (sT0, sRb))
    a("s_add_u32 s51, s%d, 0x%x" % (sT0, WS_REC))
    a("v_and_b32 v7, 31, v%d" % vLane)
    a("s_lshl_b32 s%d, s%d, 9" % (sT0, sLw))
    a("v_lshl_add_u32 v6, v7, 4, s%d" % sT0)
    a("s_lshl_b32 s%d, s%d, 7" % (sT0, sLw))
    a("s_add_u32 s%d, s%d, %d" % (sT0, sT0, G_ST))
    a("v_lshl_add_u32 v7, v7, 2, s%d" % sT0)
    def check_records():
        a("v_readfirstlane_b32 s52, v5")
        a("s_nop 3")
        a("s_cmp_lg_u32 s52, 0")
        a("s_cbranch_scc1 L_g_nonok")
        get_nonce(a, "g", sDb, 5, 4, 52)
        a.label("L_g_nonok")
        a("s_mov_b32 s98, 0")
        a.label("L_g_rec")
        a("v_cmp_ne_u32 vcc, s52, v19")
        a("s_cmp_gt_u32 s98, 0x40000")
        a("s_cbranch_scc1 L_g_recok")
        a("s_cmp_eq_u64 vcc, 0")
        a("s_cbranch_scc1 L_g_recok")
        a("s_sleep 4")
        a("buffer_load_dwordx4 v[16:19], v6, s[%d:%d], s51 offen sc1" % (sWS, sWS + 3))
        a("s_add_u32 s98, s98, 1")
        a("s_waitcnt vmcnt(0)")
        a("s_branch L_g_rec")
        a.label("L_g_recok")
        a("ds_write_b32 v7, v16")
        a("ds_write_b32 v7, v17 offset:512")
    if DEEP:
        a("s_waitcnt vmcnt(16)")
        a("s_barrier")
        a("buffer_load_dword v5, v4, s[%d:%d], 0 offen sc1" % (sDb, sDb + 3))
        issue()
        a("s_waitcnt vmcnt(17)")
        a("s_barrier")
        issue()
        a("s_waitcnt vmcnt(17)")
        a("s_barrier")
        a("buffer_load_dwordx4 v[16:19], v6, s[%d:%d], s51 offen sc1" % (sWS, sWS + 3))
        if PFN:
            a("buffer_load_dword v21, v20, s[64:67], s61 offen")
        a("s_waitcnt vmcnt(%d)" % (9 + PFN))
        a("s_barrier")
        a("s_waitcnt vmcnt(%d)" % PFN)
        check_records()
        a("s_waitcnt lgkmcnt(0)")
        a("s_barrier")
    else:
        a("s_waitcnt vmcnt(8)")
        a("s_barrier")
        a("buffer_load_dword v5, v4, s[%d:%d], 0 offen sc1" % (sDb, sDb + 3))
        issue()
        a("s_waitcnt vmcnt(8)")
        a("s_barrier")
        a("buffer_load_dwordx4 v[16:19], v6, s[%d:%d], s51 offen sc1" % (sWS, sWS + 3))
        issue()
        if PFN:
            a("buffer_load_dword v21, v20, s[64:67], s61 offen")
        a("s_waitcnt vmcnt(%d)" % (8 + PFN))
        check_records()
        a("s_barrier")
        a("s_waitcnt vmcnt(%d) lgkmcnt(0)" % PFN)
        a("s_barrier")
    stamp_flush(a, 0, sWS, sWave)
    a("s_endpgm")
    a.label("L_g_cons")
    a("s_waitcnt lgkmcnt(0)")
    ws_adjust(a, sWSP)
    srd(a, sWS, sWSP, WS_SIZE)
    vXr = [4, 5, 6, 7]
    vWr = [8, 9]
    acc = [[64, 80], [96, 112]]
    XB = [[128, 132], [136, 140]]
    WB = [[144, 148], [152, 156]]
    NM, CSF = [160, 164], [168, 172]
    SEL, CSA = 176, [180, 184]
    sMt, sNt, sHi = 46, 47, 48
    a("s_and_b32 s%d, s%d, 1" % (sMt, sWave))
    a("s_lshr_b32 s%d, s%d, 1" % (sNt, sWave))
    a("v_and_b32 v2, 31, v%d" % vLane)
    a("v_lshrrev_b32 v3, 5, v%d" % vLane)
    a("v_cmp_eq_u32 s[%d:%d], 1, v3" % (sHi, sHi + 1))
    a("v_lshrrev_b32 v10, 1, v2")
    a("v_and_b32 v10, 7, v10")
    a("s_lshl_b32 s%d, s%d, 13" % (sT0, sMt))
    a("v_lshl_add_u32 v11, v2, 7, s%d" % sT0)
    for p in range(4):
        a("v_add_u32 v12, %d, v3" % (2 * p))
        a("v_xor_b32 v12, v12, v10")
        a("v_lshl_add_u32 v%d, v12, 4, v11" % vXr[p])
    a("v_bfe_u32 v12, v%d, 2, 2" % vLane)
    a("v_lshl_add_u32 v13, v3, 3, v12")
    a("v_lshlrev_b32 v13, 8, v13")
    a("v_bfe_u32 v14, v%d, 4, 1" % vLane)
    a("v_lshl_add_u32 v13, v14, 5, v13")
    a("v_and_b32 v14, 3, v%d" % vLane)
    a("v_lshl_add_u32 v13, v14, 3, v13")
    a("v_add_u32 v13, 0x4000, v13")
    a("s_lshl_b32 s%d, s%d, 1" % (sT0, sNt))
    a("v_xor_b32 v14, s%d, v12" % sT0)
    a("v_lshl_add_u32 v%d, v14, 6, v13" % vWr[0])
    a("v_xor_b32 v%d, 64, v%d" % (vWr[1], vWr[0]))
    for r in range(64, 128):
        a("v_mov_b32 v%d, 0" % r)
    for r in list(range(136, 144)) + list(range(152, 176)) + list(range(180, 188)):
        a("v_mov_b32 v%d, 0" % r)
    a("v_bfe_u32 v12, v%d, 4, 1" % vLane)
    a("v_and_b32 v13, 1, v%d" % vLane)
    a("v_cmp_eq_u32 vcc, v12, v13")
    a("v_cmp_eq_u32 s[56:57], 1, v12")
    a("v_mov_b32 v14, 0x3f803f80")
    a("v_cndmask_b32 v%d, 0, v14, vcc" % SEL)
    for i in range(1, 4):
        a("v_mov_b32 v%d, v%d" % (SEL + i, SEL))
    def csum(buf, n):
        a("v_mfma_f32_16x16x32_bf16 %s, %s, %s, %s" % (v(CSA[n], 4), v(SEL, 4), v(WB[buf][n], 4), v(CSA[n], 4)))
    def xread(p, buf, m):
        a("ds_read_b128 %s, v%d offset:%d" % (v(XB[buf][m], 4), vXr[p], m * 4096))
    def wread(p, buf, n, t):
        a("ds_read_b64_tr_b16 %s, v%d offset:%d" % (v(WB[buf][n] + 2 * t, 2), vWr[n], p * 4096 + t * 1024))
    def mm(kind, buf, m, n):
        if kind == 0:
            a("v_mfma_f32_32x32x16_bf16 %s, %s, %s, %s" % (v(acc[m][n], 16), v(WB[buf][n], 4), v(XB[buf][m], 4), v(acc[m][n], 16)))
        else:
            a("v_mfma_f32_32x32x16_bf16 %s, %s, %s, %s" % (v(acc[m][n], 16), v(XB[buf][m], 4), v(WB[buf][n], 4), v(acc[m][n], 16)))
    def step(kind, cur, p, filler=None):
        nxt = cur ^ 1
        a("s_waitcnt lgkmcnt(3)")
        mm(kind, cur, 0, 0)
        xread(p, nxt, 0); wread(p, nxt, 0, 0); wread(p, nxt, 0, 1)
        csum(cur, 0)
        a("s_waitcnt lgkmcnt(4)")
        mm(kind, cur, 0, 1)
        wread(p, nxt, 1, 0); wread(p, nxt, 1, 1); xread(p, nxt, 1)
        csum(cur, 1)
        a("s_waitcnt lgkmcnt(6)")
        mm(kind, cur, 1, 0)
        if filler: filler(0)
        mm(kind, cur, 1, 1)
        if filler: filler(1)
    def adv(h):
        regs = (vXr + vWr)[3 * h:3 * h + 3]
        for r in regs:
            a("v_add_u32 v%d, 0x8000, v%d" % (r, r))
        for r in regs:
            a("v_and_b32 v%d, 0x1ffff, v%d" % (r, r))
    def main_loop(kind, tag):
        a("s_mov_b32 s%d, 0" % sC)
        a.label("L_g_loop%s" % tag)
        a("s_waitcnt lgkmcnt(0)")
        a("s_barrier")
        stamp(a, "s%d+10" % sC)
        step(kind, 1, 0)
        step(kind, 0, 1)
        step(kind, 1, 2)
        step(kind, 0, 3, adv)
        a("s_add_u32 s%d, s%d, 1" % (sC, sC))
        a("s_cmp_lt_u32 s%d, 8" % sC)
        a("s_cbranch_scc1 L_g_loop%s" % tag)
        stamp(a, 20)
    vM, vRs, vCs = [10, 11], [12, 14], [16, 17]
    def stat_reads(kind):
        a("v_lshlrev_b32 v18, 2, v2")
        a("s_lshl_b32 s%d, s%d, 8" % (sT0, sMt))
        a("s_add_u32 s%d, s%d, %d" % (sT0, sT0, G_ST))
        a("v_add_u32 v19, s%d, v18" % sT0)
        for m in range(2):
            a("ds_read_b32 v%d, v19 offset:%d" % (vM[m], m * 128))
        if kind == 0:
            for m in range(2):
                a("ds_read_b32 v%d, v19 offset:%d" % (vRs[m], 512 + m * 128))
        else:
            a("v_lshl_add_u32 v19, v3, 4, s%d" % sT0)
            for m in range(2):
                for j in range(4):
                    a("ds_read_b128 %s, v19 offset:%d" % (v(24 + 16 * m + 4 * j, 4), 512 + m * 128 + j * 32))
    def last_step(kind):
        a("s_waitcnt lgkmcnt(%d)" % (4 if kind == 0 else 10))
        csum(1, 0)
        csum(1, 1)
        for m in range(2):
            for n in range(2):
                mm(kind, 1, m, n)
    def correction(kind, nwait):
        a("s_waitcnt lgkmcnt(%d)" % nwait)
        for m in range(2):
            a("v_sub_f32 v20, 0, v%d" % vM[m])
            a("v_cvt_pk_bf16_f32 v%d, v20, 0" % NM[m])
        for n in range(2):
            a("v_cndmask_b32 v%d, v%d, v%d, s[56:57]" % (vCs[n], CSA[n], CSA[n] + 1))
        for n in range(2):
            a("v_cvt_pk_bf16_f32 v20, v%d, v%d" % (vCs[n], vCs[n]))
            a("v_and_b32 v20, 0xffff0000, v20")
            a("v_sub_f32 v20, v%d, v20" % vCs[n])
            a("v_cndmask_b32 v20, v%d, v20, s[%d:%d]" % (vCs[n], sHi, sHi + 1))
            a("v_cvt_pk_bf16_f32 v%d, v20, 0" % CSF[n])
        a("s_nop 1")
        for m in range(2):
            for n in range(2):
                if kind == 0:
                    a("v_mfma_f32_32x32x16_bf16 %s, %s, %s, %s" % (v(acc[m][n], 16), v(CSF[n], 4), v(NM[m], 4), v(acc[m][n], 16)))
                else:
                    a("v_mfma_f32_32x32x16_bf16 %s, %s, %s, %s" % (v(acc[m][n], 16), v(NM[m], 4), v(CSF[n], 4), v(acc[m][n], 16)))
    def store_bases():
        a("s_and_b32 s%d, s%d, 3" % (sT0, sCb))
        a("s_lshl_b32 s%d, s%d, 3" % (sT0, sT0))
        a("s_lshl_b32 s%d, s%d, 2" % (sT1, sNt))
        a("s_add_u32 s%d, s%d, s%d" % (sT0, sT0, sT1))
        a("s_lshl_b32 s%d, s%d, 16" % (sT0, sT0))
        a("s_lshl_b32 s%d, s%d, 2" % (sT1, sRb))
        a("s_lshl_b32 s50, s%d, 1" % sMt)
        a("s_add_u32 s%d, s%d, s50" % (sT1, sT1))
        a("s_lshl_b32 s%d, s%d, 10" % (sT1, sT1))
        a("s_add_u32 s50, s%d, s%d" % (sT0, sT1))
        a("s_lshr_b32 s%d, s%d, 2" % (sT0, sCb))
        a("s_lshl_b32 s%d, s%d, 21" % (sT0, sT0))
        a("s_add_u32 s50, s50, s%d" % sT0)
    a("s_cmp_ge_u32 s%d, 8" % sCb)
    a("s_cbranch_scc1 L_g_v")
    main_loop(0, "q")
    stat_reads(0)
    last_step(0)
    store_bases()
    correction(0, 2)
    a("s_cmp_lt_u32 s%d, 4" % sCb)
    a("s_cselect_b32 s51, %s, 1.0" % fhex(QSCALE))
    a("v_lshlrev_b32 v21, 4, v%d" % vLane)
    a("s_waitcnt lgkmcnt(0)")
    for m in range(2):
        a("v_mul_f32 v%d, s51, v%d" % (vRs[m], vRs[m]))
    a("s_nop 4")
    for m in range(2):
        for n in range(2):
            A = acc[m][n]
            P = XB[0][0] + 8 * ((2 * m + n) % 2)
            for i in range(8):
                a("v_pk_mul_f32 %s, %s, %s op_sel_hi:[1,0]" % (v(A + 2 * i, 2), v(A + 2 * i, 2), v(vRs[m], 2)))
            for i in range(8):
                a("v_cvt_pk_bf16_f32 v%d, v%d, v%d" % (A + i, A + 2 * i, A + 2 * i + 1))
            a("s_add_u32 s52, s50, %d" % (m * 1024 + n * 0x20000))
            a("s_add_u32 s53, s52, 0x10000")
            a("buffer_store_dwordx4 %s, v21, s[%d:%d], s52 offen%s" % (v(A, 4), sWS, sWS + 3, QST))
            a("buffer_store_dwordx4 %s, v21, s[%d:%d], s53 offen%s" % (v(A + 4, 4), sWS, sWS + 3, QST))
    a("s_branch L_g_fin")
    a.label("L_g_v")
    main_loop(1, "v")
    stat_reads(1)
    last_step(1)
    store_bases()
    correction(1, 8)
    a("v_bfe_u32 v21, v%d, 4, 1" % vLane)
    a("v_lshlrev_b32 v21, 16, v21")
    a("v_lshl_add_u32 v21, v3, 8, v21")
    a("v_and_b32 v22, 15, v%d" % vLane)
    a("v_lshl_add_u32 v21, v22, 4, v21")
    a("s_waitcnt lgkmcnt(0)")
    a("s_nop 4")
    for m in range(2):
        for n in range(2):
            A = acc[m][n]
            for i in range(8):
                a("v_pk_mul_f32 %s, %s, %s" % (v(A + 2 * i, 2), v(A + 2 * i, 2), v(24 + 16 * m + 2 * i, 2)))
            for i in range(8):
                a("v_cvt_pk_bf16_f32 v%d, v%d, v%d" % (A + i, A + 2 * i, A + 2 * i + 1))
            a("s_add_u32 s52, s50, %d" % (m * 1024 + n * 0x20000))
            a("buffer_store_dwordx4 %s, v21, s[%d:%d], s52 offen%s" % (v(A, 4), sWS, sWS + 3, QST))
            a("buffer_store_dwordx4 %s, v21, s[%d:%d], s52 offen offset:512%s" % (v(A + 4, 4), sWS, sWS + 3, QST))
    a.label("L_g_fin")
    stamp(a, 21)
    stamp_flush(a, 0, sWS, sWave)
    a("s_endpgm")

def gen_k1():
    a = Asm()
    N = "k1_kernel"
    a(kernel_head(N))
    a("s_cmp_ge_u32 s2, %d" % K1_GRID)
    a("s_cbranch_scc1 L_k1_end")
    stamp_begin(a, 255)
    a("s_load_dwordx4 s[4:7], s[0:1], 0")
    a("s_load_dwordx8 s[12:19], s[0:1], 32")
    a("s_load_dwordx4 s[20:23], s[0:1], 72")
    a("v_lshrrev_b32 v2, 6, v0")
    a("v_and_b32 v1, 63, v0")
    a("v_readfirstlane_b32 s%d, v2" % sWave)
    if opt("PF_CODE", 1):
        a("s_cmp_ge_u32 s2, 8")
        a("s_cbranch_scc1 L_k1_nocode")
        a("s_cmp_lt_u32 s%d, 4" % sWave)
        a("s_cbranch_scc1 L_k1_nocode")
        a("s_getpc_b64 s[40:41]")
        a.label("L_k1_anchor")
        a("s_mov_b32 s42, L_code_end-L_k1_anchor")
        a("s_mov_b32 s43, 0x20000")
        a("s_sub_u32 s44, s%d, 4" % sWave)
        a("s_lshl_b32 s44, s44, 13")
        a("v_lshlrev_b32 v3, 7, v1")
        a("v_add_u32 v3, s44, v3")
        a("buffer_load_dword v250, v3, s[40:43], 0 offen") if PROF else a("buffer_load_dword v191, v3, s[40:43], 0 offen")
        a.label("L_k1_nocode")
    a("s_cmp_lt_u32 s2, 64")
    a("s_cbranch_scc1 L_k1_aux")
    gen_gemm(a)
    a.label("L_k1_aux")
    a("s_waitcnt lgkmcnt(0)")
    ws_adjust(a, sWSP)
    a("s_or_b32 s24, s2, s%d" % sWave)
    a("s_cmp_lg_u32 s24, 0")
    a("s_cbranch_scc1 L_k1_non")
    a("s_memrealtime s[60:61]")
    srd(a, 24, sDBG, 256)
    a("v_mov_b32 v3, 0")
    a("s_waitcnt lgkmcnt(0)")
    a("s_or_b32 s60, s60, 1")
    a("v_mov_b32 v4, s60")
    a("s_mov_b32 exec_lo, 1")
    a("s_mov_b32 exec_hi, 0")
    a("buffer_store_dword v4, v3, s[24:27], 0 offen sc1")
    a("s_mov_b64 exec, -1")
    a.label("L_k1_non")
    a("s_cmp_gt_u32 s2, 32")
    a("s_cbranch_scc1 %s" % ("L_k1_touch" if opt("PF_IN", 1) else "L_k1_end"))
    a("s_cmp_eq_u32 s2, 32")
    a("s_cbranch_scc1 L_k1_topk")
    gen_e(a)
    a.label("L_k1_topk")
    gen_topk(a)
    if opt("PF_IN", 1):
        a.label("L_k1_touch")
        gen_touch(a)
    a.label("L_k1_end")
    a("s_endpgm")
    return a.text(), (256 if PROF else 192)
```
